```python
import torch

def _softmax(x, axis=-1):
    return torch.softmax(x, dim=axis)
def _gelu(x):
    return torch.nn.functional.gelu(x, approximate="tanh")
def _silu(x):
    return torch.nn.functional.silu(x)
def _sigmoid(x):
    return torch.sigmoid(x)
def _layernorm(x, axis=-1, eps=1e-5):
    m = x.mean(dim=axis, keepdim=True)
    v = x.var(dim=axis, keepdim=True, unbiased=False)
    return (x - m) / torch.sqrt(v + eps)
def _scatter_add(tgt, idx, src, axis=0):
    return tgt.clone().index_add_(axis, idx, src)
def _segment_sum(src, seg, n):
    out = torch.zeros((n,) + src.shape[1:], dtype=src.dtype)
    return out.index_add_(0, seg, src)
def _pad(x, pw):
    flat = tuple(v for pair in reversed(pw) for v in pair)
    return torch.nn.functional.pad(x, flat)

kernel_name = 'interleave_layers__grouped_kv_mqa__sliding_local_dilated__prompt'

def setup_inputs():

    _w = (lambda a: (lambda t: t.to(torch.bfloat16) if t.is_floating_point() else t)(torch.as_tensor(a)))
    def _A_setup():
        B, S, D, H = 1, 2048, 512, 32
        Dh = D // H
        return {
            "x": _w((lambda *s: torch.randn(*s, dtype=torch.bfloat16) * 0.05)(B, S, D)),
            "wq": _w((lambda *s: torch.randn(*s, dtype=torch.bfloat16) * 0.05)(D, H * Dh)),
            "wk": _w((lambda *s: torch.randn(*s, dtype=torch.bfloat16) * 0.05)(D, Dh)),
            "wv": _w((lambda *s: torch.randn(*s, dtype=torch.bfloat16) * 0.05)(D, Dh)),
            "wo": _w((lambda *s: torch.randn(*s, dtype=torch.bfloat16) * 0.05)(H * Dh, D)),
        }
    _A_in = _A_setup()

    def _B_setup():
        B, S, D = 1, 2048, 512
        return {
            "x": _w((lambda *s: torch.randn(*s, dtype=torch.bfloat16) * 0.05)(B, S, D)),
            "wqkv": _w((lambda *s: torch.randn(*s, dtype=torch.bfloat16) * 0.05)(D, 3 * D)),
            "wo": _w((lambda *s: torch.randn(*s, dtype=torch.bfloat16) * 0.05)(D, D)),
        }
    _B_in = _B_setup()

    return {
        "A_x": _A_in["x"],
        "A_wq": _A_in["wq"],
        "A_wk": _A_in["wk"],
        "A_wv": _A_in["wv"],
        "A_wo": _A_in["wo"],
        "B_x": _B_in["x"],
        "B_wqkv": _B_in["wqkv"],
        "B_wo": _B_in["wo"],
    }

def reference(A_x, A_wq, A_wk, A_wv, A_wo, B_x, B_wqkv, B_wo):
    def _A_ref(x, wq, wk, wv, wo):
        B, S, D = x.shape
        H = 32
        Dh = D // H
        q = (lambda x, *d: x.permute(*d))((x @ wq).reshape(B, S, H, Dh), 0, 2, 1, 3)
        k = x @ wk
        v = x @ wv
        scores = torch.einsum("bhqd,bkd->bhqk", q, k) * (Dh ** -0.5)
        p = _softmax(scores, axis=-1)
        o = torch.einsum("bhqk,bkd->bhqd", p, v)
        return (lambda x, *d: x.permute(*d))(o, 0, 2, 1, 3).reshape(B, S, H * Dh) @ wo

    def _B_ref(x, wqkv, wo):
        B, S, D = x.shape
        H = 32; Dh = D // H
        W, dil = 8, 2
        qkv = (lambda x, *d: x.permute(*d))((x @ wqkv).reshape(B, S, 3, H, Dh), 2, 0, 3, 1, 4)
        q, k, v = qkv[0], qkv[1], qkv[2]
        scale = Dh ** -0.5
        pos = torch.arange(S)
        off = torch.arange(W) * dil
        idx = pos[:, None] - off[None, :]
        mask = idx >= 0
        idx_c = torch.where(mask, idx, 0).reshape(-1)
        kg = k[:, :, idx_c, :].reshape(B, H, S, W, Dh)
        vg = v[:, :, idx_c, :].reshape(B, H, S, W, Dh)
        logits = torch.einsum("bhsd,bhswd->bhsw", q, kg) * scale
        logits = torch.where(mask[None, None, :, :], logits, -1e9)
        attn = _softmax(logits, axis=-1)
        o = torch.einsum("bhsw,bhswd->bhsd", attn, vg)
        return (lambda x, *d: x.permute(*d))(o, 0, 2, 1, 3).reshape(B, S, D) @ wo

    x = A_x
    x = x + _A_ref(_layernorm(x, axis=-1), A_wq, A_wk, A_wv, A_wo)
    x = x + _B_ref(_layernorm(x, axis=-1), B_wqkv, B_wo)
    x = x + _A_ref(_layernorm(x, axis=-1), A_wq, A_wk, A_wv, A_wo)
    x = x + _B_ref(_layernorm(x, axis=-1), B_wqkv, B_wo)
    return x
```

```python
import re

TRANS = ("v_exp_f32", "v_log_f32", "v_rcp_f32", "v_rsq_f32", "v_sqrt_f32", "v_sin_f32", "v_cos_f32",
         "v_exp_f16", "v_log_f16", "v_rcp_f16", "v_rsq_f16", "v_sqrt_f16", "v_rcp_iflag_f32")
REG_RE = re.compile(r"^(-|abs\()?\|?(v|a|s)(?:\[(\d+):(\d+)\]|(\d+))\|?\)?$")

def parse_reg(op):
    op = op.strip()
    if op in ("vcc", "vcc_lo", "vcc_hi"): return [("s", 106), ("s", 107)]
    if op in ("exec", "exec_lo", "exec_hi"): return [("x", 0)]
    if op == "m0": return [("m", 0)]
    m = REG_RE.match(op)
    if not m: return []
    k = m.group(2)
    if m.group(3) is not None:
        return [(k, i) for i in range(int(m.group(3)), int(m.group(4)) + 1)]
    return [(k, int(m.group(5)))]

class Ins:
    __slots__ = ("text", "op", "kind", "wr", "rd", "passes", "srcC", "dst_exact", "is_trans", "storedata", "nop", "rdAB", "lanesel")
    def __init__(self, text):
        self.text = text
        t = text.split(";")[0].strip()
        self.op = t.split()[0] if t else ""
        rest = t[len(self.op):].strip()
        ops = [o.strip() for o in rest.split(",")] if rest else []
        if ops:
            last = ops[-1].split()
            ops[-1] = last[0] if last else ""
            mods = last[1:]
        else:
            mods = []
        op = self.op
        self.wr, self.rd = set(), set()
        self.passes = 0; self.srcC = set(); self.dst_exact = None; self.is_trans = False
        self.storedata = set(); self.nop = 0; self.rdAB = set(); self.lanesel = set()
        R = lambda o: set(parse_reg(o))
        if op.startswith("v_mfma") or op.startswith("v_smfmac"):
            self.kind = "mfma"
            self.passes = 8 if "32x32" in op else 4
            self.wr = R(ops[0]); self.rdAB = R(ops[1]) | R(ops[2]); self.srcC = R(ops[3])
            self.rd = self.rdAB | self.srcC
            self.dst_exact = (ops[0], op)
        elif op.startswith("v_"):
            self.kind = "valu"
            base = op.replace("_e32", "").replace("_e64", "").replace("_dpp", "").replace("_sdwa", "")
            self.is_trans = base in TRANS
            if base.startswith("v_cmp"):
                self.wr = R(ops[0])
                for o in ops[1:]: self.rd |= R(o)
                if base.startswith("v_cmpx"): self.wr |= {("x", 0)}
            elif base.startswith("v_permlane") and "swap" in base:
                self.kind = "permlane"
                self.wr = R(ops[0]) | R(ops[1]); self.rd = set(self.wr)
            elif base in ("v_readfirstlane_b32", "v_readlane_b32"):
                self.kind = "readlane"
                self.wr = R(ops[0]); self.rd = R(ops[1])
                if len(ops) > 2: self.lanesel = R(ops[2])
            elif base in ("v_add_co_u32", "v_sub_co_u32", "v_addc_co_u32", "v_subb_co_u32", "v_subrev_co_u32"):
                self.wr = R(ops[0]) | R(ops[1])
                for o in ops[2:]: self.rd |= R(o)
            else:
                self.wr = R(ops[0])
                for o in ops[1:]: self.rd |= R(o)
                if base.startswith(("v_fmac", "v_dot2c", "v_pk_fmac")) or "UNUSED_PRESERVE" in text or base.startswith("v_writelane") or base.startswith("v_fma_mix"):
                    self.rd |= R(ops[0])
                if base == "v_cndmask_b32" and len(ops) == 3: self.rd |= R("vcc")
            if "dpp" in op or "row_" in text or "quad_perm" in text: self.kind = "dpp"
        elif op.startswith("ds_"):
            self.kind = "mem"
            if op.startswith(("ds_read", "ds_bpermute", "ds_permute", "ds_swizzle")):
                self.wr = R(ops[0])
                for o in ops[1:]: self.rd |= R(o)
            else:
                for o in ops: self.rd |= R(o)
        elif op.startswith(("buffer_", "global_", "flat_", "scratch_")):
            self.kind = "mem"
            islds = ("lds" in mods) or ("_lds_" in op)
            if op in ("buffer_wbl2", "buffer_inv"):
                pass
            elif "load" in op and not islds:
                self.wr = R(ops[0])
                for o in ops[1:]: self.rd |= R(o)
            elif "load" in op and islds:
                for o in ops: self.rd |= R(o)
                self.rd |= {("m", 0)}
                self.kind = "memlds"
            elif "atomic" in op:
                for o in ops: self.rd |= R(o)
                if "sc0" in mods:
                    self.wr = R(ops[0])
            else:
                for o in ops: self.rd |= R(o)
                if "x3" in op or "x4" in op:
                    self.storedata = R(ops[0]) if op.startswith("buffer_") else R(ops[1])
        elif op == "s_nop":
            self.kind = "nop"; self.nop = int(ops[0], 0) + 1
        elif op.startswith("s_"):
            self.kind = "salu"
            if op.startswith(("s_cmp", "s_cbranch", "s_branch", "s_waitcnt", "s_barrier", "s_endpgm", "s_setprio", "s_sleep", "s_bitcmp")):
                for o in ops: self.rd |= R(o)
            else:
                if ops: self.wr = R(ops[0])
                for o in ops[1:]: self.rd |= R(o)
                if "saveexec" in op: self.wr |= {("x", 0)}
        else:
            self.kind = "other"

def vregs(s): return {r for r in s if r[0] in "va"}
def sregs(s): return {r for r in s if r[0] == "s"}

def need(p, c):
    n = 0
    pv = p.kind in ("valu", "permlane", "dpp", "readlane")
    cv = c.kind in ("valu", "permlane", "dpp", "readlane")
    if pv:
        w = vregs(p.wr)
        if w:
            if c.kind == "mfma" and (w & c.rd): n = max(n, 2)
            if c.kind == "permlane" and (w & c.rd): n = max(n, 2)
            if c.kind == "dpp" and (w & c.rd): n = max(n, 2)
            if c.kind == "readlane" and (w & c.rd): n = max(n, 1)
            if p.is_trans and cv and not c.is_trans and (w & c.rd): n = max(n, 1)
            if p.is_trans and cv and (w & c.rd): n = max(n, 1)
            if ("sdwa" in p.op or "op_sel" in p.text) and cv and (w & (c.rd | c.wr)): n = max(n, 1)
        sw = sregs(p.wr)
        if sw:
            if cv and (sw & c.rd): n = max(n, 2)
            if c.kind == "readlane" and (sw & c.lanesel): n = max(n, 4)
            if c.kind in ("mem", "memlds") and (sw & c.rd): n = max(n, 5)
            if c.kind == "salu" and (sw & c.rd): n = max(n, 1)
        if ("x", 0) in p.wr:
            if c.kind == "mfma": n = max(n, 4)
            if c.kind in ("dpp",): n = max(n, 5)
            if c.kind in ("permlane", "readlane"): n = max(n, 4)
    if p.kind == "mfma":
        d = p.wr
        big = p.passes == 8
        if c.kind == "mfma":
            if d & c.srcC:
                same = (c.srcC == d and c.passes == p.passes)
                n = max(n, 0 if same else (10 if big else 6))
            if d & c.rdAB: n = max(n, 12 if big else 8)
            if (d & c.wr) and not (d & c.srcC):
                n = max(n, 10 if big else 6) if c.wr != d else max(n, 0)
        elif cv or c.kind in ("mem", "memlds"):
            if d & (c.rd | vregs(c.wr)): n = max(n, 12 if big else 8)
        if cv and (p.srcC & vregs(c.wr)): n = max(n, 7 if big else 3)
    if p.storedata:
        if p.storedata & vregs(c.wr): n = max(n, 2 if cv else 1)
    if p.kind == "salu" and ("m", 0) in p.wr and c.kind == "memlds": n = max(n, 1)
    return n

class Asm:
    def __init__(self):
        self.lines = []
    def __call__(self, s):
        for l in s.strip("\n").split("\n"):
            l = l.strip()
            if l: self.lines.append(l)
    def label(self, l): self.lines.append(l + ":")
    def raw(self, s): self.lines.append(s)

WINDOW = 24
def fix_hazards(lines, verbose=False):
    out = []
    labelpos = {}
    inserted = 0
    def dist_scan(hist, c):
        d = 0; extra = 0
        for p in reversed(hist):
            r = need(p, c)
            if r > d: extra = max(extra, r - d)
            d += p.nop if p.kind == "nop" else 1
            if d >= WINDOW: break
        return extra
    hist = []
    alts = []
    fwd = {}
    for l in lines:
        if l.endswith(":") and " " not in l:
            labelpos[l[:-1]] = len(out)
            for h in fwd.pop(l[:-1], []):
                alts.append([h, WINDOW])
            out.append((l, None)); continue
        if l.startswith(".") or l.startswith(";"):
            out.append((l, None)); continue
        c = Ins(l)
        e = dist_scan(hist, c)
        for a in alts:
            e = max(e, dist_scan(a[0], c))
        if e > 0:
            nop = Ins(f"s_nop {e-1}")
            out.append((nop.text, nop)); hist.append(nop); inserted += 1
            for a in alts: a[0].append(nop)
            if verbose: print("hazard: inserted", e, "before", l)
        out.append((l, c)); hist.append(c)
        for a in alts:
            a[0].append(c); a[1] -= 1
        alts = [a for a in alts if a[1] > 0]
        if c.op.startswith(("s_cbranch", "s_branch")):
            tgt = l.split()[-1]
            if tgt in labelpos:
                head = [x[1] for x in out[labelpos[tgt]:] if x[1] is not None][:WINDOW]
                h2 = list(hist)
                worst = 0
                for hc in head:
                    ex = dist_scan(h2, hc)
                    if ex > 0: worst = max(worst, ex)
                    h2.append(hc)
                if worst > 0:
                    nop = Ins(f"s_nop {worst-1}")
                    out.insert(len(out) - 1, (nop.text, nop)); hist.insert(len(hist) - 1, nop); inserted += 1
                    if verbose: print("hazard(backedge): inserted", worst, "before", l)
            else:
                fwd.setdefault(tgt, []).append(list(hist[-WINDOW:]))
        if len(hist) > 4 * WINDOW: hist = hist[-2 * WINDOW:]
    return [x[0] for x in out], inserted
```

```python
import sys, os
sys.path.insert(0, os.path.dirname(os.path.abspath(__file__)))
from asmlib import Asm, fix_hazards

NAME = "interleave_layers__grouped_kv_mqa__sliding_local_dilated__prompt"

T_WQ, T_WOA, T_WOB, T_WQKV, T_WK, T_WV = 0, 32, 64, 96, 192, 193
NFRAG = 194 * 16
KF = [0x310000, 0x330000]
VF = [0x320000, 0x340000]
QF = [0x400000, 0x600000]
OA = [0x800000, 0x1000000]
X1 = 0xA00000
OB = [0xC00000, 0x1400000]
X2 = 0xE00000
X3 = 0x1200000
WS_SIZE = 0x2000000

CQ = 0.25 * 1.4426950408889634
import struct
def f32(x): return "0x%08x" % struct.unpack("<I", struct.pack("<f", x))[0]

class St:
    def __init__(self): self.it = []
    def i(self, text, lds=None, vm=None):
        for l in text.strip("\n").split("\n"):
            l = l.strip()
            if l: self.it.append(("i", l, lds, vm))
        return self
    def __call__(self, text): return self.i(text)
    def wl(self, tag): self.it.append(("wl", tag, None, None))
    def wv(self, tag): self.it.append(("wv", tag, None, None))
    def label(self, l): self.it.append(("i", l + ":", None, None))
    def ext(self, o): self.it += o.it

def resolve(st, vm_pre=0):
    out = []
    nl = 0; nv = 0; lt = {}; vt = {}; dl = 0; dv = 0
    for k, a, lds, vm in st.it:
        if k == "i":
            out.append(a)
            op = a.split()[0]
            isl = op.startswith("ds_")
            isv = op.startswith(("buffer_", "global_")) and op not in ("buffer_inv", "buffer_wbl2")
            if isl:
                if lds is not None: lt[lds] = nl
                nl += 1
            else:
                assert lds is None, a
            if isv:
                if vm is not None: vt[vm] = nv
                nv += 1
            else:
                assert vm is None, a
            if op == "s_waitcnt":
                if "lgkmcnt(0)" in a: dl = nl
                if "vmcnt(0)" in a: dv = nv
        elif k == "wl":
            idx = lt[a]
            if idx < dl: continue
            n = nl - idx - 1
            out.append(f"s_waitcnt lgkmcnt({min(n, 15)})")
            dl = idx + 1 if n <= 15 else max(dl, nl - 15)
            assert dl > idx
        elif k == "wv":
            idx = vt[a]
            if idx < dv: continue
            n = nv - idx - 1
            out.append(f"s_waitcnt vmcnt({min(n, 63)})")
            dv = idx + 1 if n <= 63 else max(dv, nv - 63)
            assert dv > idx
    return out

def weave(main_steps, side, per=2, start=0):
    out = St()
    q = list(side.it)
    skip = 0
    for si, stp in enumerate(main_steps):
        for it in stp.it:
            out.it.append(it)
            if si >= start and it[0] == "i" and it[1].startswith("v_mfma"):
                if skip > 0:
                    skip -= 1; continue
                n = 0
                while q and n < per:
                    x = q.pop(0)
                    if x[0] == "gap":
                        skip = x[1]; break
                    out.it.append(x)
                    if x[0] == "i": n += 1
    for x in q:
        if x[0] != "gap": out.it.append(x)
    return out

def vr(b, n=1): return f"v{b}" if n == 1 else f"v[{b}:{b+n-1}]"
def ar(b, n=1): return f"a{b}" if n == 1 else f"a[{b}:{b+n-1}]"
def rr(reg, n=1):
    k, b = reg
    return vr(b, n) if k == "v" else ar(b, n)

S_WS = 4
S_IO = 6
SRD_WS = 8
SRD_IO = 12
S_G, S_M, S_W = 20, 21, 22

def prologue(st, name, extra_loads=""):
    st(f"""
    s_cmp_ge_u32 s2, 256
    s_cbranch_scc1 L_end_{name}
    s_load_dwordx2 s[4:5], s[0:1], 80
    {extra_loads}
    v_lshrrev_b32 v1, 6, v0
    v_and_b32 v0, 63, v0
    s_and_b32 s20, s2, 7
    s_lshr_b32 s21, s2, 3
    s_lshl_b32 s20, s20, 2
    s_lshr_b32 s23, s21, 3
    s_add_u32 s20, s20, s23
    s_and_b32 s21, s21, 7
    v_readfirstlane_b32 s22, v1
    s_waitcnt lgkmcnt(0)
    s_mov_b32 s8, s4
    s_mov_b32 s9, s5
    s_mov_b32 s10, {WS_SIZE}
    s_mov_b32 s11, 0x00020000
    """)

def srd_io(st, ptr, size):
    st(f"""
    s_mov_b32 s12, s{ptr}
    s_mov_b32 s13, s{ptr+1}
    s_mov_b32 s14, {size}
    s_mov_b32 s15, 0x00020000
    """)

def kernel_text(name, st, vgpr=512, accum=256, sgpr=100):
    lines = resolve(st)
    lines, nins = fix_hazards(lines)
    body = "\n".join(("    " + l) if not l.endswith(":") else l for l in lines)
    txt = f""".text
.globl {name}
.p2align 8
.type {name},@function
{name}:
{body}
L_end_{name}:
    s_endpgm
.section .rodata,"a"
.p2align 6
.amdhsa_kernel {name}
  .amdhsa_next_free_vgpr {vgpr}
  .amdhsa_next_free_sgpr {sgpr}
  .amdhsa_accum_offset {accum}
  .amdhsa_group_segment_fixed_size 0
  .amdhsa_kernarg_size 88
  .amdhsa_user_sgpr_count 2
  .amdhsa_user_sgpr_kernarg_segment_ptr 1
  .amdhsa_system_sgpr_workgroup_id_x 1
  .amdhsa_float_denorm_mode_32 3
.end_amdhsa_kernel
"""
    return txt

def emit_selectors(st, vB0, vB1, tmp):
    n, gb, key, val, t2 = tmp, tmp + 1, tmp + 2, tmp + 3, tmp + 4
    st(f"""
    v_and_b32 v{n}, 15, v0
    v_lshrrev_b32 v{gb}, 4, v0
    v_and_b32 v{val}, 1, v{n}
    v_mov_b32 v{t2}, 0x3f80
    v_lshlrev_b32 v{val}, 4, v{val}
    v_lshlrev_b32 v{val}, v{val}, v{t2}
    v_and_b32 v{key}, 7, v{n}
    v_lshrrev_b32 v{key}, 1, v{key}
    v_lshrrev_b32 v{t2}, 1, v{gb}
    v_lshl_add_u32 v{key}, v{t2}, 2, v{key}
    v_and_b32 v{gb}, 1, v{gb}
    v_lshrrev_b32 v{n}, 3, v{n}
    v_cmp_eq_u32 s[24:25], v{gb}, v{n}
    v_mov_b32 v{t2}, 0xff
    v_cndmask_b32_e64 v{key}, v{t2}, v{key}, s[24:25]
    """)
    for s in range(2):
        for q in range(4):
            d = (vB0 if s == 0 else vB1) + q
            st(f"""
            v_cmp_eq_u32 s[24:25], {4*s+q}, v{key}
            v_cndmask_b32_e64 v{d}, 0, v{val}, s[24:25]
            """)

def gen_k0(name):
    st = St()
    prologue(st, name, """
    s_load_dwordx2 s[32:33], s[0:1], 8
    s_load_dwordx4 s[36:39], s[0:1], 16
    s_load_dwordx2 s[40:41], s[0:1], 32
    s_load_dwordx4 s[44:47], s[0:1], 48
    """)
    vB0, vB1 = 8, 12
    emit_selectors(st, vB0, vB1, 20)
    st("""
    v_and_b32 v20, 15, v0
    v_lshrrev_b32 v21, 4, v0
    v_lshrrev_b32 v4, 2, v20
    v_lshlrev_b32 v4, 3, v4
    v_and_b32 v22, 3, v20
    v_add_u32 v4, v4, v22
    v_lshrrev_b32 v22, 1, v21
    v_lshl_add_u32 v4, v22, 2, v4
    v_and_b32 v5, 1, v21
    v_lshlrev_b32 v5, 4, v5
    v_lshlrev_b32 v6, 4, v0
    s_lshl_b32 s26, s2, 2
    s_add_u32 s26, s26, s22
    """)
    for i in range(4):
        st(f"""
        s_add_u32 s27, s26, {1024*i}
        s_cmp_ge_u32 s27, {NFRAG}
        s_cbranch_scc1 L_done_{name}
        s_lshr_b32 s28, s27, 4
        s_and_b32 s29, s27, 15
        s_mov_b32 s48, s32
        s_mov_b32 s49, s33
        s_mov_b32 s50, s28
        s_mov_b32 s51, 1024
        """)
        for T0, reg, stride in ((T_WOA, 40, 1024), (T_WOB, 46, 1024), (T_WQKV, 44, 3072), (T_WK, 36, 32), (T_WV, 38, 32)):
            st(f"""
            s_sub_u32 s52, s28, {T0}
            s_cmp_ge_u32 s28, {T0}
            s_cselect_b32 s48, s{reg}, s48
            s_cselect_b32 s49, s{reg+1}, s49
            s_cselect_b32 s50, s52, s50
            s_cselect_b32 s51, {stride}, s51
            """)
        st(f"""
        s_lshl_b32 s29, s29, 5
        s_lshl_b32 s50, s50, 5
        v_add_u32 v20, s29, v4
        v_mul_lo_u32 v20, v20, s51
        v_add_u32 v20, v20, v5
        v_add_u32 v20, s50, v20
        global_load_dwordx4 v[24:27], v20, s[48:49]
        s_lshl_b32 s27, s27, 10
        s_waitcnt vmcnt(0)
        v_mfma_f32_16x16x32_bf16 v[28:31], v[24:27], v[{vB0}:{vB0+3}], 0
        v_mfma_f32_16x16x32_bf16 v[32:35], v[24:27], v[{vB1}:{vB1+3}], 0
        v_cvt_pk_bf16_f32 v36, v28, v29
        v_cvt_pk_bf16_f32 v37, v30, v31
        v_cvt_pk_bf16_f32 v38, v32, v33
        v_cvt_pk_bf16_f32 v39, v34, v35
        buffer_store_dwordx4 v[36:39], v6, s[8:11], s27 offen
        """)
    st.label(f"L_done_{name}")
    st("s_waitcnt vmcnt(0)")
    return kernel_text(name, st, vgpr=64, accum=64)

LDS_X = 0
RING = 8

def lds_stat_base(ns): return ns * 16384
def lds_priv_base(ns): return ns * 16384 + 2560

class G:
    vLane16 = 1
    vXA = 2
    vT = 6
    vGq = 7
    vOnes = 8
    vRing = 12
    vStatA = 44
    vStatW = 45
    vStatR = 46
    vPrivR = 47
    vTmp = 48
    vAcc = 64

def common_lane_setup(st, ns):
    g = G
    st(f"""
    v_lshlrev_b32 v{g.vLane16}, 4, v0
    v_and_b32 v{g.vT}, 15, v0
    v_lshrrev_b32 v{g.vGq}, 4, v0
    """)
    for jg in range(4):
        st(f"""
        s_add_u32 s23, s22, {jg}
        s_and_b32 s23, s23, 3
        s_mul_i32 s23, s23, {ns*4096}
        v_add_u32 v{g.vXA+jg}, s23, v{g.vLane16}
        """)
    for q in range(4):
        st(f"v_mov_b32 v{g.vOnes+q}, 0x3f803f80")

def load_weights(st, dst, tile_sgpr_expr_setup, sT, tag):
    g = G
    for jg in range(4):
        st(f"""
        s_add_u32 s23, s22, {jg}
        s_and_b32 s23, s23, 3
        s_lshl_b32 s23, s23, 12
        s_add_u32 s23, s23, s{sT}
        """)
        for q in range(4):
            b = dst[1] + 4 * (4 * jg + q)
            st.i(f"buffer_load_dwordx4 {rr((dst[0], b), 4)}, v{g.vLane16}, s[8:11], s23 offen offset:{q*1024}", vm=f"{tag}{4*jg+q}")

def dma_act(st, ns, src_off, sTile0, tag, clamp0=False):
    g = G
    for s in range(ns):
        if clamp0 and s == 0:
            st(f"""
            s_max_i32 s23, s{sTile0}, 0
            """)
        else:
            st(f"s_add_u32 s23, s{sTile0}, {s}")
        st(f"""
        s_lshl_b32 s23, s23, 14
        s_lshl_b32 s24, s22, 12
        s_add_u32 s23, s23, s24
        s_add_u32 s23, s23, {src_off}
        s_mul_i32 s24, s22, {ns*4096}
        s_add_u32 m0, s24, {LDS_X + s*4096}
        """)
        for q in range(4):
            st.i(f"buffer_load_dwordx4 v{g.vLane16}, s[8:11], s23 offen offset:{q*1024} lds", vm=f"{tag}{s}_{q}")

def dma_rowmajor(st, ns, sTile0, tag, vtmp):
    g = G
    st(f"""
    v_lshlrev_b32 v{vtmp}, 10, v{g.vT}
    v_lshl_add_u32 v{vtmp}, v{g.vGq}, 4, v{vtmp}
    """)
    for s in range(ns):
        for q in range(4):
            st(f"""
            s_add_u32 s23, s{sTile0}, {s}
            s_lshl_b32 s23, s23, 14
            s_lshl_b32 s24, s22, 8
            s_add_u32 s23, s23, s24
            s_add_u32 s23, s23, {q*64}
            s_mul_i32 s24, s22, {ns*4096}
            s_add_u32 m0, s24, {LDS_X + s*4096 + q*1024}
            """)
            st.i(f"buffer_load_dwordx4 v{vtmp}, s[12:15], s23 offen lds", vm=f"{tag}{s}_{q}")

def stats_setup(st, ns):
    g = G
    sb = lds_stat_base(ns); pb = lds_priv_base(ns)
    dummy = pb + 4 * 128
    st(f"""
    v_lshrrev_b32 v{g.vTmp}, 2, v{g.vT}
    v_cmp_eq_u32 s[30:31], v{g.vTmp}, v{g.vGq}
    v_lshlrev_b32 v{g.vStatW}, 5, v{g.vT}
    s_lshl_b32 s23, s22, 2
    s_add_u32 s23, s23, {sb}
    v_add_u32 v{g.vStatW}, s23, v{g.vStatW}
    v_mov_b32 v{g.vTmp}, {dummy}
    v_cndmask_b32_e64 v{g.vStatW}, v{g.vTmp}, v{g.vStatW}, s[30:31]
    v_lshlrev_b32 v{g.vStatR}, 5, v{g.vT}
    v_add_u32 v{g.vStatR}, {sb}, v{g.vStatR}
    s_lshl_b32 s23, s22, 7
    s_add_u32 s23, s23, {pb}
    v_lshlrev_b32 v{g.vStatA}, 2, v{g.vT}
    v_add_u32 v{g.vStatA}, s23, v{g.vStatA}
    v_lshlrev_b32 v{g.vPrivR}, 4, v{g.vGq}
    v_add_u32 v{g.vPrivR}, s23, v{g.vPrivR}
    s_mov_b32 s32, 0x22222222
    s_mov_b32 s33, 0x22222222
    s_mov_b32 s34, 0x44444444
    s_mov_b32 s35, 0x44444444
    s_mov_b32 s36, 0x88888888
    s_mov_b32 s37, 0x88888888
    """)

def gemm_steps(ns, chains, tagx, stats, vStatG=None, vStatS=None, xtag_fmt=None, extra_wait=None):
    g = G
    steps = []
    total = ns * 16
    def rd(idx):
        s, jj = divmod(idx, 16)
        ring = g.vRing + 4 * (idx % RING)
        return f"ds_read_b128 {vr(ring, 4)}, v{g.vXA + (jj >> 2)} offset:{s*4096 + (jj & 3)*1024}"
    pre = St()
    pre.wv(f"{tagx}0_3")
    pre("s_barrier")
    for idx in range(RING):
        pre.i(rd(idx), lds=f"x{idx}")
    steps.append(pre)
    for idx in range(total):
        s, jj = divmod(idx, 16)
        stp = St()
        ring = g.vRing + 4 * (idx % RING)
        if idx % 2 == 0:
            stp.wl(f"x{min(idx+1, total-1)}")
        first = True
        ms = []
        for (acc, w, w_is_A) in chains(s):
            wreg = rr((w[0], w[1] + 4 * jj), 4)
            c = "0" if jj == 0 and acc[1] else vr(acc[0], 4)
            if w_is_A:
                ms.append(f"v_mfma_f32_16x16x32_bf16 {vr(acc[0],4)}, {wreg}, {vr(ring,4)}, {c}")
            else:
                ms.append(f"v_mfma_f32_16x16x32_bf16 {vr(acc[0],4)}, {vr(ring,4)}, {wreg}, {c}")
        if stats and jj < 4:
            cg = "0" if jj == 0 else vr(vStatG, 4)
            cs = "0" if jj == 0 else vr(vStatS, 4)
            ms.append(f"v_mfma_f32_16x16x32_bf16 {vr(vStatG,4)}, {vr(ring,4)}, {vr(ring,4)}, {cg}")
            ms.append(f"v_mfma_f32_16x16x32_bf16 {vr(vStatS,4)}, {vr(g.vOnes,4)}, {vr(ring,4)}, {cs}")
        for mi in ms: stp(mi)
        nxt = idx + RING
        if nxt < total:
            if nxt % 16 == 0:
                stp.wv(f"{tagx}{nxt//16}_3")
                if stats: stp.wl(f"sw{s}")
                stp("s_barrier")
            stp.i(rd(nxt), lds=f"x{nxt}")
        elif stats and nxt == total:
            stp.wl(f"sw{s}")
            stp("s_barrier")
        steps.append(stp)
    return steps

def stats_extract(s, vStatG, vStatS, ns):
    g = G
    st = St()
    t = g.vTmp
    st(f"""
    v_cndmask_b32_e64 v{t}, v{vStatG}, v{vStatG+1}, s[32:33]
    v_cndmask_b32_e64 v{t}, v{t}, v{vStatG+2}, s[34:35]
    v_cndmask_b32_e64 v{t}, v{t}, v{vStatG+3}, s[36:37]
    """)
    st.i(f"ds_write_b32 v{g.vStatW}, v{vStatS} offset:{s*512}")
    st.i(f"ds_write_b32 v{g.vStatW}, v{t} offset:{s*512 + 16}", lds=f"sw{s}")
    return st

def stats_finalize(s, vR, vN, tmp):
    g = G
    st = St()
    a = tmp
    st.i(f"ds_read_b128 {vr(a,4)}, v{g.vStatR} offset:{s*512}")
    st.i(f"ds_read_b128 {vr(a+4,4)}, v{g.vStatR} offset:{s*512+16}", lds=f"sr{s}")
    st.it.append(("gap", 2, None, None))
    st.wl(f"sr{s}")
    st(f"""
    v_add_f32 v{a}, v{a}, v{a+1}
    v_add_f32 v{a+2}, v{a+2}, v{a+3}
    v_add_f32 v{a+4}, v{a+4}, v{a+5}
    v_add_f32 v{a+6}, v{a+6}, v{a+7}
    v_add_f32 v{a}, v{a}, v{a+2}
    v_add_f32 v{a+4}, v{a+4}, v{a+6}
    v_mul_f32 v{a}, {f32(1.0/512)}, v{a}
    v_mul_f32 v{a+4}, {f32(1.0/512)}, v{a+4}
    v_fma_f32 v{a+4}, -v{a}, v{a}, v{a+4}
    v_max_f32 v{a+4}, 0, v{a+4}
    v_add_f32 v{a+4}, {f32(1e-5)}, v{a+4}
    v_rsq_f32 v{vR}, v{a+4}
    s_nop 0
    v_mul_f32 v{vN}, v{a}, v{vR}
    v_sub_f32 v{vN}, 0, v{vN}
    """)
    return st

def stats_vlayout(s, vR, vN, vR4, vN4):
    g = G
    st = St()
    st.i(f"ds_write_b32 v{g.vStatA}, v{vR}")
    st.i(f"ds_write_b32 v{g.vStatA}, v{vN} offset:64", lds=f"pw{s}")
    st.wl(f"pw{s}")
    st.i(f"ds_read_b128 {vr(vR4,4)}, v{g.vPrivR}")
    st.i(f"ds_read_b128 {vr(vN4,4)}, v{g.vPrivR} offset:64", lds=f"pr{s}")
    return st

def act_store_addr(st, vdst, tmp):
    g = G
    st(f"""
    s_lshl_b32 s23, s21, 11
    s_lshr_b32 s24, s22, 1
    s_lshl_b32 s24, s24, 10
    s_add_u32 s23, s23, s24
    s_and_b32 s24, s22, 1
    s_lshl_b32 s24, s24, 9
    s_add_u32 s23, s23, s24
    v_lshrrev_b32 v{tmp}, 1, v{g.vGq}
    v_lshlrev_b32 v{tmp}, 8, v{tmp}
    v_lshl_add_u32 v{tmp}, v{g.vT}, 4, v{tmp}
    v_and_b32 v{vdst}, 1, v{g.vGq}
    v_lshl_add_u32 v{vdst}, v{vdst}, 3, v{tmp}
    v_add_u32 v{vdst}, s23, v{vdst}
    """)

def row_addr(st, vdst):
    g = G
    st(f"""
    s_lshl_b32 s23, s21, 7
    s_lshl_b32 s24, s22, 5
    s_add_u32 s23, s23, s24
    v_lshlrev_b32 v{vdst}, 10, v{g.vT}
    v_lshl_add_u32 v{vdst}, v{g.vGq}, 3, v{vdst}
    v_add_u32 v{vdst}, s23, v{vdst}
    """)

def gen_p13(name, T0, src_act, resid, out):
    g = G
    st = St()
    loads = ""
    if resid[0] == "row": loads = "s_load_dwordx2 s[6:7], s[0:1], 0"
    if out[0] == "row": loads = "s_load_dwordx2 s[6:7], s[0:1], 64"
    prologue(st, name, loads)
    if resid[0] == "row" or out[0] == "row": srd_io(st, 6, 2048 * 1024)
    ns = 4
    common_lane_setup(st, ns)
    W = ("a", 0)
    st(f"""
    s_lshl_b32 s25, s21, 2
    s_add_u32 s25, s25, s22
    s_add_u32 s25, s25, {T0}
    s_lshl_b32 s25, s25, 14
    s_lshl_b32 s26, s20, 2
    """)
    load_weights(st, W, None, 25, "w")
    vActA, vRowA = 44, 45
    act_store_addr(st, vActA, g.vTmp)
    row_addr(st, vRowA)
    vRes = 80
    for s in range(ns):
        st(f"s_add_u32 s23, s26, {s}\ns_lshl_b32 s23, s23, 14")
        if resid[0] == "row":
            st.i(f"buffer_load_dwordx2 {vr(vRes+2*s,2)}, v{vRowA}, s[12:15], s23 offen", vm=f"r{s}")
        else:
            st(f"s_add_u32 s23, s23, {resid[1]}")
            st.i(f"buffer_load_dwordx2 {vr(vRes+2*s,2)}, v{vActA}, s[8:11], s23 offen", vm=f"r{s}")
    dma_act(st, ns, src_act, 26, "x")
    acc = g.vAcc
    st.wv("r3")
    for s in range(ns):
        a = acc + 4 * s
        st(f"""
        v_lshlrev_b32 v{a}, 16, v{vRes+2*s}
        v_and_b32 v{a+1}, 0xffff0000, v{vRes+2*s}
        v_lshlrev_b32 v{a+2}, 16, v{vRes+2*s+1}
        v_and_b32 v{a+3}, 0xffff0000, v{vRes+2*s+1}
        """)
    steps = gemm_steps(ns, lambda s: [((acc + 4 * s, False), W, True)], "x", False)
    def epi(s):
        e = St()
        a = acc + 4 * s
        p = 88 + 2 * s
        e(f"""
        v_cvt_pk_bf16_f32 v{p}, v{a}, v{a+1}
        v_cvt_pk_bf16_f32 v{p+1}, v{a+2}, v{a+3}
        s_add_u32 s27, s26, {s}
        s_lshl_b32 s27, s27, 14
        """)
        if out[0] == "act":
            e(f"s_add_u32 s27, s27, {out[1]}")
            e.i(f"buffer_store_dwordx2 {vr(p,2)}, v{vActA}, s[8:11], s27 offen")
        else:
            e.i(f"buffer_store_dwordx2 {vr(p,2)}, v{vRowA}, s[12:15], s27 offen")
        return e
    body = St()
    body.ext(steps[0])
    for s in range(ns):
        seg = steps[1 + 16 * s: 1 + 16 * (s + 1)]
        if s > 0:
            side = St(); side.it.append(("gap", 3, None, None)); side.ext(epi(s - 1))
            body.ext(weave(seg, side, per=2))
        else:
            for x in seg: body.ext(x)
    body.ext(epi(ns - 1))
    st.ext(body)
    st("s_waitcnt vmcnt(0)")
    return kernel_text(name, st)

def colsum(st, dst, W, w_is_A):
    g = G
    for jj in range(16):
        wreg = rr((W[0], W[1] + 4 * jj), 4)
        c = "0" if jj == 0 else vr(dst, 4)
        if w_is_A: st(f"v_mfma_f32_16x16x32_bf16 {vr(dst,4)}, {wreg}, {vr(g.vOnes,4)}, {c}")
        else:      st(f"v_mfma_f32_16x16x32_bf16 {vr(dst,4)}, {vr(g.vOnes,4)}, {wreg}, {c}")

def ln_epi_t(e, acc, vR, vN, vCS, pk, tmp):
    for r in range(4):
        e(f"v_mul_f32 v{tmp+r}, v{vN}, v{vCS+r}")
    for r in range(4):
        e(f"v_fma_f32 v{tmp+r}, v{acc+r}, v{vR}, v{tmp+r}")
    e(f"v_cvt_pk_bf16_f32 v{pk}, v{tmp}, v{tmp+1}")
    e(f"v_cvt_pk_bf16_f32 v{pk+1}, v{tmp+2}, v{tmp+3}")

def ln_epi_v(e, acc, vR4, vN4, vCS1, pk, tmp):
    for r in range(4):
        e(f"v_mul_f32 v{tmp+r}, v{vN4+r}, v{vCS1}")
    for r in range(4):
        e(f"v_fma_f32 v{tmp+r}, v{acc+r}, v{vR4+r}, v{tmp+r}")
    e(f"v_cvt_pk_bf16_f32 v{pk}, v{tmp}, v{tmp+1}")
    e(f"v_cvt_pk_bf16_f32 v{pk+1}, v{tmp+2}, v{tmp+3}")

def gen_p4(name, layer):
    g = G
    st = St()
    loads = "s_load_dwordx2 s[6:7], s[0:1], 0" if layer == 0 else ""
    prologue(st, name, loads)
    if layer == 0: srd_io(st, 6, 2048 * 1024)
    ns = 4
    common_lane_setup(st, ns)
    stats_setup(st, ns)
    Wq = ("a", 0); Wkv = ("a", 64)
    st(f"""
    s_lshl_b32 s25, s21, 2
    s_add_u32 s25, s25, s22
    s_add_u32 s25, s25, {T_WQ}
    s_lshl_b32 s25, s25, 14
    s_lshl_b32 s26, s20, 2
    s_lshr_b32 s38, s21, 1
    """)
    load_weights(st, Wq, None, 25, "w")
    st(f"""
    s_and_b32 s25, s21, 1
    s_add_u32 s25, s25, {T_WK}
    s_lshl_b32 s25, s25, 14
    """)
    load_weights(st, Wkv, None, 25, "wk")
    for s in range(ns):
        st(f"""
        s_add_u32 s23, s38, {s}
        s_and_b32 s23, s23, 3
        s_add_u32 s{40+s}, s26, s23
        """)
    if layer == 0:
        vtmp = g.vTmp + 8
        st(f"""
        v_lshlrev_b32 v{vtmp}, 10, v{g.vT}
        v_lshl_add_u32 v{vtmp}, v{g.vGq}, 4, v{vtmp}
        """)
        for s in range(ns):
            for q in range(4):
                st(f"""
                s_lshl_b32 s23, s{40+s}, 14
                s_lshl_b32 s24, s22, 8
                s_add_u32 s23, s23, s24
                s_add_u32 s23, s23, {q*64}
                s_mul_i32 s24, s22, {ns*4096}
                s_add_u32 m0, s24, {LDS_X + s*4096 + q*1024}
                """)
                st.i(f"buffer_load_dwordx4 v{vtmp}, s[12:15], s23 offen lds", vm=f"x{s}_{q}")
    else:
        for s in range(ns):
            st(f"""
            s_lshl_b32 s23, s{40+s}, 14
            s_lshl_b32 s24, s22, 12
            s_add_u32 s23, s23, s24
            s_add_u32 s23, s23, {X2}
            s_mul_i32 s24, s22, {ns*4096}
            s_add_u32 m0, s24, {LDS_X + s*4096}
            """)
            for q in range(4):
                st.i(f"buffer_load_dwordx4 v{g.vLane16}, s[8:11], s23 offen offset:{q*1024} lds", vm=f"x{s}_{q}")
    vCSq, vCSk = 96, 100
    st.wv("wk15")
    colsum(st, vCSq, Wq, True)
    st("s_bitcmp1_b32 s21, 0")
    st(f"s_cbranch_scc1 L_csv_{name}")
    colsum(st, vCSk, Wkv, True)
    st(f"s_branch L_csd_{name}")
    st.label(f"L_csv_{name}")
    colsum(st, vCSk, Wkv, False)
    st.label(f"L_csd_{name}")
    acc = g.vAcc
    accKV_k, accKV_v = 80, 84
    vStatG, vStatS = 88, 92
    def chains(s):
        return [((acc + 4 * s, True), Wq, True)]
    steps = gemm_steps(ns, chains, "x", True, vStatG, vStatS)
    vR = [104 + s for s in range(ns)]; vN = [108 + s for s in range(ns)]
    vRq, vNq = 112, 113
    pk = 116
    tmp = g.vTmp + 8
    def epi(s):
        e = St()
        e(f"v_mul_f32 v{vRq}, {f32(CQ)}, v{vR[s]}\nv_mul_f32 v{vNq}, {f32(CQ)}, v{vN[s]}")
        ln_epi_t(e, acc + 4 * s, vRq, vNq, vCSq, pk + 2 * s, tmp)
        return e
    body = St()
    body.ext(steps[0])
    for s in range(ns):
        seg = steps[1 + 16 * s: 1 + 16 * (s + 1)]
        a = seg[:4]; b = seg[4:9]; c = seg[9:]
        if s > 0:
            side = St(); side.it.append(("gap", 2, None, None)); side.ext(epi(s - 1))
            body.ext(weave(a, side, per=2))
        else:
            for x in a: body.ext(x)
        side = St(); side.it.append(("gap", 2, None, None)); side.ext(stats_extract(s, vStatG, vStatS, ns))
        bb = weave(b[:4], side, per=2)
        body.ext(bb); body.ext(b[4])
        body.ext(weave(c, stats_finalize(s, vR[s], vN[s], g.vTmp), per=2))
    body.ext(epi(ns - 1))
    st.ext(body)
    st(f"s_cmp_lg_u32 s22, 0\ns_cbranch_scc1 L_nokv_{name}")
    st("s_bitcmp1_b32 s21, 0")
    st(f"s_cbranch_scc1 L_v_{name}")
    for variant in ("k", "v"):
        if variant == "v": st.label(f"L_v_{name}")
        a = 80
        for j in range(16):
            ring = g.vRing + 4 * (j % RING)
            if j % RING == 0:
                for u in range(RING):
                    jj = j + u
                    st.i(f"ds_read_b128 {vr(g.vRing+4*u,4)}, v{g.vXA+(jj>>2)} offset:{(jj&3)*1024}", lds=f"kv{variant}{jj}")
            st.wl(f"kv{variant}{j}")
            c = "0" if j == 0 else vr(a, 4)
            wreg = rr((Wkv[0], Wkv[1] + 4 * j), 4)
            if variant == "k": st(f"v_mfma_f32_16x16x32_bf16 {vr(a,4)}, {wreg}, {vr(ring,4)}, {c}")
            else:              st(f"v_mfma_f32_16x16x32_bf16 {vr(a,4)}, {vr(ring,4)}, {wreg}, {c}")
        e = St()
        e(f"""
        s_lshr_b32 s23, s40, 1
        s_lshl_b32 s23, s23, 10
        s_and_b32 s24, s40, 1
        """)
        if variant == "k":
            ln_epi_t(e, a, vR[0], vN[0], vCSk, 84, tmp)
            e(f"""
            s_lshl_b32 s24, s24, 8
            s_add_u32 s23, s23, s24
            s_add_u32 s23, s23, {KF[layer]}
            v_lshrrev_b32 v{tmp}, 1, v{g.vGq}
            v_lshlrev_b32 v{tmp}, 9, v{tmp}
            v_lshl_add_u32 v{tmp}, v{g.vT}, 4, v{tmp}
            v_and_b32 v{tmp+1}, 1, v{g.vGq}
            v_lshl_add_u32 v{tmp}, v{tmp+1}, 3, v{tmp}
            """)
            e.i(f"buffer_store_dwordx2 v[84:85], v{tmp}, s[8:11], s23 offen")
            e(f"s_branch L_nokv_{name}")
        else:
            e.ext(stats_vlayout(9, vR[0], vN[0], 56, 60))
            e.wl("pr9")
            ln_epi_v(e, a, 56, 60, vCSk, 84, 48)
            e(f"""
            s_lshl_b32 s24, s24, 9
            s_add_u32 s23, s23, s24
            s_add_u32 s23, s23, {VF[layer]}
            v_and_b32 v48, 1, v{g.vGq}
            v_lshlrev_b32 v48, 8, v48
            v_lshl_add_u32 v48, v{g.vT}, 4, v48
            v_lshrrev_b32 v49, 1, v{g.vGq}
            v_lshl_add_u32 v48, v49, 3, v48
            """)
            e.i(f"buffer_store_dwordx2 v[84:85], v48, s[8:11], s23 offen")
        st.ext(e)
    st.label(f"L_nokv_{name}")
    st(f"""
    v_lshrrev_b32 v48, 1, v{g.vGq}
    v_lshlrev_b32 v48, 9, v48
    v_lshl_add_u32 v48, v{g.vT}, 4, v48
    v_and_b32 v49, 1, v{g.vGq}
    v_lshl_add_u32 v48, v49, 3, v48
    s_lshl_b32 s25, s20, 3
    s_add_u32 s25, s25, s21
    s_lshl_b32 s25, s25, 2
    s_add_u32 s25, s25, s22
    s_lshl_b32 s25, s25, 11
    s_add_u32 s25, s25, {QF[layer]}
    """)
    for s in range(ns):
        st(f"""
        s_and_b32 s23, s{40+s}, 3
        s_lshr_b32 s24, s23, 1
        s_lshl_b32 s24, s24, 10
        s_and_b32 s23, s23, 1
        s_lshl_b32 s23, s23, 8
        s_add_u32 s23, s23, s24
        s_add_u32 s23, s23, s25
        """)
        st.i(f"buffer_store_dwordx2 {vr(pk+2*s,2)}, v48, s[8:11], s23 offen")
    st("s_waitcnt vmcnt(0)")
    return kernel_text(name, st)

def gen_p2(name, src_act, out_act):
    g = G
    st = St()
    prologue(st, name)
    ns = 5
    common_lane_setup(st, ns)
    stats_setup(st, ns)
    Wq, Wk, Wv = ("a", 0), ("a", 64), ("a", 128)
    st(f"""
    s_lshl_b32 s25, s21, 2
    s_add_u32 s25, s25, s22
    s_add_u32 s25, s25, {T_WQKV}
    s_lshl_b32 s25, s25, 14
    """)
    load_weights(st, Wq, None, 25, "wq")
    st(f"s_add_u32 s25, s25, {32*16384}")
    load_weights(st, Wk, None, 25, "wk")
    st(f"s_add_u32 s25, s25, {32*16384}")
    load_weights(st, Wv, None, 25, "wv")
    st("""
    s_lshl_b32 s26, s20, 2
    s_sub_u32 s26, s26, 1
    """)
    dma_act(st, ns, src_act, 26, "x", clamp0=True)
    vActA = 96
    act_store_addr(st, vActA, g.vTmp)
    vMo, vMp, vMp0 = 100, 104, 108
    NEG = f32(-1.0e30)
    st(f"v_mov_b32 v{g.vTmp+2}, {NEG}")
    for r in range(4):
        st(f"""
        v_lshl_add_u32 v{g.vTmp}, v{g.vGq}, 2, {r}
        v_sub_u32 v{g.vTmp}, v{g.vT}, v{g.vTmp}
        v_and_b32 v{g.vTmp+1}, 0x80000001, v{g.vTmp}
        v_cmp_eq_u32 s[28:29], 0, v{g.vTmp+1}
        v_cndmask_b32_e64 v{vMo+r}, v{g.vTmp+2}, 0, s[28:29]
        v_cmp_gt_i32 s[38:39], -1, v{g.vTmp}
        v_and_b32 v{g.vTmp+1}, 1, v{g.vTmp}
        v_cmp_eq_u32 s[28:29], 0, v{g.vTmp+1}
        s_and_b64 s[28:29], s[28:29], s[38:39]
        v_cndmask_b32_e64 v{vMp+r}, v{g.vTmp+2}, 0, s[28:29]
        """)
    st("s_cmp_eq_u32 s20, 0\ns_cselect_b64 s[28:29], -1, 0")
    for r in range(4):
        st(f"v_cndmask_b32_e64 v{vMp0+r}, v{vMp+r}, v{g.vTmp+2}, s[28:29]")
    vCSq, vCSk, vCSv = 112, 116, 120
    st.wv("wv15")
    colsum(st, vCSq, Wq, True)
    colsum(st, vCSk, Wk, True)
    colsum(st, vCSv, Wv, False)
    accq, acck, accv = 64, 68, 72
    def A(base, s): return base + 12 * (s & 1)
    vStatG, vStatS = 88, 92
    def chains(s):
        c = []
        if s > 0: c.append(((A(accq, s), True), Wq, True))
        c.append(((A(acck, s), True), Wk, True))
        c.append(((A(accv, s), True), Wv, False))
        return c
    steps = gemm_steps(ns, chains, "x", True, vStatG, vStatS)
    vR, vN = 124, 125
    vRq, vNq = 128, 129
    vR4, vN4 = 132, 136
    pq = 140
    pk = 142
    pv = 148
    tmp = 56
    S = 160
    P = 168
    O = 172; L = 176; MX = 180; T2 = 181
    def epi(s):
        e = St()
        R, N = vR + 2 * (s & 1), vN + 2 * (s & 1)
        e.ext(stats_vlayout(s, R, N, vR4, vN4))
        ln_epi_t(e, A(acck, s), R, N, vCSk, pk + 2 * (s & 1), tmp)
        if s > 0:
            e(f"v_mul_f32 v{vRq}, {f32(CQ)}, v{R}\nv_mul_f32 v{vNq}, {f32(CQ)}, v{N}")
            ln_epi_t(e, A(accq, s), vRq, vNq, vCSq, pq, tmp)
        e.wl(f"pr{s}")
        ln_epi_v(e, A(accv, s), vR4, vN4, vCSv, pv + 2 * s, tmp)
        if s == 0: return e
        kp = pk + 2 * ((s - 1) & 1); ko = pk + 2 * (s & 1)
        mp = vMp0 if s == 1 else vMp
        e(f"v_mfma_f32_16x16x16_bf16 {vr(S,4)}, {vr(kp,2)}, {vr(pq,2)}, {vr(mp,4)}")
        e(f"v_mfma_f32_16x16x16_bf16 {vr(S+4,4)}, {vr(ko,2)}, {vr(pq,2)}, {vr(vMo,4)}")
        e.it.append(("gap", 3, None, None))
        e(f"""
        v_max3_f32 v{MX}, v{S}, v{S+1}, v{S+2}
        v_max3_f32 v{T2}, v{S+3}, v{S+4}, v{S+5}
        v_max3_f32 v{MX}, v{MX}, v{S+6}, v{S+7}
        v_max_f32 v{MX}, v{MX}, v{T2}
        v_mov_b32 v{T2}, v{MX}
        v_permlane32_swap_b32 v{T2}, v{MX}
        v_max_f32 v{MX}, v{MX}, v{T2}
        v_mov_b32 v{T2}, v{MX}
        v_permlane16_swap_b32 v{T2}, v{MX}
        v_max_f32 v{MX}, v{MX}, v{T2}
        """)
        for r in range(8): e(f"v_sub_f32 v{S+r}, v{S+r}, v{MX}")
        for r in range(8): e(f"v_exp_f32 v{S+r}, v{S+r}")
        for r in range(4): e(f"v_cvt_pk_bf16_f32 v{P+r}, v{S+2*r}, v{S+2*r+1}")
        e(f"v_mfma_f32_16x16x32_bf16 {vr(O,4)}, {vr(pv+2*(s-1),4)}, {vr(P,4)}, 0")
        e(f"v_mfma_f32_16x16x32_bf16 {vr(L,4)}, {vr(g.vOnes,4)}, {vr(P,4)}, 0")
        e.it.append(("gap", 3, None, None))
        e(f"v_rcp_f32 v{L}, v{L}")
        for r in range(4): e(f"v_mul_f32 v{O+r}, v{O+r}, v{L}")
        e(f"""
        v_cvt_pk_bf16_f32 v{P}, v{O}, v{O+1}
        v_cvt_pk_bf16_f32 v{P+1}, v{O+2}, v{O+3}
        s_add_u32 s27, s26, {s}
        s_lshl_b32 s27, s27, 14
        s_add_u32 s27, s27, {out_act}
        """)
        e.i(f"buffer_store_dwordx2 {vr(P,2)}, v{vActA}, s[8:11], s27 offen")
        return e
    body = St()
    body.ext(steps[0])
    for s in range(ns):
        seg = steps[1 + 16 * s: 1 + 16 * (s + 1)]
        R, N = vR + 2 * (s & 1), vN + 2 * (s & 1)
        side_a = St()
        if s > 0:
            side_a.it.append(("gap", 2, None, None)); side_a.ext(epi(s - 1))
        q = list(side_a.it)
        def take(n):
            nonlocal q
            s1 = St(); cnt = 0
            while q and cnt < n:
                x = q.pop(0); s1.it.append(x)
                if x[0] == "i": cnt += 1
            return s1
        nm = len(chains(s))
        body.ext(weave(seg[0:4], take(4 * (nm + 2) * 2 - 6), per=2))
        side = St(); side.it.append(("gap", 2, None, None)); side.ext(stats_extract(s, vStatG, vStatS, ns)); side.ext(take(4 * nm * 2 - 12))
        body.ext(weave(seg[4:8], side, per=2))
        body.ext(seg[8])
        side = stats_finalize(s, R, N, g.vTmp); rest = St(); rest.it = q; side.ext(rest)
        body.ext(weave(seg[9:16], side, per=2))
    body.ext(epi(ns - 1))
    st.ext(body)
    st("s_waitcnt vmcnt(0)")
    return kernel_text(name, st)

LDS_K = 0
LDS_V = 65536
VSTRIDE = 1040
ATT_LDS = LDS_V + 66 * VSTRIDE

def att_iter(st, t_par, koff, voff, SA, SB, PA, PB, OA_, OB_, QA, QB, KB, VB, vK, vV0, vV1, safe=None):
    Kc = KB + 4 * t_par
    Kn = KB + 4 * (1 - t_par)
    Vp = VB + 8 * (1 - t_par)
    Vc = VB + 8 * t_par
    def softmax(S, P, M):
        ins = []
        if M is not None:
            for r in range(16): ins.append(f"v_sub_f32 v{S+r}, v{S+r}, v{M}")
        for i in range(8):
            ins.append(f"v_exp_f32 v{S+2*i}, v{S+2*i}")
            ins.append(f"v_exp_f32 v{S+2*i+1}, v{S+2*i+1}")
            if i > 0: ins.append(f"v_cvt_pk_bf16_f32 v{P+i-1}, v{S+2*i-2}, v{S+2*i-1}")
        ins.append(f"v_cvt_pk_bf16_f32 v{P+7}, v{S+14}, v{S+15}")
        return ins
    def mix(valu, ms):
        n = len(valu); k = len(ms)
        for j in range(k):
            for x in ms[j]: st(x)
            for x in valu[j * n // k:(j + 1) * n // k]: st(x)
    mix(softmax(SA, PA, safe[0] if safe else None), [
        [f"v_mfma_f32_32x32x16_bf16 {vr(SB,16)}, {vr(Kc,4)}, {vr(QB,4)}, 0",
         f"ds_read_b128 {vr(Kc,4)}, v{vK} offset:{koff}"],
        [f"v_mfma_f32_32x32x16_bf16 {vr(OB_,16)}, {vr(Vp,4)}, {vr(PB,4)}, {vr(OB_,16)}",
         f"ds_read_b128 {vr(Vp,4)}, v{vV0} offset:{voff}"],
        [f"v_mfma_f32_32x32x16_bf16 {vr(OB_,16)}, {vr(Vp+4,4)}, {vr(PB+4,4)}, {vr(OB_,16)}",
         f"ds_read_b128 {vr(Vp+4,4)}, v{vV1} offset:{voff}"]])
    mix(softmax(SB, PB, safe[1] if safe else None), [
        [f"v_mfma_f32_32x32x16_bf16 {vr(SA,16)}, {vr(Kn,4)}, {vr(QA,4)}, 0"],
        [f"v_mfma_f32_32x32x16_bf16 {vr(OA_,16)}, {vr(Vc,4)}, {vr(PA,4)}, {vr(OA_,16)}"],
        [f"v_mfma_f32_32x32x16_bf16 {vr(OA_,16)}, {vr(Vc+4,4)}, {vr(PA+4,4)}, {vr(OA_,16)}",
         "s_waitcnt lgkmcnt(0)"]])

ATT_U = 8
def gen_att(name, layer):
    st = St()
    prologue(st, name)
    SA, SB, OA_, OB_ = 16, 32, 48, 64
    PA, PB, QA, QB, KB, VB = 80, 88, 96, 100, 104, 112
    vK, vV0, vV1, vL16 = 2, 3, 4, 1
    st(f"""
    v_lshlrev_b32 v{vL16}, 4, v0
    v_mov_b32 v{vK}, v{vL16}
    v_and_b32 v5, 31, v0
    v_lshrrev_b32 v6, 5, v0
    v_lshlrev_b32 v7, 8, v6
    v_lshl_add_u32 v7, v5, 4, v7
    v_add_u32 v7, {LDS_V}, v7
    v_mov_b32 v8, {LDS_V + 1024}
    v_cmp_gt_u32 s[28:29], 16, v5
    v_cndmask_b32_e64 v{vV0}, v8, v7, s[28:29]
    v_add_u32 v7, 512, v7
    v_cndmask_b32_e64 v{vV1}, v8, v7, s[28:29]
    """)
    def dma_kv(t_sreg_expr, tag):
        pass
    st(f"""
    s_lshl_b32 s23, s22, 11
    s_add_u32 s24, s23, {KF[layer]}
    s_mov_b32 m0, s23
    """)
    st.i(f"buffer_load_dwordx4 v{vL16}, s[8:11], s24 offen lds")
    st.i(f"buffer_load_dwordx4 v{vL16}, s[8:11], s24 offen offset:1024 lds")
    st(f"""
    s_add_u32 s24, s23, {VF[layer]}
    s_mul_i32 s25, s22, {2*VSTRIDE}
    s_add_u32 m0, s25, {LDS_V}
    """)
    st.i(f"buffer_load_dwordx4 v{vL16}, s[8:11], s24 offen lds")
    st(f"s_add_u32 s24, s24, 1024\ns_add_u32 m0, m0, {VSTRIDE}")
    st.i(f"buffer_load_dwordx4 v{vL16}, s[8:11], s24 offen lds", vm="c0")
    st(f"""
    s_lshl_b32 s25, s20, 3
    s_add_u32 s25, s25, s21
    s_lshl_b32 s25, s25, 2
    s_add_u32 s25, s25, s22
    s_lshl_b32 s25, s25, 11
    s_add_u32 s25, s25, {QF[layer]}
    """)
    st.i(f"buffer_load_dwordx4 {vr(QA,4)}, v{vL16}, s[8:11], s25 offen")
    st.i(f"buffer_load_dwordx4 {vr(QB,4)}, v{vL16}, s[8:11], s25 offen offset:1024", vm="q")
    st(f"""
    s_mul_i32 s23, s22, {14*1024}
    s_add_u32 s23, s23, {8*1024}
    s_add_u32 s24, s23, {KF[layer]}
    s_mov_b32 m0, s23
    """)
    for i in range(14):
        st.i(f"buffer_load_dwordx4 v{vL16}, s[8:11], s24 offen offset:{(i&3)*1024} lds")
        if i & 3 == 3: st("s_add_u32 s24, s24, 4096\ns_add_u32 m0, m0, 4096")
    st(f"""
    s_add_u32 s24, s23, {VF[layer]}
    s_mul_i32 s25, s22, {14*VSTRIDE}
    s_add_u32 m0, s25, {LDS_V + 8*VSTRIDE}
    """)
    for i in range(14):
        st.i(f"buffer_load_dwordx4 v{vL16}, s[8:11], s24 offen lds", vm=("rest" if i == 13 else None))
        if i < 13: st(f"s_add_u32 s24, s24, 1024\ns_add_u32 m0, m0, {VSTRIDE}")
    st(f"""
    v_mov_b32 v8, 0x3f803f80
    v_mov_b32 v9, v8
    v_mov_b32 v10, v8
    v_mov_b32 v11, v8
    v_mul_u32_u24 v12, {VSTRIDE}, v0
    v_add_u32 v12, {LDS_V + 1024}, v12
    """)
    st(f"s_cmp_lg_u32 s22, 0\ns_cbranch_scc1 L_noones_{name}")
    st("ds_write_b128 v12, v[8:11]")
    st.label(f"L_noones_{name}")
    for r in range(16):
        st(f"v_mov_b32 v{OA_+r}, 0\nv_mov_b32 v{OB_+r}, 0")
    for r in range(8):
        st(f"v_mov_b32 v{PB+r}, 0\nv_mov_b32 v{VB+8+r}, 0")
    st.wv("q")
    st("s_waitcnt lgkmcnt(0)\ns_barrier")
    st(f"""
    ds_read_b128 {vr(KB,4)}, v{vK}
    ds_read_b128 {vr(KB+4,4)}, v{vK} offset:1024
    ds_read_b128 {vr(VB,4)}, v{vV0}
    ds_read_b128 {vr(VB+4,4)}, v{vV1}
    s_waitcnt lgkmcnt(0)
    v_mfma_f32_32x32x16_bf16 {vr(SA,16)}, {vr(KB,4)}, {vr(QA,4)}, 0
    s_mov_b32 s30, 0
    """)
    st.label(f"L_att_{name}")
    U = ATT_U
    loop = St()
    for u in range(U):
        if u == U - 3:
            loop(f"s_cmp_lg_u32 s30, 0\ns_cbranch_scc1 L_skipw_{name}\ns_waitcnt vmcnt(0)\ns_barrier")
            loop.label(f"L_skipw_{name}")
        att_iter(loop, u & 1, (u + 2) * 1024, (u + 1) * VSTRIDE, SA, SB, PA, PB, OA_, OB_, QA, QB, KB, VB, vK, vV0, vV1)
    loop(f"""
    v_add_u32 v{vK}, {U*1024}, v{vK}
    v_add_u32 v{vV0}, {U*VSTRIDE}, v{vV0}
    v_add_u32 v{vV1}, {U*VSTRIDE}, v{vV1}
    s_add_u32 s30, s30, 1
    s_cmp_lt_u32 s30, {64//U}
    s_cbranch_scc1 L_att_{name}
    """)
    st.ext(loop)
    st(f"""
    v_mfma_f32_32x32x16_bf16 {vr(OB_,16)}, {vr(VB+8,4)}, {vr(PB,4)}, {vr(OB_,16)}
    v_mfma_f32_32x32x16_bf16 {vr(OB_,16)}, {vr(VB+12,4)}, {vr(PB+4,4)}, {vr(OB_,16)}
    """)
    st(f"""
    s_lshl_b32 s23, s21, 11
    s_lshr_b32 s24, s22, 1
    s_lshl_b32 s24, s24, 10
    s_add_u32 s23, s23, s24
    s_and_b32 s24, s22, 1
    s_lshl_b32 s24, s24, 9
    s_add_u32 s23, s23, s24
    s_lshl_b32 s24, s20, 16
    s_add_u32 s23, s23, s24
    s_add_u32 s23, s23, {OA[layer]}
    v_and_b32 v5, 15, v0
    v_lshlrev_b32 v5, 4, v5
    v_lshrrev_b32 v6, 5, v0
    v_lshl_add_u32 v5, v6, 3, v5
    v_bfe_u32 v6, v0, 4, 1
    v_lshl_add_u32 v5, v6, 14, v5
    """)
    for qb, O in ((0, OA_), (1, OB_)):
        st(f"v_rcp_f32 v8, v{O+8}")
        for r in range(8): st(f"v_mul_f32 v{O+r}, v{O+r}, v8")
        st(f"""
        v_cvt_pk_bf16_f32 v10, v{O}, v{O+1}
        v_cvt_pk_bf16_f32 v11, v{O+2}, v{O+3}
        v_cvt_pk_bf16_f32 v12, v{O+4}, v{O+5}
        v_cvt_pk_bf16_f32 v13, v{O+6}, v{O+7}
        """)
        st.i(f"buffer_store_dwordx2 v[10:11], v5, s[8:11], s23 offen")
        st.i(f"buffer_store_dwordx2 v[12:13], v5, s[8:11], s23 offen offset:256")
        if qb == 0: st("s_add_u32 s23, s23, 32768")
    st("s_waitcnt vmcnt(0)")
    return kernel_text(name, st)

def build(path):
    ks = []
    ks.append(("k0_kernel", gen_k0("k0_kernel"), 0))
    ks.append(("p4a_kernel", gen_p4("p4a_kernel", 0), 72 * 1024))
    ks.append(("att0_kernel", gen_att("att0_kernel", 0), ATT_LDS))
    ks.append(("p1a_kernel", gen_p13("p1a_kernel", T_WOA, OA[0], ("row",), ("act", X1)), 64 * 1024))
    ks.append(("p2a_kernel", gen_p2("p2a_kernel", X1, OB[0]), 90 * 1024))
    ks.append(("p3a_kernel", gen_p13("p3a_kernel", T_WOB, OB[0], ("act", X1), ("act", X2)), 64 * 1024))
    ks.append(("p4b_kernel", gen_p4("p4b_kernel", 1), 72 * 1024))
    ks.append(("att1_kernel", gen_att("att1_kernel", 1), ATT_LDS))
    ks.append(("p1b_kernel", gen_p13("p1b_kernel", T_WOA, OA[1], ("act", X2), ("act", X3)), 64 * 1024))
    ks.append(("p2b_kernel", gen_p2("p2b_kernel", X3, OB[1]), 90 * 1024))
    ks.append(("p3b_kernel", gen_p13("p3b_kernel", T_WOB, OB[1], ("act", X3), ("row",)), 64 * 1024))
    hdr = open("cdna_kernels/" + NAME + ".s.ref").read().split("; Override launch geometry")[0]
    out = hdr
    for n, _, lds in ks:
        out += f"; @launch kernel={n} grid=(256,1,1) block=(256,1,1) lds={lds}\n"
    out += '.amdgcn_target "amdgcn-amd-amdhsa--gfx950"\n'
    for n, t, _ in ks: out += t
    open(path, "w").write(out)

if __name__ == "__main__":
    build(sys.argv[1] if len(sys.argv) > 1 else "stage1.s")
```

```python
import sys, os
sys.path.insert(0, os.path.dirname(os.path.abspath(__file__)))
from asmlib import Asm, fix_hazards

NAME = "interleave_layers__grouped_kv_mqa__sliding_local_dilated__prompt"

T_WQ, T_WOA, T_WOB, T_WQKV, T_WK, T_WV = 0, 32, 64, 96, 192, 193
NFRAG = 194 * 16
KF = [0x310000, 0x330000]
VF = [0x320000, 0x340000]
QF = [0x400000, 0x600000]
OA = [0x800000, 0x1000000]
X1 = 0xA00000
OB = [0xC00000, 0x1400000]
X2 = 0xE00000
X3 = 0x1200000
WS_SIZE = 0x2000000

CQ = 0.25 * 1.4426950408889634
import struct
def f32(x): return "0x%08x" % struct.unpack("<I", struct.pack("<f", x))[0]

class St:
    def __init__(self): self.it = []
    def i(self, text, lds=None, vm=None):
        for l in text.strip("\n").split("\n"):
            l = l.strip()
            if l: self.it.append(("i", l, lds, vm))
        return self
    def __call__(self, text): return self.i(text)
    def wl(self, tag): self.it.append(("wl", tag, None, None))
    def wv(self, tag): self.it.append(("wv", tag, None, None))
    def label(self, l): self.it.append(("i", l + ":", None, None))
    def ext(self, o): self.it += o.it

def resolve(st, vm_pre=0):
    out = []
    nl = 0; nv = 0; lt = {}; vt = {}; dl = 0; dv = 0
    for k, a, lds, vm in st.it:
        if k == "i":
            out.append(a)
            op = a.split()[0]
            isl = op.startswith("ds_")
            isv = op.startswith(("buffer_", "global_")) and op not in ("buffer_inv", "buffer_wbl2")
            if isl:
                if lds is not None: lt[lds] = nl
                nl += 1
            else:
                assert lds is None, a
            if isv:
                if vm is not None: vt[vm] = nv
                nv += 1
            else:
                assert vm is None, a
            if op == "s_waitcnt":
                if "lgkmcnt(0)" in a: dl = nl
                if "vmcnt(0)" in a: dv = nv
        elif k == "wl":
            idx = lt[a]
            if idx < dl: continue
            n = nl - idx - 1
            out.append(f"s_waitcnt lgkmcnt({min(n, 15)})")
            dl = idx + 1 if n <= 15 else max(dl, nl - 15)
            assert dl > idx
        elif k == "wv":
            idx = vt[a]
            if idx < dv: continue
            n = nv - idx - 1
            out.append(f"s_waitcnt vmcnt({min(n, 63)})")
            dv = idx + 1 if n <= 63 else max(dv, nv - 63)
            assert dv > idx
    return out

def weave(main_steps, side, per=2, start=0):
    out = St()
    q = list(side.it)
    skip = 0
    for si, stp in enumerate(main_steps):
        for it in stp.it:
            out.it.append(it)
            if si >= start and it[0] == "i" and it[1].startswith("v_mfma"):
                if skip > 0:
                    skip -= 1; continue
                n = 0
                while q and n < per:
                    x = q.pop(0)
                    if x[0] == "gap":
                        skip = x[1]; break
                    out.it.append(x)
                    if x[0] == "i": n += 1
    for x in q:
        if x[0] != "gap": out.it.append(x)
    return out

def vr(b, n=1): return f"v{b}" if n == 1 else f"v[{b}:{b+n-1}]"
def ar(b, n=1): return f"a{b}" if n == 1 else f"a[{b}:{b+n-1}]"
def rr(reg, n=1):
    k, b = reg
    return vr(b, n) if k == "v" else ar(b, n)

S_WS = 4
S_IO = 6
SRD_WS = 8
SRD_IO = 12
S_G, S_M, S_W = 20, 21, 22

def prologue(st, name, extra_loads=""):
    st(f"""
    s_cmp_ge_u32 s2, 256
    s_cbranch_scc1 L_end_{name}
    s_load_dwordx2 s[4:5], s[0:1], 80
    {extra_loads}
    v_lshrrev_b32 v1, 6, v0
    v_and_b32 v0, 63, v0
    s_and_b32 s20, s2, 7
    s_lshr_b32 s21, s2, 3
    s_lshl_b32 s20, s20, 2
    s_lshr_b32 s23, s21, 3
    s_add_u32 s20, s20, s23
    s_and_b32 s21, s21, 7
    v_readfirstlane_b32 s22, v1
    s_waitcnt lgkmcnt(0)
    s_mov_b32 s8, s4
    s_mov_b32 s9, s5
    s_mov_b32 s10, {WS_SIZE}
    s_mov_b32 s11, 0x00020000
    """)

def srd_io(st, ptr, size):
    st(f"""
    s_mov_b32 s12, s{ptr}
    s_mov_b32 s13, s{ptr+1}
    s_mov_b32 s14, {size}
    s_mov_b32 s15, 0x00020000
    """)

INSTR = os.environ.get("INSTR")
KIDX = {}
TS_OFF = 0x1800000
def kernel_text(name, st, vgpr=512, accum=256, sgpr=100):
    if INSTR:
        k = KIDX.setdefault(name, len(KIDX))
        pre = St()
        pre("s_memrealtime s[96:97]\ns_memtime s[92:93]")
        post = St()
        post(f'''
        s_memrealtime s[98:99]
        s_memtime s[94:95]
        s_waitcnt lgkmcnt(0)
        s_sub_u32 s94, s94, s92
        v_mov_b32 v4, s96
        v_mov_b32 v5, s94
        v_mov_b32 v6, s98
        v_mov_b32 v7, {'s87' if 'att' in name else 's99'}
        s_lshl_b32 s23, s2, 2
        s_add_u32 s23, s23, s22
        s_lshl_b32 s23, s23, 4
        s_add_u32 s23, s23, {TS_OFF + k*16384}
        v_mov_b32 v8, 0
        s_mov_b64 exec, 1
        buffer_store_dwordx4 v[4:7], v8, s[8:11], s23 offen
        s_waitcnt vmcnt(0)
        ''')
        n = St(); n.ext(pre); n.ext(st); n.ext(post); st = n
    lines = resolve(st)
    lines, nins = fix_hazards(lines)
    body = "\n".join(("    " + l) if not l.endswith(":") else l for l in lines)
    txt = f""".text
.globl {name}
.p2align 8
.type {name},@function
{name}:
{body}
L_end_{name}:
    s_endpgm
.section .rodata,"a"
.p2align 6
.amdhsa_kernel {name}
  .amdhsa_next_free_vgpr {vgpr}
  .amdhsa_next_free_sgpr {sgpr}
  .amdhsa_accum_offset {accum}
  .amdhsa_group_segment_fixed_size 0
  .amdhsa_kernarg_size 88
  .amdhsa_user_sgpr_count 2
  .amdhsa_user_sgpr_kernarg_segment_ptr 1
  .amdhsa_system_sgpr_workgroup_id_x 1
  .amdhsa_float_denorm_mode_32 3
.end_amdhsa_kernel
"""
    return txt

def emit_selectors(st, vB0, vB1, tmp):
    n, gb, key, val, t2 = tmp, tmp + 1, tmp + 2, tmp + 3, tmp + 4
    st(f"""
    v_and_b32 v{n}, 15, v0
    v_lshrrev_b32 v{gb}, 4, v0
    v_and_b32 v{val}, 1, v{n}
    v_mov_b32 v{t2}, 0x3f80
    v_lshlrev_b32 v{val}, 4, v{val}
    v_lshlrev_b32 v{val}, v{val}, v{t2}
    v_and_b32 v{key}, 7, v{n}
    v_lshrrev_b32 v{key}, 1, v{key}
    v_lshrrev_b32 v{t2}, 1, v{gb}
    v_lshl_add_u32 v{key}, v{t2}, 2, v{key}
    v_and_b32 v{gb}, 1, v{gb}
    v_lshrrev_b32 v{n}, 3, v{n}
    v_cmp_eq_u32 s[24:25], v{gb}, v{n}
    v_mov_b32 v{t2}, 0xff
    v_cndmask_b32_e64 v{key}, v{t2}, v{key}, s[24:25]
    """)
    for s in range(2):
        for q in range(4):
            d = (vB0 if s == 0 else vB1) + q
            st(f"""
            v_cmp_eq_u32 s[24:25], {4*s+q}, v{key}
            v_cndmask_b32_e64 v{d}, 0, v{val}, s[24:25]
            """)

def gen_k0(name):
    st = St()
    prologue(st, name, """
    s_load_dwordx2 s[32:33], s[0:1], 8
    s_load_dwordx4 s[36:39], s[0:1], 16
    s_load_dwordx2 s[40:41], s[0:1], 32
    s_load_dwordx4 s[44:47], s[0:1], 48
    """)
    vB0, vB1 = 8, 12
    emit_selectors(st, vB0, vB1, 20)
    st("""
    v_and_b32 v20, 15, v0
    v_lshrrev_b32 v21, 4, v0
    v_lshrrev_b32 v4, 2, v20
    v_lshlrev_b32 v4, 3, v4
    v_and_b32 v22, 3, v20
    v_add_u32 v4, v4, v22
    v_lshrrev_b32 v22, 1, v21
    v_lshl_add_u32 v4, v22, 2, v4
    v_and_b32 v5, 1, v21
    v_lshlrev_b32 v5, 4, v5
    v_lshlrev_b32 v6, 4, v0
    s_lshl_b32 s26, s2, 2
    s_add_u32 s26, s26, s22
    """)
    for i in range(4):
        st(f"""
        s_add_u32 s27, s26, {1024*i}
        s_cmp_ge_u32 s27, {NFRAG}
        s_cbranch_scc1 L_done_{name}
        s_lshr_b32 s28, s27, 4
        s_and_b32 s29, s27, 15
        s_mov_b32 s48, s32
        s_mov_b32 s49, s33
        s_mov_b32 s50, s28
        s_mov_b32 s51, 1024
        """)
        for T0, reg, stride in ((T_WOA, 40, 1024), (T_WOB, 46, 1024), (T_WQKV, 44, 3072), (T_WK, 36, 32), (T_WV, 38, 32)):
            st(f"""
            s_sub_u32 s52, s28, {T0}
            s_cmp_ge_u32 s28, {T0}
            s_cselect_b32 s48, s{reg}, s48
            s_cselect_b32 s49, s{reg+1}, s49
            s_cselect_b32 s50, s52, s50
            s_cselect_b32 s51, {stride}, s51
            """)
        st(f"""
        s_lshl_b32 s29, s29, 5
        s_lshl_b32 s50, s50, 5
        v_add_u32 v20, s29, v4
        v_mul_lo_u32 v20, v20, s51
        v_add_u32 v20, v20, v5
        v_add_u32 v20, s50, v20
        global_load_dwordx4 v[24:27], v20, s[48:49]
        s_lshl_b32 s27, s27, 10
        s_waitcnt vmcnt(0)
        v_mfma_f32_16x16x32_bf16 v[28:31], v[24:27], v[{vB0}:{vB0+3}], 0
        v_mfma_f32_16x16x32_bf16 v[32:35], v[24:27], v[{vB1}:{vB1+3}], 0
        v_cvt_pk_bf16_f32 v36, v28, v29
        v_cvt_pk_bf16_f32 v37, v30, v31
        v_cvt_pk_bf16_f32 v38, v32, v33
        v_cvt_pk_bf16_f32 v39, v34, v35
        buffer_store_dwordx4 v[36:39], v6, s[8:11], s27 offen
        """)
    st.label(f"L_done_{name}")
    st("s_waitcnt vmcnt(0)")
    return kernel_text(name, st, vgpr=64, accum=64)

LDS_X = 0
RING = 8

def lds_stat_base(ns): return ns * 16384
def lds_priv_base(ns): return ns * 16384 + 2560

class G:
    vLane16 = 1
    vXA = 2
    vT = 6
    vGq = 7
    vOnes = 8
    vRing = 12
    vStatA = 44
    vStatW = 45
    vStatR = 46
    vPrivR = 47
    vTmp = 48
    vAcc = 64

def common_lane_setup(st, ns):
    g = G
    st(f"""
    v_lshlrev_b32 v{g.vLane16}, 4, v0
    v_and_b32 v{g.vT}, 15, v0
    v_lshrrev_b32 v{g.vGq}, 4, v0
    """)
    for jg in range(4):
        st(f"""
        s_add_u32 s23, s22, {jg}
        s_and_b32 s23, s23, 3
        s_mul_i32 s23, s23, {ns*4096}
        v_add_u32 v{g.vXA+jg}, s23, v{g.vLane16}
        """)
    for q in range(4):
        st(f"v_mov_b32 v{g.vOnes+q}, 0x3f803f80")

def load_weights(st, dst, tile_sgpr_expr_setup, sT, tag):
    g = G
    for jg in range(4):
        st(f"""
        s_add_u32 s23, s22, {jg}
        s_and_b32 s23, s23, 3
        s_lshl_b32 s23, s23, 12
        s_add_u32 s23, s23, s{sT}
        """)
        for q in range(4):
            b = dst[1] + 4 * (4 * jg + q)
            st.i(f"buffer_load_dwordx4 {rr((dst[0], b), 4)}, v{g.vLane16}, s[8:11], s23 offen offset:{q*1024}", vm=f"{tag}{4*jg+q}")

def dma_act(st, ns, src_off, sTile0, tag, clamp0=False):
    g = G
    for s in range(ns):
        if clamp0 and s == 0:
            st(f"""
            s_max_i32 s23, s{sTile0}, 0
            """)
        else:
            st(f"s_add_u32 s23, s{sTile0}, {s}")
        st(f"""
        s_lshl_b32 s23, s23, 14
        s_lshl_b32 s24, s22, 12
        s_add_u32 s23, s23, s24
        s_add_u32 s23, s23, {src_off}
        s_mul_i32 s24, s22, {ns*4096}
        s_add_u32 m0, s24, {LDS_X + s*4096}
        """)
        for q in range(4):
            st.i(f"buffer_load_dwordx4 v{g.vLane16}, s[8:11], s23 offen offset:{q*1024} lds", vm=f"{tag}{s}_{q}")

def dma_rowmajor(st, ns, sTile0, tag, vtmp):
    g = G
    st(f"""
    v_lshlrev_b32 v{vtmp}, 10, v{g.vT}
    v_lshl_add_u32 v{vtmp}, v{g.vGq}, 4, v{vtmp}
    """)
    for s in range(ns):
        for q in range(4):
            st(f"""
            s_add_u32 s23, s{sTile0}, {s}
            s_lshl_b32 s23, s23, 14
            s_lshl_b32 s24, s22, 8
            s_add_u32 s23, s23, s24
            s_add_u32 s23, s23, {q*64}
            s_mul_i32 s24, s22, {ns*4096}
            s_add_u32 m0, s24, {LDS_X + s*4096 + q*1024}
            """)
            st.i(f"buffer_load_dwordx4 v{vtmp}, s[12:15], s23 offen lds", vm=f"{tag}{s}_{q}")

def stats_setup(st, ns):
    g = G
    sb = lds_stat_base(ns); pb = lds_priv_base(ns)
    dummy = pb + 4 * 128
    st(f"""
    v_lshrrev_b32 v{g.vTmp}, 2, v{g.vT}
    v_cmp_eq_u32 s[30:31], v{g.vTmp}, v{g.vGq}
    v_lshlrev_b32 v{g.vStatW}, 5, v{g.vT}
    s_lshl_b32 s23, s22, 2
    s_add_u32 s23, s23, {sb}
    v_add_u32 v{g.vStatW}, s23, v{g.vStatW}
    v_mov_b32 v{g.vTmp}, {dummy}
    v_cndmask_b32_e64 v{g.vStatW}, v{g.vTmp}, v{g.vStatW}, s[30:31]
    v_lshlrev_b32 v{g.vStatR}, 5, v{g.vT}
    v_add_u32 v{g.vStatR}, {sb}, v{g.vStatR}
    s_lshl_b32 s23, s22, 7
    s_add_u32 s23, s23, {pb}
    v_lshlrev_b32 v{g.vStatA}, 2, v{g.vT}
    v_add_u32 v{g.vStatA}, s23, v{g.vStatA}
    v_lshlrev_b32 v{g.vPrivR}, 4, v{g.vGq}
    v_add_u32 v{g.vPrivR}, s23, v{g.vPrivR}
    s_mov_b32 s32, 0x22222222
    s_mov_b32 s33, 0x22222222
    s_mov_b32 s34, 0x44444444
    s_mov_b32 s35, 0x44444444
    s_mov_b32 s36, 0x88888888
    s_mov_b32 s37, 0x88888888
    """)

def gemm_steps(ns, chains, tagx, stats, vStatG=None, vStatS=None, xtag_fmt=None, extra_wait=None):
    g = G
    steps = []
    total = ns * 16
    def rd(idx):
        s, jj = divmod(idx, 16)
        ring = g.vRing + 4 * (idx % RING)
        return f"ds_read_b128 {vr(ring, 4)}, v{g.vXA + (jj >> 2)} offset:{s*4096 + (jj & 3)*1024}"
    pre = St()
    pre.wv(f"{tagx}0_3")
    pre("s_barrier")
    for idx in range(RING):
        pre.i(rd(idx), lds=f"x{idx}")
    steps.append(pre)
    for idx in range(total):
        s, jj = divmod(idx, 16)
        stp = St()
        ring = g.vRing + 4 * (idx % RING)
        if idx % 2 == 0:
            stp.wl(f"x{min(idx+1, total-1)}")
        first = True
        ms = []
        for (acc, w, w_is_A) in chains(s):
            wreg = rr((w[0], w[1] + 4 * jj), 4)
            c = "0" if jj == 0 and acc[1] else vr(acc[0], 4)
            if w_is_A:
                ms.append(f"v_mfma_f32_16x16x32_bf16 {vr(acc[0],4)}, {wreg}, {vr(ring,4)}, {c}")
            else:
                ms.append(f"v_mfma_f32_16x16x32_bf16 {vr(acc[0],4)}, {vr(ring,4)}, {wreg}, {c}")
        if stats and jj < 4:
            cg = "0" if jj == 0 else vr(vStatG, 4)
            cs = "0" if jj == 0 else vr(vStatS, 4)
            ms.append(f"v_mfma_f32_16x16x32_bf16 {vr(vStatG,4)}, {vr(ring,4)}, {vr(ring,4)}, {cg}")
            ms.append(f"v_mfma_f32_16x16x32_bf16 {vr(vStatS,4)}, {vr(g.vOnes,4)}, {vr(ring,4)}, {cs}")
        for mi in ms: stp(mi)
        nxt = idx + RING
        if nxt < total:
            if nxt % 16 == 0:
                stp.wv(f"{tagx}{nxt//16}_3")
                if stats: stp.wl(f"sw{s}")
                stp("s_barrier")
            stp.i(rd(nxt), lds=f"x{nxt}")
        elif stats and nxt == total:
            stp.wl(f"sw{s}")
            stp("s_barrier")
        steps.append(stp)
    return steps

def stats_extract(s, vStatG, vStatS, ns):
    g = G
    st = St()
    t = g.vTmp
    st(f"""
    v_cndmask_b32_e64 v{t}, v{vStatG}, v{vStatG+1}, s[32:33]
    v_cndmask_b32_e64 v{t}, v{t}, v{vStatG+2}, s[34:35]
    v_cndmask_b32_e64 v{t}, v{t}, v{vStatG+3}, s[36:37]
    """)
    st.i(f"ds_write_b32 v{g.vStatW}, v{vStatS} offset:{s*512}")
    st.i(f"ds_write_b32 v{g.vStatW}, v{t} offset:{s*512 + 16}", lds=f"sw{s}")
    return st

def stats_finalize(s, vR, vN, tmp):
    g = G
    st = St()
    a = tmp
    st.i(f"ds_read_b128 {vr(a,4)}, v{g.vStatR} offset:{s*512}")
    st.i(f"ds_read_b128 {vr(a+4,4)}, v{g.vStatR} offset:{s*512+16}", lds=f"sr{s}")
    st.it.append(("gap", 2, None, None))
    st.wl(f"sr{s}")
    st(f"""
    v_add_f32 v{a}, v{a}, v{a+1}
    v_add_f32 v{a+2}, v{a+2}, v{a+3}
    v_add_f32 v{a+4}, v{a+4}, v{a+5}
    v_add_f32 v{a+6}, v{a+6}, v{a+7}
    v_add_f32 v{a}, v{a}, v{a+2}
    v_add_f32 v{a+4}, v{a+4}, v{a+6}
    v_mul_f32 v{a}, {f32(1.0/512)}, v{a}
    v_mul_f32 v{a+4}, {f32(1.0/512)}, v{a+4}
    v_fma_f32 v{a+4}, -v{a}, v{a}, v{a+4}
    v_max_f32 v{a+4}, 0, v{a+4}
    v_add_f32 v{a+4}, {f32(1e-5)}, v{a+4}
    v_rsq_f32 v{vR}, v{a+4}
    s_nop 0
    v_mul_f32 v{vN}, v{a}, v{vR}
    v_sub_f32 v{vN}, 0, v{vN}
    """)
    return st

def stats_vlayout(s, vR, vN, vR4, vN4):
    g = G
    st = St()
    st.i(f"ds_write_b32 v{g.vStatA}, v{vR}")
    st.i(f"ds_write_b32 v{g.vStatA}, v{vN} offset:64", lds=f"pw{s}")
    st.wl(f"pw{s}")
    st.i(f"ds_read_b128 {vr(vR4,4)}, v{g.vPrivR}")
    st.i(f"ds_read_b128 {vr(vN4,4)}, v{g.vPrivR} offset:64", lds=f"pr{s}")
    return st

def act_store_addr(st, vdst, tmp):
    g = G
    st(f"""
    s_lshl_b32 s23, s21, 11
    s_lshr_b32 s24, s22, 1
    s_lshl_b32 s24, s24, 10
    s_add_u32 s23, s23, s24
    s_and_b32 s24, s22, 1
    s_lshl_b32 s24, s24, 9
    s_add_u32 s23, s23, s24
    v_lshrrev_b32 v{tmp}, 1, v{g.vGq}
    v_lshlrev_b32 v{tmp}, 8, v{tmp}
    v_lshl_add_u32 v{tmp}, v{g.vT}, 4, v{tmp}
    v_and_b32 v{vdst}, 1, v{g.vGq}
    v_lshl_add_u32 v{vdst}, v{vdst}, 3, v{tmp}
    v_add_u32 v{vdst}, s23, v{vdst}
    """)

def row_addr(st, vdst):
    g = G
    st(f"""
    s_lshl_b32 s23, s21, 7
    s_lshl_b32 s24, s22, 5
    s_add_u32 s23, s23, s24
    v_lshlrev_b32 v{vdst}, 10, v{g.vT}
    v_lshl_add_u32 v{vdst}, v{g.vGq}, 3, v{vdst}
    v_add_u32 v{vdst}, s23, v{vdst}
    """)

def gen_p13(name, T0, src_act, resid, out):
    g = G
    st = St()
    loads = ""
    if resid[0] == "row": loads = "s_load_dwordx2 s[6:7], s[0:1], 0"
    if out[0] == "row": loads = "s_load_dwordx2 s[6:7], s[0:1], 64"
    prologue(st, name, loads)
    if resid[0] == "row" or out[0] == "row": srd_io(st, 6, 2048 * 1024)
    ns = 4
    common_lane_setup(st, ns)
    W = ("a", 0)
    st(f"""
    s_lshl_b32 s25, s21, 2
    s_add_u32 s25, s25, s22
    s_add_u32 s25, s25, {T0}
    s_lshl_b32 s25, s25, 14
    s_lshl_b32 s26, s20, 2
    """)
    load_weights(st, W, None, 25, "w")
    vActA, vRowA = 44, 45
    act_store_addr(st, vActA, g.vTmp)
    row_addr(st, vRowA)
    vRes = 80
    for s in range(ns):
        st(f"s_add_u32 s23, s26, {s}\ns_lshl_b32 s23, s23, 14")
        if resid[0] == "row":
            st.i(f"buffer_load_dwordx2 {vr(vRes+2*s,2)}, v{vRowA}, s[12:15], s23 offen", vm=f"r{s}")
        else:
            st(f"s_add_u32 s23, s23, {resid[1]}")
            st.i(f"buffer_load_dwordx2 {vr(vRes+2*s,2)}, v{vActA}, s[8:11], s23 offen", vm=f"r{s}")
    dma_act(st, ns, src_act, 26, "x")
    acc = g.vAcc
    st.wv("r3")
    for s in range(ns):
        a = acc + 4 * s
        st(f"""
        v_lshlrev_b32 v{a}, 16, v{vRes+2*s}
        v_and_b32 v{a+1}, 0xffff0000, v{vRes+2*s}
        v_lshlrev_b32 v{a+2}, 16, v{vRes+2*s+1}
        v_and_b32 v{a+3}, 0xffff0000, v{vRes+2*s+1}
        """)
    steps = gemm_steps(ns, lambda s: [((acc + 4 * s, False), W, True)], "x", False)
    def epi(s):
        e = St()
        a = acc + 4 * s
        p = 88 + 2 * s
        e(f"""
        v_cvt_pk_bf16_f32 v{p}, v{a}, v{a+1}
        v_cvt_pk_bf16_f32 v{p+1}, v{a+2}, v{a+3}
        s_add_u32 s27, s26, {s}
        s_lshl_b32 s27, s27, 14
        """)
        if out[0] == "act":
            e(f"s_add_u32 s27, s27, {out[1]}")
            e.i(f"buffer_store_dwordx2 {vr(p,2)}, v{vActA}, s[8:11], s27 offen")
        else:
            e.i(f"buffer_store_dwordx2 {vr(p,2)}, v{vRowA}, s[12:15], s27 offen")
        return e
    body = St()
    body.ext(steps[0])
    for s in range(ns):
        seg = steps[1 + 16 * s: 1 + 16 * (s + 1)]
        if s > 0:
            side = St(); side.it.append(("gap", 3, None, None)); side.ext(epi(s - 1))
            body.ext(weave(seg, side, per=2))
        else:
            for x in seg: body.ext(x)
    body.ext(epi(ns - 1))
    st.ext(body)
    st("s_waitcnt vmcnt(0)")
    return kernel_text(name, st)

def colsum(st, dst, W, w_is_A):
    g = G
    for jj in range(16):
        wreg = rr((W[0], W[1] + 4 * jj), 4)
        c = "0" if jj == 0 else vr(dst, 4)
        if w_is_A: st(f"v_mfma_f32_16x16x32_bf16 {vr(dst,4)}, {wreg}, {vr(g.vOnes,4)}, {c}")
        else:      st(f"v_mfma_f32_16x16x32_bf16 {vr(dst,4)}, {vr(g.vOnes,4)}, {wreg}, {c}")

def ln_epi_t(e, acc, vR, vN, vCS, pk, tmp):
    for r in range(4):
        e(f"v_mul_f32 v{tmp+r}, v{vN}, v{vCS+r}")
    for r in range(4):
        e(f"v_fma_f32 v{tmp+r}, v{acc+r}, v{vR}, v{tmp+r}")
    e(f"v_cvt_pk_bf16_f32 v{pk}, v{tmp}, v{tmp+1}")
    e(f"v_cvt_pk_bf16_f32 v{pk+1}, v{tmp+2}, v{tmp+3}")

def ln_epi_v(e, acc, vR4, vN4, vCS1, pk, tmp):
    for r in range(4):
        e(f"v_mul_f32 v{tmp+r}, v{vN4+r}, v{vCS1}")
    for r in range(4):
        e(f"v_fma_f32 v{tmp+r}, v{acc+r}, v{vR4+r}, v{tmp+r}")
    e(f"v_cvt_pk_bf16_f32 v{pk}, v{tmp}, v{tmp+1}")
    e(f"v_cvt_pk_bf16_f32 v{pk+1}, v{tmp+2}, v{tmp+3}")

def gen_p4(name, layer):
    g = G
    st = St()
    loads = "s_load_dwordx2 s[6:7], s[0:1], 0" if layer == 0 else ""
    prologue(st, name, loads)
    if layer == 0: srd_io(st, 6, 2048 * 1024)
    ns = 4
    common_lane_setup(st, ns)
    stats_setup(st, ns)
    Wq = ("a", 0); Wkv = ("a", 64)
    st(f"""
    s_lshl_b32 s25, s21, 2
    s_add_u32 s25, s25, s22
    s_add_u32 s25, s25, {T_WQ}
    s_lshl_b32 s25, s25, 14
    s_lshl_b32 s26, s20, 2
    s_lshr_b32 s38, s21, 1
    """)
    load_weights(st, Wq, None, 25, "w")
    st(f"""
    s_and_b32 s25, s21, 1
    s_add_u32 s25, s25, {T_WK}
    s_lshl_b32 s25, s25, 14
    """)
    load_weights(st, Wkv, None, 25, "wk")
    for s in range(ns):
        st(f"""
        s_add_u32 s23, s38, {s}
        s_and_b32 s23, s23, 3
        s_add_u32 s{40+s}, s26, s23
        """)
    if layer == 0:
        vtmp = g.vTmp + 8
        st(f"""
        v_lshlrev_b32 v{vtmp}, 10, v{g.vT}
        v_lshl_add_u32 v{vtmp}, v{g.vGq}, 4, v{vtmp}
        """)
        for s in range(ns):
            for q in range(4):
                st(f"""
                s_lshl_b32 s23, s{40+s}, 14
                s_lshl_b32 s24, s22, 8
                s_add_u32 s23, s23, s24
                s_add_u32 s23, s23, {q*64}
                s_mul_i32 s24, s22, {ns*4096}
                s_add_u32 m0, s24, {LDS_X + s*4096 + q*1024}
                """)
                st.i(f"buffer_load_dwordx4 v{vtmp}, s[12:15], s23 offen lds", vm=f"x{s}_{q}")
    else:
        for s in range(ns):
            st(f"""
            s_lshl_b32 s23, s{40+s}, 14
            s_lshl_b32 s24, s22, 12
            s_add_u32 s23, s23, s24
            s_add_u32 s23, s23, {X2}
            s_mul_i32 s24, s22, {ns*4096}
            s_add_u32 m0, s24, {LDS_X + s*4096}
            """)
            for q in range(4):
                st.i(f"buffer_load_dwordx4 v{g.vLane16}, s[8:11], s23 offen offset:{q*1024} lds", vm=f"x{s}_{q}")
    vCSq, vCSk = 96, 100
    st.wv("wk15")
    colsum(st, vCSq, Wq, True)
    st("s_bitcmp1_b32 s21, 0")
    st(f"s_cbranch_scc1 L_csv_{name}")
    colsum(st, vCSk, Wkv, True)
    st(f"s_branch L_csd_{name}")
    st.label(f"L_csv_{name}")
    colsum(st, vCSk, Wkv, False)
    st.label(f"L_csd_{name}")
    acc = g.vAcc
    accKV_k, accKV_v = 80, 84
    vStatG, vStatS = 88, 92
    def chains(s):
        return [((acc + 4 * s, True), Wq, True)]
    steps = gemm_steps(ns, chains, "x", True, vStatG, vStatS)
    vR = [104 + s for s in range(ns)]; vN = [108 + s for s in range(ns)]
    vRq, vNq = 112, 113
    pk = 116
    tmp = g.vTmp + 8
    def epi(s):
        e = St()
        e(f"v_mul_f32 v{vRq}, {f32(CQ)}, v{vR[s]}\nv_mul_f32 v{vNq}, {f32(CQ)}, v{vN[s]}")
        ln_epi_t(e, acc + 4 * s, vRq, vNq, vCSq, pk + 2 * s, tmp)
        return e
    body = St()
    body.ext(steps[0])
    for s in range(ns):
        seg = steps[1 + 16 * s: 1 + 16 * (s + 1)]
        a = seg[:4]; b = seg[4:9]; c = seg[9:]
        if s > 0:
            side = St(); side.it.append(("gap", 2, None, None)); side.ext(epi(s - 1))
            body.ext(weave(a, side, per=2))
        else:
            for x in a: body.ext(x)
        side = St(); side.it.append(("gap", 2, None, None)); side.ext(stats_extract(s, vStatG, vStatS, ns))
        bb = weave(b[:4], side, per=2)
        body.ext(bb); body.ext(b[4])
        body.ext(weave(c, stats_finalize(s, vR[s], vN[s], g.vTmp), per=2))
    body.ext(epi(ns - 1))
    st.ext(body)
    st(f"s_cmp_lg_u32 s22, 0\ns_cbranch_scc1 L_nokv_{name}")
    st("s_bitcmp1_b32 s21, 0")
    st(f"s_cbranch_scc1 L_v_{name}")
    for variant in ("k", "v"):
        if variant == "v": st.label(f"L_v_{name}")
        a = 80
        for j in range(16):
            ring = g.vRing + 4 * (j % RING)
            if j % RING == 0:
                for u in range(RING):
                    jj = j + u
                    st.i(f"ds_read_b128 {vr(g.vRing+4*u,4)}, v{g.vXA+(jj>>2)} offset:{(jj&3)*1024}", lds=f"kv{variant}{jj}")
            st.wl(f"kv{variant}{j}")
            c = "0" if j == 0 else vr(a, 4)
            wreg = rr((Wkv[0], Wkv[1] + 4 * j), 4)
            if variant == "k": st(f"v_mfma_f32_16x16x32_bf16 {vr(a,4)}, {wreg}, {vr(ring,4)}, {c}")
            else:              st(f"v_mfma_f32_16x16x32_bf16 {vr(a,4)}, {vr(ring,4)}, {wreg}, {c}")
        e = St()
        e(f"""
        s_lshr_b32 s23, s40, 1
        s_lshl_b32 s23, s23, 10
        s_and_b32 s24, s40, 1
        """)
        if variant == "k":
            ln_epi_t(e, a, vR[0], vN[0], vCSk, 84, tmp)
            e(f"""
            s_lshl_b32 s24, s24, 8
            s_add_u32 s23, s23, s24
            s_add_u32 s23, s23, {KF[layer]}
            v_lshrrev_b32 v{tmp}, 1, v{g.vGq}
            v_lshlrev_b32 v{tmp}, 9, v{tmp}
            v_lshl_add_u32 v{tmp}, v{g.vT}, 4, v{tmp}
            v_and_b32 v{tmp+1}, 1, v{g.vGq}
            v_lshl_add_u32 v{tmp}, v{tmp+1}, 3, v{tmp}
            """)
            e.i(f"buffer_store_dwordx2 v[84:85], v{tmp}, s[8:11], s23 offen")
            e(f"s_branch L_nokv_{name}")
        else:
            e.ext(stats_vlayout(9, vR[0], vN[0], 56, 60))
            e.wl("pr9")
            ln_epi_v(e, a, 56, 60, vCSk, 84, 48)
            e(f"""
            s_lshl_b32 s24, s24, 9
            s_add_u32 s23, s23, s24
            s_add_u32 s23, s23, {VF[layer]}
            v_and_b32 v48, 1, v{g.vGq}
            v_lshlrev_b32 v48, 8, v48
            v_lshl_add_u32 v48, v{g.vT}, 4, v48
            v_lshrrev_b32 v49, 1, v{g.vGq}
            v_lshl_add_u32 v48, v49, 3, v48
            """)
            e.i(f"buffer_store_dwordx2 v[84:85], v48, s[8:11], s23 offen")
        st.ext(e)
    st.label(f"L_nokv_{name}")
    st(f"""
    v_lshrrev_b32 v48, 1, v{g.vGq}
    v_lshlrev_b32 v48, 9, v48
    v_lshl_add_u32 v48, v{g.vT}, 4, v48
    v_and_b32 v49, 1, v{g.vGq}
    v_lshl_add_u32 v48, v49, 3, v48
    s_lshl_b32 s25, s20, 3
    s_add_u32 s25, s25, s21
    s_lshl_b32 s25, s25, 2
    s_add_u32 s25, s25, s22
    s_lshl_b32 s25, s25, 11
    s_add_u32 s25, s25, {QF[layer]}
    """)
    for s in range(ns):
        st(f"""
        s_and_b32 s23, s{40+s}, 3
        s_lshr_b32 s24, s23, 1
        s_lshl_b32 s24, s24, 10
        s_and_b32 s23, s23, 1
        s_lshl_b32 s23, s23, 8
        s_add_u32 s23, s23, s24
        s_add_u32 s23, s23, s25
        """)
        st.i(f"buffer_store_dwordx2 {vr(pk+2*s,2)}, v48, s[8:11], s23 offen")
    st("s_waitcnt vmcnt(0)")
    return kernel_text(name, st)

def gen_p2(name, src_act, out_act):
    g = G
    st = St()
    prologue(st, name)
    ns = 5
    common_lane_setup(st, ns)
    stats_setup(st, ns)
    Wq, Wk, Wv = ("a", 0), ("a", 64), ("a", 128)
    st(f"""
    s_lshl_b32 s25, s21, 2
    s_add_u32 s25, s25, s22
    s_add_u32 s25, s25, {T_WQKV}
    s_lshl_b32 s25, s25, 14
    """)
    load_weights(st, Wq, None, 25, "wq")
    st(f"s_add_u32 s25, s25, {32*16384}")
    load_weights(st, Wk, None, 25, "wk")
    st(f"s_add_u32 s25, s25, {32*16384}")
    load_weights(st, Wv, None, 25, "wv")
    st("""
    s_lshl_b32 s26, s20, 2
    s_sub_u32 s26, s26, 1
    """)
    dma_act(st, ns, src_act, 26, "x", clamp0=True)
    vActA = 96
    act_store_addr(st, vActA, g.vTmp)
    vMo, vMp, vMp0 = 100, 104, 108
    NEG = f32(-1.0e30)
    st(f"v_mov_b32 v{g.vTmp+2}, {NEG}")
    for r in range(4):
        st(f"""
        v_lshl_add_u32 v{g.vTmp}, v{g.vGq}, 2, {r}
        v_sub_u32 v{g.vTmp}, v{g.vT}, v{g.vTmp}
        v_and_b32 v{g.vTmp+1}, 0x80000001, v{g.vTmp}
        v_cmp_eq_u32 s[28:29], 0, v{g.vTmp+1}
        v_cndmask_b32_e64 v{vMo+r}, v{g.vTmp+2}, 0, s[28:29]
        v_cmp_gt_i32 s[38:39], -1, v{g.vTmp}
        v_and_b32 v{g.vTmp+1}, 1, v{g.vTmp}
        v_cmp_eq_u32 s[28:29], 0, v{g.vTmp+1}
        s_and_b64 s[28:29], s[28:29], s[38:39]
        v_cndmask_b32_e64 v{vMp+r}, v{g.vTmp+2}, 0, s[28:29]
        """)
    st("s_cmp_eq_u32 s20, 0\ns_cselect_b64 s[28:29], -1, 0")
    for r in range(4):
        st(f"v_cndmask_b32_e64 v{vMp0+r}, v{vMp+r}, v{g.vTmp+2}, s[28:29]")
    vCSq, vCSk, vCSv = 112, 116, 120
    st.wv("wv15")
    colsum(st, vCSq, Wq, True)
    colsum(st, vCSk, Wk, True)
    colsum(st, vCSv, Wv, False)
    accq, acck, accv = 64, 68, 72
    def A(base, s): return base + 12 * (s & 1)
    vStatG, vStatS = 88, 92
    def chains(s):
        c = []
        if s > 0: c.append(((A(accq, s), True), Wq, True))
        c.append(((A(acck, s), True), Wk, True))
        c.append(((A(accv, s), True), Wv, False))
        return c
    steps = gemm_steps(ns, chains, "x", True, vStatG, vStatS)
    vR, vN = 124, 125
    vRq, vNq = 128, 129
    vR4, vN4 = 132, 136
    pq = 140
    pk = 142
    pv = 148
    tmp = 56
    S = 160
    P = 168
    O = 172; L = 176; MX = 180; T2 = 181
    def epi(s):
        e = St()
        R, N = vR + 2 * (s & 1), vN + 2 * (s & 1)
        e.ext(stats_vlayout(s, R, N, vR4, vN4))
        ln_epi_t(e, A(acck, s), R, N, vCSk, pk + 2 * (s & 1), tmp)
        if s > 0:
            e(f"v_mul_f32 v{vRq}, {f32(CQ)}, v{R}\nv_mul_f32 v{vNq}, {f32(CQ)}, v{N}")
            ln_epi_t(e, A(accq, s), vRq, vNq, vCSq, pq, tmp)
        e.wl(f"pr{s}")
        ln_epi_v(e, A(accv, s), vR4, vN4, vCSv, pv + 2 * s, tmp)
        if s == 0: return e
        kp = pk + 2 * ((s - 1) & 1); ko = pk + 2 * (s & 1)
        mp = vMp0 if s == 1 else vMp
        e(f"v_mfma_f32_16x16x16_bf16 {vr(S,4)}, {vr(kp,2)}, {vr(pq,2)}, {vr(mp,4)}")
        e(f"v_mfma_f32_16x16x16_bf16 {vr(S+4,4)}, {vr(ko,2)}, {vr(pq,2)}, {vr(vMo,4)}")
        e.it.append(("gap", 3, None, None))
        e(f"""
        v_max3_f32 v{MX}, v{S}, v{S+1}, v{S+2}
        v_max3_f32 v{T2}, v{S+3}, v{S+4}, v{S+5}
        v_max3_f32 v{MX}, v{MX}, v{S+6}, v{S+7}
        v_max_f32 v{MX}, v{MX}, v{T2}
        v_mov_b32 v{T2}, v{MX}
        v_permlane32_swap_b32 v{T2}, v{MX}
        v_max_f32 v{MX}, v{MX}, v{T2}
        v_mov_b32 v{T2}, v{MX}
        v_permlane16_swap_b32 v{T2}, v{MX}
        v_max_f32 v{MX}, v{MX}, v{T2}
        """)
        for r in range(8): e(f"v_sub_f32 v{S+r}, v{S+r}, v{MX}")
        for r in range(8): e(f"v_exp_f32 v{S+r}, v{S+r}")
        for r in range(4): e(f"v_cvt_pk_bf16_f32 v{P+r}, v{S+2*r}, v{S+2*r+1}")
        e(f"v_mfma_f32_16x16x32_bf16 {vr(O,4)}, {vr(pv+2*(s-1),4)}, {vr(P,4)}, 0")
        e(f"v_mfma_f32_16x16x32_bf16 {vr(L,4)}, {vr(g.vOnes,4)}, {vr(P,4)}, 0")
        e.it.append(("gap", 3, None, None))
        e(f"v_rcp_f32 v{L}, v{L}")
        for r in range(4): e(f"v_mul_f32 v{O+r}, v{O+r}, v{L}")
        e(f"""
        v_cvt_pk_bf16_f32 v{P}, v{O}, v{O+1}
        v_cvt_pk_bf16_f32 v{P+1}, v{O+2}, v{O+3}
        s_add_u32 s27, s26, {s}
        s_lshl_b32 s27, s27, 14
        s_add_u32 s27, s27, {out_act}
        """)
        e.i(f"buffer_store_dwordx2 {vr(P,2)}, v{vActA}, s[8:11], s27 offen")
        return e
    body = St()
    body.ext(steps[0])
    for s in range(ns):
        seg = steps[1 + 16 * s: 1 + 16 * (s + 1)]
        R, N = vR + 2 * (s & 1), vN + 2 * (s & 1)
        side_a = St()
        if s > 0:
            side_a.it.append(("gap", 2, None, None)); side_a.ext(epi(s - 1))
        q = list(side_a.it)
        def take(n):
            nonlocal q
            s1 = St(); cnt = 0
            while q and cnt < n:
                x = q.pop(0); s1.it.append(x)
                if x[0] == "i": cnt += 1
            return s1
        nm = len(chains(s))
        body.ext(weave(seg[0:4], take(4 * (nm + 2) * 2 - 6), per=2))
        side = St(); side.it.append(("gap", 2, None, None)); side.ext(stats_extract(s, vStatG, vStatS, ns)); side.ext(take(4 * nm * 2 - 12))
        body.ext(weave(seg[4:8], side, per=2))
        body.ext(seg[8])
        side = stats_finalize(s, R, N, g.vTmp); rest = St(); rest.it = q; side.ext(rest)
        body.ext(weave(seg[9:16], side, per=2))
    body.ext(epi(ns - 1))
    st.ext(body)
    st("s_waitcnt vmcnt(0)")
    return kernel_text(name, st)

LDS_K = 0
LDS_V = 65536
ATTV = os.environ.get("ATTV", "")
VSTRIDE = 1056
ATT_LDS = LDS_V + 66 * VSTRIDE

def att_iter(st, t_par, koff, voff, SA, SB, PA, PB, OA_, OB_, QA, QB, KB, VB, vK, vV0, vV1, safe=None):
    Kc = KB + 4 * t_par
    Kn = KB + 4 * (1 - t_par)
    Vp = VB + 8 * (1 - t_par)
    Vc = VB + 8 * t_par
    def softmax(S, P, M):
        ins = []
        if M is not None:
            for r in range(16): ins.append(f"v_sub_f32 v{S+r}, v{S+r}, v{M}")
        for i in range(8):
            ins.append(f"v_exp_f32 v{S+2*i}, v{S+2*i}")
            ins.append(f"v_exp_f32 v{S+2*i+1}, v{S+2*i+1}")
            if i > 0: ins.append(f"v_cvt_pk_bf16_f32 v{P+i-1}, v{S+2*i-2}, v{S+2*i-1}")
        ins.append(f"v_cvt_pk_bf16_f32 v{P+7}, v{S+14}, v{S+15}")
        return ins
    def mix(valu, ms):
        if "nopv" in ATTV:
            ms = [[x for x in m if not (x.startswith("v_mfma") and not x.endswith(", 0"))] for m in ms]
        if "noqk" in ATTV:
            ms = [[x for x in m if not (x.startswith("v_mfma") and x.endswith(", 0"))] for m in ms]
        if "noexp" in ATTV:
            valu = [x.replace("v_exp_f32", "v_mov_b32") for x in valu]
        if "nomfma" in ATTV:
            ms = [[x for x in m if not x.startswith("v_mfma")] for m in ms]
        n = len(valu); k = len(ms)
        for j in range(k):
            for x in ms[j]: st(x)
            for x in valu[j * n // k:(j + 1) * n // k]: st(x)
    mix(softmax(SA, PA, safe[0] if safe else None), [
        [f"v_mfma_f32_32x32x16_bf16 {vr(SB,16)}, {vr(Kc,4)}, {vr(QB,4)}, 0",
         f"ds_read_b128 {vr(Kc,4)}, v{vK} offset:{koff}"],
        [f"v_mfma_f32_32x32x16_bf16 {vr(OB_,16)}, {vr(Vp,4)}, {vr(PB,4)}, {vr(OB_,16)}",
         f"ds_read_b128 {vr(Vp,4)}, v{vV0} offset:{voff}"],
        [f"v_mfma_f32_32x32x16_bf16 {vr(OB_,16)}, {vr(Vp+4,4)}, {vr(PB+4,4)}, {vr(OB_,16)}",
         f"ds_read_b128 {vr(Vp+4,4)}, v{vV1} offset:{voff}"]])
    mix(softmax(SB, PB, safe[1] if safe else None), [
        [f"v_mfma_f32_32x32x16_bf16 {vr(SA,16)}, {vr(Kn,4)}, {vr(QA,4)}, 0"],
        [f"v_mfma_f32_32x32x16_bf16 {vr(OA_,16)}, {vr(Vc,4)}, {vr(PA,4)}, {vr(OA_,16)}"],
        [f"v_mfma_f32_32x32x16_bf16 {vr(OA_,16)}, {vr(Vc+4,4)}, {vr(PA+4,4)}, {vr(OA_,16)}",
         "s_waitcnt lgkmcnt(0)"]])

ATT_U = 8
def gen_att(name, layer):
    st = St()
    prologue(st, name)
    SA, SB, OA_, OB_ = 16, 32, 48, 64
    PA, PB, QA, QB, KB, VB = 80, 88, 96, 100, 104, 112
    vK, vV0, vV1, vL16 = 2, 3, 4, 1
    st(f"""
    v_lshlrev_b32 v{vL16}, 4, v0
    v_mov_b32 v{vK}, v{vL16}
    v_and_b32 v5, 31, v0
    v_lshrrev_b32 v6, 5, v0
    v_lshlrev_b32 v7, 8, v6
    v_lshl_add_u32 v7, v5, 4, v7
    v_add_u32 v7, {LDS_V}, v7
    v_mov_b32 v8, {LDS_V + 1024 + (0 if "allones" in ATTV else 16)}
    v_mov_b32 v9, {LDS_V + 1024}
    v_and_b32 v10, 27, v5
    v_cmp_eq_u32 s[28:29], 16, v10
    v_cndmask_b32_e64 v8, v8, v9, s[28:29]
    v_cmp_gt_u32 s[28:29], 16, v5
    v_cndmask_b32_e64 v{vV0}, v8, v7, s[28:29]
    v_add_u32 v7, 512, v7
    v_cndmask_b32_e64 v{vV1}, v8, v7, s[28:29]
    """)
    def dma_kv(t_sreg_expr, tag):
        pass
    st(f"""
    s_lshl_b32 s23, s22, 11
    s_add_u32 s24, s23, {KF[layer]}
    s_mov_b32 m0, s23
    """)
    st.i(f"buffer_load_dwordx4 v{vL16}, s[8:11], s24 offen lds")
    st.i(f"buffer_load_dwordx4 v{vL16}, s[8:11], s24 offen offset:1024 lds")
    st(f"""
    s_add_u32 s24, s23, {VF[layer]}
    s_mul_i32 s25, s22, {2*VSTRIDE}
    s_add_u32 m0, s25, {LDS_V}
    """)
    st.i(f"buffer_load_dwordx4 v{vL16}, s[8:11], s24 offen lds")
    st(f"s_add_u32 s24, s24, 1024\ns_add_u32 m0, m0, {VSTRIDE}")
    st.i(f"buffer_load_dwordx4 v{vL16}, s[8:11], s24 offen lds", vm="c0")
    st(f"""
    s_lshl_b32 s25, s20, 3
    s_add_u32 s25, s25, s21
    s_lshl_b32 s25, s25, 2
    s_add_u32 s25, s25, s22
    s_lshl_b32 s25, s25, 11
    s_add_u32 s25, s25, {QF[layer]}
    """)
    st.i(f"buffer_load_dwordx4 {vr(QA,4)}, v{vL16}, s[8:11], s25 offen")
    st.i(f"buffer_load_dwordx4 {vr(QB,4)}, v{vL16}, s[8:11], s25 offen offset:1024", vm="q")
    st(f"""
    s_mul_i32 s23, s22, {14*1024}
    s_add_u32 s23, s23, {8*1024}
    s_add_u32 s24, s23, {KF[layer]}
    s_mov_b32 m0, s23
    """)
    for i in range(14):
        st.i(f"buffer_load_dwordx4 v{vL16}, s[8:11], s24 offen offset:{(i&3)*1024} lds")
        if i & 3 == 3: st("s_add_u32 s24, s24, 4096\ns_add_u32 m0, m0, 4096")
    st(f"""
    s_add_u32 s24, s23, {VF[layer]}
    s_mul_i32 s25, s22, {14*VSTRIDE}
    s_add_u32 m0, s25, {LDS_V + 8*VSTRIDE}
    """)
    for i in range(14):
        st.i(f"buffer_load_dwordx4 v{vL16}, s[8:11], s24 offen lds", vm=("rest" if i == 13 else None))
        if i < 13: st(f"s_add_u32 s24, s24, 1024\ns_add_u32 m0, m0, {VSTRIDE}")
    st(f"""
    v_mov_b32 v8, 0x3f803f80
    v_mov_b32 v9, v8
    v_mov_b32 v10, v8
    v_mov_b32 v11, v8
    v_mul_u32_u24 v12, {VSTRIDE}, v0
    v_add_u32 v12, {LDS_V + 1024}, v12
    """)
    st(f"s_cmp_lg_u32 s22, 0\ns_cbranch_scc1 L_noones_{name}")
    st("ds_write_b128 v12, v[8:11]")
    st("v_mov_b32 v8, 0\nv_mov_b32 v9, 0\nv_mov_b32 v10, 0\nv_mov_b32 v11, 0")
    st("ds_write_b128 v12, v[8:11] offset:16")
    st.label(f"L_noones_{name}")
    for r in range(16):
        st(f"v_mov_b32 v{OA_+r}, 0\nv_mov_b32 v{OB_+r}, 0")
    for r in range(8):
        st(f"v_mov_b32 v{PB+r}, 0\nv_mov_b32 v{VB+8+r}, 0")
    st.wv("q")
    st("s_waitcnt lgkmcnt(0)\ns_barrier")
    st(f"""
    ds_read_b128 {vr(KB,4)}, v{vK}
    ds_read_b128 {vr(KB+4,4)}, v{vK} offset:1024
    ds_read_b128 {vr(VB,4)}, v{vV0}
    ds_read_b128 {vr(VB+4,4)}, v{vV1}
    s_waitcnt lgkmcnt(0)
    v_mfma_f32_32x32x16_bf16 {vr(SA,16)}, {vr(KB,4)}, {vr(QA,4)}, 0
    s_mov_b32 s30, 0
    """)
    if INSTR: st("s_memtime s[88:89]\ns_waitcnt lgkmcnt(0)")
    st.label(f"L_att_{name}")
    U = ATT_U
    loop = St()
    for u in range(U):
        if u == U - 3:
            loop(f"s_cmp_lg_u32 s30, 0\ns_cbranch_scc1 L_skipw_{name}\ns_waitcnt vmcnt(0)\ns_barrier")
            loop.label(f"L_skipw_{name}")
        att_iter(loop, u & 1, (u + 2) * 1024, (u + 1) * VSTRIDE, SA, SB, PA, PB, OA_, OB_, QA, QB, KB, VB, vK, vV0, vV1)
    loop(f"""
    v_add_u32 v{vK}, {U*1024}, v{vK}
    v_add_u32 v{vV0}, {U*VSTRIDE}, v{vV0}
    v_add_u32 v{vV1}, {U*VSTRIDE}, v{vV1}
    s_add_u32 s30, s30, 1
    s_cmp_lt_u32 s30, {64//U}
    s_cbranch_scc1 L_att_{name}
    """)
    st.ext(loop)
    if INSTR: st("s_memtime s[90:91]\ns_waitcnt lgkmcnt(0)\ns_sub_u32 s87, s90, s88")
    st(f"""
    v_mfma_f32_32x32x16_bf16 {vr(OB_,16)}, {vr(VB+8,4)}, {vr(PB,4)}, {vr(OB_,16)}
    v_mfma_f32_32x32x16_bf16 {vr(OB_,16)}, {vr(VB+12,4)}, {vr(PB+4,4)}, {vr(OB_,16)}
    """)
    st(f"""
    s_lshl_b32 s23, s21, 11
    s_lshr_b32 s24, s22, 1
    s_lshl_b32 s24, s24, 10
    s_add_u32 s23, s23, s24
    s_and_b32 s24, s22, 1
    s_lshl_b32 s24, s24, 9
    s_add_u32 s23, s23, s24
    s_lshl_b32 s24, s20, 16
    s_add_u32 s23, s23, s24
    s_add_u32 s23, s23, {OA[layer]}
    v_and_b32 v5, 15, v0
    v_lshlrev_b32 v5, 4, v5
    v_lshrrev_b32 v6, 5, v0
    v_lshl_add_u32 v5, v6, 3, v5
    v_bfe_u32 v6, v0, 4, 1
    v_lshl_add_u32 v5, v6, 14, v5
    """)
    for qb, O in ((0, OA_), (1, OB_)):
        st(f"v_rcp_f32 v8, v{O+8}")
        for r in range(8): st(f"v_mul_f32 v{O+r}, v{O+r}, v8")
        st(f"""
        v_cvt_pk_bf16_f32 v10, v{O}, v{O+1}
        v_cvt_pk_bf16_f32 v11, v{O+2}, v{O+3}
        v_cvt_pk_bf16_f32 v12, v{O+4}, v{O+5}
        v_cvt_pk_bf16_f32 v13, v{O+6}, v{O+7}
        """)
        st.i(f"buffer_store_dwordx2 v[10:11], v5, s[8:11], s23 offen")
        st.i(f"buffer_store_dwordx2 v[12:13], v5, s[8:11], s23 offen offset:256")
        if qb == 0: st("s_add_u32 s23, s23, 32768")
    st("s_waitcnt vmcnt(0)")
    return kernel_text(name, st)

def build(path):
    ks = []
    ks.append(("k0_kernel", gen_k0("k0_kernel"), 0))
    ks.append(("p4a_kernel", gen_p4("p4a_kernel", 0), 72 * 1024))
    ks.append(("att0_kernel", gen_att("att0_kernel", 0), ATT_LDS))
    ks.append(("p1a_kernel", gen_p13("p1a_kernel", T_WOA, OA[0], ("row",), ("act", X1)), 64 * 1024))
    ks.append(("p2a_kernel", gen_p2("p2a_kernel", X1, OB[0]), 90 * 1024))
    ks.append(("p3a_kernel", gen_p13("p3a_kernel", T_WOB, OB[0], ("act", X1), ("act", X2)), 64 * 1024))
    ks.append(("p4b_kernel", gen_p4("p4b_kernel", 1), 72 * 1024))
    ks.append(("att1_kernel", gen_att("att1_kernel", 1), ATT_LDS))
    ks.append(("p1b_kernel", gen_p13("p1b_kernel", T_WOA, OA[1], ("act", X2), ("act", X3)), 64 * 1024))
    ks.append(("p2b_kernel", gen_p2("p2b_kernel", X3, OB[1]), 90 * 1024))
    ks.append(("p3b_kernel", gen_p13("p3b_kernel", T_WOB, OB[1], ("act", X3), ("row",)), 64 * 1024))
    hdr = open("cdna_kernels/" + NAME + ".s.ref").read().split("; Override launch geometry")[0]
    out = hdr
    for n, _, lds in ks:
        out += f"; @launch kernel={n} grid=(256,1,1) block=(256,1,1) lds={lds}\n"
    out += '.amdgcn_target "amdgcn-amd-amdhsa--gfx950"\n'
    for n, t, _ in ks: out += t
    open(path, "w").write(out)

if __name__ == "__main__":
    build(sys.argv[1] if len(sys.argv) > 1 else "stage1.s")
```

```python
import sys, os
sys.path.insert(0, os.path.dirname(os.path.abspath(__file__)))
import gen
from gen import (St, weave, vr, ar, rr, f32, CQ, G, RING, LDS_X, prologue, srd_io, kernel_text, emit_selectors,
                 common_lane_setup, load_weights, stats_setup, gemm_steps, stats_extract, stats_finalize, stats_vlayout,
                 act_store_addr, row_addr, colsum, ln_epi_t, ln_epi_v, T_WQ, T_WOA, T_WOB, T_WQKV, T_WK, T_WV, NFRAG, NAME)
INSTR = gen.INSTR
OPT = os.environ.get("OPT", "")

KF0, VF0, KVS = 0x310000, 0x320000, 0x20000
QF0, QFS = 0x400000, 0x200000
B0, BS = 0x800000, 0x800000
XIN, OA, X1, OB = 0, 0x200000, 0x400000, 0x600000
FLAGS = 0x1900000
FLAG_BYTES = 0x8000
sKF, sVF, sQF, sXIN, sOA, sX1, sOB, sL, sFLAG = 48, 49, 50, 51, 52, 53, 54, 55, 56
SRD_OUT = 60
sSPIN = 45

def gen_k0(name):
    st = St()
    prologue(st, name, """
    s_load_dwordx2 s[32:33], s[0:1], 8
    s_load_dwordx4 s[36:39], s[0:1], 16
    s_load_dwordx2 s[40:41], s[0:1], 32
    s_load_dwordx4 s[44:47], s[0:1], 48
    s_load_dwordx2 s[6:7], s[0:1], 0
    """)
    vB0, vB1 = 8, 12
    st("""
    v_lshlrev_b32 v6, 4, v0
    s_lshl_b32 s26, s2, 2
    s_add_u32 s26, s26, s22
    """)
    st("""
    v_and_b32 v20, 15, v0
    v_lshrrev_b32 v21, 4, v0
    v_lshlrev_b32 v22, 10, v20
    v_lshl_add_u32 v22, v21, 4, v22
    s_lshr_b32 s27, s26, 3
    s_lshl_b32 s27, s27, 14
    s_and_b32 s28, s26, 7
    s_lshl_b32 s28, s28, 7
    s_add_u32 s27, s27, s28
    v_add_u32 v22, s27, v22
    global_load_dwordx4 v[40:43], v22, s[6:7]
    global_load_dwordx4 v[44:47], v22, s[6:7] offset:64
    """)
    st(f"""
    s_cmp_ge_u32 s26, {FLAG_BYTES // 1024}
    s_cbranch_scc1 L_nofl_{name}
    v_mov_b32 v48, 0
    v_mov_b32 v49, 0
    v_mov_b32 v50, 0
    v_mov_b32 v51, 0
    s_lshl_b32 s27, s26, 10
    s_add_u32 s27, s27, {FLAGS}
    buffer_store_dwordx4 v[48:51], v6, s[8:11], s27 offen
    """)
    st.label(f"L_nofl_{name}")
    emit_selectors(st, vB0, vB1, 20)
    st("""
    v_and_b32 v20, 15, v0
    v_lshrrev_b32 v21, 4, v0
    v_lshrrev_b32 v4, 2, v20
    v_lshlrev_b32 v4, 3, v4
    v_and_b32 v22, 3, v20
    v_add_u32 v4, v4, v22
    v_lshrrev_b32 v22, 1, v21
    v_lshl_add_u32 v4, v22, 2, v4
    v_and_b32 v5, 1, v21
    v_lshlrev_b32 v5, 4, v5
    """)
    for i in range(4):
        st(f"""
        s_add_u32 s27, s26, {1024*i}
        s_min_u32 s27, s27, {NFRAG-1}
        s_lshr_b32 s28, s27, 4
        s_and_b32 s29, s27, 15
        s_mov_b32 s48, s32
        s_mov_b32 s49, s33
        s_mov_b32 s50, s28
        s_mov_b32 s51, 1024
        """)
        for T0, reg, stride in ((T_WOA, 40, 1024), (T_WOB, 46, 1024), (T_WQKV, 44, 3072), (T_WK, 36, 32), (T_WV, 38, 32)):
            st(f"""
            s_sub_u32 s52, s28, {T0}
            s_cmp_ge_u32 s28, {T0}
            s_cselect_b32 s48, s{reg}, s48
            s_cselect_b32 s49, s{reg+1}, s49
            s_cselect_b32 s50, s52, s50
            s_cselect_b32 s51, {stride}, s51
            """)
        st(f"""
        s_lshl_b32 s29, s29, 5
        s_lshl_b32 s50, s50, 5
        v_add_u32 v20, s29, v4
        v_mul_lo_u32 v20, v20, s51
        v_add_u32 v20, v20, v5
        v_add_u32 v20, s50, v20
        global_load_dwordx4 v[{52+4*i}:{55+4*i}], v20, s[48:49]
        """)
    st(f"""
    s_lshl_b32 s27, s26, 11
    s_add_u32 s27, s27, {B0 + XIN}
    s_waitcnt vmcnt(4)
    buffer_store_dwordx4 v[40:43], v6, s[8:11], s27 offen
    buffer_store_dwordx4 v[44:47], v6, s[8:11], s27 offen offset:1024
    """)
    for i in range(4):
        st(f"""
        s_add_u32 s27, s26, {1024*i}
        s_cmp_ge_u32 s27, {NFRAG}
        s_cbranch_scc1 L_done_{name}
        s_lshl_b32 s27, s27, 10
        s_waitcnt vmcnt(5)
        v_mfma_f32_16x16x32_bf16 v[28:31], v[{52+4*i}:{55+4*i}], v[{vB0}:{vB0+3}], 0
        v_mfma_f32_16x16x32_bf16 v[32:35], v[{52+4*i}:{55+4*i}], v[{vB1}:{vB1+3}], 0
        v_cvt_pk_bf16_f32 v36, v28, v29
        v_cvt_pk_bf16_f32 v37, v30, v31
        v_cvt_pk_bf16_f32 v38, v32, v33
        v_cvt_pk_bf16_f32 v39, v34, v35
        buffer_store_dwordx4 v[36:39], v6, s[8:11], s27 offen
        """)
    st.label(f"L_done_{name}")
    st("s_waitcnt vmcnt(0)")
    return kernel_text(name, st, vgpr=80, accum=80)

NST = [0]
def stamp(st):
    if not INSTR: return
    k = NST[0]; NST[0] += 1
    st(f"s_memtime s[{64+2*k}:{65+2*k}]\ns_waitcnt lgkmcnt(0)")
def stamp_dump(st, slot):
    if not INSTR: return
    st("s_memrealtime s[98:99]\ns_waitcnt lgkmcnt(0)")
    for k in range(16): st(f"v_mov_b32 v{16+k}, s{64+2*k if k < NST[0] else 98}")
    st(f"""
    v_mov_b32 v31, s98
    s_lshl_b32 s23, s2, 2
    s_add_u32 s23, s23, s22
    s_lshl_b32 s23, s23, 6
    s_lshl_b32 s24, {slot}, 16
    s_add_u32 s23, s23, s24
    s_add_u32 s23, s23, {gen.TS_OFF}
    v_mov_b32 v8, 0
    s_mov_b64 exec, 1
    buffer_store_dwordx4 v[16:19], v8, s[8:11], s23 offen
    buffer_store_dwordx4 v[20:23], v8, s[8:11], s23 offen offset:16
    buffer_store_dwordx4 v[24:27], v8, s[8:11], s23 offen offset:32
    buffer_store_dwordx4 v[28:31], v8, s[8:11], s23 offen offset:48
    s_waitcnt vmcnt(0)
    s_mov_b64 exec, -1
    """)

vFLO, vFLP = 62, 63
def sync_publish(st, e, name):
    st(f"""
    s_waitcnt vmcnt(0)
    s_barrier
    s_cmp_lg_u32 s22, 0
    s_cbranch_scc1 L_np{e}_{name}
    s_lshl_b32 s23, s20, 7
    s_lshl_b32 s24, s21, 2
    s_add_u32 s23, s23, s24
    s_add_u32 s23, s23, s{sFLAG}
    s_add_u32 s23, s23, {e*0x1000}
    v_mov_b32 v{vFLO}, 1
    v_mov_b32 v{vFLP}, 0
    s_mov_b64 exec, 1
    buffer_store_dword v{vFLO}, v{vFLP}, s[8:11], s23 offen sc1
    s_mov_b64 exec, -1
    """)
    st.label(f"L_np{e}_{name}")

def sync_wait(st, e, name, halo=False):
    st(f"""
    v_and_b32 v{vFLP}, 7, v0
    v_lshlrev_b32 v{vFLP}, 2, v{vFLP}
    s_lshl_b32 s23, s20, 7
    """)
    if halo:
        st(f"""
        s_sub_u32 s24, s20, 1
        s_max_i32 s24, s24, 0
        s_lshl_b32 s24, s24, 7
        s_sub_u32 s24, s24, s23
        v_bfe_u32 v{vFLO}, v0, 3, 1
        v_mul_lo_u32 v{vFLO}, v{vFLO}, s24
        v_add_u32 v{vFLP}, v{vFLP}, v{vFLO}
        """)
    st(f"""
    v_add_u32 v{vFLP}, s23, v{vFLP}
    s_add_u32 s23, s{sFLAG}, {e*0x1000}
    s_mov_b32 s{sSPIN}, 0x10000
    """)
    st.label(f"L_poll{e}_{name}")
    st(f"""
    buffer_load_dword v{vFLO}, v{vFLP}, s[8:11], s23 offen sc1
    s_waitcnt vmcnt(0)
    v_cmp_ne_u32 vcc, 1, v{vFLO}
    s_sub_u32 s{sSPIN}, s{sSPIN}, 1
    s_cmp_eq_u32 s{sSPIN}, 0
    s_cbranch_scc1 L_pdone{e}_{name}
    s_cbranch_vccnz L_poll{e}_{name}
    """)
    st.label(f"L_pdone{e}_{name}")
    stamp(st)

def dma_act2(st, ns, sSrc, sTile0, tag, clamp0=False, tiles=None):
    g = G
    for s in range(ns):
        if tiles is not None: st(f"s_mov_b32 s23, s{tiles[s]}")
        elif clamp0 and s == 0: st(f"s_max_i32 s23, s{sTile0}, 0")
        else: st(f"s_add_u32 s23, s{sTile0}, {s}")
        st(f"""
        s_lshl_b32 s23, s23, 14
        s_lshl_b32 s24, s22, 12
        s_add_u32 s23, s23, s24
        s_add_u32 s23, s23, {sSrc}
        s_mul_i32 s24, s22, {ns*4096}
        s_add_u32 m0, s24, {LDS_X + s*4096}
        """)
        for q in range(4):
            st.i(f"buffer_load_dwordx4 v{g.vLane16}, s[8:11], s23 offen offset:{q*1024} sc1 lds", vm=f"{tag}{s}_{q}")

def wtile(st, T0, dst_sgpr=25):
    st(f"""
    s_lshl_b32 s{dst_sgpr}, s21, 2
    s_add_u32 s{dst_sgpr}, s{dst_sgpr}, s22
    s_add_u32 s{dst_sgpr}, s{dst_sgpr}, {T0}
    s_lshl_b32 s{dst_sgpr}, s{dst_sgpr}, 14
    """)

def load_w_block(st, dst, T0, tag, vL16):
    wtile(st, T0)
    for jg in range(4):
        st(f"""
        s_add_u32 s23, s22, {jg}
        s_and_b32 s23, s23, 3
        s_lshl_b32 s23, s23, 12
        s_add_u32 s23, s23, s25
        """)
        for q in range(4):
            b = dst[1] + 4 * (4 * jg + q)
            st.i(f"buffer_load_dwordx4 {rr((dst[0], b), 4)}, v{vL16}, s[8:11], s23 offen offset:{q*1024}", vm=f"{tag}{4*jg+q}")

W_Q2, W_K2, W_V2, W_O = ("a", 0), ("a", 64), ("a", 128), ("a", 192)

LDS_K, LDS_V, VSTRIDE = gen.LDS_K, gen.LDS_V, gen.VSTRIDE
ATT_LDS = gen.ATT_LDS
ATT_U = int(os.environ.get("ATT_U", "8"))
vRES = 240

def phase_att(st, name):
    SA, SB, OA_, OB_ = 16, 32, 48, 64
    PA, PB, QA, QB, KB, VB = 80, 88, 96, 100, 104, 112
    vK, vV0, vV1, vL16 = 2, 3, 4, 1
    st(f"""
    v_lshlrev_b32 v{vL16}, 4, v0
    """)
    st(f"""
    s_lshl_b32 s23, s22, 11
    s_add_u32 s24, s23, s{sKF}
    s_mov_b32 m0, s23
    """)
    st.i(f"buffer_load_dwordx4 v{vL16}, s[8:11], s24 offen lds")
    st.i(f"buffer_load_dwordx4 v{vL16}, s[8:11], s24 offen offset:1024 lds")
    st(f"""
    s_add_u32 s24, s23, s{sVF}
    s_mul_i32 s25, s22, {2*VSTRIDE}
    s_add_u32 m0, s25, {LDS_V}
    """)
    st.i(f"buffer_load_dwordx4 v{vL16}, s[8:11], s24 offen lds")
    st(f"s_add_u32 s24, s24, 1024\ns_add_u32 m0, m0, {VSTRIDE}")
    st.i(f"buffer_load_dwordx4 v{vL16}, s[8:11], s24 offen lds", vm="c0")
    st(f"""
    s_lshl_b32 s25, s20, 3
    s_add_u32 s25, s25, s21
    s_lshl_b32 s25, s25, 2
    s_add_u32 s25, s25, s22
    s_lshl_b32 s25, s25, 11
    s_add_u32 s25, s25, s{sQF}
    """)
    st.i(f"buffer_load_dwordx4 {vr(QA,4)}, v{vL16}, s[8:11], s25 offen")
    st.i(f"buffer_load_dwordx4 {vr(QB,4)}, v{vL16}, s[8:11], s25 offen offset:1024", vm="q")
    st(f"""
    s_mul_i32 s23, s22, {14*1024}
    s_add_u32 s23, s23, {8*1024}
    s_add_u32 s24, s23, s{sKF}
    s_mov_b32 m0, s23
    """)
    for i in range(14):
        st.i(f"buffer_load_dwordx4 v{vL16}, s[8:11], s24 offen offset:{(i&3)*1024} lds")
        if i & 3 == 3: st("s_add_u32 s24, s24, 4096\ns_add_u32 m0, m0, 4096")
    st(f"""
    s_add_u32 s24, s23, s{sVF}
    s_mul_i32 s25, s22, {14*VSTRIDE}
    s_add_u32 m0, s25, {LDS_V + 8*VSTRIDE}
    """)
    for i in range(14):
        st.i(f"buffer_load_dwordx4 v{vL16}, s[8:11], s24 offen lds", vm=("rest" if i == 13 else None))
        if i < 13: st(f"s_add_u32 s24, s24, 1024\ns_add_u32 m0, m0, {VSTRIDE}")
    st(f"""
    v_mov_b32 v{vK}, v{vL16}
    v_and_b32 v5, 31, v0
    v_lshrrev_b32 v6, 5, v0
    v_lshlrev_b32 v7, 8, v6
    v_lshl_add_u32 v7, v5, 4, v7
    v_add_u32 v7, {LDS_V}, v7
    v_mov_b32 v16, {LDS_V + 1024 + 16}
    v_mov_b32 v17, {LDS_V + 1024}
    v_and_b32 v18, 27, v5
    v_cmp_eq_u32 s[28:29], 16, v18
    v_cndmask_b32_e64 v16, v16, v17, s[28:29]
    v_cmp_gt_u32 s[28:29], 16, v5
    v_cndmask_b32_e64 v{vV0}, v16, v7, s[28:29]
    v_add_u32 v7, 512, v7
    v_cndmask_b32_e64 v{vV1}, v16, v7, s[28:29]
    """)
    g = G
    st(f"v_and_b32 v{g.vT}, 15, v0\nv_lshrrev_b32 v{g.vGq}, 4, v0")
    act_store_addr(st, 5, 16)
    st("s_lshl_b32 s26, s20, 2")
    for s in range(4):
        st(f"s_add_u32 s23, s26, {s}\ns_lshl_b32 s23, s23, 14\ns_add_u32 s23, s23, s{sXIN}")
        st.i(f"buffer_load_dwordx2 {vr(vRES+2*s,2)}, v5, s[8:11], s23 offen")
    load_w_block(st, W_O, T_WOA, "woa", vL16)
    st(f"""
    v_mov_b32 v16, 0x3f803f80
    v_mov_b32 v17, v16
    v_mov_b32 v18, v16
    v_mov_b32 v19, v16
    v_mul_u32_u24 v20, {VSTRIDE}, v0
    v_add_u32 v20, {LDS_V + 1024}, v20
    s_cmp_lg_u32 s22, 0
    s_cbranch_scc1 L_noones_{name}
    ds_write_b128 v20, v[16:19]
    v_mov_b32 v16, 0
    v_mov_b32 v17, 0
    v_mov_b32 v18, 0
    v_mov_b32 v19, 0
    ds_write_b128 v20, v[16:19] offset:16
    """)
    st.label(f"L_noones_{name}")
    def init_acc(s):
        for r in range(16):
            s(f"v_mov_b32 v{OA_+r}, 0\nv_mov_b32 v{OB_+r}, 0")
        for r in range(8):
            s(f"v_mov_b32 v{PB+r}, 0\nv_mov_b32 v{VB+8+r}, 0")
    def first_reads(s):
        s(f"""
        ds_read_b128 {vr(KB,4)}, v{vK}
        ds_read_b128 {vr(KB+4,4)}, v{vK} offset:1024
        ds_read_b128 {vr(VB,4)}, v{vV0}
        ds_read_b128 {vr(VB+4,4)}, v{vV1}
        s_waitcnt lgkmcnt(0)
        v_mfma_f32_32x32x16_bf16 {vr(SA,16)}, {vr(KB,4)}, {vr(QA,4)}, 0
        """)
    init_acc(st)
    st.wv("q")
    st("s_waitcnt lgkmcnt(0)\ns_barrier")
    first_reads(st)
    st("s_mov_b32 s44, 0")
    stamp(st)
    st.label(f"L_att_{name}")
    U = ATT_U
    ntrip = 64 // U
    for u in range(U):
        if u == 5:
            st(f"s_cmp_lg_u32 s44, 0\ns_cbranch_scc1 L_skipw_{name}")
            st.wv("rest")
            st("s_barrier")
            load_w_block(st, W_Q2, T_WQKV, "wq2", vL16)
            load_w_block(st, W_K2, T_WQKV + 32, "wk2", vL16)
            load_w_block(st, W_V2, T_WQKV + 64, "wv2", vL16)
            st.label(f"L_skipw_{name}")
        gen.att_iter(st, u & 1, (u + 2) * 1024, (u + 1) * VSTRIDE, SA, SB, PA, PB, OA_, OB_, QA, QB, KB, VB, vK, vV0, vV1)
    st(f"""
    v_add_u32 v{vK}, {U*1024}, v{vK}
    v_add_u32 v{vV0}, {U*VSTRIDE}, v{vV0}
    v_add_u32 v{vV1}, {U*VSTRIDE}, v{vV1}
    s_add_u32 s44, s44, 1
    s_cmp_lt_u32 s44, {ntrip}
    s_cbranch_scc1 L_att_{name}
    """)
    stamp(st)
    def tail(s):
        s(f"""
        v_mfma_f32_32x32x16_bf16 {vr(OB_,16)}, {vr(VB+8,4)}, {vr(PB,4)}, {vr(OB_,16)}
        v_mfma_f32_32x32x16_bf16 {vr(OB_,16)}, {vr(VB+12,4)}, {vr(PB+4,4)}, {vr(OB_,16)}
        """)
    tail(st)
    st(f"""
    v_mul_f32 v5, 0, v{OA_}
    v_mul_f32 v6, 0, v{OB_}
    """)
    for r in range(1, 8):
        st(f"v_fma_f32 v5, v{OA_+r}, 0, v5\nv_fma_f32 v6, v{OB_+r}, 0, v6")
    st(f"""
    v_add_f32 v5, v5, v6
    v_min_f32 v6, v{OA_+8}, v{OB_+8}
    v_max_f32 v7, v{OA_+8}, v{OB_+8}
    v_add_f32 v6, v6, v5
    v_add_f32 v7, v7, v5
    v_cmp_u_f32 s[28:29], v{OA_+8}, v{OB_+8}
    v_cmp_nge_f32 vcc, v6, {f32(2.0**-40)}
    s_or_b64 s[28:29], s[28:29], vcc
    v_cmp_nle_f32 vcc, v7, {f32(2.0**100)}
    s_or_b64 s[28:29], s[28:29], vcc
    s_cmp_eq_u64 s[28:29], 0
    s_cbranch_scc1 L_attok_{name}
    """.replace("v_cmp_nge_f32 vcc, v6, " + f32(2.0**-40), f"v_mov_b32 v20, {f32(2.0**-40)}\n    v_cmp_nge_f32 vcc, v6, v20")
       .replace("v_cmp_nle_f32 vcc, v7, " + f32(2.0**100), f"v_mov_b32 v20, {f32(2.0**100)}\n    v_cmp_nle_f32 vcc, v7, v20"))
    MA, MB = 5, 6
    st(f"""
    v_subrev_u32 v{vK}, {65536}, v{vK}
    v_subrev_u32 v{vV0}, {64*VSTRIDE}, v{vV0}
    v_subrev_u32 v{vV1}, {64*VSTRIDE}, v{vV1}
    v_mov_b32 v{MA}, {f32(-3.0e38)}
    v_mov_b32 v{MB}, {f32(-3.0e38)}
    v_mov_b32 v7, v{vK}
    s_mov_b32 s44, 0
    """)
    st.label(f"L_max_{name}")
    st(f"""
    ds_read_b128 {vr(KB,4)}, v7
    s_waitcnt lgkmcnt(0)
    v_mfma_f32_32x32x16_bf16 {vr(SA,16)}, {vr(KB,4)}, {vr(QA,4)}, 0
    v_mfma_f32_32x32x16_bf16 {vr(SB,16)}, {vr(KB,4)}, {vr(QB,4)}, 0
    v_add_u32 v7, 1024, v7
    """)
    for r in range(0, 16, 2):
        st(f"v_max3_f32 v{MA}, v{MA}, v{SA+r}, v{SA+r+1}")
    for r in range(0, 16, 2):
        st(f"v_max3_f32 v{MB}, v{MB}, v{SB+r}, v{SB+r+1}")
    st(f"""
    s_add_u32 s44, s44, 1
    s_cmp_lt_u32 s44, 64
    s_cbranch_scc1 L_max_{name}
    v_mov_b32 v7, v{MA}
    v_permlane32_swap_b32 v7, v{MA}
    v_max_f32 v{MA}, v{MA}, v7
    v_mov_b32 v7, v{MB}
    v_permlane32_swap_b32 v7, v{MB}
    v_max_f32 v{MB}, v{MB}, v7
    """)
    init_acc(st)
    first_reads(st)
    st("s_mov_b32 s44, 0")
    st.label(f"L_att2_{name}")
    for u in range(2):
        gen.att_iter(st, u & 1, (u + 2) * 1024, (u + 1) * VSTRIDE, SA, SB, PA, PB, OA_, OB_, QA, QB, KB, VB, vK, vV0, vV1, safe=(MA, MB))
    st(f"""
    v_add_u32 v{vK}, {2*1024}, v{vK}
    v_add_u32 v{vV0}, {2*VSTRIDE}, v{vV0}
    v_add_u32 v{vV1}, {2*VSTRIDE}, v{vV1}
    s_add_u32 s44, s44, 1
    s_cmp_lt_u32 s44, 32
    s_cbranch_scc1 L_att2_{name}
    """)
    tail(st)
    st.label(f"L_attok_{name}")
    st(f"""
    s_lshl_b32 s23, s21, 11
    s_lshr_b32 s24, s22, 1
    s_lshl_b32 s24, s24, 10
    s_add_u32 s23, s23, s24
    s_and_b32 s24, s22, 1
    s_lshl_b32 s24, s24, 9
    s_add_u32 s23, s23, s24
    s_lshl_b32 s24, s20, 16
    s_add_u32 s23, s23, s24
    s_add_u32 s23, s23, s{sOA}
    v_and_b32 v5, 15, v0
    v_lshlrev_b32 v5, 4, v5
    v_lshrrev_b32 v6, 5, v0
    v_lshl_add_u32 v5, v6, 3, v5
    v_bfe_u32 v6, v0, 4, 1
    v_lshl_add_u32 v5, v6, 14, v5
    """)
    for qb, O in ((0, OA_), (1, OB_)):
        st(f"v_rcp_f32 v7, v{O+8}")
        for r in range(8): st(f"v_mul_f32 v{O+r}, v{O+r}, v7")
        p = 16 + 4 * qb
        st(f"""
        v_cvt_pk_bf16_f32 v{p}, v{O}, v{O+1}
        v_cvt_pk_bf16_f32 v{p+1}, v{O+2}, v{O+3}
        v_cvt_pk_bf16_f32 v{p+2}, v{O+4}, v{O+5}
        v_cvt_pk_bf16_f32 v{p+3}, v{O+6}, v{O+7}
        """)
        st.i(f"buffer_store_dwordx2 {vr(p,2)}, v5, s[8:11], s23 offen sc1")
        st.i(f"buffer_store_dwordx2 {vr(p+2,2)}, v5, s[8:11], s23 offen offset:256 sc1")
        if qb == 0: st("s_add_u32 s23, s23, 32768")

vX1P = 232
def phase_p13(st, name, which):
    g = G
    ns = 4
    common_lane_setup(st, ns)
    st("s_lshl_b32 s26, s20, 2")
    sync_wait(st, 0 if which == 1 else 2, name)
    gen_tag = f"x{which}"
    dma_act2(st, ns, f"s{sOA if which == 1 else sOB}", 26, gen_tag)
    if which == 3:
        load_w_block(st, W_Q2, T_WQ, "wq4", g.vLane16)
        st(f"""
        s_and_b32 s25, s21, 1
        s_add_u32 s25, s25, {T_WK}
        s_lshl_b32 s25, s25, 14
        """)
        load_weights(st, W_K2, None, 25, "wk4")
    vActA, vRowA = 44, 45
    act_store_addr(st, vActA, g.vTmp)
    res = vRES if which == 1 else vX1P
    acc = g.vAcc
    for s in range(ns):
        a = acc + 4 * s
        st(f"""
        v_lshlrev_b32 v{a}, 16, v{res+2*s}
        v_and_b32 v{a+1}, 0xffff0000, v{res+2*s}
        v_lshlrev_b32 v{a+2}, 16, v{res+2*s+1}
        v_and_b32 v{a+3}, 0xffff0000, v{res+2*s+1}
        """)
    if which == 3:
        row_addr(st, vRowA)
        st(f"""
        s_cmp_eq_u32 s{sL}, 0
        s_cselect_b32 s{SRD_OUT}, s8, s12
        s_cselect_b32 s{SRD_OUT+1}, s9, s13
        s_cselect_b32 s{SRD_OUT+2}, s10, s14
        s_mov_b32 s{SRD_OUT+3}, 0x00020000
        s_cselect_b32 s46, {B0 + BS + XIN}, 0
        s_cselect_b64 s[28:29], -1, 0
        v_cndmask_b32_e64 v{vActA}, v{vRowA}, v{vActA}, s[28:29]
        """)
    steps = gemm_steps(ns, lambda s: [((acc + 4 * s, False), W_O, True)], gen_tag, False)
    def epi(s):
        e = St()
        a = acc + 4 * s
        p = (vX1P if which == 1 else 88) + 2 * s
        e(f"""
        v_cvt_pk_bf16_f32 v{p}, v{a}, v{a+1}
        v_cvt_pk_bf16_f32 v{p+1}, v{a+2}, v{a+3}
        s_add_u32 s27, s26, {s}
        s_lshl_b32 s27, s27, 14
        """)
        if which == 1:
            e(f"s_add_u32 s27, s27, s{sX1}")
            e.i(f"buffer_store_dwordx2 {vr(p,2)}, v{vActA}, s[8:11], s27 offen sc1")
        else:
            e("s_add_u32 s27, s27, s46")
            e.i(f"buffer_store_dwordx2 {vr(p,2)}, v{vActA}, s[{SRD_OUT}:{SRD_OUT+3}], s27 offen sc1")
        return e
    st.ext(steps[0])
    for s in range(ns):
        seg = steps[1 + 16 * s: 1 + 16 * (s + 1)]
        if s > 0:
            side = St(); side.it.append(("gap", 3, None, None)); side.ext(epi(s - 1))
            st.ext(weave(seg, side, per=2))
        else:
            for x in seg: st.ext(x)
    st.ext(epi(ns - 1))

def phase_p2(st, name):
    g = G
    ns = 5
    common_lane_setup(st, ns)
    stats_setup(st, ns)
    Wq, Wk, Wv = W_Q2, W_K2, W_V2
    st("""
    s_lshl_b32 s26, s20, 2
    s_sub_u32 s26, s26, 1
    """)
    vActA = 96
    act_store_addr(st, vActA, g.vTmp)
    vMo, vMp, vMp0 = 100, 104, 108
    NEG = f32(-1.0e30)
    st(f"v_mov_b32 v{g.vTmp+2}, {NEG}")
    for r in range(4):
        st(f"""
        v_lshl_add_u32 v{g.vTmp}, v{g.vGq}, 2, {r}
        v_sub_u32 v{g.vTmp}, v{g.vT}, v{g.vTmp}
        v_and_b32 v{g.vTmp+1}, 0x80000001, v{g.vTmp}
        v_cmp_eq_u32 s[28:29], 0, v{g.vTmp+1}
        v_cndmask_b32_e64 v{vMo+r}, v{g.vTmp+2}, 0, s[28:29]
        v_cmp_gt_i32 s[38:39], -1, v{g.vTmp}
        v_and_b32 v{g.vTmp+1}, 1, v{g.vTmp}
        v_cmp_eq_u32 s[28:29], 0, v{g.vTmp+1}
        s_and_b64 s[28:29], s[28:29], s[38:39]
        v_cndmask_b32_e64 v{vMp+r}, v{g.vTmp+2}, 0, s[28:29]
        """)
    st("s_cmp_eq_u32 s20, 0\ns_cselect_b64 s[28:29], -1, 0")
    for r in range(4):
        st(f"v_cndmask_b32_e64 v{vMp0+r}, v{vMp+r}, v{g.vTmp+2}, s[28:29]")
    vCSq, vCSk, vCSv = 112, 116, 120
    colsum(st, vCSq, Wq, True)
    colsum(st, vCSk, Wk, True)
    colsum(st, vCSv, Wv, False)
    sync_wait(st, 1, name, halo=True)
    dma_act2(st, ns, f"s{sX1}", 26, "x2", clamp0=True)
    load_w_block(st, W_O, T_WOB, "wob", g.vLane16)
    accq, acck, accv = 64, 68, 72
    def A(base, s): return base + 12 * (s & 1)
    vStatG, vStatS = 88, 92
    def chains(s):
        c = []
        if s > 0: c.append(((A(accq, s), True), Wq, True))
        c.append(((A(acck, s), True), Wk, True))
        c.append(((A(accv, s), True), Wv, False))
        return c
    steps = gemm_steps(ns, chains, "x2", True, vStatG, vStatS)
    vR, vN = 124, 125
    vRq, vNq = 128, 129
    vR4, vN4 = 132, 136
    pq, pk, pv = 140, 142, 148
    tmp = 56
    S, P, O, L, MX, T2 = 160, 168, 172, 176, 180, 181
    def epi(s):
        e = St()
        R, N = vR + 2 * (s & 1), vN + 2 * (s & 1)
        e.ext(stats_vlayout(s, R, N, vR4, vN4))
        ln_epi_t(e, A(acck, s), R, N, vCSk, pk + 2 * (s & 1), tmp)
        if s > 0:
            e(f"v_mul_f32 v{vRq}, {f32(CQ)}, v{R}\nv_mul_f32 v{vNq}, {f32(CQ)}, v{N}")
            ln_epi_t(e, A(accq, s), vRq, vNq, vCSq, pq, tmp)
        e.wl(f"pr{s}")
        ln_epi_v(e, A(accv, s), vR4, vN4, vCSv, pv + 2 * s, tmp)
        if s == 0: return e
        kp = pk + 2 * ((s - 1) & 1); ko = pk + 2 * (s & 1)
        mp = vMp0 if s == 1 else vMp
        e(f"v_mfma_f32_16x16x16_bf16 {vr(S,4)}, {vr(kp,2)}, {vr(pq,2)}, {vr(mp,4)}")
        e(f"v_mfma_f32_16x16x16_bf16 {vr(S+4,4)}, {vr(ko,2)}, {vr(pq,2)}, {vr(vMo,4)}")
        e.it.append(("gap", 3, None, None))
        e(f"""
        v_max3_f32 v{MX}, v{S}, v{S+1}, v{S+2}
        v_max3_f32 v{T2}, v{S+3}, v{S+4}, v{S+5}
        v_max3_f32 v{MX}, v{MX}, v{S+6}, v{S+7}
        v_max_f32 v{MX}, v{MX}, v{T2}
        v_mov_b32 v{T2}, v{MX}
        v_permlane32_swap_b32 v{T2}, v{MX}
        v_max_f32 v{MX}, v{MX}, v{T2}
        v_mov_b32 v{T2}, v{MX}
        v_permlane16_swap_b32 v{T2}, v{MX}
        v_max_f32 v{MX}, v{MX}, v{T2}
        """)
        for r in range(8): e(f"v_sub_f32 v{S+r}, v{S+r}, v{MX}")
        for r in range(8): e(f"v_exp_f32 v{S+r}, v{S+r}")
        for r in range(4): e(f"v_cvt_pk_bf16_f32 v{P+r}, v{S+2*r}, v{S+2*r+1}")
        e(f"v_mfma_f32_16x16x32_bf16 {vr(O,4)}, {vr(pv+2*(s-1),4)}, {vr(P,4)}, 0")
        e(f"v_mfma_f32_16x16x32_bf16 {vr(L,4)}, {vr(g.vOnes,4)}, {vr(P,4)}, 0")
        e.it.append(("gap", 3, None, None))
        e(f"v_rcp_f32 v{L}, v{L}")
        for r in range(4): e(f"v_mul_f32 v{O+r}, v{O+r}, v{L}")
        e(f"""
        v_cvt_pk_bf16_f32 v{P}, v{O}, v{O+1}
        v_cvt_pk_bf16_f32 v{P+1}, v{O+2}, v{O+3}
        s_add_u32 s27, s26, {s}
        s_lshl_b32 s27, s27, 14
        s_add_u32 s27, s27, s{sOB}
        """)
        e.i(f"buffer_store_dwordx2 {vr(P,2)}, v{vActA}, s[8:11], s27 offen sc1")
        return e
    st.ext(steps[0])
    for s in range(ns):
        seg = steps[1 + 16 * s: 1 + 16 * (s + 1)]
        R, N = vR + 2 * (s & 1), vN + 2 * (s & 1)
        side_a = St()
        if s > 0:
            side_a.it.append(("gap", 2, None, None)); side_a.ext(epi(s - 1))
        q = list(side_a.it)
        def take(n):
            nonlocal q
            s1 = St(); cnt = 0
            while q and cnt < n:
                x = q.pop(0); s1.it.append(x)
                if x[0] == "i": cnt += 1
            return s1
        nm = len(chains(s))
        st.ext(weave(seg[0:4], take(4 * (nm + 2) * 2 - 6), per=2))
        side = St(); side.it.append(("gap", 2, None, None)); side.ext(stats_extract(s, vStatG, vStatS, ns)); side.ext(take(4 * nm * 2 - 12))
        st.ext(weave(seg[4:8], side, per=2))
        st.ext(seg[8])
        side = stats_finalize(s, R, N, g.vTmp); rest = St(); rest.it = q; side.ext(rest)
        st.ext(weave(seg[9:16], side, per=2))
    st.ext(epi(ns - 1))

def phase_p4(st, name, layer, src, preloaded):
    g = G
    ns = 4
    common_lane_setup(st, ns)
    stats_setup(st, ns)
    Wq, Wkv = W_Q2, W_K2
    st("""
    s_lshl_b32 s26, s20, 2
    s_lshr_b32 s38, s21, 1
    """)
    for s in range(ns):
        st(f"""
        s_add_u32 s23, s38, {s}
        s_and_b32 s23, s23, 3
        s_add_u32 s{40+s}, s26, s23
        """)
    if not preloaded:
        load_w_block(st, Wq, T_WQ, "wq4", g.vLane16)
        st(f"""
        s_and_b32 s25, s21, 1
        s_add_u32 s25, s25, {T_WK}
        s_lshl_b32 s25, s25, 14
        """)
        load_weights(st, Wkv, None, 25, "wk4")
    vCSq, vCSk = 96, 100
    def do_colsum():
        st.wv("wk415")
        colsum(st, vCSq, Wq, True)
        st("s_bitcmp1_b32 s21, 0")
        st(f"s_cbranch_scc1 L_csv_{name}")
        colsum(st, vCSk, Wkv, True)
        st(f"s_branch L_csd_{name}")
        st.label(f"L_csv_{name}")
        colsum(st, vCSk, Wkv, False)
        st.label(f"L_csd_{name}")
    if src == "act":
        do_colsum()
        sync_wait(st, 3, name)
        st(f"s_mov_b32 s47, {B0 + BS*layer + XIN}")
        dma_act2(st, ns, "s47", 26, "x4", tiles=[40, 41, 42, 43])
    else:
        vtmp = g.vTmp + 8
        st(f"""
        v_lshlrev_b32 v{vtmp}, 10, v{g.vT}
        v_lshl_add_u32 v{vtmp}, v{g.vGq}, 4, v{vtmp}
        """)
        for s in range(ns):
            for q in range(4):
                st(f"""
                s_lshl_b32 s23, s{40+s}, 14
                s_lshl_b32 s24, s22, 8
                s_add_u32 s23, s23, s24
                s_add_u32 s23, s23, {q*64}
                s_mul_i32 s24, s22, {ns*4096}
                s_add_u32 m0, s24, {LDS_X + s*4096 + q*1024}
                """)
                st.i(f"buffer_load_dwordx4 v{vtmp}, s[12:15], s23 offen lds", vm=f"x4{s}_{q}")
        do_colsum()
    acc = g.vAcc
    vStatG, vStatS = 88, 92
    steps = gemm_steps(ns, lambda s: [((acc + 4 * s, True), Wq, True)], "x4", True, vStatG, vStatS)
    vR = [104 + s for s in range(ns)]; vN = [108 + s for s in range(ns)]
    vRq, vNq = 112, 113
    pk = 116
    tmp = g.vTmp + 8
    def epi(s):
        e = St()
        e(f"v_mul_f32 v{vRq}, {f32(CQ)}, v{vR[s]}\nv_mul_f32 v{vNq}, {f32(CQ)}, v{vN[s]}")
        ln_epi_t(e, acc + 4 * s, vRq, vNq, vCSq, pk + 2 * s, tmp)
        return e
    def kv_chain():
        c = St()
        c(f"s_cmp_lg_u32 s22, 0\ns_cbranch_scc1 L_nokv_{name}")
        c("s_bitcmp1_b32 s21, 0")
        c(f"s_cbranch_scc1 L_v_{name}")
        R2 = 128
        for variant in ("k", "v"):
            if variant == "v": c.label(f"L_v_{name}")
            a = 80
            for j in range(16):
                ring = R2 + 4 * (j % 8)
                if j % 8 == 0:
                    for u in range(8):
                        jj = j + u
                        c.i(f"ds_read_b128 {vr(R2+4*u,4)}, v{g.vXA+(jj>>2)} offset:{(jj&3)*1024}", lds=f"kv{variant}{jj}")
                c.wl(f"kv{variant}{j}")
                cc = "0" if j == 0 else vr(a, 4)
                wreg = rr((Wkv[0], Wkv[1] + 4 * j), 4)
                if variant == "k": c(f"v_mfma_f32_16x16x32_bf16 {vr(a,4)}, {wreg}, {vr(ring,4)}, {cc}")
                else:              c(f"v_mfma_f32_16x16x32_bf16 {vr(a,4)}, {vr(ring,4)}, {wreg}, {cc}")
            c(f"""
            s_lshr_b32 s23, s40, 1
            s_lshl_b32 s23, s23, 10
            s_and_b32 s24, s40, 1
            """)
            t2 = 160
            if variant == "k":
                ln_epi_t(c, a, vR[0], vN[0], vCSk, 84, t2)
                c(f"""
                s_lshl_b32 s24, s24, 8
                s_add_u32 s23, s23, s24
                s_add_u32 s23, s23, {KF0 + KVS*layer}
                v_lshrrev_b32 v{t2}, 1, v{g.vGq}
                v_lshlrev_b32 v{t2}, 9, v{t2}
                v_lshl_add_u32 v{t2}, v{g.vT}, 4, v{t2}
                v_and_b32 v{t2+1}, 1, v{g.vGq}
                v_lshl_add_u32 v{t2}, v{t2+1}, 3, v{t2}
                """)
                c.i(f"buffer_store_dwordx2 v[84:85], v{t2}, s[8:11], s23 offen")
                c(f"s_branch L_nokv_{name}")
            else:
                c.ext(stats_vlayout(9, vR[0], vN[0], 164, 168))
                c.wl("pr9")
                ln_epi_v(c, a, 164, 168, vCSk, 84, t2)
                c(f"""
                s_lshl_b32 s24, s24, 9
                s_add_u32 s23, s23, s24
                s_add_u32 s23, s23, {VF0 + KVS*layer}
                v_and_b32 v{t2}, 1, v{g.vGq}
                v_lshlrev_b32 v{t2}, 8, v{t2}
                v_lshl_add_u32 v{t2}, v{g.vT}, 4, v{t2}
                v_lshrrev_b32 v{t2+1}, 1, v{g.vGq}
                v_lshl_add_u32 v{t2}, v{t2+1}, 3, v{t2}
                """)
                c.i(f"buffer_store_dwordx2 v[84:85], v{t2}, s[8:11], s23 offen")
        c.label(f"L_nokv_{name}")
        c("s_waitcnt lgkmcnt(0)")
        return c
    st.ext(steps[0])
    for s in range(ns):
        seg = steps[1 + 16 * s: 1 + 16 * (s + 1)]
        a = seg[:4]; b = seg[4:9]; c = seg[9:]
        if s > 0:
            side = St(); side.it.append(("gap", 2, None, None)); side.ext(epi(s - 1))
            st.ext(weave(a, side, per=2))
        else:
            for x in a: st.ext(x)
        side = St(); side.it.append(("gap", 2, None, None)); side.ext(stats_extract(s, vStatG, vStatS, ns))
        st.ext(weave(b[:4], side, per=2)); st.ext(b[4])
        st.ext(weave(c, stats_finalize(s, vR[s], vN[s], g.vTmp), per=2))
    st.ext(epi(ns - 1))
    st.ext(kv_chain())
    st(f"""
    v_lshrrev_b32 v48, 1, v{g.vGq}
    v_lshlrev_b32 v48, 9, v48
    v_lshl_add_u32 v48, v{g.vT}, 4, v48
    v_and_b32 v49, 1, v{g.vGq}
    v_lshl_add_u32 v48, v49, 3, v48
    s_lshl_b32 s25, s20, 3
    s_add_u32 s25, s25, s21
    s_lshl_b32 s25, s25, 2
    s_add_u32 s25, s25, s22
    s_lshl_b32 s25, s25, 11
    s_add_u32 s25, s25, {QF0 + QFS*layer}
    """)
    for s in range(ns):
        st(f"""
        s_and_b32 s23, s{40+s}, 3
        s_lshr_b32 s24, s23, 1
        s_lshl_b32 s24, s24, 10
        s_and_b32 s23, s23, 1
        s_lshl_b32 s23, s23, 8
        s_add_u32 s23, s23, s24
        s_add_u32 s23, s23, s25
        """)
        st.i(f"buffer_store_dwordx2 {vr(pk+2*s,2)}, v48, s[8:11], s23 offen")

def gen_p4a(name):
    st = St()
    prologue(st, name, "s_load_dwordx2 s[6:7], s[0:1], 0")
    srd_io(st, 6, 2048 * 1024)
    phase_p4(st, name, 0, "row", False)
    st("s_waitcnt vmcnt(0)")
    return kernel_text(name, st)

def gen_main(names):
    body_name = names[0]
    st = St()
    st(f"s_mov_b32 s{sL}, 0")
    st.label("L_main_common")
    NST[0] = 0
    stamp(st)
    if INSTR: st("s_memrealtime s[96:97]")
    prologue(st, body_name, "s_load_dwordx2 s[6:7], s[0:1], 64")
    srd_io(st, 6, 2048 * 1024)
    st(f"""
    s_mul_i32 s23, s{sL}, {KVS}
    s_add_u32 s{sKF}, s23, {KF0}
    s_add_u32 s{sVF}, s23, {VF0}
    s_mul_i32 s23, s{sL}, {QFS}
    s_add_u32 s{sQF}, s23, {QF0}
    s_mul_i32 s23, s{sL}, {BS}
    s_add_u32 s{sXIN}, s23, {B0 + XIN}
    s_add_u32 s{sOA}, s23, {B0 + OA}
    s_add_u32 s{sX1}, s23, {B0 + X1}
    s_add_u32 s{sOB}, s23, {B0 + OB}
    s_lshl_b32 s23, s{sL}, 14
    s_add_u32 s{sFLAG}, s23, {FLAGS}
    """)
    phase_att(st, body_name)
    stamp(st)
    sync_publish(st, 0, body_name)
    phase_p13(st, body_name + "_1", 1)
    stamp(st)
    sync_publish(st, 1, body_name)
    phase_p2(st, body_name + "_2")
    stamp(st)
    sync_publish(st, 2, body_name)
    phase_p13(st, body_name + "_3", 3)
    stamp(st)
    st(f"s_cmp_lg_u32 s{sL}, 0\ns_cbranch_scc1 L_fin_{body_name}")
    sync_publish(st, 3, body_name)
    phase_p4(st, body_name + "_4", 1, "act", True)
    st.label(f"L_fin_{body_name}")
    st("s_waitcnt vmcnt(0)")
    stamp(st)
    stamp_dump(st, f"s{sL}")
    txt = kernel_text(body_name, st)
    n2 = names[1]
    desc = txt[txt.index(".section .rodata"):].replace(body_name, n2)
    txt += f""".text
.globl {n2}
.p2align 8
.type {n2},@function
{n2}:
    s_mov_b32 s{sL}, 1
    s_branch L_main_common
""" + desc
    return txt

def build(path):
    gen.INSTR = None
    ks = [("k0_kernel", 0), ("p4a_kernel", 72 * 1024), ("main0_kernel", ATT_LDS), ("main1_kernel", ATT_LDS)]
    hdr = open("cdna_kernels/" + NAME + ".s.ref").read().split("; Override launch geometry")[0]
    out = hdr
    for n, lds in ks:
        out += f"; @launch kernel={n} grid=(256,1,1) block=(256,1,1) lds={lds}\n"
    out += '.amdgcn_target "amdgcn-amd-amdhsa--gfx950"\n'
    out += gen_k0("k0_kernel")
    out += gen_p4a("p4a_kernel")
    out += gen_main(("main0_kernel", "main1_kernel"))
    open(path, "w").write(out)

if __name__ == "__main__":
    build(sys.argv[1] if len(sys.argv) > 1 else "stage2.s")
```

```python
import re

TRANS = ("v_exp_f32", "v_log_f32", "v_rcp_f32", "v_rsq_f32", "v_sqrt_f32", "v_sin_f32", "v_cos_f32",
         "v_exp_f16", "v_log_f16", "v_rcp_f16", "v_rsq_f16", "v_sqrt_f16", "v_rcp_iflag_f32")
REG_RE = re.compile(r"^(-|abs\()?\|?(v|a|s)(?:\[(\d+):(\d+)\]|(\d+))\|?\)?$")

def parse_reg(op):
    op = op.strip()
    if op in ("vcc", "vcc_lo", "vcc_hi"): return [("s", 106), ("s", 107)]
    if op in ("exec", "exec_lo", "exec_hi"): return [("x", 0)]
    if op == "m0": return [("m", 0)]
    m = REG_RE.match(op)
    if not m: return []
    k = m.group(2)
    if m.group(3) is not None:
        return [(k, i) for i in range(int(m.group(3)), int(m.group(4)) + 1)]
    return [(k, int(m.group(5)))]

class Ins:
    __slots__ = ("text", "op", "kind", "wr", "rd", "passes", "srcC", "dst_exact", "is_trans", "storedata", "nop", "rdAB", "lanesel")
    def __init__(self, text):
        self.text = text
        t = text.split(";")[0].strip()
        self.op = t.split()[0] if t else ""
        rest = t[len(self.op):].strip()
        ops = [o.strip() for o in rest.split(",")] if rest else []
        if ops:
            last = ops[-1].split()
            ops[-1] = last[0] if last else ""
            mods = last[1:]
        else:
            mods = []
        op = self.op
        self.wr, self.rd = set(), set()
        self.passes = 0; self.srcC = set(); self.dst_exact = None; self.is_trans = False
        self.storedata = set(); self.nop = 0; self.rdAB = set(); self.lanesel = set()
        R = lambda o: set(parse_reg(o))
        if op.startswith("v_mfma") or op.startswith("v_smfmac"):
            self.kind = "mfma"
            self.passes = 8 if "32x32" in op else (2 if "4x4x4" in op else 4)
            if op.startswith("v_smfmac"):
                self.wr = R(ops[0]); self.rdAB = R(ops[1]) | R(ops[2]) | R(ops[3]); self.srcC = R(ops[0])
            else:
                self.wr = R(ops[0]); self.rdAB = R(ops[1]) | R(ops[2]); self.srcC = R(ops[3])
            self.rd = self.rdAB | self.srcC
            self.dst_exact = (ops[0], op)
        elif op.startswith("v_"):
            self.kind = "valu"
            base = op.replace("_e32", "").replace("_e64", "").replace("_dpp", "").replace("_sdwa", "")
            self.is_trans = base in TRANS
            if base.startswith("v_cmp"):
                self.wr = R(ops[0])
                for o in ops[1:]: self.rd |= R(o)
                if base.startswith("v_cmpx"): self.wr |= {("x", 0)}
            elif base.startswith("v_permlane") and "swap" in base:
                self.kind = "permlane"
                self.wr = R(ops[0]) | R(ops[1]); self.rd = set(self.wr)
            elif base in ("v_readfirstlane_b32", "v_readlane_b32"):
                self.kind = "readlane"
                self.wr = R(ops[0]); self.rd = R(ops[1])
                if len(ops) > 2: self.lanesel = R(ops[2])
            elif base in ("v_add_co_u32", "v_sub_co_u32", "v_addc_co_u32", "v_subb_co_u32", "v_subrev_co_u32"):
                self.wr = R(ops[0]) | R(ops[1])
                for o in ops[2:]: self.rd |= R(o)
            else:
                self.wr = R(ops[0])
                for o in ops[1:]: self.rd |= R(o)
                if base.startswith(("v_fmac", "v_dot2c", "v_pk_fmac")) or "UNUSED_PRESERVE" in text or base.startswith("v_writelane") or base.startswith("v_fma_mix"):
                    self.rd |= R(ops[0])
                if base == "v_cndmask_b32" and len(ops) == 3: self.rd |= R("vcc")
            if "dpp" in op or "row_" in text or "quad_perm" in text: self.kind = "dpp"
        elif op.startswith("ds_"):
            self.kind = "mem"
            if op.startswith(("ds_read", "ds_bpermute", "ds_permute", "ds_swizzle")):
                self.wr = R(ops[0])
                for o in ops[1:]: self.rd |= R(o)
            else:
                for o in ops: self.rd |= R(o)
        elif op.startswith(("buffer_", "global_", "flat_", "scratch_")):
            self.kind = "mem"
            islds = ("lds" in mods) or ("_lds_" in op)
            if op in ("buffer_wbl2", "buffer_inv"):
                pass
            elif "load" in op and not islds:
                self.wr = R(ops[0])
                for o in ops[1:]: self.rd |= R(o)
            elif "load" in op and islds:
                for o in ops: self.rd |= R(o)
                self.rd |= {("m", 0)}
                self.kind = "memlds"
            elif "atomic" in op:
                for o in ops: self.rd |= R(o)
                if "sc0" in mods:
                    self.wr = R(ops[0])
            else:
                for o in ops: self.rd |= R(o)
                if "x3" in op or "x4" in op:
                    self.storedata = R(ops[0]) if op.startswith("buffer_") else R(ops[1])
        elif op == "s_nop":
            self.kind = "nop"; self.nop = int(ops[0], 0) + 1
        elif op.startswith("s_"):
            self.kind = "salu"
            if op.startswith(("s_cmp", "s_cbranch", "s_branch", "s_waitcnt", "s_barrier", "s_endpgm", "s_setprio", "s_sleep", "s_bitcmp")):
                for o in ops: self.rd |= R(o)
            else:
                if ops: self.wr = R(ops[0])
                for o in ops[1:]: self.rd |= R(o)
                if "saveexec" in op: self.wr |= {("x", 0)}
        else:
            self.kind = "other"

def vregs(s): return {r for r in s if r[0] in "va"}
def sregs(s): return {r for r in s if r[0] == "s"}

def need(p, c):
    n = 0
    pv = p.kind in ("valu", "permlane", "dpp", "readlane")
    cv = c.kind in ("valu", "permlane", "dpp", "readlane")
    if pv:
        w = vregs(p.wr)
        if w:
            if c.kind == "mfma" and (w & c.rd): n = max(n, 2)
            if c.kind == "permlane" and (w & c.rd): n = max(n, 2)
            if c.kind == "dpp" and (w & c.rd): n = max(n, 2)
            if c.kind == "readlane" and (w & c.rd): n = max(n, 1)
            if p.is_trans and cv and not c.is_trans and (w & c.rd): n = max(n, 1)
            if p.is_trans and cv and (w & c.rd): n = max(n, 1)
            if ("sdwa" in p.op or "op_sel" in p.text) and cv and (w & (c.rd | c.wr)): n = max(n, 1)
        sw = sregs(p.wr)
        if sw:
            if cv and (sw & c.rd): n = max(n, 2)
            if c.kind == "readlane" and (sw & c.lanesel): n = max(n, 4)
            if c.kind in ("mem", "memlds") and (sw & c.rd): n = max(n, 5)
            if c.kind == "salu" and (sw & c.rd): n = max(n, 1)
        if ("x", 0) in p.wr:
            if c.kind == "mfma": n = max(n, 4)
            if c.kind in ("dpp",): n = max(n, 5)
            if c.kind in ("permlane", "readlane"): n = max(n, 4)
    if p.kind == "mfma":
        d = p.wr
        k = {2: 0, 4: 1, 8: 2}[p.passes]
        if c.kind == "mfma":
            if d & c.srcC:
                same = (c.srcC == d and c.passes == p.passes)
                n = max(n, (2, 0, 0)[k] if same else (4, 6, 10)[k])
            if d & c.rdAB: n = max(n, (5, 8, 12)[k])
            if (d & c.wr) and not (d & c.srcC):
                n = max(n, (4, 6, 10)[k]) if c.wr != d else max(n, (2, 0, 0)[k])
        elif cv or c.kind in ("mem", "memlds"):
            if d & (c.rd | vregs(c.wr)): n = max(n, (5, 8, 12)[k])
        if cv and (p.srcC & vregs(c.wr)): n = max(n, (1, 3, 7)[k])
    if p.storedata:
        if p.storedata & vregs(c.wr): n = max(n, 2 if cv else 1)
    if p.kind == "salu" and ("m", 0) in p.wr and c.kind == "memlds": n = max(n, 1)
    return n

class Asm:
    def __init__(self):
        self.lines = []
    def __call__(self, s):
        for l in s.strip("\n").split("\n"):
            l = l.strip()
            if l: self.lines.append(l)
    def label(self, l): self.lines.append(l + ":")
    def raw(self, s): self.lines.append(s)

WINDOW = 24
def fix_hazards(lines, verbose=False):
    out = []
    labelpos = {}
    inserted = 0
    def dist_scan(hist, c):
        d = 0; extra = 0
        for p in reversed(hist):
            r = need(p, c)
            if r > d: extra = max(extra, r - d)
            d += p.nop if p.kind == "nop" else 1
            if d >= WINDOW: break
        return extra
    hist = []
    alts = []
    fwd = {}
    for l in lines:
        if l.endswith(":") and " " not in l:
            labelpos[l[:-1]] = len(out)
            for h in fwd.pop(l[:-1], []):
                alts.append([h, WINDOW])
            out.append((l, None)); continue
        if l.startswith(".") or l.startswith(";"):
            out.append((l, None)); continue
        c = Ins(l)
        e = dist_scan(hist, c)
        for a in alts:
            e = max(e, dist_scan(a[0], c))
        if e > 0:
            nop = Ins(f"s_nop {e-1}")
            out.append((nop.text, nop)); hist.append(nop); inserted += 1
            for a in alts: a[0].append(nop)
            if verbose: print("hazard: inserted", e, "before", l)
        out.append((l, c)); hist.append(c)
        for a in alts:
            a[0].append(c); a[1] -= 1
        alts = [a for a in alts if a[1] > 0]
        if c.op.startswith(("s_cbranch", "s_branch")):
            tgt = l.split()[-1]
            if tgt in labelpos:
                head = [x[1] for x in out[labelpos[tgt]:] if x[1] is not None][:WINDOW]
                h2 = list(hist)
                worst = 0
                for hc in head:
                    ex = dist_scan(h2, hc)
                    if ex > 0: worst = max(worst, ex)
                    h2.append(hc)
                if worst > 0:
                    nop = Ins(f"s_nop {worst-1}")
                    out.insert(len(out) - 1, (nop.text, nop)); hist.insert(len(hist) - 1, nop); inserted += 1
                    if verbose: print("hazard(backedge): inserted", worst, "before", l)
            else:
                fwd.setdefault(tgt, []).append(list(hist[-WINDOW:]))
        if len(hist) > 4 * WINDOW: hist = hist[-2 * WINDOW:]
    return [x[0] for x in out], inserted
```

```python
import sys, os
sys.path.insert(0, os.path.dirname(os.path.abspath(__file__)))
import gen
from gen import (St, weave, vr, ar, rr, f32, CQ, G, RING, LDS_X, prologue, srd_io, kernel_text, emit_selectors,
                 common_lane_setup, load_weights, stats_setup, gemm_steps, stats_extract, stats_finalize, stats_vlayout,
                 act_store_addr, row_addr, colsum, ln_epi_t, ln_epi_v, T_WQ, T_WOA, T_WOB, T_WQKV, T_WK, T_WV, NFRAG, NAME)
INSTR = gen.INSTR
OPT = os.environ.get("OPT", "")

KF0, VF0, KVS = 0x310000, 0x320000, 0x20000
QF0, QFS = 0x400000, 0x200000
B0, BS = 0x800000, 0x800000
XIN, OA, X1, OB = 0, 0x200000, 0x400000, 0x600000
FLAGS = 0x1900000
FLAG_BYTES = 0x8000
sKF, sVF, sQF, sXIN, sOA, sX1, sOB, sL, sFLAG = 48, 49, 50, 51, 52, 53, 54, 55, 56
SRD_OUT = 60
sSPIN = 45

def gen_k0(name):
    st = St()
    prologue(st, name, """
    s_load_dwordx2 s[32:33], s[0:1], 8
    s_load_dwordx4 s[36:39], s[0:1], 16
    s_load_dwordx2 s[40:41], s[0:1], 32
    s_load_dwordx4 s[44:47], s[0:1], 48
    s_load_dwordx2 s[6:7], s[0:1], 0
    """)
    vB0, vB1 = 8, 12
    st("""
    v_lshlrev_b32 v6, 4, v0
    s_lshl_b32 s26, s2, 2
    s_add_u32 s26, s26, s22
    """)
    st("""
    v_and_b32 v20, 15, v0
    v_lshrrev_b32 v21, 4, v0
    v_lshlrev_b32 v22, 10, v20
    v_lshl_add_u32 v22, v21, 4, v22
    s_lshr_b32 s27, s26, 3
    s_lshl_b32 s27, s27, 14
    s_and_b32 s28, s26, 7
    s_lshl_b32 s28, s28, 7
    s_add_u32 s27, s27, s28
    v_add_u32 v22, s27, v22
    global_load_dwordx4 v[40:43], v22, s[6:7]
    global_load_dwordx4 v[44:47], v22, s[6:7] offset:64
    """)
    st(f"""
    s_cmp_ge_u32 s26, {FLAG_BYTES // 1024}
    s_cbranch_scc1 L_nofl_{name}
    v_mov_b32 v48, 0
    v_mov_b32 v49, 0
    v_mov_b32 v50, 0
    v_mov_b32 v51, 0
    s_lshl_b32 s27, s26, 10
    s_add_u32 s27, s27, {FLAGS}
    buffer_store_dwordx4 v[48:51], v6, s[8:11], s27 offen
    """)
    st.label(f"L_nofl_{name}")
    emit_selectors(st, vB0, vB1, 20)
    st("""
    v_and_b32 v20, 15, v0
    v_lshrrev_b32 v21, 4, v0
    v_lshrrev_b32 v4, 2, v20
    v_lshlrev_b32 v4, 3, v4
    v_and_b32 v22, 3, v20
    v_add_u32 v4, v4, v22
    v_lshrrev_b32 v22, 1, v21
    v_lshl_add_u32 v4, v22, 2, v4
    v_and_b32 v5, 1, v21
    v_lshlrev_b32 v5, 4, v5
    """)
    for i in range(4):
        st(f"""
        s_add_u32 s27, s26, {1024*i}
        s_min_u32 s27, s27, {NFRAG-1}
        s_lshr_b32 s28, s27, 4
        s_and_b32 s29, s27, 15
        s_mov_b32 s48, s32
        s_mov_b32 s49, s33
        s_mov_b32 s50, s28
        s_mov_b32 s51, 1024
        """)
        for T0, reg, stride in ((T_WOA, 40, 1024), (T_WOB, 46, 1024), (T_WQKV, 44, 3072), (T_WK, 36, 32), (T_WV, 38, 32)):
            st(f"""
            s_sub_u32 s52, s28, {T0}
            s_cmp_ge_u32 s28, {T0}
            s_cselect_b32 s48, s{reg}, s48
            s_cselect_b32 s49, s{reg+1}, s49
            s_cselect_b32 s50, s52, s50
            s_cselect_b32 s51, {stride}, s51
            """)
        st(f"""
        s_lshl_b32 s29, s29, 5
        s_lshl_b32 s50, s50, 5
        v_add_u32 v20, s29, v4
        v_mul_lo_u32 v20, v20, s51
        v_add_u32 v20, v20, v5
        v_add_u32 v20, s50, v20
        global_load_dwordx4 v[{52+4*i}:{55+4*i}], v20, s[48:49]
        """)
    st(f"""
    s_lshl_b32 s27, s26, 11
    s_add_u32 s27, s27, {B0 + XIN}
    s_waitcnt vmcnt(4)
    buffer_store_dwordx4 v[40:43], v6, s[8:11], s27 offen
    buffer_store_dwordx4 v[44:47], v6, s[8:11], s27 offen offset:1024
    """)
    for i in range(4):
        st(f"""
        s_add_u32 s27, s26, {1024*i}
        s_cmp_ge_u32 s27, {NFRAG}
        s_cbranch_scc1 L_done_{name}
        s_lshl_b32 s27, s27, 10
        s_waitcnt vmcnt(5)
        v_mfma_f32_16x16x32_bf16 v[28:31], v[{52+4*i}:{55+4*i}], v[{vB0}:{vB0+3}], 0
        v_mfma_f32_16x16x32_bf16 v[32:35], v[{52+4*i}:{55+4*i}], v[{vB1}:{vB1+3}], 0
        v_cvt_pk_bf16_f32 v36, v28, v29
        v_cvt_pk_bf16_f32 v37, v30, v31
        v_cvt_pk_bf16_f32 v38, v32, v33
        v_cvt_pk_bf16_f32 v39, v34, v35
        buffer_store_dwordx4 v[36:39], v6, s[8:11], s27 offen
        """)
    st.label(f"L_done_{name}")
    st("s_waitcnt vmcnt(0)")
    return kernel_text(name, st, vgpr=80, accum=80)

NST = [0]
def stamp(st):
    if not INSTR: return
    k = NST[0]; NST[0] += 1
    st(f"s_memtime s[{64+2*k}:{65+2*k}]\ns_waitcnt lgkmcnt(0)")
def stamp_dump(st, slot):
    if not INSTR: return
    st("s_memrealtime s[98:99]\ns_waitcnt lgkmcnt(0)")
    for k in range(16): st(f"v_mov_b32 v{16+k}, s{64+2*k if k < NST[0] else 98}")
    st(f"""
    v_mov_b32 v31, s98
    s_lshl_b32 s23, s2, 2
    s_add_u32 s23, s23, s22
    s_lshl_b32 s23, s23, 6
    s_lshl_b32 s24, {slot}, 16
    s_add_u32 s23, s23, s24
    s_add_u32 s23, s23, {gen.TS_OFF}
    v_mov_b32 v8, 0
    s_mov_b64 exec, 1
    buffer_store_dwordx4 v[16:19], v8, s[8:11], s23 offen
    buffer_store_dwordx4 v[20:23], v8, s[8:11], s23 offen offset:16
    buffer_store_dwordx4 v[24:27], v8, s[8:11], s23 offen offset:32
    buffer_store_dwordx4 v[28:31], v8, s[8:11], s23 offen offset:48
    s_waitcnt vmcnt(0)
    s_mov_b64 exec, -1
    """)

vFLO, vFLP = 62, 63
def sync_publish(st, e, name):
    st(f"""
    s_waitcnt vmcnt(0)
    s_barrier
    s_cmp_lg_u32 s22, 0
    s_cbranch_scc1 L_np{e}_{name}
    s_lshl_b32 s23, s20, 7
    s_lshl_b32 s24, s21, 2
    s_add_u32 s23, s23, s24
    s_add_u32 s23, s23, s{sFLAG}
    s_add_u32 s23, s23, {e*0x1000}
    v_mov_b32 v{vFLO}, 1
    v_mov_b32 v{vFLP}, 0
    s_mov_b64 exec, 1
    buffer_store_dword v{vFLO}, v{vFLP}, s[8:11], s23 offen sc1
    s_mov_b64 exec, -1
    """)
    st.label(f"L_np{e}_{name}")

def sync_wait(st, e, name, halo=False, keep=True):
    st(f"""
    v_and_b32 v{vFLP}, 7, v0
    v_lshlrev_b32 v{vFLP}, 2, v{vFLP}
    s_lshl_b32 s23, s20, 7
    """)
    if halo:
        st(f"""
        s_sub_u32 s28, s20, 1
        s_max_i32 s28, s28, 0
        s_lshl_b32 s28, s28, 7
        s_sub_u32 s28, s28, s23
        v_bfe_u32 v{vFLO}, v0, 3, 1
        v_mul_lo_u32 v{vFLO}, v{vFLO}, s28
        v_add_u32 v{vFLP}, v{vFLP}, v{vFLO}
        """)
    st(f"""
    v_add_u32 v{vFLP}, s23, v{vFLP}
    s_add_u32 s23, s{sFLAG}, {e*0x1000}
    s_mov_b32 s{sSPIN}, 0x10000
    """)
    st.label(f"L_poll{e}_{name}")
    st(f"""
    buffer_load_dword v{vFLO}, v{vFLP}, s[8:11], s23 offen sc1
    s_waitcnt vmcnt(0)
    v_cmp_ne_u32 vcc, 1, v{vFLO}
    s_sub_u32 s{sSPIN}, s{sSPIN}, 1
    s_cmp_eq_u32 s{sSPIN}, 0
    s_cbranch_scc1 L_pdone{e}_{name}
    s_cbranch_vccnz L_poll{e}_{name}
    """)
    st.label(f"L_pdone{e}_{name}")
    stamp(st)

def dma_act2(st, ns, sSrc, sTile0, tag, clamp0=False, tiles=None):
    g = G
    for s in range(ns):
        if tiles is not None: st(f"s_mov_b32 s23, s{tiles[s]}")
        elif clamp0 and s == 0: st(f"s_max_i32 s23, s{sTile0}, 0")
        else: st(f"s_add_u32 s23, s{sTile0}, {s}")
        st(f"""
        s_lshl_b32 s23, s23, 14
        s_lshl_b32 s24, s22, 12
        s_add_u32 s23, s23, s24
        s_add_u32 s23, s23, {sSrc}
        s_mul_i32 s24, s22, {ns*4096}
        s_add_u32 m0, s24, {LDS_X + s*4096}
        """)
        for q in range(4):
            st.i(f"buffer_load_dwordx4 v{g.vLane16}, s[8:11], s23 offen offset:{q*1024} sc1 lds", vm=f"{tag}{s}_{q}")

def wtile(st, T0, dst_sgpr=25):
    st(f"""
    s_lshl_b32 s{dst_sgpr}, s21, 2
    s_add_u32 s{dst_sgpr}, s{dst_sgpr}, s22
    s_add_u32 s{dst_sgpr}, s{dst_sgpr}, {T0}
    s_lshl_b32 s{dst_sgpr}, s{dst_sgpr}, 14
    """)

def load_w_block(st, dst, T0, tag, vL16):
    wtile(st, T0)
    for jg in range(4):
        st(f"""
        s_add_u32 s23, s22, {jg}
        s_and_b32 s23, s23, 3
        s_lshl_b32 s23, s23, 12
        s_add_u32 s23, s23, s25
        """)
        for q in range(4):
            b = dst[1] + 4 * (4 * jg + q)
            st.i(f"buffer_load_dwordx4 {rr((dst[0], b), 4)}, v{vL16}, s[8:11], s23 offen offset:{q*1024}", vm=f"{tag}{4*jg+q}")

W_Q2, W_K2, W_V2, W_O = ("a", 0), ("a", 64), ("a", 128), ("a", 192)
W_QA = ("v", 166)
W_KV = ("v", 230)
SMF = "nosmf" not in OPT
sROT = 16
sWT = 57

def wave_scalars(st):
    for jg in range(4):
        st(f"""
        s_add_u32 s23, s22, {jg}
        s_and_b32 s23, s23, 3
        s_lshl_b32 s{sROT+jg}, s23, 12
        """)
    st(f"""
    s_lshl_b32 s{sWT}, s21, 2
    s_add_u32 s{sWT}, s{sWT}, s22
    s_lshl_b32 s{sWT}, s{sWT}, 14
    """)

def w_loads(dst, T0, tag, vL16):
    out = []
    for jg in range(4):
        for q in range(4):
            e = St()
            if q == 0:
                e(f"s_add_u32 s58, s{sWT}, s{sROT+jg}")
                e(f"s_add_u32 s58, s58, {T0*16384}")
            b = dst[1] + 4 * (4 * jg + q)
            e.i(f"buffer_load_dwordx4 {rr((dst[0], b), 4)}, v{vL16}, s[8:11], s58 offen offset:{q*1024}", vm=f"{tag}{4*jg+q}")
            out.append(e)
    return out

def kv_loads(vL16, tag):
    out = []
    for q in range(4):
        e = St()
        if q == 0:
            e(f"""
            s_and_b32 s58, s21, 1
            s_add_u32 s58, s58, {T_WK}
            s_lshl_b32 s58, s58, 14
            s_add_u32 s58, s58, s{sROT}
            """)
        e.i(f"buffer_load_dwordx4 {rr((W_KV[0], W_KV[1] + 4*q), 4)}, v{vL16}, s[8:11], s58 offen offset:{q*1024}", vm=f"{tag}{q}")
        out.append(e)
    return out

LDS_K, LDS_V, VSTRIDE = gen.LDS_K, gen.LDS_V, gen.VSTRIDE
ATT_LDS = gen.ATT_LDS
ATT_U = int(os.environ.get("ATT_U", "8"))
vRES = 246

def phase_att(st, name):
    SA, SB, OA_, OB_ = 16, 32, 48, 64
    PA, PB, QA, QB, KB, VB = 80, 88, 96, 100, 104, 112
    LA, LB, vIDX, vONE = 120, 124, 5, 6
    vK, vV0, vV1, vL16 = 2, 3, 4, 1
    VS = 1024 if SMF else VSTRIDE
    st(f"v_lshlrev_b32 v{vL16}, 4, v0")
    st(f"""
    s_lshl_b32 s26, s22, 11
    s_add_u32 s24, s26, s{sKF}
    s_add_u32 s25, s26, s{sVF}
    s_mul_i32 s27, s22, {2*VS}
    s_add_u32 s27, s27, {LDS_V}
    """)
    def kv_group(gi, tag):
        out = []
        e = St(); e(f"s_add_u32 s23, s24, {gi*8192}\ns_add_u32 m0, s26, {gi*8192}")
        e.i(f"buffer_load_dwordx4 v{vL16}, s[8:11], s23 offen lds"); out.append(e)
        e = St(); e.i(f"buffer_load_dwordx4 v{vL16}, s[8:11], s23 offen offset:1024 lds"); out.append(e)
        e = St(); e(f"s_add_u32 s23, s25, {gi*8192}\ns_add_u32 m0, s27, {gi*8*VS}")
        e.i(f"buffer_load_dwordx4 v{vL16}, s[8:11], s23 offen lds"); out.append(e)
        e = St()
        if VS != 1024: e(f"s_add_u32 m0, s27, {gi*8*VS + VS - 1024}")
        e.i(f"buffer_load_dwordx4 v{vL16}, s[8:11], s23 offen offset:1024 lds", vm=tag); out.append(e)
        return out
    for e in kv_group(0, "c0"): st.ext(e)
    st(f"""
    s_lshl_b32 s23, s20, 3
    s_add_u32 s23, s23, s21
    s_lshl_b32 s23, s23, 2
    s_add_u32 s23, s23, s22
    s_lshl_b32 s23, s23, 11
    s_add_u32 s23, s23, s{sQF}
    """)
    st.i(f"buffer_load_dwordx4 {vr(QA,4)}, v{vL16}, s[8:11], s23 offen")
    st.i(f"buffer_load_dwordx4 {vr(QB,4)}, v{vL16}, s[8:11], s23 offen offset:1024", vm="q")
    wave_scalars(st)
    st(f"v_mov_b32 v{vK}, v{vL16}")
    if SMF:
        st(f"""
        v_add_u32 v{vV0}, {LDS_V}, v{vL16}
        v_mov_b32 v{vIDX}, 0x4444
        v_mov_b32 v16, 0xeeee
        v_and_b32 v17, 16, v0
        v_cmp_eq_u32 s[28:29], 16, v17
        v_cndmask_b32_e64 v{vIDX}, v{vIDX}, v16, s[28:29]
        v_mov_b32 v{vONE}, 0x3f803f80
        v_mov_b32 v{vONE+1}, 0x3f803f80
        """)
    else:
        st(f"""
        v_and_b32 v5, 31, v0
        v_lshrrev_b32 v6, 5, v0
        v_lshlrev_b32 v7, 8, v6
        v_lshl_add_u32 v7, v5, 4, v7
        v_add_u32 v7, {LDS_V}, v7
        v_mov_b32 v16, {LDS_V + 1024 + 16}
        v_mov_b32 v17, {LDS_V + 1024}
        v_and_b32 v18, 27, v5
        v_cmp_eq_u32 s[28:29], 16, v18
        v_cndmask_b32_e64 v16, v16, v17, s[28:29]
        v_cmp_gt_u32 s[28:29], 16, v5
        v_cndmask_b32_e64 v{vV0}, v16, v7, s[28:29]
        v_add_u32 v7, 512, v7
        v_cndmask_b32_e64 v{vV1}, v16, v7, s[28:29]
        v_mov_b32 v16, 0x3f803f80
        v_mov_b32 v17, v16
        v_mov_b32 v18, v16
        v_mov_b32 v19, v16
        v_mul_u32_u24 v20, {VSTRIDE}, v0
        v_add_u32 v20, {LDS_V + 1024}, v20
        s_cmp_lg_u32 s22, 0
        s_cbranch_scc1 L_noones_{name}
        ds_write_b128 v20, v[16:19]
        v_mov_b32 v16, 0
        v_mov_b32 v17, 0
        v_mov_b32 v18, 0
        v_mov_b32 v19, 0
        ds_write_b128 v20, v[16:19] offset:16
        """)
        st.label(f"L_noones_{name}")
    st(f"""
    v_and_b32 v9, 15, v0
    v_lshrrev_b32 v10, 4, v0
    s_lshl_b32 s23, s21, 11
    s_lshr_b32 s28, s22, 1
    s_lshl_b32 s28, s28, 10
    s_add_u32 s23, s23, s28
    s_and_b32 s28, s22, 1
    s_lshl_b32 s28, s28, 9
    s_add_u32 s23, s23, s28
    v_lshrrev_b32 v11, 1, v10
    v_lshlrev_b32 v11, 8, v11
    v_lshl_add_u32 v11, v9, 4, v11
    v_and_b32 v8, 1, v10
    v_lshl_add_u32 v8, v8, 3, v11
    v_add_u32 v8, s23, v8
    s_lshl_b32 s59, s20, 16
    s_add_u32 s59, s59, s{sXIN}
    """)
    def init_acc(s):
        for r in range(16):
            s(f"v_mov_b32 v{OA_+r}, 0\nv_mov_b32 v{OB_+r}, 0")
        if SMF:
            for r in range(4): s(f"v_mov_b32 v{LA+r}, 0\nv_mov_b32 v{LB+r}, 0")
    nV = 4 if SMF else 8
    def rdK(t, base): return f"ds_read_b128 {vr(KB + 4*(t&1),4)}, v{vK} offset:{(t-base)*1024}"
    def rdV(t, base):
        b = VB + nV * (t & 1)
        if SMF: return [f"ds_read_b128 {vr(b,4)}, v{vV0} offset:{(t-base)*VS}"]
        return [f"ds_read_b128 {vr(b,4)}, v{vV0} offset:{(t-base)*VS}", f"ds_read_b128 {vr(b+4,4)}, v{vV1} offset:{(t-base)*VS}"]
    def qk(S, t, Q): return f"v_mfma_f32_32x32x16_bf16 {vr(S,16)}, {vr(KB + 4*(t&1),4)}, {vr(Q,4)}, 0"
    def pv(O, L, t, P):
        b = VB + nV * (t & 1)
        if SMF:
            return ([f"v_smfmac_f32_32x32x32_bf16 {vr(O,16)}, {vr(b,4)}, {vr(P,8)}, v{vIDX}"] +
                    [f"v_mfma_f32_4x4x4_16b_bf16 {vr(L,4)}, {vr(vONE,2)}, {vr(P+2*i,2)}, {vr(L,4)}" for i in range(4)])
        return [f"v_mfma_f32_32x32x16_bf16 {vr(O,16)}, {vr(b,4)}, {vr(P,4)}, {vr(O,16)}",
                f"v_mfma_f32_32x32x16_bf16 {vr(O,16)}, {vr(b+4,4)}, {vr(P+4,4)}, {vr(O,16)}"]
    def softmax(S, P, M):
        ins = []
        if M is not None:
            for r in range(16): ins.append(f"v_sub_f32 v{S+r}, v{S+r}, v{M}")
        for i in range(8):
            ins.append(f"v_exp_f32 v{S+2*i}, v{S+2*i}")
            ins.append(f"v_exp_f32 v{S+2*i+1}, v{S+2*i+1}")
            if i > 0: ins.append(f"v_cvt_pk_bf16_f32 v{P+i-1}, v{S+2*i-2}, v{S+2*i-1}")
        ins.append(f"v_cvt_pk_bf16_f32 v{P+7}, v{S+14}, v{S+15}")
        return ins
    def mix(s, valu, groups):
        n = len(valu); k = len(groups)
        for j in range(k):
            for x in groups[j]:
                if isinstance(x, St): s.ext(x)
                else: s(x)
            for x in valu[j * n // k:(j + 1) * n // k]: s(x)
    def iteration(s, t, nt, base, extras, safe=None, first=False, rolled=False):
        MA, MB = safe if safe else (None, None)
        ex = list(extras)
        def pop(): return [ex.pop(0)] if ex else []
        g1 = [[qk(SB, t, QB)] + ([rdK(t + 2, base)] if (rolled or t + 2 < nt) else [])]
        pvb = [] if first else pv(OB_, LB, t - 1, PB)
        rv = rdV(t + 1, base) if (rolled or t + 1 < nt) else []
        if SMF:
            if pvb:
                g1.append([pvb[0]] + rv); g1 += [[x] for x in pvb[1:]]
            else:
                g1.append(rv)
        else:
            if pvb:
                g1.append([pvb[0]] + rv[:1]); g1.append([pvb[1]] + rv[1:])
            else:
                g1.append(rv)
        mix(s, softmax(SA, PA, MA), g1)
        pva = pv(OA_, LA, t, PA)
        g2 = []
        if rolled or t + 1 < nt: g2.append([qk(SA, t + 1, QA)] + pop())
        else: g2.append([])
        g2.append([pva[0]] + pop())
        for x in pva[1:-1]: g2.append([x] + pop())
        g2.append([pva[-1], "s_waitcnt lgkmcnt(0)"])
        mix(s, softmax(SB, PB, MB), g2)
        for x in ex: s.ext(x)
    def first_reads(s):
        s(rdK(0, 0)); s(rdK(1, 0))
        for x in rdV(0, 0): s(x)
        s("s_waitcnt lgkmcnt(0)")
        s(qk(SA, 0, QA))
    init_acc(st)
    st.wv("q")
    st("s_waitcnt lgkmcnt(0)\ns_barrier")
    first_reads(st)
    stamp(st)
    extras = {t: [] for t in range(64)}
    for gi in range(1, 8):
        extras[gi - 1] += kv_group(gi, f"kv{gi}")
    pre = []
    pre += w_loads(W_O, T_WOA, "woa", vL16)
    for q in range(4):
        e = St()
        if q: e("s_add_u32 s59, s59, 16384")
        e.i(f"buffer_load_dwordx2 {vr(vRES+2*q,2)}, v8, s[8:11], s59 offen"); pre.append(e)
    pre += w_loads(W_Q2, T_WQKV, "wq2", vL16)
    pre += w_loads(W_K2, T_WQKV + 32, "wk2", vL16)
    pre += w_loads(W_V2, T_WQKV + 64, "wv2", vL16)
    pre += w_loads(W_QA, T_WQ, "wq4", vL16)
    pre += kv_loads(vL16, "wk4")
    t = 14
    while pre:
        extras[t] += pre[:2]; pre = pre[2:]; t += 1
    assert t <= 62
    base = 0
    for t in range(64):
        if t == 6:
            st.wv("kv1"); st("s_barrier")
        if t == 14:
            st.wv("kv7"); st("s_barrier")
        if t == 32:
            st(f"v_add_u32 v{vK}, {32*1024}, v{vK}\nv_add_u32 v{vV0}, {32*VS}, v{vV0}")
            if not SMF: st(f"v_add_u32 v{vV1}, {32*VS}, v{vV1}")
            base = 32
        iteration(st, t, 64, base, extras[t], first=(t == 0))
    stamp(st)
    def tail(s):
        for x in pv(OB_, LB, 63, PB): s(x)
    def finish_l(s):
        if SMF:
            for O in (OA_, OB_):
                for r in range(8): s(f"v_add_f32 v{O+r}, v{O+r}, v{O+8+r}")
            for L in (LA, LB):
                s(f"""
                v_mov_b32 v{L+1}, v{L}
                v_permlane32_swap_b32 v{L+1}, v{L}
                v_add_f32 v{L}, v{L}, v{L+1}
                """)
    lA, lB = (LA, LB) if SMF else (OA_ + 8, OB_ + 8)
    tail(st)
    finish_l(st)
    st(f"""
    v_mul_f32 v9, 0, v{OA_}
    v_mul_f32 v10, 0, v{OB_}
    """)
    for r in range(1, 8):
        st(f"v_fma_f32 v9, v{OA_+r}, 0, v9\nv_fma_f32 v10, v{OB_+r}, 0, v10")
    st(f"""
    v_add_f32 v9, v9, v10
    v_min_f32 v10, v{lA}, v{lB}
    v_max_f32 v11, v{lA}, v{lB}
    v_add_f32 v10, v10, v9
    v_add_f32 v11, v11, v9
    v_cmp_u_f32 s[28:29], v{lA}, v{lB}
    v_mov_b32 v20, {f32(2.0**-40)}
    v_cmp_nge_f32 vcc, v10, v20
    s_or_b64 s[28:29], s[28:29], vcc
    v_mov_b32 v20, {f32(2.0**100)}
    v_cmp_nle_f32 vcc, v11, v20
    s_or_b64 s[28:29], s[28:29], vcc
    s_cmp_eq_u64 s[28:29], 0
    s_cbranch_scc1 L_attok_{name}
    """)
    MA, MB = 9, 10
    st(f"""
    v_subrev_u32 v{vK}, {32*1024}, v{vK}
    v_subrev_u32 v{vV0}, {32*VS}, v{vV0}
    """)
    if not SMF: st(f"v_subrev_u32 v{vV1}, {32*VS}, v{vV1}")
    st(f"""
    v_mov_b32 v{MA}, {f32(-3.0e38)}
    v_mov_b32 v{MB}, {f32(-3.0e38)}
    v_mov_b32 v11, v{vK}
    s_mov_b32 s44, 0
    """)
    st.label(f"L_max_{name}")
    st(f"""
    ds_read_b128 {vr(KB,4)}, v11
    s_waitcnt lgkmcnt(0)
    v_mfma_f32_32x32x16_bf16 {vr(SA,16)}, {vr(KB,4)}, {vr(QA,4)}, 0
    v_mfma_f32_32x32x16_bf16 {vr(SB,16)}, {vr(KB,4)}, {vr(QB,4)}, 0
    v_add_u32 v11, 1024, v11
    """)
    for r in range(0, 16, 2):
        st(f"v_max3_f32 v{MA}, v{MA}, v{SA+r}, v{SA+r+1}")
    for r in range(0, 16, 2):
        st(f"v_max3_f32 v{MB}, v{MB}, v{SB+r}, v{SB+r+1}")
    st(f"""
    s_add_u32 s44, s44, 1
    s_cmp_lt_u32 s44, 64
    s_cbranch_scc1 L_max_{name}
    v_mov_b32 v11, v{MA}
    v_permlane32_swap_b32 v11, v{MA}
    v_max_f32 v{MA}, v{MA}, v11
    v_mov_b32 v11, v{MB}
    v_permlane32_swap_b32 v11, v{MB}
    v_max_f32 v{MB}, v{MB}, v11
    """)
    init_acc(st)
    for r in range(8): st(f"v_mov_b32 v{PB+r}, 0")
    for r in range(nV): st(f"v_mov_b32 v{VB+nV+r}, 0")
    first_reads(st)
    st("s_mov_b32 s44, 0")
    st.label(f"L_att2_{name}")
    for u in range(2):
        iteration(st, u + 2, 64, 2, [], safe=(MA, MB), rolled=True)
    st(f"""
    v_add_u32 v{vK}, {2*1024}, v{vK}
    v_add_u32 v{vV0}, {2*VS}, v{vV0}
    """)
    if not SMF: st(f"v_add_u32 v{vV1}, {2*VS}, v{vV1}")
    st(f"""
    s_add_u32 s44, s44, 1
    s_cmp_lt_u32 s44, 32
    s_cbranch_scc1 L_att2_{name}
    """)
    tail(st)
    finish_l(st)
    st.label(f"L_attok_{name}")
    st(f"""
    s_lshl_b32 s23, s21, 11
    s_lshr_b32 s24, s22, 1
    s_lshl_b32 s24, s24, 10
    s_add_u32 s23, s23, s24
    s_and_b32 s24, s22, 1
    s_lshl_b32 s24, s24, 9
    s_add_u32 s23, s23, s24
    s_lshl_b32 s24, s20, 16
    s_add_u32 s23, s23, s24
    s_add_u32 s23, s23, s{sOA}
    v_and_b32 v9, 15, v0
    v_lshlrev_b32 v9, 4, v9
    v_lshrrev_b32 v10, 5, v0
    v_lshl_add_u32 v9, v10, 3, v9
    v_bfe_u32 v10, v0, 4, 1
    v_lshl_add_u32 v9, v10, 14, v9
    """)
    for qb, O, l in ((0, OA_, lA), (1, OB_, lB)):
        st(f"v_rcp_f32 v11, v{l}")
        for r in range(8): st(f"v_mul_f32 v{O+r}, v{O+r}, v11")
        p = 16 + 4 * qb
        st(f"""
        v_cvt_pk_bf16_f32 v{p}, v{O}, v{O+1}
        v_cvt_pk_bf16_f32 v{p+1}, v{O+2}, v{O+3}
        v_cvt_pk_bf16_f32 v{p+2}, v{O+4}, v{O+5}
        v_cvt_pk_bf16_f32 v{p+3}, v{O+6}, v{O+7}
        """)
        st.i(f"buffer_store_dwordx2 {vr(p,2)}, v9, s[8:11], s23 offen sc1")
        st.i(f"buffer_store_dwordx2 {vr(p+2,2)}, v9, s[8:11], s23 offen offset:256 sc1")
        if qb == 0: st("s_add_u32 s23, s23, 32768")


def dma_slots(st, ns, sSrc, tile_of_slot, tag, vL16, row_src=None):
    st(f"s_mul_i32 s25, s22, {ns*4096}")
    if row_src is None:
        st(f"s_lshl_b32 s24, s22, 12\ns_add_u32 s24, s24, {sSrc}")
    else:
        st(f"s_lshl_b32 s24, s22, 8")
    slots = []
    for s in range(ns):
        L = []
        for q in range(4):
            e = St()
            if q == 0:
                tile_of_slot(e, s)
                e(f"s_lshl_b32 s23, s23, 14\ns_add_u32 s27, s23, s24")
            if row_src is None:
                if q == 0: e(f"s_add_u32 m0, s25, {LDS_X + s*4096}")
                e.i(f"buffer_load_dwordx4 v{vL16}, s[8:11], s27 offen offset:{q*1024} sc1 lds", vm=f"{tag}{s}_{q}")
            else:
                if q: e("s_add_u32 s27, s27, 64")
                e(f"s_add_u32 m0, s25, {LDS_X + s*4096 + q*1024}")
                e.i(f"buffer_load_dwordx4 v{row_src}, s[12:15], s27 offen lds", vm=f"{tag}{s}_{q}")
            L.append(e)
        slots.append(L)
    return slots

def gemm_steps2(ns, chains, tagx, stats, dma, vStatG=None, vStatS=None, extra=None):
    g = G
    steps = []
    total = ns * 16
    def rd(idx):
        s, jj = divmod(idx, 16)
        ring = g.vRing + 4 * (idx % RING)
        return f"ds_read_b128 {vr(ring, 4)}, v{g.vXA + (jj >> 2)} offset:{s*4096 + (jj & 3)*1024}"
    pre = St()
    for e in dma[0]: pre.ext(e)
    for e in dma[1]: pre.ext(e)
    steps.append(pre)
    pre2 = St()
    pre2.wv(f"{tagx}0_3")
    pre2("s_barrier")
    for idx in range(RING):
        pre2.i(rd(idx), lds=f"x{idx}")
    steps.append(pre2)
    for idx in range(total):
        s, jj = divmod(idx, 16)
        stp = St()
        ring = g.vRing + 4 * (idx % RING)
        if idx % 2 == 0:
            stp.wl(f"x{min(idx+1, total-1)}")
        ms = []
        for (acc, w, w_is_A) in chains(s):
            wreg = rr((w[0], w[1] + 4 * jj), 4)
            c = "0" if jj == 0 and acc[1] else vr(acc[0], 4)
            if w_is_A: ms.append(f"v_mfma_f32_16x16x32_bf16 {vr(acc[0],4)}, {wreg}, {vr(ring,4)}, {c}")
            else:      ms.append(f"v_mfma_f32_16x16x32_bf16 {vr(acc[0],4)}, {vr(ring,4)}, {wreg}, {c}")
        if stats and jj < 4:
            cg = "0" if jj == 0 else vr(vStatG, 4)
            cs = "0" if jj == 0 else vr(vStatS, 4)
            ms.append(f"v_mfma_f32_16x16x32_bf16 {vr(vStatG,4)}, {vr(ring,4)}, {vr(ring,4)}, {cg}")
            ms.append(f"v_mfma_f32_16x16x32_bf16 {vr(vStatS,4)}, {vr(g.vOnes,4)}, {vr(ring,4)}, {cs}")
        if extra:
            ms += [x.replace("{X}", vr(ring, 4)) for x in extra(s, jj)]
        for mi in ms: stp(mi)
        nxt = idx + RING
        if nxt < total:
            if nxt % 16 == 0:
                stp.wv(f"{tagx}{nxt//16}_3")
                if stats: stp.wl(f"sw{s}")
                stp("s_barrier")
            stp.i(rd(nxt), lds=f"x{nxt}")
        elif stats and nxt == total:
            stp.wl(f"sw{s}")
            stp("s_barrier")
        if s + 2 < ns and jj < 4:
            stp.ext(dma[s + 2][jj])
        steps.append(stp)
    return steps

vX1P = vRES
def phase_p13(st, name, which):
    g = G
    ns = 4
    common_lane_setup(st, ns)
    st("s_lshl_b32 s26, s20, 2")
    gen_tag = f"x{which}"
    dma = dma_slots(st, ns, f"s{sOA if which == 1 else sOB}", lambda e, s: e(f"s_add_u32 s23, s26, {s}"), gen_tag, g.vLane16)
    vActA, vRowA = 44, 45
    act_store_addr(st, vActA, g.vTmp)
    res = vRES
    acc = g.vAcc
    for s in range(ns):
        a = acc + 4 * s
        st(f"""
        v_lshlrev_b32 v{a}, 16, v{res+2*s}
        v_and_b32 v{a+1}, 0xffff0000, v{res+2*s}
        v_lshlrev_b32 v{a+2}, 16, v{res+2*s+1}
        v_and_b32 v{a+3}, 0xffff0000, v{res+2*s+1}
        """)
    if which == 3:
        row_addr(st, vRowA)
        st(f"""
        s_cmp_eq_u32 s{sL}, 0
        s_cselect_b32 s{SRD_OUT}, s8, s12
        s_cselect_b32 s{SRD_OUT+1}, s9, s13
        s_cselect_b32 s{SRD_OUT+2}, s10, s14
        s_mov_b32 s{SRD_OUT+3}, 0x00020000
        s_cselect_b32 s46, {B0 + BS + XIN}, 0
        s_cselect_b64 s[28:29], -1, 0
        v_cndmask_b32_e64 v{vActA}, v{vRowA}, v{vActA}, s[28:29]
        s_mul_i32 s25, s22, {ns*4096}
        s_lshl_b32 s24, s22, 12
        s_add_u32 s24, s24, s{sOB}
        """)
    else:
        st(f"""
        s_mul_i32 s25, s22, {ns*4096}
        s_lshl_b32 s24, s22, 12
        s_add_u32 s24, s24, s{sOA}
        """)
    sync_wait(st, 0 if which == 1 else 2, name, keep=True)
    steps = gemm_steps2(ns, lambda s: [((acc + 4 * s, False), W_O, True)], gen_tag, False, dma)
    def epi(s):
        e = St()
        a = acc + 4 * s
        p = (vX1P if which == 1 else 88) + 2 * s
        e(f"""
        v_cvt_pk_bf16_f32 v{p}, v{a}, v{a+1}
        v_cvt_pk_bf16_f32 v{p+1}, v{a+2}, v{a+3}
        s_add_u32 s47, s26, {s}
        s_lshl_b32 s47, s47, 14
        """)
        if which == 1:
            e(f"s_add_u32 s47, s47, s{sX1}")
            e.i(f"buffer_store_dwordx2 {vr(p,2)}, v{vActA}, s[8:11], s47 offen sc1")
        else:
            e("s_add_u32 s47, s47, s46")
            e.i(f"buffer_store_dwordx2 {vr(p,2)}, v{vActA}, s[{SRD_OUT}:{SRD_OUT+3}], s47 offen sc1")
        return e
    st.ext(steps[0]); st.ext(steps[1])
    for s in range(ns):
        seg = steps[2 + 16 * s: 2 + 16 * (s + 1)]
        if s > 0:
            side = St(); side.it.append(("gap", 3, None, None)); side.ext(epi(s - 1))
            st.ext(weave(seg, side, per=2))
        else:
            for x in seg: st.ext(x)
    st.ext(epi(ns - 1))

def phase_p2(st, name):
    g = G
    ns = 5
    common_lane_setup(st, ns)
    stats_setup(st, ns)
    Wq, Wk, Wv = W_Q2, W_K2, W_V2
    st("""
    s_lshl_b32 s26, s20, 2
    s_sub_u32 s26, s26, 1
    """)
    vActA = 96
    act_store_addr(st, vActA, g.vTmp)
    vMo, vMp, vMp0 = 100, 104, 108
    NEG = f32(-1.0e30)
    st(f"v_mov_b32 v{g.vTmp+2}, {NEG}")
    for r in range(4):
        st(f"""
        v_lshl_add_u32 v{g.vTmp}, v{g.vGq}, 2, {r}
        v_sub_u32 v{g.vTmp}, v{g.vT}, v{g.vTmp}
        v_and_b32 v{g.vTmp+1}, 0x80000001, v{g.vTmp}
        v_cmp_eq_u32 s[28:29], 0, v{g.vTmp+1}
        v_cndmask_b32_e64 v{vMo+r}, v{g.vTmp+2}, 0, s[28:29]
        v_cmp_gt_i32 s[38:39], -1, v{g.vTmp}
        v_and_b32 v{g.vTmp+1}, 1, v{g.vTmp}
        v_cmp_eq_u32 s[28:29], 0, v{g.vTmp+1}
        s_and_b64 s[28:29], s[28:29], s[38:39]
        v_cndmask_b32_e64 v{vMp+r}, v{g.vTmp+2}, 0, s[28:29]
        """)
    st("s_cmp_eq_u32 s20, 0\ns_cselect_b64 s[28:29], -1, 0")
    for r in range(4):
        st(f"v_cndmask_b32_e64 v{vMp0+r}, v{vMp+r}, v{g.vTmp+2}, s[28:29]")
    vCSq, vCSk, vCSv = 112, 116, 120
    colsum(st, vCSq, Wq, True)
    colsum(st, vCSk, Wk, True)
    colsum(st, vCSv, Wv, False)
    def tile_of_slot(e, s):
        if s == 0: e("s_max_i32 s23, s26, 0")
        else: e(f"s_add_u32 s23, s26, {s}")
    dma = dma_slots(st, ns, f"s{sX1}", tile_of_slot, "x2", g.vLane16)
    sync_wait(st, 1, name, halo=True)
    wob = w_loads(W_O, T_WOB, "wob", g.vLane16)
    accq, acck, accv = 64, 68, 72
    def A(base, s): return base + 12 * (s & 1)
    vStatG, vStatS = 88, 92
    def chains(s):
        c = []
        if s > 0: c.append(((A(accq, s), True), Wq, True))
        c.append(((A(acck, s), True), Wk, True))
        c.append(((A(accv, s), True), Wv, False))
        return c
    steps = gemm_steps2(ns, chains, "x2", True, dma, vStatG, vStatS)
    for jj in range(16): steps[2 + 16 * 4 + jj].ext(wob[jj]) if jj >= 0 else None
    vR, vN = 124, 125
    vRq, vNq = 128, 129
    vR4, vN4 = 132, 136
    pq, pk, pv = 140, 142, 148
    tmp = 56
    S, P, MX, T2, PO = 158, 132, 97, 98, 146
    O, L = S, S + 4
    def epi(s):
        e = St()
        R, N = vR + 2 * (s & 1), vN + 2 * (s & 1)
        e.ext(stats_vlayout(s, R, N, vR4, vN4))
        ln_epi_t(e, A(acck, s), R, N, vCSk, pk + 2 * (s & 1), tmp)
        if s > 0:
            e(f"v_mul_f32 v{vRq}, {f32(CQ)}, v{R}\nv_mul_f32 v{vNq}, {f32(CQ)}, v{N}")
            ln_epi_t(e, A(accq, s), vRq, vNq, vCSq, pq, tmp)
        e.wl(f"pr{s}")
        ln_epi_v(e, A(accv, s), vR4, vN4, vCSv, pv + 2 * s, tmp)
        if s == 0: return e
        kp = pk + 2 * ((s - 1) & 1); ko = pk + 2 * (s & 1)
        mp = vMp0 if s == 1 else vMp
        e(f"v_mfma_f32_16x16x16_bf16 {vr(S,4)}, {vr(kp,2)}, {vr(pq,2)}, {vr(mp,4)}")
        e(f"v_mfma_f32_16x16x16_bf16 {vr(S+4,4)}, {vr(ko,2)}, {vr(pq,2)}, {vr(vMo,4)}")
        e.it.append(("gap", 3, None, None))
        e(f"""
        v_max3_f32 v{MX}, v{S}, v{S+1}, v{S+2}
        v_max3_f32 v{T2}, v{S+3}, v{S+4}, v{S+5}
        v_max3_f32 v{MX}, v{MX}, v{S+6}, v{S+7}
        v_max_f32 v{MX}, v{MX}, v{T2}
        v_mov_b32 v{T2}, v{MX}
        v_permlane32_swap_b32 v{T2}, v{MX}
        v_max_f32 v{MX}, v{MX}, v{T2}
        v_mov_b32 v{T2}, v{MX}
        v_permlane16_swap_b32 v{T2}, v{MX}
        v_max_f32 v{MX}, v{MX}, v{T2}
        """)
        for r in range(8): e(f"v_sub_f32 v{S+r}, v{S+r}, v{MX}")
        for r in range(8): e(f"v_exp_f32 v{S+r}, v{S+r}")
        for r in range(4): e(f"v_cvt_pk_bf16_f32 v{P+r}, v{S+2*r}, v{S+2*r+1}")
        e(f"v_mfma_f32_16x16x32_bf16 {vr(O,4)}, {vr(pv+2*(s-1),4)}, {vr(P,4)}, 0")
        e(f"v_mfma_f32_16x16x32_bf16 {vr(L,4)}, {vr(g.vOnes,4)}, {vr(P,4)}, 0")
        e.it.append(("gap", 3, None, None))
        e(f"v_rcp_f32 v{L}, v{L}")
        for r in range(4): e(f"v_mul_f32 v{O+r}, v{O+r}, v{L}")
        e(f"""
        v_cvt_pk_bf16_f32 v{PO}, v{O}, v{O+1}
        v_cvt_pk_bf16_f32 v{PO+1}, v{O+2}, v{O+3}
        s_add_u32 s47, s26, {s}
        s_lshl_b32 s47, s47, 14
        s_add_u32 s47, s47, s{sOB}
        """)
        e.i(f"buffer_store_dwordx2 {vr(PO,2)}, v{vActA}, s[8:11], s47 offen sc1")
        return e
    st.ext(steps[0]); st.ext(steps[1])
    for s in range(ns):
        seg = steps[2 + 16 * s: 2 + 16 * (s + 1)]
        R, N = vR + 2 * (s & 1), vN + 2 * (s & 1)
        side_a = St()
        if s > 0:
            side_a.it.append(("gap", 2, None, None)); side_a.ext(epi(s - 1))
        q = list(side_a.it)
        def take(n):
            nonlocal q
            s1 = St(); cnt = 0
            while q and cnt < n:
                x = q.pop(0); s1.it.append(x)
                if x[0] == "i": cnt += 1
            return s1
        nm = len(chains(s))
        st.ext(weave(seg[0:4], take(4 * (nm + 2) * 2 - 6), per=2))
        side = St(); side.it.append(("gap", 2, None, None)); side.ext(stats_extract(s, vStatG, vStatS, ns)); side.ext(take(4 * nm * 2 - 12))
        st.ext(weave(seg[4:8], side, per=2))
        st.ext(seg[8])
        side = stats_finalize(s, R, N, g.vTmp); rest = St(); rest.it = q; side.ext(rest)
        st.ext(weave(seg[9:16], side, per=2))
    st.ext(epi(ns - 1))

LDS_KVP = 71680
P4_LDS = LDS_KVP + 4096
def phase_p4(st, name, layer, src, preloaded):
    g = G
    ns = 4
    common_lane_setup(st, ns)
    stats_setup(st, ns)
    Wq, Wkv = W_QA, W_KV
    st("""
    s_lshl_b32 s26, s20, 2
    s_lshr_b32 s38, s21, 1
    """)
    for s in range(ns):
        st(f"""
        s_add_u32 s23, s38, {s}
        s_and_b32 s23, s23, 3
        s_add_u32 s{40+s}, s26, s23
        """)
    tos = lambda e, s: e(f"s_mov_b32 s23, s{40+s}")
    if src == "row":
        vtmp = g.vTmp + 13
        st(f"""
        v_lshlrev_b32 v{vtmp}, 10, v{g.vT}
        v_lshl_add_u32 v{vtmp}, v{g.vGq}, 4, v{vtmp}
        """)
        dma = dma_slots(st, ns, None, tos, "x4", g.vLane16, row_src=vtmp)
        pre = St()
        for sl in range(2):
            for e in dma[sl]: pre.ext(e)
        st.ext(pre)
        wave_scalars(st)
        for e in w_loads(Wq, T_WQ, "wq4", g.vLane16): st.ext(e)
        for e in kv_loads(g.vLane16, "wk4"): st.ext(e)
        dma[0] = []; dma[1] = []
    else:
        st(f"s_mov_b32 s47, {B0 + BS*layer + XIN}")
        dma = dma_slots(st, ns, "s47", tos, "x4", g.vLane16)
    vCSq = 96
    accK, accV, csK, csV = 80, 84, 128, 132
    vA0, vA1, vKW, vKR = 136, 137, 138, 139
    st(f"""
    s_bitcmp1_b32 s21, 0
    s_cselect_b64 s[64+0:64+1], -1, 0
    """.replace("s[64+0:64+1]", "s[38:39]"))
    t = g.vTmp
    st(f"""
    v_lshrrev_b32 v{t}, 1, v{g.vGq}
    v_and_b32 v{t+1}, 1, v{g.vGq}
    v_lshlrev_b32 v{t+2}, 9, v{t}
    v_lshl_add_u32 v{t+2}, v{g.vT}, 4, v{t+2}
    v_lshl_add_u32 v{t+2}, v{t+1}, 3, v{t+2}
    v_add_u32 v{t+3}, 4, v{t+2}
    """)
    if SMF:
        st(f"""
        v_lshl_add_u32 v{t+4}, v{t+1}, 1, v{t}
        v_lshlrev_b32 v{t+4}, 2, v{t+4}
        v_lshl_add_u32 v{t+4}, v{g.vT}, 4, v{t+4}
        v_add_u32 v{t+5}, 256, v{t+4}
        """)
    else:
        st(f"""
        v_lshlrev_b32 v{t+4}, 8, v{t+1}
        v_lshl_add_u32 v{t+4}, v{g.vT}, 4, v{t+4}
        v_lshl_add_u32 v{t+4}, v{t}, 3, v{t+4}
        v_add_u32 v{t+5}, 4, v{t+4}
        """)
    st(f"""
    v_cndmask_b32_e64 v{vA0}, v{t+2}, v{t+4}, s[38:39]
    v_cndmask_b32_e64 v{vA1}, v{t+3}, v{t+5}, s[38:39]
    s_lshl_b32 s23, s22, 10
    s_add_u32 s23, s23, {LDS_KVP}
    v_add_u32 v{vKW}, s23, v{g.vLane16}
    v_add_u32 v{vKR}, {LDS_KVP}, v{g.vLane16}
    s_lshr_b32 s23, s40, 1
    s_lshl_b32 s23, s23, 10
    s_and_b32 s28, s40, 1
    s_lshl_b32 s29, s28, 8
    s_add_u32 s29, s29, {KF0 + KVS*layer}
    s_lshl_b32 s28, s28, 9
    s_add_u32 s28, s28, {VF0 + KVS*layer}
    s_bitcmp1_b32 s21, 0
    s_cselect_b32 s28, s28, s29
    s_add_u32 s59, s23, s28
    """)
    st.wv("wk43")
    colsum(st, vCSq, Wq, True)
    for jj in range(4):
        w = rr((Wkv[0], Wkv[1] + 4 * jj), 4)
        st(f"v_mfma_f32_16x16x32_bf16 {vr(csK,4)}, {w}, {vr(g.vOnes,4)}, {'0' if jj == 0 else vr(csK,4)}")
        st(f"v_mfma_f32_16x16x32_bf16 {vr(csV,4)}, {vr(g.vOnes,4)}, {w}, {'0' if jj == 0 else vr(csV,4)}")
    if src == "act":
        sync_wait(st, 3, name)
    acc = g.vAcc
    vStatG, vStatS = 88, 92
    def extra(s, jj):
        if s != 0 or jj >= 4: return []
        w = rr((Wkv[0], Wkv[1] + 4 * jj), 4)
        return [f"v_mfma_f32_16x16x32_bf16 {vr(accK,4)}, {w}, {{X}}, {'0' if jj == 0 else vr(accK,4)}",
                f"v_mfma_f32_16x16x32_bf16 {vr(accV,4)}, {{X}}, {w}, {'0' if jj == 0 else vr(accV,4)}"]
    steps = gemm_steps2(ns, lambda s: [((acc + 4 * s, True), Wq, True)], "x4", True, dma, vStatG, vStatS, extra=extra)
    vR = [104 + s for s in range(ns)]; vN = [108 + s for s in range(ns)]
    vRq, vNq = 112, 113
    pk = 116
    tmp = g.vTmp + 8
    def epi(s):
        e = St()
        e(f"v_mul_f32 v{vRq}, {f32(CQ)}, v{vR[s]}\nv_mul_f32 v{vNq}, {f32(CQ)}, v{vN[s]}")
        ln_epi_t(e, acc + 4 * s, vRq, vNq, vCSq, pk + 2 * s, tmp)
        return e
    R4, N4, Y = 140, 144, 148
    def kv_part():
        e = St()
        e.ext(stats_vlayout(9, vR[0], vN[0], R4, N4))
        e.wl("pr9")
        for r in range(4):
            e(f"""
            v_cndmask_b32_e64 v{R4+r}, v{vR[0]}, v{R4+r}, s[38:39]
            v_cndmask_b32_e64 v{N4+r}, v{vN[0]}, v{N4+r}, s[38:39]
            v_cndmask_b32_e64 v{csK+r}, v{csK+r}, v{csV}, s[38:39]
            v_cndmask_b32_e64 v{accK+r}, v{accK+r}, v{accV+r}, s[38:39]
            """)
        for r in range(4): e(f"v_mul_f32 v{Y+r}, v{N4+r}, v{csK+r}")
        for r in range(4): e(f"v_fma_f32 v{Y+r}, v{accK+r}, v{R4+r}, v{Y+r}")
        e.i(f"ds_write_b128 v{vKW}, {vr(Y,4)}", lds="kvw")
        return e
    def kv_fin():
        e = St()
        F = 140
        for w in range(4): e.i(f"ds_read_b128 {vr(F+4*w,4)}, v{vKR} offset:{w*1024}", lds=f"kvr{w}")
        e.it.append(("gap", 2, None, None))
        e.wl("kvr3")
        for r in range(4):
            e(f"v_add_f32 v{F+r}, v{F+r}, v{F+4+r}\nv_add_f32 v{F+8+r}, v{F+8+r}, v{F+12+r}")
        for r in range(4): e(f"v_add_f32 v{F+r}, v{F+r}, v{F+8+r}")
        e(f"v_cvt_pk_bf16_f32 v156, v{F}, v{F+1}\nv_cvt_pk_bf16_f32 v157, v{F+2}, v{F+3}")
        e.i(f"buffer_store_dword v156, v{vA0}, s[8:11], s59 offen")
        e.i(f"buffer_store_dword v157, v{vA1}, s[8:11], s59 offen")
        return e
    st.ext(steps[0]); st.ext(steps[1])
    for s in range(ns):
        seg = steps[2 + 16 * s: 2 + 16 * (s + 1)]
        a = seg[:4]; b = seg[4:9]; c = seg[9:]
        side = St()
        if s > 0:
            side.it.append(("gap", 2, None, None)); side.ext(epi(s - 1))
        if s == 1: side.ext(kv_part())
        st.ext(weave(a, side, per=2))
        side = St(); side.it.append(("gap", 2, None, None)); side.ext(stats_extract(s, vStatG, vStatS, ns))
        st.ext(weave(b[:4], side, per=2))
        if s == 1: st.wl("kvw")
        st.ext(b[4])
        side = stats_finalize(s, vR[s], vN[s], g.vTmp)
        if s == 1: side.ext(kv_fin())
        st.ext(weave(c, side, per=2))
    st.ext(epi(ns - 1))
    st(f"""
    v_lshrrev_b32 v48, 1, v{g.vGq}
    v_lshlrev_b32 v48, 9, v48
    v_lshl_add_u32 v48, v{g.vT}, 4, v48
    v_and_b32 v49, 1, v{g.vGq}
    v_lshl_add_u32 v48, v49, 3, v48
    s_lshl_b32 s25, s20, 3
    s_add_u32 s25, s25, s21
    s_lshl_b32 s25, s25, 2
    s_add_u32 s25, s25, s22
    s_lshl_b32 s25, s25, 11
    s_add_u32 s25, s25, {QF0 + QFS*layer}
    """)
    for s in range(ns):
        st(f"""
        s_and_b32 s23, s{40+s}, 3
        s_lshr_b32 s24, s23, 1
        s_lshl_b32 s24, s24, 10
        s_and_b32 s23, s23, 1
        s_lshl_b32 s23, s23, 8
        s_add_u32 s23, s23, s24
        s_add_u32 s23, s23, s25
        """)
        st.i(f"buffer_store_dwordx2 {vr(pk+2*s,2)}, v48, s[8:11], s23 offen")

def gen_p4a(name):
    st = St()
    prologue(st, name, "s_load_dwordx2 s[6:7], s[0:1], 0")
    srd_io(st, 6, 2048 * 1024)
    phase_p4(st, name, 0, "row", False)
    st("s_waitcnt vmcnt(0)")
    return kernel_text(name, st)

def gen_main(names):
    body_name = names[0]
    st = St()
    st(f"s_mov_b32 s{sL}, 0")
    st.label("L_main_common")
    NST[0] = 0
    stamp(st)
    if INSTR: st("s_memrealtime s[96:97]")
    prologue(st, body_name, "s_load_dwordx2 s[6:7], s[0:1], 64")
    srd_io(st, 6, 2048 * 1024)
    st(f"""
    s_mul_i32 s23, s{sL}, {KVS}
    s_add_u32 s{sKF}, s23, {KF0}
    s_add_u32 s{sVF}, s23, {VF0}
    s_mul_i32 s23, s{sL}, {QFS}
    s_add_u32 s{sQF}, s23, {QF0}
    s_mul_i32 s23, s{sL}, {BS}
    s_add_u32 s{sXIN}, s23, {B0 + XIN}
    s_add_u32 s{sOA}, s23, {B0 + OA}
    s_add_u32 s{sX1}, s23, {B0 + X1}
    s_add_u32 s{sOB}, s23, {B0 + OB}
    s_lshl_b32 s23, s{sL}, 14
    s_add_u32 s{sFLAG}, s23, {FLAGS}
    """)
    phase_att(st, body_name)
    stamp(st)
    sync_publish(st, 0, body_name)
    phase_p13(st, body_name + "_1", 1)
    stamp(st)
    sync_publish(st, 1, body_name)
    phase_p2(st, body_name + "_2")
    stamp(st)
    sync_publish(st, 2, body_name)
    phase_p13(st, body_name + "_3", 3)
    stamp(st)
    st(f"s_cmp_lg_u32 s{sL}, 0\ns_cbranch_scc1 L_fin_{body_name}")
    sync_publish(st, 3, body_name)
    phase_p4(st, body_name + "_4", 1, "act", True)
    st.label(f"L_fin_{body_name}")
    st("s_waitcnt vmcnt(0)")
    stamp(st)
    stamp_dump(st, f"s{sL}")
    txt = kernel_text(body_name, st)
    n2 = names[1]
    desc = txt[txt.index(".section .rodata"):].replace(body_name, n2)
    txt += f""".text
.globl {n2}
.p2align 8
.type {n2},@function
{n2}:
    s_mov_b32 s{sL}, 1
    s_branch L_main_common
""" + desc
    return txt

def build(path):
    gen.INSTR = None
    ks = [("k0_kernel", 0), ("p4a_kernel", P4_LDS), ("main0_kernel", ATT_LDS), ("main1_kernel", ATT_LDS)]
    hdr = open("cdna_kernels/" + NAME + ".s.ref").read().split("; Override launch geometry")[0]
    out = hdr
    for n, lds in ks:
        out += f"; @launch kernel={n} grid=(256,1,1) block=(256,1,1) lds={lds}\n"
    out += '.amdgcn_target "amdgcn-amd-amdhsa--gfx950"\n'
    out += gen_k0("k0_kernel")
    out += gen_p4a("p4a_kernel")
    out += gen_main(("main0_kernel", "main1_kernel"))
    open(path, "w").write(out)

if __name__ == "__main__":
    build(sys.argv[1] if len(sys.argv) > 1 else "stage3.s")
```

```python
import sys, os
sys.path.insert(0, os.path.dirname(os.path.abspath(__file__)))
import gen
from gen import (St, weave, vr, ar, rr, f32, CQ, G, RING, LDS_X, prologue, srd_io, kernel_text, emit_selectors,
                 common_lane_setup, load_weights, stats_setup, gemm_steps, stats_extract, stats_finalize, stats_vlayout,
                 act_store_addr, row_addr, colsum, ln_epi_t, ln_epi_v, T_WQ, T_WOA, T_WOB, T_WQKV, T_WK, T_WV, NFRAG, NAME)
INSTR = gen.INSTR
OPT = os.environ.get("OPT", "")

KF0, VF0, KVS = 0x310000, 0x320000, 0x20000
QF0, QFS = 0x400000, 0x200000
B0, BS = 0x800000, 0x800000
XIN, OA, X1, OB = 0, 0x200000, 0x400000, 0x600000
FLAGS = 0x1900000
FLAG_BYTES = 0x8000
sKF, sVF, sQF, sXIN, sOA, sX1, sOB, sL, sFLAG = 48, 49, 50, 51, 52, 53, 54, 55, 56
SRD_OUT = 60
sSPIN = 45

DBG = os.environ.get("DBG")
DBG_OFF = 0x1A00000
DBGSUB = int(os.environ.get('DBGSUB', '0'))
def dbg_start(st):
    if DBG: st("s_memrealtime s[96:97]")
def dbg_end(st, k, name, last=False):
    if not DBG: return
    st(f"""
    s_memrealtime s[98:99]
    s_or_b32 s23, s2, s22
    s_cmp_lg_u32 s23, 0
    s_cbranch_scc1 L_nodbg_{name}
    s_waitcnt lgkmcnt(0)
    v_mov_b32 v4, s96
    v_mov_b32 v5, s98
    v_mov_b32 v8, 0
    s_mov_b64 exec, 1
    s_mov_b32 s23, {DBG_OFF + 8*k}
    buffer_store_dwordx2 v[4:5], v8, s[8:11], s23 offen
    s_waitcnt vmcnt(0)
    """)
    if last:
        st(f"""
        s_load_dwordx2 s[28:29], s[0:1], 72
        s_mov_b64 exec, -1
        v_lshlrev_b32 v8, 2, v0
        s_mov_b32 s23, {DBG_OFF}
        buffer_load_dword v4, v8, s[8:11], s23 offen sc1
        s_waitcnt vmcnt(0) lgkmcnt(0)
        s_sub_u32 s28, s28, {DBGSUB*512}
        s_subb_u32 s29, s29, 0
        s_mov_b64 exec, 0xffff
        global_store_dword v8, v4, s[28:29]
        s_waitcnt vmcnt(0)
        """)
    st.label(f"L_nodbg_{name}")

NST = [0]
def stamp(st):
    if not INSTR: return
    k = NST[0]; NST[0] += 1
    st(f"s_memtime s[{64+2*k}:{65+2*k}]\ns_waitcnt lgkmcnt(0)")
def stamp_dump(st, slot):
    if not INSTR: return
    st("s_memrealtime s[98:99]\ns_waitcnt lgkmcnt(0)")
    for k in range(16): st(f"v_mov_b32 v{16+k}, s{64+2*k if k < NST[0] else 98}")
    st(f"""
    v_mov_b32 v31, s98
    v_mov_b32 v30, s96
    s_lshl_b32 s23, s2, 2
    s_add_u32 s23, s23, s22
    s_lshl_b32 s23, s23, 6
    s_mul_i32 s24, {slot}, 65536
    s_add_u32 s23, s23, s24
    s_add_u32 s23, s23, {gen.TS_OFF}
    v_mov_b32 v8, 0
    s_mov_b64 exec, 1
    buffer_store_dwordx4 v[16:19], v8, s[8:11], s23 offen
    buffer_store_dwordx4 v[20:23], v8, s[8:11], s23 offen offset:16
    buffer_store_dwordx4 v[24:27], v8, s[8:11], s23 offen offset:32
    buffer_store_dwordx4 v[28:31], v8, s[8:11], s23 offen offset:48
    s_waitcnt vmcnt(0)
    s_mov_b64 exec, -1
    """)

def gen_k0(name):
    st = St()
    NST[0] = 0
    stamp(st)
    dbg_start(st)
    if INSTR: st("s_memrealtime s[96:97]")
    prologue(st, name, """
    s_load_dwordx2 s[32:33], s[0:1], 8
    s_load_dwordx4 s[36:39], s[0:1], 16
    s_load_dwordx2 s[40:41], s[0:1], 32
    s_load_dwordx4 s[44:47], s[0:1], 48
    s_load_dwordx2 s[6:7], s[0:1], 0
    """)
    vB0, vB1 = 8, 12
    st("""
    v_lshlrev_b32 v6, 4, v0
    s_lshl_b32 s26, s2, 2
    s_add_u32 s26, s26, s22
    """)
    st("""
    v_and_b32 v20, 15, v0
    v_lshrrev_b32 v21, 4, v0
    v_lshlrev_b32 v22, 10, v20
    v_lshl_add_u32 v22, v21, 4, v22
    s_lshr_b32 s27, s26, 3
    s_lshl_b32 s27, s27, 14
    s_and_b32 s28, s26, 7
    s_lshl_b32 s28, s28, 7
    s_add_u32 s27, s27, s28
    v_add_u32 v22, s27, v22
    global_load_dwordx4 v[40:43], v22, s[6:7]
    global_load_dwordx4 v[44:47], v22, s[6:7] offset:64
    """)
    st(f"""
    s_cmp_ge_u32 s26, {FLAG_BYTES // 1024}
    s_cbranch_scc1 L_nofl_{name}
    v_mov_b32 v48, 0
    v_mov_b32 v49, 0
    v_mov_b32 v50, 0
    v_mov_b32 v51, 0
    s_lshl_b32 s27, s26, 10
    s_add_u32 s27, s27, {FLAGS}
    buffer_store_dwordx4 v[48:51], v6, s[8:11], s27 offen
    """)
    st.label(f"L_nofl_{name}")
    emit_selectors(st, vB0, vB1, 20)
    st("""
    v_and_b32 v20, 15, v0
    v_lshrrev_b32 v21, 4, v0
    v_lshrrev_b32 v4, 2, v20
    v_lshlrev_b32 v4, 3, v4
    v_and_b32 v22, 3, v20
    v_add_u32 v4, v4, v22
    v_lshrrev_b32 v22, 1, v21
    v_lshl_add_u32 v4, v22, 2, v4
    v_and_b32 v5, 1, v21
    v_lshlrev_b32 v5, 4, v5
    """)
    for i in range(4):
        st(f"""
        s_add_u32 s27, s26, {1024*i}
        s_min_u32 s27, s27, {NFRAG-1}
        s_lshr_b32 s28, s27, 4
        s_and_b32 s29, s27, 15
        s_mov_b32 s48, s32
        s_mov_b32 s49, s33
        s_mov_b32 s50, s28
        s_mov_b32 s51, 1024
        """)
        for T0, reg, stride in ((T_WOA, 40, 1024), (T_WOB, 46, 1024), (T_WQKV, 44, 3072), (T_WK, 36, 32), (T_WV, 38, 32)):
            st(f"""
            s_sub_u32 s52, s28, {T0}
            s_cmp_ge_u32 s28, {T0}
            s_cselect_b32 s48, s{reg}, s48
            s_cselect_b32 s49, s{reg+1}, s49
            s_cselect_b32 s50, s52, s50
            s_cselect_b32 s51, {stride}, s51
            """)
        st(f"""
        s_lshl_b32 s29, s29, 5
        s_lshl_b32 s50, s50, 5
        v_add_u32 v20, s29, v4
        v_mul_lo_u32 v20, v20, s51
        v_add_u32 v20, v20, v5
        v_add_u32 v20, s50, v20
        global_load_dwordx4 v[{52+4*i}:{55+4*i}], v20, s[48:49]
        """)
    st(f"""
    s_lshl_b32 s27, s26, 11
    s_add_u32 s27, s27, {B0 + XIN}
    s_waitcnt vmcnt(4)
    buffer_store_dwordx4 v[40:43], v6, s[8:11], s27 offen
    buffer_store_dwordx4 v[44:47], v6, s[8:11], s27 offen offset:1024
    """)
    for i in range(4):
        st(f"""
        s_add_u32 s27, s26, {1024*i}
        s_cmp_ge_u32 s27, {NFRAG}
        s_cbranch_scc1 L_done_{name}
        s_lshl_b32 s27, s27, 10
        s_waitcnt vmcnt(5)
        v_mfma_f32_16x16x32_bf16 v[28:31], v[{52+4*i}:{55+4*i}], v[{vB0}:{vB0+3}], 0
        v_mfma_f32_16x16x32_bf16 v[32:35], v[{52+4*i}:{55+4*i}], v[{vB1}:{vB1+3}], 0
        v_cvt_pk_bf16_f32 v36, v28, v29
        v_cvt_pk_bf16_f32 v37, v30, v31
        v_cvt_pk_bf16_f32 v38, v32, v33
        v_cvt_pk_bf16_f32 v39, v34, v35
        buffer_store_dwordx4 v[36:39], v6, s[8:11], s27 offen
        """)
    st.label(f"L_done_{name}")
    st("s_waitcnt vmcnt(0)")
    stamp(st)
    stamp_dump(st, 2)
    dbg_end(st, 0, name)
    return kernel_text(name, st, vgpr=80, accum=80)

vFLO, vFLP = 62, 63
def sync_publish(st, e, name):
    st(f"""
    s_waitcnt vmcnt(0)
    s_barrier
    s_cmp_lg_u32 s22, 0
    s_cbranch_scc1 L_np{e}_{name}
    s_lshl_b32 s23, s20, 7
    s_lshl_b32 s24, s21, 2
    s_add_u32 s23, s23, s24
    s_add_u32 s23, s23, s{sFLAG}
    s_add_u32 s23, s23, {e*0x1000}
    v_mov_b32 v{vFLO}, 1
    v_mov_b32 v{vFLP}, 0
    s_mov_b64 exec, 1
    buffer_store_dword v{vFLO}, v{vFLP}, s[8:11], s23 offen sc1
    s_mov_b64 exec, -1
    """)
    st.label(f"L_np{e}_{name}")

def sync_wait(st, e, name, halo=False, keep=True):
    st(f"""
    v_and_b32 v{vFLP}, 7, v0
    v_lshlrev_b32 v{vFLP}, 2, v{vFLP}
    s_lshl_b32 s23, s20, 7
    """)
    if halo:
        st(f"""
        s_sub_u32 s28, s20, 1
        s_max_i32 s28, s28, 0
        s_lshl_b32 s28, s28, 7
        s_sub_u32 s28, s28, s23
        v_bfe_u32 v{vFLO}, v0, 3, 1
        v_mul_lo_u32 v{vFLO}, v{vFLO}, s28
        v_add_u32 v{vFLP}, v{vFLP}, v{vFLO}
        """)
    st(f"""
    v_add_u32 v{vFLP}, s23, v{vFLP}
    s_add_u32 s23, s{sFLAG}, {e*0x1000}
    s_mov_b32 s{sSPIN}, 0x10000
    """)
    st.label(f"L_poll{e}_{name}")
    st(f"""
    buffer_load_dword v{vFLO}, v{vFLP}, s[8:11], s23 offen sc1
    s_waitcnt vmcnt(0)
    v_cmp_ne_u32 vcc, 1, v{vFLO}
    s_sub_u32 s{sSPIN}, s{sSPIN}, 1
    s_cmp_eq_u32 s{sSPIN}, 0
    s_cbranch_scc1 L_pdone{e}_{name}
    s_cbranch_vccnz L_poll{e}_{name}
    """)
    st.label(f"L_pdone{e}_{name}")
    stamp(st)

def dma_act2(st, ns, sSrc, sTile0, tag, clamp0=False, tiles=None):
    g = G
    for s in range(ns):
        if tiles is not None: st(f"s_mov_b32 s23, s{tiles[s]}")
        elif clamp0 and s == 0: st(f"s_max_i32 s23, s{sTile0}, 0")
        else: st(f"s_add_u32 s23, s{sTile0}, {s}")
        st(f"""
        s_lshl_b32 s23, s23, 14
        s_lshl_b32 s24, s22, 12
        s_add_u32 s23, s23, s24
        s_add_u32 s23, s23, {sSrc}
        s_mul_i32 s24, s22, {ns*4096}
        s_add_u32 m0, s24, {LDS_X + s*4096}
        """)
        for q in range(4):
            st.i(f"buffer_load_dwordx4 v{g.vLane16}, s[8:11], s23 offen offset:{q*1024} sc1 lds", vm=f"{tag}{s}_{q}")

def wtile(st, T0, dst_sgpr=25):
    st(f"""
    s_lshl_b32 s{dst_sgpr}, s21, 2
    s_add_u32 s{dst_sgpr}, s{dst_sgpr}, s22
    s_add_u32 s{dst_sgpr}, s{dst_sgpr}, {T0}
    s_lshl_b32 s{dst_sgpr}, s{dst_sgpr}, 14
    """)

def load_w_block(st, dst, T0, tag, vL16):
    wtile(st, T0)
    for jg in range(4):
        st(f"""
        s_add_u32 s23, s22, {jg}
        s_and_b32 s23, s23, 3
        s_lshl_b32 s23, s23, 12
        s_add_u32 s23, s23, s25
        """)
        for q in range(4):
            b = dst[1] + 4 * (4 * jg + q)
            st.i(f"buffer_load_dwordx4 {rr((dst[0], b), 4)}, v{vL16}, s[8:11], s23 offen offset:{q*1024}", vm=f"{tag}{4*jg+q}")

W_Q2, W_K2, W_V2, W_O = ("a", 0), ("a", 64), ("a", 128), ("a", 192)
W_QA = ("v", 166)
W_KV = ("v", 230)
SMF = "nosmf" not in OPT
sROT = 16
sWT = 57

def wave_scalars(st):
    for jg in range(4):
        st(f"""
        s_add_u32 s23, s22, {jg}
        s_and_b32 s23, s23, 3
        s_lshl_b32 s{sROT+jg}, s23, 12
        """)
    st(f"""
    s_lshl_b32 s{sWT}, s21, 2
    s_add_u32 s{sWT}, s{sWT}, s22
    s_lshl_b32 s{sWT}, s{sWT}, 14
    """)

def w_loads(dst, T0, tag, vL16):
    out = []
    for jg in range(4):
        for q in range(4):
            e = St()
            if q == 0:
                e(f"s_add_u32 s58, s{sWT}, s{sROT+jg}")
                e(f"s_add_u32 s58, s58, {T0*16384}")
            b = dst[1] + 4 * (4 * jg + q)
            e.i(f"buffer_load_dwordx4 {rr((dst[0], b), 4)}, v{vL16}, s[8:11], s58 offen offset:{q*1024}", vm=f"{tag}{4*jg+q}")
            out.append(e)
    return out

def kv_loads(vL16, tag):
    out = []
    for q in range(4):
        e = St()
        if q == 0:
            e(f"""
            s_and_b32 s58, s21, 1
            s_add_u32 s58, s58, {T_WK}
            s_lshl_b32 s58, s58, 14
            s_add_u32 s58, s58, s{sROT}
            """)
        e.i(f"buffer_load_dwordx4 {rr((W_KV[0], W_KV[1] + 4*q), 4)}, v{vL16}, s[8:11], s58 offen offset:{q*1024}", vm=f"{tag}{q}")
        out.append(e)
    return out

LDS_K, LDS_V, VSTRIDE = gen.LDS_K, gen.LDS_V, gen.VSTRIDE
ATT_LDS = gen.ATT_LDS
ATT_U = int(os.environ.get("ATT_U", "8"))
vRES = 246

def phase_att(st, name):
    SA, SB, OA_, OB_ = 16, 32, 48, 64
    PA, PB, QA, QB, KB, VB = 80, 88, 96, 100, 104, 112
    LA, LB, vIDX, vONE = 120, 124, 5, 6
    vK, vV0, vV1, vL16 = 2, 3, 4, 1
    VS = 1024 if SMF else VSTRIDE
    st(f"v_lshlrev_b32 v{vL16}, 4, v0")
    st(f"""
    s_lshl_b32 s26, s22, 11
    s_add_u32 s24, s26, s{sKF}
    s_add_u32 s25, s26, s{sVF}
    s_mul_i32 s27, s22, {2*VS}
    s_add_u32 s27, s27, {LDS_V}
    """)
    def kv_group(gi, tag):
        out = []
        e = St(); e(f"s_add_u32 s23, s24, {gi*8192}\ns_add_u32 m0, s26, {gi*8192}")
        e.i(f"buffer_load_dwordx4 v{vL16}, s[8:11], s23 offen lds"); out.append(e)
        e = St(); e.i(f"buffer_load_dwordx4 v{vL16}, s[8:11], s23 offen offset:1024 lds"); out.append(e)
        e = St(); e(f"s_add_u32 s23, s25, {gi*8192}\ns_add_u32 m0, s27, {gi*8*VS}")
        e.i(f"buffer_load_dwordx4 v{vL16}, s[8:11], s23 offen lds"); out.append(e)
        e = St()
        if VS != 1024: e(f"s_add_u32 m0, s27, {gi*8*VS + VS - 1024}")
        e.i(f"buffer_load_dwordx4 v{vL16}, s[8:11], s23 offen offset:1024 lds", vm=tag); out.append(e)
        return out
    for e in kv_group(0, "c0"): st.ext(e)
    st(f"""
    s_lshl_b32 s23, s20, 3
    s_add_u32 s23, s23, s21
    s_lshl_b32 s23, s23, 2
    s_add_u32 s23, s23, s22
    s_lshl_b32 s23, s23, 11
    s_add_u32 s23, s23, s{sQF}
    """)
    st.i(f"buffer_load_dwordx4 {vr(QA,4)}, v{vL16}, s[8:11], s23 offen")
    st.i(f"buffer_load_dwordx4 {vr(QB,4)}, v{vL16}, s[8:11], s23 offen offset:1024", vm="q")
    wave_scalars(st)
    st(f"v_mov_b32 v{vK}, v{vL16}")
    if SMF:
        st(f"""
        v_add_u32 v{vV0}, {LDS_V}, v{vL16}
        v_mov_b32 v{vIDX}, 0x4444
        v_mov_b32 v16, 0xeeee
        v_and_b32 v17, 16, v0
        v_cmp_eq_u32 s[28:29], 16, v17
        v_cndmask_b32_e64 v{vIDX}, v{vIDX}, v16, s[28:29]
        v_mov_b32 v{vONE}, 0x3f803f80
        v_mov_b32 v{vONE+1}, 0x3f803f80
        """)
    else:
        st(f"""
        v_and_b32 v5, 31, v0
        v_lshrrev_b32 v6, 5, v0
        v_lshlrev_b32 v7, 8, v6
        v_lshl_add_u32 v7, v5, 4, v7
        v_add_u32 v7, {LDS_V}, v7
        v_mov_b32 v16, {LDS_V + 1024 + 16}
        v_mov_b32 v17, {LDS_V + 1024}
        v_and_b32 v18, 27, v5
        v_cmp_eq_u32 s[28:29], 16, v18
        v_cndmask_b32_e64 v16, v16, v17, s[28:29]
        v_cmp_gt_u32 s[28:29], 16, v5
        v_cndmask_b32_e64 v{vV0}, v16, v7, s[28:29]
        v_add_u32 v7, 512, v7
        v_cndmask_b32_e64 v{vV1}, v16, v7, s[28:29]
        v_mov_b32 v16, 0x3f803f80
        v_mov_b32 v17, v16
        v_mov_b32 v18, v16
        v_mov_b32 v19, v16
        v_mul_u32_u24 v20, {VSTRIDE}, v0
        v_add_u32 v20, {LDS_V + 1024}, v20
        s_cmp_lg_u32 s22, 0
        s_cbranch_scc1 L_noones_{name}
        ds_write_b128 v20, v[16:19]
        v_mov_b32 v16, 0
        v_mov_b32 v17, 0
        v_mov_b32 v18, 0
        v_mov_b32 v19, 0
        ds_write_b128 v20, v[16:19] offset:16
        """)
        st.label(f"L_noones_{name}")
    st(f"""
    v_and_b32 v9, 15, v0
    v_lshrrev_b32 v10, 4, v0
    s_lshl_b32 s23, s21, 11
    s_lshr_b32 s28, s22, 1
    s_lshl_b32 s28, s28, 10
    s_add_u32 s23, s23, s28
    s_and_b32 s28, s22, 1
    s_lshl_b32 s28, s28, 9
    s_add_u32 s23, s23, s28
    v_lshrrev_b32 v11, 1, v10
    v_lshlrev_b32 v11, 8, v11
    v_lshl_add_u32 v11, v9, 4, v11
    v_and_b32 v8, 1, v10
    v_lshl_add_u32 v8, v8, 3, v11
    v_add_u32 v8, s23, v8
    s_lshl_b32 s59, s20, 16
    s_add_u32 s59, s59, s{sXIN}
    """)
    def init_acc(s):
        for r in range(16):
            s(f"v_mov_b32 v{OA_+r}, 0\nv_mov_b32 v{OB_+r}, 0")
        if SMF:
            for r in range(4): s(f"v_mov_b32 v{LA+r}, 0\nv_mov_b32 v{LB+r}, 0")
    nV = 4 if SMF else 8
    def rdK(t, base): return f"ds_read_b128 {vr(KB + 4*(t&1),4)}, v{vK} offset:{(t-base)*1024}"
    def rdV(t, base):
        b = VB + nV * (t & 1)
        if SMF: return [f"ds_read_b128 {vr(b,4)}, v{vV0} offset:{(t-base)*VS}"]
        return [f"ds_read_b128 {vr(b,4)}, v{vV0} offset:{(t-base)*VS}", f"ds_read_b128 {vr(b+4,4)}, v{vV1} offset:{(t-base)*VS}"]
    def qk(S, t, Q): return f"v_mfma_f32_32x32x16_bf16 {vr(S,16)}, {vr(KB + 4*(t&1),4)}, {vr(Q,4)}, 0"
    def pv(O, L, t, P):
        b = VB + nV * (t & 1)
        if SMF:
            return ([f"v_smfmac_f32_32x32x32_bf16 {vr(O,16)}, {vr(b,4)}, {vr(P,8)}, v{vIDX}"] +
                    [f"v_mfma_f32_4x4x4_16b_bf16 {vr(L,4)}, {vr(vONE,2)}, {vr(P+2*i,2)}, {vr(L,4)}" for i in range(4)])
        return [f"v_mfma_f32_32x32x16_bf16 {vr(O,16)}, {vr(b,4)}, {vr(P,4)}, {vr(O,16)}",
                f"v_mfma_f32_32x32x16_bf16 {vr(O,16)}, {vr(b+4,4)}, {vr(P+4,4)}, {vr(O,16)}"]
    def softmax(S, P, M):
        ins = []
        if M is not None:
            for r in range(16): ins.append(f"v_sub_f32 v{S+r}, v{S+r}, v{M}")
        for i in range(8):
            ins.append(f"v_exp_f32 v{S+2*i}, v{S+2*i}")
            ins.append(f"v_exp_f32 v{S+2*i+1}, v{S+2*i+1}")
            if i > 0: ins.append(f"v_cvt_pk_bf16_f32 v{P+i-1}, v{S+2*i-2}, v{S+2*i-1}")
        ins.append(f"v_cvt_pk_bf16_f32 v{P+7}, v{S+14}, v{S+15}")
        return ins
    def mix(s, valu, groups):
        n = len(valu); k = len(groups)
        for j in range(k):
            for x in groups[j]:
                if isinstance(x, St): s.ext(x)
                else: s(x)
            for x in valu[j * n // k:(j + 1) * n // k]: s(x)
    def iteration(s, t, nt, base, extras, safe=None, first=False, rolled=False):
        MA, MB = safe if safe else (None, None)
        ex = list(extras)
        def pop(): return [ex.pop(0)] if ex else []
        g1 = [[qk(SB, t, QB)] + ([rdK(t + 2, base)] if (rolled or t + 2 < nt) else [])]
        pvb = [] if first else pv(OB_, LB, t - 1, PB)
        rv = rdV(t + 1, base) if (rolled or t + 1 < nt) else []
        if SMF:
            if pvb:
                g1.append([pvb[0]] + rv); g1 += [[x] for x in pvb[1:]]
            else:
                g1.append(rv)
        else:
            if pvb:
                g1.append([pvb[0]] + rv[:1]); g1.append([pvb[1]] + rv[1:])
            else:
                g1.append(rv)
        mix(s, softmax(SA, PA, MA), g1)
        pva = pv(OA_, LA, t, PA)
        g2 = []
        if rolled or t + 1 < nt: g2.append([qk(SA, t + 1, QA)] + pop())
        else: g2.append([])
        g2.append([pva[0]] + pop())
        for x in pva[1:-1]: g2.append([x] + pop())
        g2.append([pva[-1], "s_waitcnt lgkmcnt(0)"])
        mix(s, softmax(SB, PB, MB), g2)
        for x in ex: s.ext(x)
    def first_reads(s):
        s(rdK(0, 0)); s(rdK(1, 0))
        for x in rdV(0, 0): s(x)
        s("s_waitcnt lgkmcnt(0)")
        s(qk(SA, 0, QA))
    init_acc(st)
    st.wv("q")
    st("s_waitcnt lgkmcnt(0)\ns_barrier")
    first_reads(st)
    stamp(st)
    extras = {t: [] for t in range(64)}
    for gi in range(1, 8):
        extras[gi - 1] += kv_group(gi, f"kv{gi}")
    pre = []
    pre += w_loads(W_O, T_WOA, "woa", vL16)
    for q in range(4):
        e = St()
        if q: e("s_add_u32 s59, s59, 16384")
        e.i(f"buffer_load_dwordx2 {vr(vRES+2*q,2)}, v8, s[8:11], s59 offen"); pre.append(e)
    pre += w_loads(W_Q2, T_WQKV, "wq2", vL16)
    pre += w_loads(W_K2, T_WQKV + 32, "wk2", vL16)
    pre += w_loads(W_V2, T_WQKV + 64, "wv2", vL16)
    pre += w_loads(W_QA, T_WQ, "wq4", vL16)
    pre += kv_loads(vL16, "wk4")
    t = 14
    while pre:
        extras[t] += pre[:2]; pre = pre[2:]; t += 1
    assert t <= 62
    base = 0
    for t in range(64):
        if t == 6:
            st.wv("kv1"); st("s_barrier")
        if t == 14:
            st.wv("kv7"); st("s_barrier")
        if t == 32:
            st(f"v_add_u32 v{vK}, {32*1024}, v{vK}\nv_add_u32 v{vV0}, {32*VS}, v{vV0}")
            if not SMF: st(f"v_add_u32 v{vV1}, {32*VS}, v{vV1}")
            base = 32
        iteration(st, t, 64, base, extras[t], first=(t == 0))
    stamp(st)
    def tail(s):
        for x in pv(OB_, LB, 63, PB): s(x)
    def finish_l(s):
        if SMF:
            for O in (OA_, OB_):
                for r in range(8): s(f"v_add_f32 v{O+r}, v{O+r}, v{O+8+r}")
            for L in (LA, LB):
                s(f"""
                v_mov_b32 v{L+1}, v{L}
                v_permlane32_swap_b32 v{L+1}, v{L}
                v_add_f32 v{L}, v{L}, v{L+1}
                """)
    lA, lB = (LA, LB) if SMF else (OA_ + 8, OB_ + 8)
    tail(st)
    finish_l(st)
    st(f"""
    v_mul_f32 v9, 0, v{OA_}
    v_mul_f32 v10, 0, v{OB_}
    """)
    for r in range(1, 8):
        st(f"v_fma_f32 v9, v{OA_+r}, 0, v9\nv_fma_f32 v10, v{OB_+r}, 0, v10")
    st(f"""
    v_add_f32 v9, v9, v10
    v_min_f32 v10, v{lA}, v{lB}
    v_max_f32 v11, v{lA}, v{lB}
    v_add_f32 v10, v10, v9
    v_add_f32 v11, v11, v9
    v_cmp_u_f32 s[28:29], v{lA}, v{lB}
    v_mov_b32 v20, {f32(2.0**-40)}
    v_cmp_nge_f32 vcc, v10, v20
    s_or_b64 s[28:29], s[28:29], vcc
    v_mov_b32 v20, {f32(2.0**100)}
    v_cmp_nle_f32 vcc, v11, v20
    s_or_b64 s[28:29], s[28:29], vcc
    s_cmp_eq_u64 s[28:29], 0
    s_cbranch_scc1 L_attok_{name}
    """)
    MA, MB = 9, 10
    st(f"""
    v_subrev_u32 v{vK}, {32*1024}, v{vK}
    v_subrev_u32 v{vV0}, {32*VS}, v{vV0}
    """)
    if not SMF: st(f"v_subrev_u32 v{vV1}, {32*VS}, v{vV1}")
    st(f"""
    v_mov_b32 v{MA}, {f32(-3.0e38)}
    v_mov_b32 v{MB}, {f32(-3.0e38)}
    v_mov_b32 v11, v{vK}
    s_mov_b32 s44, 0
    """)
    st.label(f"L_max_{name}")
    st(f"""
    ds_read_b128 {vr(KB,4)}, v11
    s_waitcnt lgkmcnt(0)
    v_mfma_f32_32x32x16_bf16 {vr(SA,16)}, {vr(KB,4)}, {vr(QA,4)}, 0
    v_mfma_f32_32x32x16_bf16 {vr(SB,16)}, {vr(KB,4)}, {vr(QB,4)}, 0
    v_add_u32 v11, 1024, v11
    """)
    for r in range(0, 16, 2):
        st(f"v_max3_f32 v{MA}, v{MA}, v{SA+r}, v{SA+r+1}")
    for r in range(0, 16, 2):
        st(f"v_max3_f32 v{MB}, v{MB}, v{SB+r}, v{SB+r+1}")
    st(f"""
    s_add_u32 s44, s44, 1
    s_cmp_lt_u32 s44, 64
    s_cbranch_scc1 L_max_{name}
    v_mov_b32 v11, v{MA}
    v_permlane32_swap_b32 v11, v{MA}
    v_max_f32 v{MA}, v{MA}, v11
    v_mov_b32 v11, v{MB}
    v_permlane32_swap_b32 v11, v{MB}
    v_max_f32 v{MB}, v{MB}, v11
    """)
    init_acc(st)
    for r in range(8): st(f"v_mov_b32 v{PB+r}, 0")
    for r in range(nV): st(f"v_mov_b32 v{VB+nV+r}, 0")
    first_reads(st)
    st("s_mov_b32 s44, 0")
    st.label(f"L_att2_{name}")
    for u in range(2):
        iteration(st, u + 2, 64, 2, [], safe=(MA, MB), rolled=True)
    st(f"""
    v_add_u32 v{vK}, {2*1024}, v{vK}
    v_add_u32 v{vV0}, {2*VS}, v{vV0}
    """)
    if not SMF: st(f"v_add_u32 v{vV1}, {2*VS}, v{vV1}")
    st(f"""
    s_add_u32 s44, s44, 1
    s_cmp_lt_u32 s44, 32
    s_cbranch_scc1 L_att2_{name}
    """)
    tail(st)
    finish_l(st)
    st.label(f"L_attok_{name}")
    st(f"""
    s_lshl_b32 s23, s21, 11
    s_lshr_b32 s24, s22, 1
    s_lshl_b32 s24, s24, 10
    s_add_u32 s23, s23, s24
    s_and_b32 s24, s22, 1
    s_lshl_b32 s24, s24, 9
    s_add_u32 s23, s23, s24
    s_lshl_b32 s24, s20, 16
    s_add_u32 s23, s23, s24
    s_add_u32 s23, s23, s{sOA}
    v_and_b32 v9, 15, v0
    v_lshlrev_b32 v9, 4, v9
    v_lshrrev_b32 v10, 5, v0
    v_lshl_add_u32 v9, v10, 3, v9
    v_bfe_u32 v10, v0, 4, 1
    v_lshl_add_u32 v9, v10, 14, v9
    """)
    for qb, O, l in ((0, OA_, lA), (1, OB_, lB)):
        st(f"v_rcp_f32 v11, v{l}")
        for r in range(8): st(f"v_mul_f32 v{O+r}, v{O+r}, v11")
        p = 16 + 4 * qb
        st(f"""
        v_cvt_pk_bf16_f32 v{p}, v{O}, v{O+1}
        v_cvt_pk_bf16_f32 v{p+1}, v{O+2}, v{O+3}
        v_cvt_pk_bf16_f32 v{p+2}, v{O+4}, v{O+5}
        v_cvt_pk_bf16_f32 v{p+3}, v{O+6}, v{O+7}
        """)
        st.i(f"buffer_store_dwordx2 {vr(p,2)}, v9, s[8:11], s23 offen sc1")
        st.i(f"buffer_store_dwordx2 {vr(p+2,2)}, v9, s[8:11], s23 offen offset:256 sc1")
        if qb == 0: st("s_add_u32 s23, s23, 32768")


def dma_slots(st, ns, sSrc, tile_of_slot, tag, vL16, row_src=None):
    st(f"s_mul_i32 s25, s22, {ns*4096}")
    if row_src is None:
        st(f"s_lshl_b32 s24, s22, 12\ns_add_u32 s24, s24, {sSrc}")
    else:
        st(f"s_lshl_b32 s24, s22, 8")
    slots = []
    for s in range(ns):
        L = []
        for q in range(4):
            e = St()
            if q == 0:
                tile_of_slot(e, s)
                e(f"s_lshl_b32 s23, s23, 14\ns_add_u32 s27, s23, s24")
            if row_src is None:
                if q == 0: e(f"s_add_u32 m0, s25, {LDS_X + s*4096}")
                e.i(f"buffer_load_dwordx4 v{vL16}, s[8:11], s27 offen offset:{q*1024} sc1 lds", vm=f"{tag}{s}_{q}")
            else:
                if q: e("s_add_u32 s27, s27, 64")
                e(f"s_add_u32 m0, s25, {LDS_X + s*4096 + q*1024}")
                e.i(f"buffer_load_dwordx4 v{row_src}, s[12:15], s27 offen lds", vm=f"{tag}{s}_{q}")
            L.append(e)
        slots.append(L)
    return slots

def gemm_steps2(ns, chains, tagx, stats, dma, vStatG=None, vStatS=None, extra=None):
    g = G
    steps = []
    total = ns * 16
    def rd(idx):
        s, jj = divmod(idx, 16)
        ring = g.vRing + 4 * (idx % RING)
        return f"ds_read_b128 {vr(ring, 4)}, v{g.vXA + (jj >> 2)} offset:{s*4096 + (jj & 3)*1024}"
    pre = St()
    for e in dma[0]: pre.ext(e)
    for e in dma[1]: pre.ext(e)
    steps.append(pre)
    pre2 = St()
    pre2.wv(f"{tagx}0_3")
    pre2("s_barrier")
    for idx in range(RING):
        pre2.i(rd(idx), lds=f"x{idx}")
    steps.append(pre2)
    for idx in range(total):
        s, jj = divmod(idx, 16)
        stp = St()
        ring = g.vRing + 4 * (idx % RING)
        if idx % 2 == 0:
            stp.wl(f"x{min(idx+1, total-1)}")
        ms = []
        for (acc, w, w_is_A) in chains(s):
            wreg = rr((w[0], w[1] + 4 * jj), 4)
            c = "0" if jj == 0 and acc[1] else vr(acc[0], 4)
            if w_is_A: ms.append(f"v_mfma_f32_16x16x32_bf16 {vr(acc[0],4)}, {wreg}, {vr(ring,4)}, {c}")
            else:      ms.append(f"v_mfma_f32_16x16x32_bf16 {vr(acc[0],4)}, {vr(ring,4)}, {wreg}, {c}")
        if stats and jj < 4:
            cg = "0" if jj == 0 else vr(vStatG, 4)
            cs = "0" if jj == 0 else vr(vStatS, 4)
            ms.append(f"v_mfma_f32_16x16x32_bf16 {vr(vStatG,4)}, {vr(ring,4)}, {vr(ring,4)}, {cg}")
            ms.append(f"v_mfma_f32_16x16x32_bf16 {vr(vStatS,4)}, {vr(g.vOnes,4)}, {vr(ring,4)}, {cs}")
        if extra:
            ms += [x.replace("{X}", vr(ring, 4)) for x in extra(s, jj)]
        for mi in ms: stp(mi)
        nxt = idx + RING
        if nxt < total:
            if nxt % 16 == 0:
                stp.wv(f"{tagx}{nxt//16}_3")
                if stats: stp.wl(f"sw{s}")
                stp("s_barrier")
            stp.i(rd(nxt), lds=f"x{nxt}")
        elif stats and nxt == total:
            stp.wl(f"sw{s}")
            stp("s_barrier")
        if s + 2 < ns and jj < 4:
            stp.ext(dma[s + 2][jj])
        steps.append(stp)
    return steps

vX1P = vRES
def phase_p13(st, name, which):
    g = G
    ns = 4
    common_lane_setup(st, ns)
    st("s_lshl_b32 s26, s20, 2")
    gen_tag = f"x{which}"
    dma = dma_slots(st, ns, f"s{sOA if which == 1 else sOB}", lambda e, s: e(f"s_add_u32 s23, s26, {s}"), gen_tag, g.vLane16)
    vActA, vRowA = 44, 45
    act_store_addr(st, vActA, g.vTmp)
    res = vRES
    acc = g.vAcc
    for s in range(ns):
        a = acc + 4 * s
        st(f"""
        v_lshlrev_b32 v{a}, 16, v{res+2*s}
        v_and_b32 v{a+1}, 0xffff0000, v{res+2*s}
        v_lshlrev_b32 v{a+2}, 16, v{res+2*s+1}
        v_and_b32 v{a+3}, 0xffff0000, v{res+2*s+1}
        """)
    if which == 3:
        row_addr(st, vRowA)
        st(f"""
        s_cmp_eq_u32 s{sL}, 0
        s_cselect_b32 s{SRD_OUT}, s8, s12
        s_cselect_b32 s{SRD_OUT+1}, s9, s13
        s_cselect_b32 s{SRD_OUT+2}, s10, s14
        s_mov_b32 s{SRD_OUT+3}, 0x00020000
        s_cselect_b32 s46, {B0 + BS + XIN}, 0
        s_cselect_b64 s[28:29], -1, 0
        v_cndmask_b32_e64 v{vActA}, v{vRowA}, v{vActA}, s[28:29]
        s_mul_i32 s25, s22, {ns*4096}
        s_lshl_b32 s24, s22, 12
        s_add_u32 s24, s24, s{sOB}
        """)
    else:
        st(f"""
        s_mul_i32 s25, s22, {ns*4096}
        s_lshl_b32 s24, s22, 12
        s_add_u32 s24, s24, s{sOA}
        """)
    sync_wait(st, 0 if which == 1 else 2, name, keep=True)
    steps = gemm_steps2(ns, lambda s: [((acc + 4 * s, False), W_O, True)], gen_tag, False, dma)
    def epi(s):
        e = St()
        a = acc + 4 * s
        p = (vX1P if which == 1 else 88) + 2 * s
        e(f"""
        v_cvt_pk_bf16_f32 v{p}, v{a}, v{a+1}
        v_cvt_pk_bf16_f32 v{p+1}, v{a+2}, v{a+3}
        s_add_u32 s47, s26, {s}
        s_lshl_b32 s47, s47, 14
        """)
        if which == 1:
            e(f"s_add_u32 s47, s47, s{sX1}")
            e.i(f"buffer_store_dwordx2 {vr(p,2)}, v{vActA}, s[8:11], s47 offen sc1")
        else:
            e("s_add_u32 s47, s47, s46")
            e.i(f"buffer_store_dwordx2 {vr(p,2)}, v{vActA}, s[{SRD_OUT}:{SRD_OUT+3}], s47 offen sc1")
        return e
    st.ext(steps[0]); st.ext(steps[1])
    for s in range(ns):
        seg = steps[2 + 16 * s: 2 + 16 * (s + 1)]
        if s > 0:
            side = St(); side.it.append(("gap", 3, None, None)); side.ext(epi(s - 1))
            st.ext(weave(seg, side, per=2))
        else:
            for x in seg: st.ext(x)
    st.ext(epi(ns - 1))

def phase_p2(st, name):
    g = G
    ns = 5
    common_lane_setup(st, ns)
    stats_setup(st, ns)
    Wq, Wk, Wv = W_Q2, W_K2, W_V2
    st("""
    s_lshl_b32 s26, s20, 2
    s_sub_u32 s26, s26, 1
    """)
    vActA = 96
    act_store_addr(st, vActA, g.vTmp)
    vMo, vMp, vMp0 = 100, 104, 108
    NEG = f32(-1.0e30)
    st(f"v_mov_b32 v{g.vTmp+2}, {NEG}")
    for r in range(4):
        st(f"""
        v_lshl_add_u32 v{g.vTmp}, v{g.vGq}, 2, {r}
        v_sub_u32 v{g.vTmp}, v{g.vT}, v{g.vTmp}
        v_and_b32 v{g.vTmp+1}, 0x80000001, v{g.vTmp}
        v_cmp_eq_u32 s[28:29], 0, v{g.vTmp+1}
        v_cndmask_b32_e64 v{vMo+r}, v{g.vTmp+2}, 0, s[28:29]
        v_cmp_gt_i32 s[38:39], -1, v{g.vTmp}
        v_and_b32 v{g.vTmp+1}, 1, v{g.vTmp}
        v_cmp_eq_u32 s[28:29], 0, v{g.vTmp+1}
        s_and_b64 s[28:29], s[28:29], s[38:39]
        v_cndmask_b32_e64 v{vMp+r}, v{g.vTmp+2}, 0, s[28:29]
        """)
    st("s_cmp_eq_u32 s20, 0\ns_cselect_b64 s[28:29], -1, 0")
    for r in range(4):
        st(f"v_cndmask_b32_e64 v{vMp0+r}, v{vMp+r}, v{g.vTmp+2}, s[28:29]")
    vCSq, vCSk, vCSv = 112, 116, 120
    colsum(st, vCSq, Wq, True)
    colsum(st, vCSk, Wk, True)
    colsum(st, vCSv, Wv, False)
    def tile_of_slot(e, s):
        if s == 0: e("s_max_i32 s23, s26, 0")
        else: e(f"s_add_u32 s23, s26, {s}")
    dma = dma_slots(st, ns, f"s{sX1}", tile_of_slot, "x2", g.vLane16)
    sync_wait(st, 1, name, halo=True)
    wob = w_loads(W_O, T_WOB, "wob", g.vLane16)
    accq, acck, accv = 64, 68, 72
    def A(base, s): return base + 12 * (s & 1)
    vStatG, vStatS = 88, 92
    def chains(s):
        c = []
        if s > 0: c.append(((A(accq, s), True), Wq, True))
        c.append(((A(acck, s), True), Wk, True))
        c.append(((A(accv, s), True), Wv, False))
        return c
    steps = gemm_steps2(ns, chains, "x2", True, dma, vStatG, vStatS)
    for jj in range(16): steps[2 + 16 * 4 + jj].ext(wob[jj]) if jj >= 0 else None
    vR, vN = 124, 125
    vRq, vNq = 128, 129
    vR4, vN4 = 132, 136
    pq, pk, pv = 140, 142, 148
    tmp = 56
    S, P, MX, T2, PO = 158, 132, 97, 98, 146
    O, L = S, S + 4
    def epi(s):
        e = St()
        R, N = vR + 2 * (s & 1), vN + 2 * (s & 1)
        e.ext(stats_vlayout(s, R, N, vR4, vN4))
        ln_epi_t(e, A(acck, s), R, N, vCSk, pk + 2 * (s & 1), tmp)
        if s > 0:
            e(f"v_mul_f32 v{vRq}, {f32(CQ)}, v{R}\nv_mul_f32 v{vNq}, {f32(CQ)}, v{N}")
            ln_epi_t(e, A(accq, s), vRq, vNq, vCSq, pq, tmp)
        e.wl(f"pr{s}")
        ln_epi_v(e, A(accv, s), vR4, vN4, vCSv, pv + 2 * s, tmp)
        if s == 0: return e
        kp = pk + 2 * ((s - 1) & 1); ko = pk + 2 * (s & 1)
        mp = vMp0 if s == 1 else vMp
        e(f"v_mfma_f32_16x16x16_bf16 {vr(S,4)}, {vr(kp,2)}, {vr(pq,2)}, {vr(mp,4)}")
        e(f"v_mfma_f32_16x16x16_bf16 {vr(S+4,4)}, {vr(ko,2)}, {vr(pq,2)}, {vr(vMo,4)}")
        e.it.append(("gap", 3, None, None))
        e(f"""
        v_max3_f32 v{MX}, v{S}, v{S+1}, v{S+2}
        v_max3_f32 v{T2}, v{S+3}, v{S+4}, v{S+5}
        v_max3_f32 v{MX}, v{MX}, v{S+6}, v{S+7}
        v_max_f32 v{MX}, v{MX}, v{T2}
        v_mov_b32 v{T2}, v{MX}
        v_permlane32_swap_b32 v{T2}, v{MX}
        v_max_f32 v{MX}, v{MX}, v{T2}
        v_mov_b32 v{T2}, v{MX}
        v_permlane16_swap_b32 v{T2}, v{MX}
        v_max_f32 v{MX}, v{MX}, v{T2}
        """)
        for r in range(8): e(f"v_sub_f32 v{S+r}, v{S+r}, v{MX}")
        for r in range(8): e(f"v_exp_f32 v{S+r}, v{S+r}")
        for r in range(4): e(f"v_cvt_pk_bf16_f32 v{P+r}, v{S+2*r}, v{S+2*r+1}")
        e(f"v_mfma_f32_16x16x32_bf16 {vr(O,4)}, {vr(pv+2*(s-1),4)}, {vr(P,4)}, 0")
        e(f"v_mfma_f32_16x16x32_bf16 {vr(L,4)}, {vr(g.vOnes,4)}, {vr(P,4)}, 0")
        e.it.append(("gap", 3, None, None))
        e(f"v_rcp_f32 v{L}, v{L}")
        for r in range(4): e(f"v_mul_f32 v{O+r}, v{O+r}, v{L}")
        e(f"""
        v_cvt_pk_bf16_f32 v{PO}, v{O}, v{O+1}
        v_cvt_pk_bf16_f32 v{PO+1}, v{O+2}, v{O+3}
        s_add_u32 s47, s26, {s}
        s_lshl_b32 s47, s47, 14
        s_add_u32 s47, s47, s{sOB}
        """)
        e.i(f"buffer_store_dwordx2 {vr(PO,2)}, v{vActA}, s[8:11], s47 offen sc1")
        return e
    st.ext(steps[0]); st.ext(steps[1])
    for s in range(ns):
        seg = steps[2 + 16 * s: 2 + 16 * (s + 1)]
        R, N = vR + 2 * (s & 1), vN + 2 * (s & 1)
        side_a = St()
        if s > 0:
            side_a.it.append(("gap", 2, None, None)); side_a.ext(epi(s - 1))
        q = list(side_a.it)
        def take(n):
            nonlocal q
            s1 = St(); cnt = 0
            while q and cnt < n:
                x = q.pop(0); s1.it.append(x)
                if x[0] == "i": cnt += 1
            return s1
        nm = len(chains(s))
        st.ext(weave(seg[0:4], take(4 * (nm + 2) * 2 - 6), per=2))
        side = St(); side.it.append(("gap", 2, None, None)); side.ext(stats_extract(s, vStatG, vStatS, ns)); side.ext(take(4 * nm * 2 - 12))
        st.ext(weave(seg[4:8], side, per=2))
        st.ext(seg[8])
        side = stats_finalize(s, R, N, g.vTmp); rest = St(); rest.it = q; side.ext(rest)
        st.ext(weave(seg[9:16], side, per=2))
    st.ext(epi(ns - 1))

LDS_KVP = 71680
P4_LDS = LDS_KVP + 4096
def phase_p4(st, name, layer, src, preloaded):
    g = G
    ns = 4
    common_lane_setup(st, ns)
    stats_setup(st, ns)
    Wq, Wkv = W_QA, W_KV
    st("""
    s_lshl_b32 s26, s20, 2
    s_lshr_b32 s38, s21, 1
    """)
    for s in range(ns):
        st(f"""
        s_add_u32 s23, s38, {s}
        s_and_b32 s23, s23, 3
        s_add_u32 s{40+s}, s26, s23
        """)
    tos = lambda e, s: e(f"s_mov_b32 s23, s{40+s}")
    if src == "row":
        vtmp = g.vTmp + 13
        st(f"""
        v_lshlrev_b32 v{vtmp}, 10, v{g.vT}
        v_lshl_add_u32 v{vtmp}, v{g.vGq}, 4, v{vtmp}
        """)
        dma = dma_slots(st, ns, None, tos, "x4", g.vLane16, row_src=vtmp)
        pre = St()
        for sl in range(2):
            for e in dma[sl]: pre.ext(e)
        st.ext(pre)
        wave_scalars(st)
        for e in w_loads(Wq, T_WQ, "wq4", g.vLane16): st.ext(e)
        for e in kv_loads(g.vLane16, "wk4"): st.ext(e)
        dma[0] = []; dma[1] = []
    else:
        st(f"s_mov_b32 s47, {B0 + BS*layer + XIN}")
        dma = dma_slots(st, ns, "s47", tos, "x4", g.vLane16)
    vCSq = 96
    accK, accV, csK, csV = 80, 84, 128, 132
    vA0, vA1, vKW, vKR = 136, 137, 138, 139
    st(f"""
    s_bitcmp1_b32 s21, 0
    s_cselect_b64 s[64+0:64+1], -1, 0
    """.replace("s[64+0:64+1]", "s[38:39]"))
    t = g.vTmp
    st(f"""
    v_lshrrev_b32 v{t}, 1, v{g.vGq}
    v_and_b32 v{t+1}, 1, v{g.vGq}
    v_lshlrev_b32 v{t+2}, 9, v{t}
    v_lshl_add_u32 v{t+2}, v{g.vT}, 4, v{t+2}
    v_lshl_add_u32 v{t+2}, v{t+1}, 3, v{t+2}
    v_add_u32 v{t+3}, 4, v{t+2}
    """)
    if SMF:
        st(f"""
        v_lshl_add_u32 v{t+4}, v{t+1}, 1, v{t}
        v_lshlrev_b32 v{t+4}, 2, v{t+4}
        v_lshl_add_u32 v{t+4}, v{g.vT}, 4, v{t+4}
        v_add_u32 v{t+5}, 256, v{t+4}
        """)
    else:
        st(f"""
        v_lshlrev_b32 v{t+4}, 8, v{t+1}
        v_lshl_add_u32 v{t+4}, v{g.vT}, 4, v{t+4}
        v_lshl_add_u32 v{t+4}, v{t}, 3, v{t+4}
        v_add_u32 v{t+5}, 4, v{t+4}
        """)
    st(f"""
    v_cndmask_b32_e64 v{vA0}, v{t+2}, v{t+4}, s[38:39]
    v_cndmask_b32_e64 v{vA1}, v{t+3}, v{t+5}, s[38:39]
    s_lshl_b32 s23, s22, 10
    s_add_u32 s23, s23, {LDS_KVP}
    v_add_u32 v{vKW}, s23, v{g.vLane16}
    v_add_u32 v{vKR}, {LDS_KVP}, v{g.vLane16}
    s_lshr_b32 s23, s40, 1
    s_lshl_b32 s23, s23, 10
    s_and_b32 s28, s40, 1
    s_lshl_b32 s29, s28, 8
    s_add_u32 s29, s29, {KF0 + KVS*layer}
    s_lshl_b32 s28, s28, 9
    s_add_u32 s28, s28, {VF0 + KVS*layer}
    s_bitcmp1_b32 s21, 0
    s_cselect_b32 s28, s28, s29
    s_add_u32 s59, s23, s28
    """)
    st.wv("wk43")
    colsum(st, vCSq, Wq, True)
    for jj in range(4):
        w = rr((Wkv[0], Wkv[1] + 4 * jj), 4)
        st(f"v_mfma_f32_16x16x32_bf16 {vr(csK,4)}, {w}, {vr(g.vOnes,4)}, {'0' if jj == 0 else vr(csK,4)}")
        st(f"v_mfma_f32_16x16x32_bf16 {vr(csV,4)}, {vr(g.vOnes,4)}, {w}, {'0' if jj == 0 else vr(csV,4)}")
    if src == "act":
        sync_wait(st, 3, name)
    acc = g.vAcc
    vStatG, vStatS = 88, 92
    def extra(s, jj):
        if s != 0 or jj >= 4: return []
        w = rr((Wkv[0], Wkv[1] + 4 * jj), 4)
        return [f"v_mfma_f32_16x16x32_bf16 {vr(accK,4)}, {w}, {{X}}, {'0' if jj == 0 else vr(accK,4)}",
                f"v_mfma_f32_16x16x32_bf16 {vr(accV,4)}, {{X}}, {w}, {'0' if jj == 0 else vr(accV,4)}"]
    steps = gemm_steps2(ns, lambda s: [((acc + 4 * s, True), Wq, True)], "x4", True, dma, vStatG, vStatS, extra=extra)
    vR = [104 + s for s in range(ns)]; vN = [108 + s for s in range(ns)]
    vRq, vNq = 112, 113
    pk = 116
    tmp = g.vTmp + 8
    def epi(s):
        e = St()
        e(f"v_mul_f32 v{vRq}, {f32(CQ)}, v{vR[s]}\nv_mul_f32 v{vNq}, {f32(CQ)}, v{vN[s]}")
        ln_epi_t(e, acc + 4 * s, vRq, vNq, vCSq, pk + 2 * s, tmp)
        return e
    R4, N4, Y = 140, 144, 148
    def kv_part():
        e = St()
        e.ext(stats_vlayout(9, vR[0], vN[0], R4, N4))
        e.wl("pr9")
        for r in range(4):
            e(f"""
            v_cndmask_b32_e64 v{R4+r}, v{vR[0]}, v{R4+r}, s[38:39]
            v_cndmask_b32_e64 v{N4+r}, v{vN[0]}, v{N4+r}, s[38:39]
            v_cndmask_b32_e64 v{csK+r}, v{csK+r}, v{csV}, s[38:39]
            v_cndmask_b32_e64 v{accK+r}, v{accK+r}, v{accV+r}, s[38:39]
            """)
        for r in range(4): e(f"v_mul_f32 v{Y+r}, v{N4+r}, v{csK+r}")
        for r in range(4): e(f"v_fma_f32 v{Y+r}, v{accK+r}, v{R4+r}, v{Y+r}")
        e.i(f"ds_write_b128 v{vKW}, {vr(Y,4)}", lds="kvw")
        return e
    def kv_fin():
        e = St()
        F = 140
        for w in range(4): e.i(f"ds_read_b128 {vr(F+4*w,4)}, v{vKR} offset:{w*1024}", lds=f"kvr{w}")
        e.it.append(("gap", 2, None, None))
        e.wl("kvr3")
        for r in range(4):
            e(f"v_add_f32 v{F+r}, v{F+r}, v{F+4+r}\nv_add_f32 v{F+8+r}, v{F+8+r}, v{F+12+r}")
        for r in range(4): e(f"v_add_f32 v{F+r}, v{F+r}, v{F+8+r}")
        e(f"v_cvt_pk_bf16_f32 v156, v{F}, v{F+1}\nv_cvt_pk_bf16_f32 v157, v{F+2}, v{F+3}")
        e.i(f"buffer_store_dword v156, v{vA0}, s[8:11], s59 offen")
        e.i(f"buffer_store_dword v157, v{vA1}, s[8:11], s59 offen")
        return e
    st.ext(steps[0]); st.ext(steps[1])
    for s in range(ns):
        seg = steps[2 + 16 * s: 2 + 16 * (s + 1)]
        a = seg[:4]; b = seg[4:9]; c = seg[9:]
        side = St()
        if s > 0:
            side.it.append(("gap", 2, None, None)); side.ext(epi(s - 1))
        if s == 1: side.ext(kv_part())
        st.ext(weave(a, side, per=2))
        side = St(); side.it.append(("gap", 2, None, None)); side.ext(stats_extract(s, vStatG, vStatS, ns))
        st.ext(weave(b[:4], side, per=2))
        if s == 1: st.wl("kvw")
        st.ext(b[4])
        side = stats_finalize(s, vR[s], vN[s], g.vTmp)
        if s == 1: side.ext(kv_fin())
        st.ext(weave(c, side, per=2))
    st.ext(epi(ns - 1))
    st(f"""
    v_lshrrev_b32 v48, 1, v{g.vGq}
    v_lshlrev_b32 v48, 9, v48
    v_lshl_add_u32 v48, v{g.vT}, 4, v48
    v_and_b32 v49, 1, v{g.vGq}
    v_lshl_add_u32 v48, v49, 3, v48
    s_lshl_b32 s25, s20, 3
    s_add_u32 s25, s25, s21
    s_lshl_b32 s25, s25, 2
    s_add_u32 s25, s25, s22
    s_lshl_b32 s25, s25, 11
    s_add_u32 s25, s25, {QF0 + QFS*layer}
    """)
    for s in range(ns):
        st(f"""
        s_and_b32 s23, s{40+s}, 3
        s_lshr_b32 s24, s23, 1
        s_lshl_b32 s24, s24, 10
        s_and_b32 s23, s23, 1
        s_lshl_b32 s23, s23, 8
        s_add_u32 s23, s23, s24
        s_add_u32 s23, s23, s25
        """)
        st.i(f"buffer_store_dwordx2 {vr(pk+2*s,2)}, v48, s[8:11], s23 offen")

def gen_p4a(name):
    st = St()
    NST[0] = 0
    stamp(st)
    dbg_start(st)
    if INSTR: st("s_memrealtime s[96:97]")
    prologue(st, name, "s_load_dwordx2 s[6:7], s[0:1], 0")
    srd_io(st, 6, 2048 * 1024)
    phase_p4(st, name, 0, "row", False)
    st("s_waitcnt vmcnt(0)")
    stamp(st)
    stamp_dump(st, 3)
    dbg_end(st, 1, name)
    return kernel_text(name, st)

def gen_main(names):
    body_name = names[0]
    st = St()
    st(f"s_mov_b32 s{sL}, 0")
    st.label("L_main_common")
    NST[0] = 0
    stamp(st)
    dbg_start(st)
    if INSTR: st("s_memrealtime s[96:97]")
    prologue(st, body_name, "s_load_dwordx2 s[6:7], s[0:1], 64")
    srd_io(st, 6, 2048 * 1024)
    st(f"""
    s_mul_i32 s23, s{sL}, {KVS}
    s_add_u32 s{sKF}, s23, {KF0}
    s_add_u32 s{sVF}, s23, {VF0}
    s_mul_i32 s23, s{sL}, {QFS}
    s_add_u32 s{sQF}, s23, {QF0}
    s_mul_i32 s23, s{sL}, {BS}
    s_add_u32 s{sXIN}, s23, {B0 + XIN}
    s_add_u32 s{sOA}, s23, {B0 + OA}
    s_add_u32 s{sX1}, s23, {B0 + X1}
    s_add_u32 s{sOB}, s23, {B0 + OB}
    s_lshl_b32 s23, s{sL}, 14
    s_add_u32 s{sFLAG}, s23, {FLAGS}
    """)
    phase_att(st, body_name)
    stamp(st)
    sync_publish(st, 0, body_name)
    phase_p13(st, body_name + "_1", 1)
    stamp(st)
    sync_publish(st, 1, body_name)
    phase_p2(st, body_name + "_2")
    stamp(st)
    sync_publish(st, 2, body_name)
    phase_p13(st, body_name + "_3", 3)
    stamp(st)
    st(f"s_cmp_lg_u32 s{sL}, 0\ns_cbranch_scc1 L_fin_{body_name}")
    sync_publish(st, 3, body_name)
    phase_p4(st, body_name + "_4", 1, "act", True)
    st.label(f"L_fin_{body_name}")
    st("s_waitcnt vmcnt(0)")
    stamp(st)
    stamp_dump(st, f"s{sL}")
    if DBG:
        st(f"s_cmp_lg_u32 s{sL}, 0\ns_cbranch_scc1 L_dbg1")
        dbg_end(st, 2, body_name + "a")
        st(f"s_branch L_end_{body_name}")
        st.label("L_dbg1")
        dbg_end(st, 3, body_name + "b", last=True)
    txt = kernel_text(body_name, st)
    n2 = names[1]
    desc = txt[txt.index(".section .rodata"):].replace(body_name, n2)
    txt += f""".text
.globl {n2}
.p2align 8
.type {n2},@function
{n2}:
    s_mov_b32 s{sL}, 1
    s_branch L_main_common
""" + desc
    return txt

def build(path):
    gen.INSTR = None
    ks = [("k0_kernel", 0), ("p4a_kernel", P4_LDS), ("main0_kernel", ATT_LDS), ("main1_kernel", ATT_LDS)]
    hdr = open("cdna_kernels/" + NAME + ".s.ref").read().split("; Override launch geometry")[0]
    out = hdr
    for n, lds in ks:
        out += f"; @launch kernel={n} grid=(256,1,1) block=(256,1,1) lds={lds}\n"
    out += '.amdgcn_target "amdgcn-amd-amdhsa--gfx950"\n'
    out += gen_k0("k0_kernel")
    out += gen_p4a("p4a_kernel")
    out += gen_main(("main0_kernel", "main1_kernel"))
    open(path, "w").write(out)

if __name__ == "__main__":
    build(sys.argv[1] if len(sys.argv) > 1 else "stage3.s")
```

```python
import sys, os
sys.path.insert(0, os.path.dirname(os.path.abspath(__file__)))
import gen
from gen import (St, resolve, weave, vr, ar, rr, f32, CQ, srd_io, emit_selectors,
                 T_WQ, T_WOA, T_WOB, T_WQKV, T_WK, T_WV, NFRAG, NAME, WS_SIZE)
from asmlib import fix_hazards
INSTR = os.environ.get("INSTR")
OPT = os.environ.get("OPT", "")
FAST = "nofast" not in OPT

KF0, VF0, KVS = 0x310000, 0x320000, 0x20000
B0, BS = 0x800000, 0x800000
XIN, OA, X1, OB = 0, 0x200000, 0x400000, 0x600000
FLAGS = 0x1900000
XCCT = FLAGS + 0x8000
FLAG_BYTES = 0xA000
TS_OFF = 0x1800000
S_G, S_M, S_W = 20, 21, 22
sROT = 16
sSLOWA, sSLOWB = 40, 42
sSPIN = 45
sKF, sVF, sXIN, sOA, sX1, sOB, sL, sFLAG = 48, 49, 51, 52, 53, 54, 55, 56
sWT = 57
SRD_OUT = 60
W_Q2, W_K2, W_V2, W_O = ("a", 0), ("a", 64), ("a", 128), ("a", 192)
W_QA = ("a", 0)
W_KV = ("v", 230)
vRES = 246
vL16, vXA, vT, vG, vONES, vRING, RING = 1, 2, 6, 7, 8, 12, 8
vSTA, vSTW, vSTR, vPRR, vTMP = 44, 45, 46, 47, 48
vFLO, vFLP = 62, 63

NST = [0]
def stamp(st, fine=None):
    if not INSTR: return
    if INSTR == "1":
        if fine: return
        k = NST[0]; NST[0] += 1
        st(f"s_memtime s[{64+2*k}:{65+2*k}]\ns_waitcnt lgkmcnt(0)")
    else:
        if fine != INSTR and not (fine is None and NST[0] == 0): return
        k = NST[0]; NST[0] += 1
        assert k < 16
        st(f"s_memtime s[{64+2*k}:{65+2*k}]")
def stamp_dump(st, slot):
    if not INSTR: return
    st("s_memrealtime s[98:99]\ns_waitcnt lgkmcnt(0)")
    for k in range(16): st(f"v_mov_b32 v{16+k}, s{64+2*k if k < NST[0] else 98}")
    st(f"""
    v_mov_b32 v31, s98
    v_mov_b32 v30, s96
    s_lshl_b32 s23, s2, 2
    s_add_u32 s23, s23, s22
    s_lshl_b32 s23, s23, 6
    s_mul_i32 s24, {slot}, 65536
    s_add_u32 s23, s23, s24
    s_add_u32 s23, s23, {TS_OFF}
    v_mov_b32 v8, 0
    s_mov_b64 exec, 1
    buffer_store_dwordx4 v[16:19], v8, s[8:11], s23 offen
    buffer_store_dwordx4 v[20:23], v8, s[8:11], s23 offen offset:16
    buffer_store_dwordx4 v[24:27], v8, s[8:11], s23 offen offset:32
    buffer_store_dwordx4 v[28:31], v8, s[8:11], s23 offen offset:48
    s_waitcnt vmcnt(0)
    s_mov_b64 exec, -1
    """)

def prologue(st, name, extra_loads=""):
    st(f"""
    s_cmp_ge_u32 s2, 256
    s_cbranch_scc1 L_end_{name}
    s_load_dwordx2 s[4:5], s[0:1], 80
    {extra_loads}
    v_lshrrev_b32 v1, 6, v0
    v_and_b32 v0, 63, v0
    s_and_b32 s20, s2, 7
    s_lshr_b32 s21, s2, 3
    s_lshl_b32 s20, s20, 2
    s_lshr_b32 s23, s21, 3
    s_add_u32 s20, s20, s23
    s_and_b32 s21, s21, 7
    v_readfirstlane_b32 s22, v1
    v_lshlrev_b32 v{vL16}, 4, v0
    s_waitcnt lgkmcnt(0)
    s_mov_b32 s8, s4
    s_mov_b32 s9, s5
    s_mov_b32 s10, {WS_SIZE}
    s_mov_b32 s11, 0x00020000
    """)

OUTLINE = []
def dstore(e, text):
    if not FAST:
        e.i(text + " sc1"); return
    k = len(OUTLINE)
    e.it.append(("grp", [f"s_cbranch_vccnz L_slow_{k}", text, f"L_back_{k}:"], None, None))
    OUTLINE.append(text + " sc1")

def expand_groups(st):
    o = St()
    for it in st.it:
        if it[0] == "grp":
            for l in it[1]: o.it.append(("i", l, None, None))
        else: o.it.append(it)
    return o

def kernel_text(name, st, vgpr=512, accum=256, sgpr=100):
    lines = resolve(expand_groups(st))
    lines.append("s_endpgm")
    for k, t in enumerate(OUTLINE):
        lines += [f"L_slow_{k}:", t, f"s_branch L_back_{k}"]
    OUTLINE.clear()
    lines, nins = fix_hazards(lines)
    body = "\n".join(("    " + l) if not l.endswith(":") else l for l in lines)
    return f""".text
.globl {name}
.p2align 8
.type {name},@function
{name}:
{body}
L_end_{name}:
    s_endpgm
.section .rodata,"a"
.p2align 6
.amdhsa_kernel {name}
  .amdhsa_next_free_vgpr {vgpr}
  .amdhsa_next_free_sgpr {sgpr}
  .amdhsa_accum_offset {accum}
  .amdhsa_group_segment_fixed_size 0
  .amdhsa_kernarg_size 88
  .amdhsa_user_sgpr_count 2
  .amdhsa_user_sgpr_kernarg_segment_ptr 1
  .amdhsa_system_sgpr_workgroup_id_x 1
  .amdhsa_float_denorm_mode_32 3
.end_amdhsa_kernel
"""

def lane_consts(st):
    st(f"v_and_b32 v{vT}, 15, v0\nv_lshrrev_b32 v{vG}, 4, v0")
    for q in range(4): st(f"v_mov_b32 v{vONES+q}, 0x3f803f80")

def xa_setup(st, ns, xb):
    for jg in range(4):
        st(f"""
        s_add_u32 s23, s22, {jg}
        s_and_b32 s23, s23, 3
        s_mul_i32 s23, s23, {ns*4096}
        s_add_u32 s23, s23, {xb}
        v_add_u32 v{vXA+jg}, s23, v{vL16}
        """)

def wave_scalars(st):
    for jg in range(4):
        st(f"""
        s_add_u32 s23, s22, {jg}
        s_and_b32 s23, s23, 3
        s_lshl_b32 s{sROT+jg}, s23, 12
        """)
    st(f"""
    s_lshl_b32 s{sWT}, s21, 2
    s_add_u32 s{sWT}, s{sWT}, s22
    s_lshl_b32 s{sWT}, s{sWT}, 14
    """)

def w_loads(dst, T0, tag):
    out = []
    for jg in range(4):
        for q in range(4):
            e = St()
            if q == 0:
                e(f"s_add_u32 s58, s{sWT}, s{sROT+jg}")
                if T0: e(f"s_add_u32 s58, s58, {T0*16384}")
            b = dst[1] + 4 * (4 * jg + q)
            e.i(f"buffer_load_dwordx4 {rr((dst[0], b), 4)}, v{vL16}, s[8:11], s58 offen offset:{q*1024}", vm=f"{tag}{4*jg+q}")
            out.append(e)
    return out

def kv_loads(tag):
    out = []
    for q in range(4):
        e = St()
        if q == 0:
            e(f"""
            s_and_b32 s58, s21, 1
            s_add_u32 s58, s58, {T_WK}
            s_lshl_b32 s58, s58, 14
            s_add_u32 s58, s58, s{sROT}
            """)
        e.i(f"buffer_load_dwordx4 {rr((W_KV[0], W_KV[1] + 4*q), 4)}, v{vL16}, s[8:11], s58 offen offset:{q*1024}", vm=f"{tag}{q}")
        out.append(e)
    return out

def act_addr(st, vdst, tmp):
    st(f"""
    s_lshl_b32 s23, s21, 11
    s_lshr_b32 s28, s22, 1
    s_lshl_b32 s28, s28, 10
    s_add_u32 s23, s23, s28
    s_and_b32 s28, s22, 1
    s_lshl_b32 s28, s28, 9
    s_add_u32 s23, s23, s28
    v_lshrrev_b32 v{tmp}, 1, v{vG}
    v_lshlrev_b32 v{tmp}, 8, v{tmp}
    v_lshl_add_u32 v{tmp}, v{vT}, 4, v{tmp}
    v_and_b32 v{vdst}, 1, v{vG}
    v_lshl_add_u32 v{vdst}, v{vdst}, 3, v{tmp}
    v_add_u32 v{vdst}, s23, v{vdst}
    """)

def row_addr(st, vdst):
    st(f"""
    s_lshl_b32 s23, s21, 7
    s_lshl_b32 s28, s22, 5
    s_add_u32 s23, s23, s28
    v_lshlrev_b32 v{vdst}, 10, v{vT}
    v_lshl_add_u32 v{vdst}, v{vG}, 3, v{vdst}
    v_add_u32 v{vdst}, s23, v{vdst}
    """)

def colsum(st, dst, W, w_is_A, n=16):
    for jj in range(n):
        wreg = rr((W[0], W[1] + 4 * jj), 4)
        c = "0" if jj == 0 else vr(dst, 4)
        if w_is_A: st(f"v_mfma_f32_16x16x32_bf16 {vr(dst,4)}, {wreg}, {vr(vONES,4)}, {c}")
        else:      st(f"v_mfma_f32_16x16x32_bf16 {vr(dst,4)}, {vr(vONES,4)}, {wreg}, {c}")

def stats_setup(st, sb):
    pb = sb + 2560; dummy = pb + 512
    st(f"""
    v_lshrrev_b32 v{vTMP}, 2, v{vT}
    v_cmp_eq_u32 s[30:31], v{vTMP}, v{vG}
    v_lshlrev_b32 v{vSTW}, 5, v{vT}
    s_lshl_b32 s23, s22, 2
    s_add_u32 s23, s23, {sb}
    v_add_u32 v{vSTW}, s23, v{vSTW}
    v_mov_b32 v{vTMP}, {dummy}
    v_cndmask_b32_e64 v{vSTW}, v{vTMP}, v{vSTW}, s[30:31]
    v_lshlrev_b32 v{vSTR}, 5, v{vT}
    v_add_u32 v{vSTR}, {sb}, v{vSTR}
    s_lshl_b32 s23, s22, 7
    s_add_u32 s23, s23, {pb}
    v_lshlrev_b32 v{vSTA}, 2, v{vT}
    v_add_u32 v{vSTA}, s23, v{vSTA}
    v_lshlrev_b32 v{vPRR}, 4, v{vG}
    v_add_u32 v{vPRR}, s23, v{vPRR}
    s_mov_b32 s32, 0x22222222
    s_mov_b32 s33, 0x22222222
    s_mov_b32 s34, 0x44444444
    s_mov_b32 s35, 0x44444444
    s_mov_b32 s36, 0x88888888
    s_mov_b32 s37, 0x88888888
    """)
STAT_BYTES = 2560 + 512 + 2600

def stats_extract(e, s, vSG, vSS, t, tag):
    e(f"""
    v_cndmask_b32_e64 v{t}, v{vSG}, v{vSG+1}, s[32:33]
    v_cndmask_b32_e64 v{t}, v{t}, v{vSG+2}, s[34:35]
    v_cndmask_b32_e64 v{t}, v{t}, v{vSG+3}, s[36:37]
    """)
    e.i(f"ds_write_b32 v{vSTW}, v{vSS} offset:{s*512}")
    e.i(f"ds_write_b32 v{vSTW}, v{t} offset:{s*512 + 16}", lds=tag)

def stats_read(e, s, a, tag):
    e.i(f"ds_read_b128 {vr(a,4)}, v{vSTR} offset:{s*512}")
    e.i(f"ds_read_b128 {vr(a+4,4)}, v{vSTR} offset:{s*512+16}", lds=tag)

def stats_math(a, vR, vN):
    return f"""
    v_add_f32 v{a}, v{a}, v{a+1}
    v_add_f32 v{a+4}, v{a+4}, v{a+5}
    v_add_f32 v{a+2}, v{a+2}, v{a+3}
    v_add_f32 v{a+6}, v{a+6}, v{a+7}
    v_add_f32 v{a}, v{a}, v{a+2}
    v_add_f32 v{a+4}, v{a+4}, v{a+6}
    v_mul_f32 v{a}, {f32(1.0/512)}, v{a}
    v_mul_f32 v{a+4}, {f32(1.0/512)}, v{a+4}
    v_fma_f32 v{a+4}, -v{a}, v{a}, v{a+4}
    v_max_f32 v{a+4}, 0, v{a+4}
    v_add_f32 v{a+4}, {f32(1e-5)}, v{a+4}
    v_rsq_f32 v{vR}, v{a+4}
    v_sub_f32 v{a}, 0, v{a}
    v_mul_f32 v{vN}, v{a}, v{vR}
    """.strip().split("\n")

def ln_epi(e, acc, R, N, CS, pk, tmp):
    for r in range(4): e(f"v_mul_f32 v{tmp+r}, v{N[r]}, v{CS[r]}")
    for r in range(4): e(f"v_fma_f32 v{tmp+r}, v{acc+r}, v{R[r]}, v{tmp+r}")
    e(f"v_cvt_pk_bf16_f32 v{pk}, v{tmp}, v{tmp+1}")
    e(f"v_cvt_pk_bf16_f32 v{pk+1}, v{tmp+2}, v{tmp+3}")

def sync_publish(st, e, name, slow):
    st(f"""
    s_waitcnt vmcnt(0)
    s_barrier
    s_cmp_lg_u32 s22, 0
    s_cbranch_scc1 L_np{e}_{name}
    s_lshl_b32 s23, s20, 7
    s_lshl_b32 s28, s21, 2
    s_add_u32 s23, s23, s28
    s_add_u32 s23, s23, s{sFLAG}
    s_add_u32 s23, s23, {e*0x1000}
    v_mov_b32 v{vFLO}, 1
    v_mov_b32 v{vFLP}, 0
    s_mov_b64 vcc, s[{slow}:{slow+1}]
    s_mov_b64 exec, 1
    """)
    dstore(st, f"buffer_store_dword v{vFLO}, v{vFLP}, s[8:11], s23 offen")
    st("s_mov_b64 exec, -1")
    st.label(f"L_np{e}_{name}")

def sync_wait(st, e, name, halo=False, slow=None):
    st(f"""
    v_and_b32 v{vFLP}, 7, v0
    v_lshlrev_b32 v{vFLP}, 2, v{vFLP}
    s_lshl_b32 s23, s20, 7
    """)
    if halo:
        st(f"""
        s_sub_u32 s28, s20, 1
        s_max_i32 s28, s28, 0
        s_lshl_b32 s28, s28, 7
        s_sub_u32 s28, s28, s23
        v_bfe_u32 v{vFLO}, v0, 3, 1
        v_mul_lo_u32 v{vFLO}, v{vFLO}, s28
        v_add_u32 v{vFLP}, v{vFLP}, v{vFLO}
        """)
    st(f"""
    v_add_u32 v{vFLP}, s23, v{vFLP}
    s_add_u32 s23, s{sFLAG}, {e*0x1000}
    s_mov_b32 s{sSPIN}, 0x10000
    """)
    st.label(f"L_poll{e}_{name}")
    st(f"""
    buffer_load_dword v{vFLO}, v{vFLP}, s[8:11], s23 offen sc1
    s_waitcnt vmcnt(0)
    v_cmp_ne_u32 vcc, 1, v{vFLO}
    s_sub_u32 s{sSPIN}, s{sSPIN}, 1
    s_cmp_eq_u32 s{sSPIN}, 0
    s_cbranch_scc1 L_pdone{e}_{name}
    s_cbranch_vccnz L_poll{e}_{name}
    """)
    st.label(f"L_pdone{e}_{name}")
    if slow is not None: st(f"s_mov_b64 vcc, s[{slow}:{slow+1}]")
    stamp(st)

def xcc_publish(st, name):
    if not FAST: return
    st(f"""
    s_getreg_b32 s39, hwreg(HW_REG_XCC_ID)
    s_and_b32 s39, s39, 15
    s_add_u32 s39, s39, 1
    s_cmp_lg_u32 s22, 0
    s_cbranch_scc1 L_nx_{name}
    s_lshl_b32 s23, s20, 5
    s_lshl_b32 s28, s21, 2
    s_add_u32 s23, s23, s28
    s_lshl_b32 s28, s{sL}, 12
    s_add_u32 s23, s23, s28
    s_add_u32 s23, s23, {XCCT}
    v_mov_b32 v{vFLO}, s39
    v_mov_b32 v{vFLP}, 0
    s_mov_b64 exec, 1
    buffer_store_dword v{vFLO}, v{vFLP}, s[8:11], s23 offen sc1
    s_mov_b64 exec, -1
    """)
    st.label(f"L_nx_{name}")

vXCA, vXCV = 254, 255
def xcc_issue():
    e = St()
    e(f"""
    v_and_b32 v{vXCA}, 7, v0
    v_lshlrev_b32 v{vXCA}, 2, v{vXCA}
    s_add_u32 s28, s20, 1
    s_min_u32 s28, s28, 31
    s_sub_u32 s28, s28, s20
    s_lshl_b32 s28, s28, 5
    v_bfe_u32 v{vXCV}, v0, 3, 1
    v_mul_lo_u32 v{vXCV}, v{vXCV}, s28
    v_add_u32 v{vXCA}, v{vXCA}, v{vXCV}
    s_lshl_b32 s28, s20, 5
    v_add_u32 v{vXCA}, s28, v{vXCA}
    s_lshl_b32 s38, s{sL}, 12
    s_add_u32 s38, s38, {XCCT}
    """)
    e2 = St()
    e2.i(f"buffer_load_dword v{vXCV}, v{vXCA}, s[8:11], s38 offen sc1", vm="xcc")
    return [e, e2]

def xcc_check(st, name):
    if not FAST:
        st(f"s_mov_b64 s[{sSLOWA}:{sSLOWA+1}], -1\ns_mov_b64 s[{sSLOWB}:{sSLOWB+1}], -1"); return
    st.wv("xcc")
    st(f"""
    v_cmp_eq_u32 vcc, 0, v{vXCV}
    s_mov_b32 s{sSPIN}, 0x10000
    s_nop 0
    s_cbranch_vccz L_xd_{name}
    """)
    st.label(f"L_xp_{name}")
    st(f"""
    buffer_load_dword v{vXCV}, v{vXCA}, s[8:11], s38 offen sc1
    s_waitcnt vmcnt(0)
    v_cmp_eq_u32 vcc, 0, v{vXCV}
    s_sub_u32 s{sSPIN}, s{sSPIN}, 1
    s_cmp_eq_u32 s{sSPIN}, 0
    s_cbranch_scc1 L_xd_{name}
    s_cbranch_vccnz L_xp_{name}
    """)
    st.label(f"L_xd_{name}")
    st(f"""
    v_cmp_ne_u32 s[{sSLOWB}:{sSLOWB+1}], s39, v{vXCV}
    s_nop 1
    s_and_b32 s{sSLOWA}, s{sSLOWB}, 0xff
    s_mov_b32 s{sSLOWA+1}, 0
    """)
    if "forceslow" in OPT:
        st(f"s_mov_b64 s[{sSLOWA}:{sSLOWA+1}], -1\ns_mov_b64 s[{sSLOWB}:{sSLOWB+1}], -1")

def dma_slots(st, ns, xb, sSrc, tile_of_slot, tag):
    st(f"""
    s_mul_i32 s25, s22, {ns*4096}
    s_add_u32 s25, s25, {xb}
    s_lshl_b32 s24, s22, 12
    s_add_u32 s24, s24, {sSrc}
    """)
    slots = []
    for s in range(ns):
        L = []
        for q in range(4):
            e = St()
            if q == 0:
                tile_of_slot(e, s)
                e(f"s_lshl_b32 s23, s23, 14\ns_add_u32 s27, s23, s24\ns_add_u32 m0, s25, {s*4096}")
            e.i(f"buffer_load_dwordx4 v{vL16}, s[8:11], s27 offen offset:{q*1024} sc1 lds", vm=f"{tag}{s}_{q}")
            L.append(e)
        slots.append(L)
    return slots

def gemm_steps(ns, chains, tagx, dma, upfront, stats=None, fine=None, wtags=None, pre_mid=None):
    steps = []
    total = ns * 16
    def rd(idx):
        s, jj = divmod(idx, 16)
        return f"ds_read_b128 {vr(vRING + 4*(idx % RING), 4)}, v{vXA + (jj >> 2)} offset:{s*4096 + (jj & 3)*1024}"
    pre = St()
    for s in range(upfront):
        for e in dma[s]: pre.ext(e)
        if s == 0 and pre_mid is not None: pre.ext(pre_mid)
        if s + 1 < upfront: pre("s_barrier")
    stamp(pre, fine)
    steps.append(pre)
    pre2 = St()
    pre2.wv(f"{tagx}0_3")
    pre2("s_barrier")
    stamp(pre2, fine)
    for idx in range(RING): pre2.i(rd(idx), lds=f"x{idx}")
    steps.append(pre2)
    for idx in range(total):
        s, jj = divmod(idx, 16)
        stp = St()
        ring = vRING + 4 * (idx % RING)
        if wtags and s == 0 and jj % 4 == 0: stp.wv(wtags[jj // 4])
        if idx % 2 == 0: stp.wl(f"x{min(idx+1, total-1)}")
        for (acc, w, w_is_A) in chains(s):
            wreg = rr((w[0], w[1] + 4 * jj), 4)
            c = "0" if jj == 0 and acc[1] else vr(acc[0], 4)
            if w_is_A: stp(f"v_mfma_f32_16x16x32_bf16 {vr(acc[0],4)}, {wreg}, {vr(ring,4)}, {c}")
            else:      stp(f"v_mfma_f32_16x16x32_bf16 {vr(acc[0],4)}, {vr(ring,4)}, {wreg}, {c}")
        if stats and jj < 4:
            sg, ss = stats(s)
            stp(f"v_mfma_f32_16x16x32_bf16 {vr(sg,4)}, {vr(ring,4)}, {vr(ring,4)}, {'0' if jj == 0 else vr(sg,4)}")
            stp(f"v_mfma_f32_16x16x32_bf16 {vr(ss,4)}, {vr(vONES,4)}, {vr(ring,4)}, {'0' if jj == 0 else vr(ss,4)}")
        nxt = idx + RING
        if nxt < total:
            if nxt % 16 == 0:
                stp.it.append(("mark", f"bar{s}", None, None))
                stp.wv(f"{tagx}{nxt//16}_3")
                stp("s_barrier")
            stp.i(rd(nxt), lds=f"x{nxt}")
        sd = s + upfront
        if sd < ns and jj < 4: stp.ext(dma[sd][jj])
        if jj == 15 or jj == 7: stamp(stp, fine)
        steps.append(stp)
    return steps

def weave2(steps, progs, per=2):
    out = St()
    qs = [list(p) for p in progs]
    skip = [0] * len(qs)
    def emit_forced(name):
        for qi, q in enumerate(qs):
            last = max([i for i, (ms, it) in enumerate(q) if it[0] == "before" and it[1] == name], default=-1)
            for _ in range(last + 1):
                ms, it = q.pop(0)
                if it[0] not in ("gap", "before"): out.it.append(it)
    for si, stp in enumerate(steps):
        for it in stp.it:
            if it[0] == "mark":
                emit_forced(it[1]); continue
            out.it.append(it)
            if it[0] == "i" and it[1].startswith("v_mfma"):
                n = 0
                for qi, q in enumerate(qs):
                    if skip[qi] > 0:
                        skip[qi] -= 1; continue
                    while q and n < per and q[0][0] <= si:
                        ms, x = q.pop(0)
                        if x[0] == "gap":
                            skip[qi] = x[1]; break
                        if x[0] == "before": continue
                        out.it.append(x)
                        if x[0] in ("i", "grp"): n += 1
    for q in qs:
        for ms, x in q:
            if x[0] not in ("gap", "before"): out.it.append(x)
    return out

def prog(ms, st_): return [(ms, it) for it in st_.it]
def strip_marks(st_):
    o = St(); o.it = [it for it in st_.it if it[0] != "mark"]; return o

def phase_kv(st, name, layer_out, src, kvb):
    XR = 64
    accK, accV, csK, csV, SG, SS = 80, 84, 88, 92, 96, 100
    vA0, vA1, vKW, vKR = 104, 105, 106, 107
    t = vTMP
    lane_consts(st)
    sb = kvb + 8192
    stats_setup(st, sb)
    st(f"""
    s_lshl_b32 s26, s20, 2
    s_lshr_b32 s28, s21, 1
    s_add_u32 s26, s26, s28
    s_bitcmp1_b32 s21, 0
    s_cselect_b64 s[38:39], -1, 0
    """)
    def xloads(e):
        if src == "row":
            e(f"""
            v_lshlrev_b32 v{t+12}, 10, v{vT}
            v_lshl_add_u32 v{t+12}, v{vG}, 4, v{t+12}
            s_lshl_b32 s23, s26, 14
            s_lshl_b32 s28, s22, 8
            s_add_u32 s23, s23, s28
            """)
            for q in range(4):
                e.i(f"buffer_load_dwordx4 {vr(XR+4*q,4)}, v{t+12}, s[12:15], s23 offen offset:{q*64}", vm=f"xk{q}")
        else:
            e(f"""
            s_lshl_b32 s23, s26, 14
            s_lshl_b32 s28, s22, 12
            s_add_u32 s23, s23, s28
            s_add_u32 s23, s23, {B0 + BS*layer_out + XIN}
            """)
            for q in range(4):
                e.i(f"buffer_load_dwordx4 {vr(XR+4*q,4)}, v{vL16}, s[8:11], s23 offen offset:{q*1024} sc1", vm=f"xk{q}")
    def setup(e):
        e(f"""
        v_lshrrev_b32 v{t}, 1, v{vG}
        v_and_b32 v{t+1}, 1, v{vG}
        v_lshlrev_b32 v{t+2}, 9, v{t}
        v_lshl_add_u32 v{t+2}, v{vT}, 4, v{t+2}
        v_lshl_add_u32 v{t+2}, v{t+1}, 3, v{t+2}
        v_lshlrev_b32 v{t+4}, 8, v{t+1}
        v_lshl_add_u32 v{t+4}, v{vT}, 4, v{t+4}
        v_lshl_add_u32 v{t+4}, v{t}, 3, v{t+4}
        v_cndmask_b32_e64 v{vA0}, v{t+2}, v{t+4}, s[38:39]
        s_lshl_b32 s23, s22, 11
        s_add_u32 s23, s23, {kvb}
        v_add_u32 v{vKW}, s23, v{vL16}
        v_add_u32 v{vKR}, {kvb}, v{vL16}
        s_lshr_b32 s23, s26, 1
        s_lshl_b32 s23, s23, 10
        s_and_b32 s28, s26, 1
        s_lshl_b32 s29, s28, 8
        s_add_u32 s29, s29, {KF0 + KVS*layer_out}
        s_lshl_b32 s28, s28, 9
        s_add_u32 s28, s28, {VF0 + KVS*layer_out}
        s_bitcmp1_b32 s21, 0
        s_cselect_b32 s28, s28, s29
        s_add_u32 s59, s23, s28
        """)
    def cs(e):
        for jj in range(4):
            w = rr((W_KV[0], W_KV[1] + 4 * jj), 4)
            e(f"v_mfma_f32_16x16x32_bf16 {vr(csK,4)}, {w}, {vr(vONES,4)}, {'0' if jj == 0 else vr(csK,4)}")
            e(f"v_mfma_f32_16x16x32_bf16 {vr(csV,4)}, {vr(vONES,4)}, {w}, {'0' if jj == 0 else vr(csV,4)}")
        for r in range(4): e(f"v_cndmask_b32_e64 v{csK+r}, v{csK+r}, v{csV}, s[38:39]")
        e.i(f"ds_write_b128 v{vKW}, {vr(csK,4)} offset:1024")
    def main(e):
        for q in range(4):
            e.wv(f"xk{q}")
            w = rr((W_KV[0], W_KV[1] + 4 * q), 4); x = vr(XR + 4 * q, 4)
            z = lambda r: "0" if q == 0 else vr(r, 4)
            e(f"v_mfma_f32_16x16x32_bf16 {vr(SG,4)}, {x}, {x}, {z(SG)}")
            e(f"v_mfma_f32_16x16x32_bf16 {vr(SS,4)}, {vr(vONES,4)}, {x}, {z(SS)}")
            e(f"v_mfma_f32_16x16x32_bf16 {vr(accK,4)}, {w}, {x}, {z(accK)}")
            e(f"v_mfma_f32_16x16x32_bf16 {vr(accV,4)}, {x}, {w}, {z(accV)}")
        stats_extract(e, 0, SG, SS, t, "ksw")
        for r in range(4): e(f"v_cndmask_b32_e64 v{accK+r}, v{accK+r}, v{accV+r}, s[38:39]")
        e.i(f"ds_write_b128 v{vKW}, {vr(accK,4)}", lds="kaw")
        e("s_waitcnt lgkmcnt(0)\ns_barrier")
        e(f"s_cmp_lg_u32 s22, 0\ns_cbranch_scc1 L_kvdone_{name}")
        stats_read(e, 0, t, "ksr")
        F = 108
        for w in range(4): e.i(f"ds_read_b128 {vr(F+4*w,4)}, v{vKR} offset:{w*2048}")
        for w in range(4): e.i(f"ds_read_b128 {vr(F+16+4*w,4)}, v{vKR} offset:{w*2048+1024}", lds=f"kr{w}")
        e.wl("ksr")
        R, N = 140, 141
        for x in stats_math(t, R, N): e(x)
        e.i(f"ds_write_b32 v{vSTA}, v{R}")
        e.i(f"ds_write_b32 v{vSTA}, v{N} offset:64", lds="kpw")
        e.wl("kpw")
        R4, N4 = 144, 148
        e.i(f"ds_read_b128 {vr(R4,4)}, v{vPRR}")
        e.i(f"ds_read_b128 {vr(N4,4)}, v{vPRR} offset:64", lds="kpr")
        for b in (F, F + 16):
            for r in range(4): e(f"v_add_f32 v{b+r}, v{b+r}, v{b+4+r}\nv_add_f32 v{b+8+r}, v{b+8+r}, v{b+12+r}")
            for r in range(4): e(f"v_add_f32 v{b+r}, v{b+r}, v{b+8+r}")
        e.wl("kpr")
        for r in range(4):
            e(f"v_cndmask_b32_e64 v{R4+r}, v{R}, v{R4+r}, s[38:39]\nv_cndmask_b32_e64 v{N4+r}, v{N}, v{N4+r}, s[38:39]")
        ln_epi(e, F, [R4+r for r in range(4)], [N4+r for r in range(4)], [F+16+r for r in range(4)], 152, 156)
        e.i(f"buffer_store_dwordx2 v[152:153], v{vA0}, s[8:11], s59 offen")
        e.label(f"L_kvdone_{name}")
    return xloads, setup, cs, main

def gen_init(name):
    st = St()
    NST[0] = 0
    stamp(st)
    if INSTR: st("s_memrealtime s[96:97]")
    prologue(st, name, """
    s_load_dwordx2 s[64+0:64+1], s[0:1], 8
    s_load_dwordx4 s[68:71], s[0:1], 16
    s_load_dwordx2 s[72:73], s[0:1], 32
    s_load_dwordx4 s[76:79], s[0:1], 48
    s_load_dwordx2 s[6:7], s[0:1], 0
    """.replace("s[64+0:64+1]", "s[66:67]"))
    pWQ, pWK, pWV, pWOA, pWQKV, pWOB = 66, 68, 70, 72, 76, 78
    srd_io(st, 6, 2048 * 1024)
    KVB = 0
    xloads, setup, cs, main = phase_kv(st, name, 0, "row", KVB)
    xloads(st)
    vKap, vCol = 160, 161
    st(f"""
    v_lshrrev_b32 v{vKap}, 2, v{vT}
    v_lshlrev_b32 v{vKap}, 3, v{vKap}
    v_and_b32 v{vCol}, 3, v{vT}
    v_add_u32 v{vKap}, v{vKap}, v{vCol}
    v_lshrrev_b32 v{vCol}, 1, v{vG}
    v_lshl_add_u32 v{vKap}, v{vCol}, 2, v{vKap}
    v_and_b32 v{vCol}, 1, v{vG}
    v_lshlrev_b32 v{vCol}, 4, v{vCol}
    s_bitcmp1_b32 s21, 0
    s_cselect_b32 s28, s{pWV}, s{pWK}
    s_cselect_b32 s29, s{pWV+1}, s{pWK+1}
    v_lshl_add_u32 v162, v{vKap}, 5, v{vCol}
    s_lshl_b32 s23, s22, 12
    v_add_u32 v162, s23, v162
    """)
    for q in range(4):
        st.i(f"global_load_dwordx4 {vr(164+4*q,4)}, v162, s[28:29] offset:{q*1024}", vm=f"rw{q}")
    st(f"""
    s_lshl_b32 s46, s2, 2
    s_add_u32 s46, s46, s22
    v_lshlrev_b32 v163, 10, v{vT}
    v_lshl_add_u32 v163, v{vG}, 4, v163
    s_lshr_b32 s27, s46, 3
    s_lshl_b32 s27, s27, 14
    s_and_b32 s28, s46, 7
    s_lshl_b32 s28, s28, 7
    s_add_u32 s27, s27, s28
    """)
    st.i("buffer_load_dwordx4 v[180:183], v163, s[12:15], s27 offen")
    st.i("buffer_load_dwordx4 v[184:187], v163, s[12:15], s27 offen offset:64", vm="xc")
    for i in range(4):
        st(f"""
        s_add_u32 s27, s46, {1024*i}
        s_min_u32 s27, s27, {NFRAG-1}
        s_lshr_b32 s28, s27, 4
        s_and_b32 s29, s27, 15
        s_mov_b32 s80, s{pWQ}
        s_mov_b32 s81, s{pWQ+1}
        s_mov_b32 s82, s28
        s_mov_b32 s83, 1024
        """)
        for T0, reg, stride in ((T_WOA, pWOA, 1024), (T_WOB, pWOB, 1024), (T_WQKV, pWQKV, 3072), (T_WK, pWK, 32), (T_WV, pWV, 32)):
            st(f"""
            s_sub_u32 s84, s28, {T0}
            s_cmp_ge_u32 s28, {T0}
            s_cselect_b32 s80, s{reg}, s80
            s_cselect_b32 s81, s{reg+1}, s81
            s_cselect_b32 s82, s84, s82
            s_cselect_b32 s83, {stride}, s83
            """)
        st(f"""
        s_lshl_b32 s29, s29, 5
        s_lshl_b32 s82, s82, 5
        v_add_u32 v162, s29, v{vKap}
        v_mul_lo_u32 v162, v162, s83
        v_add_u32 v162, v162, v{vCol}
        v_add_u32 v162, s82, v162
        """)
        st.i(f"global_load_dwordx4 {vr(188+4*i,4)}, v162, s[80:81]", vm=f"pw{i}")
    vB0, vB1 = 208, 212
    emit_selectors(st, vB0, vB1, 216)
    setup(st)
    def transpose(e, src, dst):
        e(f"v_mfma_f32_16x16x32_bf16 v[220:223], {vr(src,4)}, {vr(vB0,4)}, 0")
        e(f"v_mfma_f32_16x16x32_bf16 v[224:227], {vr(src,4)}, {vr(vB1,4)}, 0")
        e(f"""
        v_cvt_pk_bf16_f32 v{dst}, v220, v221
        v_cvt_pk_bf16_f32 v{dst+1}, v222, v223
        v_cvt_pk_bf16_f32 v{dst+2}, v224, v225
        v_cvt_pk_bf16_f32 v{dst+3}, v226, v227
        """)
    for q in range(4):
        st.wv(f"rw{q}")
        transpose(st, 164 + 4 * q, W_KV[1] + 4 * q)
    cs(st)
    main(st)
    st(f"s_lshl_b32 s27, s46, 11\ns_add_u32 s27, s27, {B0 + XIN}")
    st("s_waitcnt vmcnt(0)")
    st(f"buffer_store_dwordx4 v[180:183], v{vL16}, s[8:11], s27 offen")
    st(f"buffer_store_dwordx4 v[184:187], v{vL16}, s[8:11], s27 offen offset:1024")
    st(f"""
    s_cmp_ge_u32 s46, {FLAG_BYTES // 1024}
    s_cbranch_scc1 L_nofl_{name}
    v_mov_b32 v204, 0
    v_mov_b32 v205, 0
    v_mov_b32 v206, 0
    v_mov_b32 v207, 0
    s_lshl_b32 s27, s46, 10
    s_add_u32 s27, s27, {FLAGS}
    buffer_store_dwordx4 v[204:207], v{vL16}, s[8:11], s27 offen
    """)
    st.label(f"L_nofl_{name}")
    for i in range(4):
        st(f"""
        s_add_u32 s27, s46, {1024*i}
        s_cmp_ge_u32 s27, {NFRAG}
        s_cbranch_scc1 L_done_{name}
        s_lshl_b32 s27, s27, 10
        """)
        transpose(st, 188 + 4 * i, 164 + 4 * i)
        st(f"buffer_store_dwordx4 {vr(164+4*i,4)}, v{vL16}, s[8:11], s27 offen")
    st.label(f"L_done_{name}")
    st("s_waitcnt vmcnt(0)")
    stamp(st)
    stamp_dump(st, 2)
    return kernel_text(name, st, vgpr=256, accum=256)
INIT_LDS = 86016

LDS_K, LDS_V, VS = 0, 65536, 1056
XB_Q = 74752
SB_Q = XB_Q + 65536
MAIN_LDS = SB_Q + STAT_BYTES
SA, SB, OA_, OB_ = 16, 32, 48, 64
PA, PB, QA, QB, KB, VB = 80, 88, 96, 100, 104, 112
vK, vV0, vV1 = 2, 3, 4

def kv_group(gi, tag):
    out = []
    e = St(); e(f"s_add_u32 s23, s34, {gi*8192}\ns_add_u32 m0, s36, {gi*8192}")
    e.i(f"buffer_load_dwordx4 v{vL16}, s[8:11], s23 offen lds"); out.append(e)
    e = St(); e.i(f"buffer_load_dwordx4 v{vL16}, s[8:11], s23 offen offset:1024 lds"); out.append(e)
    e = St(); e(f"s_add_u32 s23, s35, {gi*8192}\ns_add_u32 m0, s37, {gi*8*VS}")
    e.i(f"buffer_load_dwordx4 v{vL16}, s[8:11], s23 offen lds"); out.append(e)
    e = St(); e(f"s_add_u32 m0, s37, {gi*8*VS + VS - 1024}")
    e.i(f"buffer_load_dwordx4 v{vL16}, s[8:11], s23 offen offset:1024 lds", vm=tag); out.append(e)
    return out

def phase_q(st, name):
    ns = 4
    wave_scalars(st)
    wl = w_loads(W_QA, 0, "wq")
    dma = dma_slots(st, ns, XB_Q, f"s{sXIN}", lambda e, s: e(f"s_add_u32 s23, s26, {s}"), "xq")
    st("s_lshl_b32 s26, s20, 2")
    for e in wl[:4]: st.ext(e)
    mid = St()
    for e in wl[4:]: mid.ext(e)
    lane_consts(mid)
    xa_setup(mid, ns, XB_Q)
    stats_setup(mid, SB_Q)
    acc, vCS = 64, 124
    SGs = [80, 84, 88, 92]; SSs = [104, 108, 112, 116]
    steps = gemm_steps(ns, lambda s: [((acc + 4 * s, True), W_QA, True)], "xq", dma, 3,
                       stats=lambda s: (SGs[s], SSs[s]), fine="q", wtags=["wq3", "wq7", "wq11", "wq15"], pre_mid=mid)
    pa = []
    for s in range(ns):
        e = St(); stats_extract(e, s, SGs[s], SSs[s], vTMP, f"qsw{s}")
        pa += prog(2 + 16 * s + 6, e)
    kv0 = St()
    kv0(f"""
    s_lshl_b32 s36, s22, 11
    s_add_u32 s34, s36, s{sKF}
    s_add_u32 s35, s36, s{sVF}
    s_mul_i32 s37, s22, {2*VS}
    s_add_u32 s37, s37, {LDS_V}
    """)
    body = St()
    body.ext(steps[0]); body.ext(steps[1])
    rest = steps[2:]
    csum = St(); colsum(csum, vCS, W_QA, True)
    body.ext(strip_marks(weave2(rest, [[(ms - 2, it) for ms, it in pa], prog(20, csum)], per=1)))
    st.ext(body)
    st.ext(kv0)
    for e in kv_group(0, "c0"): st.ext(e)
    st("s_waitcnt lgkmcnt(0)\ns_barrier")
    A8 = [16, 24, 32, 40]
    for s in range(ns): stats_read(st, s, A8[s], f"qsr{s}")
    R = [48 + s for s in range(ns)]; N = [52 + s for s in range(ns)]
    st.wl("qsr3")
    maths = [stats_math(A8[s], R[s], N[s]) for s in range(ns)]
    for i in range(len(maths[0])):
        for s in range(ns): st(maths[s][i])
    for s in range(ns):
        st(f"v_mul_f32 v{R[s]}, {f32(CQ)}, v{R[s]}\nv_mul_f32 v{N[s]}, {f32(CQ)}, v{N[s]}")
    for s in range(ns):
        ln_epi(st, acc + 4 * s, [R[s]] * 4, [N[s]] * 4, [vCS + r for r in range(4)], QA + 2 * s, 16 + 4 * s)
    st(f"""
    v_permlane16_swap_b32 v{QA}, v{QA+2}
    v_permlane16_swap_b32 v{QA+1}, v{QA+3}
    v_permlane16_swap_b32 v{QB}, v{QB+2}
    v_permlane16_swap_b32 v{QB+1}, v{QB+3}
    """)

def phase_att(st, name):
    st(f"""
    v_mov_b32 v{vK}, v{vL16}
    v_and_b32 v5, 31, v0
    v_lshrrev_b32 v6, 5, v0
    v_lshlrev_b32 v7, 8, v6
    v_lshl_add_u32 v7, v5, 4, v7
    v_add_u32 v7, {LDS_V}, v7
    v_mov_b32 v16, {LDS_V + 1024 + 16}
    v_mov_b32 v17, {LDS_V + 1024}
    v_and_b32 v18, 27, v5
    v_cmp_eq_u32 s[28:29], 16, v18
    v_cndmask_b32_e64 v16, v16, v17, s[28:29]
    v_cmp_gt_u32 s[28:29], 16, v5
    v_cndmask_b32_e64 v{vV0}, v16, v7, s[28:29]
    v_add_u32 v7, 512, v7
    v_cndmask_b32_e64 v{vV1}, v16, v7, s[28:29]
    v_mov_b32 v16, 0x3f803f80
    v_mov_b32 v17, v16
    v_mov_b32 v18, v16
    v_mov_b32 v19, v16
    v_mul_u32_u24 v20, {VS}, v0
    v_add_u32 v20, {LDS_V + 1024}, v20
    s_cmp_lg_u32 s22, 0
    s_cbranch_scc1 L_noones_{name}
    ds_write_b128 v20, v[16:19]
    v_mov_b32 v16, 0
    v_mov_b32 v17, 0
    v_mov_b32 v18, 0
    v_mov_b32 v19, 0
    ds_write_b128 v20, v[16:19] offset:16
    """)
    st.label(f"L_noones_{name}")
    st(f"""
    v_and_b32 v9, 15, v0
    v_lshrrev_b32 v10, 4, v0
    s_lshl_b32 s23, s21, 11
    s_lshr_b32 s28, s22, 1
    s_lshl_b32 s28, s28, 10
    s_add_u32 s23, s23, s28
    s_and_b32 s28, s22, 1
    s_lshl_b32 s28, s28, 9
    s_add_u32 s23, s23, s28
    v_lshrrev_b32 v11, 1, v10
    v_lshlrev_b32 v11, 8, v11
    v_lshl_add_u32 v11, v9, 4, v11
    v_and_b32 v8, 1, v10
    v_lshl_add_u32 v8, v8, 3, v11
    v_add_u32 v8, s23, v8
    s_lshl_b32 s59, s20, 16
    s_add_u32 s59, s59, s{sXIN}
    """)
    def init_acc(s):
        for r in range(16): s(f"v_mov_b32 v{OA_+r}, 0\nv_mov_b32 v{OB_+r}, 0")
    def rdK(t, base): return f"ds_read_b128 {vr(KB + 4*(t&1),4)}, v{vK} offset:{(t-base)*1024}"
    def rdV(t, base):
        b = VB + 8 * (t & 1)
        return [f"ds_read_b128 {vr(b,4)}, v{vV0} offset:{(t-base)*VS}", f"ds_read_b128 {vr(b+4,4)}, v{vV1} offset:{(t-base)*VS}"]
    def qk(S, t, Q): return f"v_mfma_f32_32x32x16_bf16 {vr(S,16)}, {vr(KB + 4*(t&1),4)}, {vr(Q,4)}, 0"
    def pv(O, t, P):
        b = VB + 8 * (t & 1)
        return [f"v_mfma_f32_32x32x16_bf16 {vr(O,16)}, {vr(b,4)}, {vr(P,4)}, {vr(O,16)}",
                f"v_mfma_f32_32x32x16_bf16 {vr(O,16)}, {vr(b+4,4)}, {vr(P+4,4)}, {vr(O,16)}"]
    def softmax(S, P, M):
        ins = []
        if M is not None:
            for r in range(16): ins.append(f"v_sub_f32 v{S+r}, v{S+r}, v{M}")
        for i in range(8):
            ins.append(f"v_exp_f32 v{S+2*i}, v{S+2*i}")
            ins.append(f"v_exp_f32 v{S+2*i+1}, v{S+2*i+1}")
            if i > 0: ins.append(f"v_cvt_pk_bf16_f32 v{P+i-1}, v{S+2*i-2}, v{S+2*i-1}")
        ins.append(f"v_cvt_pk_bf16_f32 v{P+7}, v{S+14}, v{S+15}")
        return ins
    def mix(s, valu, groups):
        n = len(valu); k = len(groups)
        for j in range(k):
            for x in groups[j]:
                if isinstance(x, St): s.ext(x)
                else: s(x)
            for x in valu[j * n // k:(j + 1) * n // k]: s(x)
    def iteration(s, t, nt, base, extras, safe=None, first=False, rolled=False):
        MA, MB = safe if safe else (None, None)
        ex = list(extras)
        def pop(): return [ex.pop(0)] if ex else []
        g1 = [[qk(SB, t, QB)] + ([rdK(t + 2, base)] if (rolled or t + 2 < nt) else [])]
        pvb = [] if first else pv(OB_, t - 1, PB)
        rv = rdV(t + 1, base) if (rolled or t + 1 < nt) else []
        if pvb:
            g1.append([pvb[0]] + rv[:1]); g1.append([pvb[1]] + rv[1:])
        else:
            g1.append(rv)
        mix(s, softmax(SA, PA, MA), g1)
        pva = pv(OA_, t, PA)
        g2 = [([qk(SA, t + 1, QA)] if (rolled or t + 1 < nt) else []) + pop(), [pva[0]] + pop(), [pva[1], "s_waitcnt lgkmcnt(0)"]]
        mix(s, softmax(SB, PB, MB), g2)
        for x in ex: s.ext(x)
    def first_reads(s):
        s(rdK(0, 0)); s(rdK(1, 0))
        for x in rdV(0, 0): s(x)
        s("s_waitcnt lgkmcnt(0)")
        s(qk(SA, 0, QA))
    init_acc(st)
    st.wv("c0")
    st("s_waitcnt lgkmcnt(0)\ns_barrier")
    first_reads(st)
    stamp(st)
    extras = {t: [] for t in range(64)}
    for gi in range(1, 8): extras[gi - 1] += kv_group(gi, f"kv{gi}")
    pre = []
    pre += w_loads(W_O, T_WOA, "woa")
    for q in range(4):
        e = St()
        if q: e("s_add_u32 s59, s59, 16384")
        e.i(f"buffer_load_dwordx2 {vr(vRES+2*q,2)}, v8, s[8:11], s59 offen"); pre.append(e)
    pre += w_loads(W_Q2, T_WQKV, "wq2")
    pre += w_loads(W_K2, T_WQKV + 32, "wk2")
    pre += w_loads(W_V2, T_WQKV + 64, "wv2")
    pre += kv_loads("wk4")
    if FAST: pre += xcc_issue()
    t = 14
    while pre:
        extras[t] += pre[:2]; pre = pre[2:]; t += 1
    assert t <= 62
    base = 0
    for t in range(64):
        if t == 6: st.wv("kv1"); st("s_barrier")
        if t == 14: st.wv("kv7"); st("s_barrier")
        if t == 32:
            st(f"v_add_u32 v{vK}, {32*1024}, v{vK}\nv_add_u32 v{vV0}, {32*VS}, v{vV0}\nv_add_u32 v{vV1}, {32*VS}, v{vV1}")
            base = 32
        iteration(st, t, 64, base, extras[t], first=(t == 0))
    stamp(st)
    def tail(s):
        for x in pv(OB_, 63, PB): s(x)
    lA, lB = OA_ + 8, OB_ + 8
    tail(st)
    xcc_check(st, name)
    st(f"v_mul_f32 v9, 0, v{OA_}\nv_mul_f32 v10, 0, v{OB_}")
    for r in range(1, 8):
        st(f"v_fma_f32 v9, v{OA_+r}, 0, v9\nv_fma_f32 v10, v{OB_+r}, 0, v10")
    st(f"""
    v_add_f32 v9, v9, v10
    v_min_f32 v10, v{lA}, v{lB}
    v_max_f32 v11, v{lA}, v{lB}
    v_add_f32 v10, v10, v9
    v_add_f32 v11, v11, v9
    v_cmp_u_f32 s[28:29], v{lA}, v{lB}
    v_mov_b32 v20, {f32(2.0**-40)}
    v_cmp_nge_f32 vcc, v10, v20
    s_or_b64 s[28:29], s[28:29], vcc
    v_mov_b32 v20, {f32(2.0**100)}
    v_cmp_nle_f32 vcc, v11, v20
    s_or_b64 s[28:29], s[28:29], vcc
    s_cmp_eq_u64 s[28:29], 0
    s_cbranch_scc1 L_attok_{name}
    """)
    MA, MB = 9, 10
    st(f"""
    v_subrev_u32 v{vK}, {32*1024}, v{vK}
    v_subrev_u32 v{vV0}, {32*VS}, v{vV0}
    v_subrev_u32 v{vV1}, {32*VS}, v{vV1}
    v_mov_b32 v{MA}, {f32(-3.0e38)}
    v_mov_b32 v{MB}, {f32(-3.0e38)}
    v_mov_b32 v11, v{vK}
    s_mov_b32 s44, 0
    """)
    st.label(f"L_max_{name}")
    st(f"""
    ds_read_b128 {vr(KB,4)}, v11
    s_waitcnt lgkmcnt(0)
    v_mfma_f32_32x32x16_bf16 {vr(SA,16)}, {vr(KB,4)}, {vr(QA,4)}, 0
    v_mfma_f32_32x32x16_bf16 {vr(SB,16)}, {vr(KB,4)}, {vr(QB,4)}, 0
    v_add_u32 v11, 1024, v11
    """)
    for r in range(0, 16, 2): st(f"v_max3_f32 v{MA}, v{MA}, v{SA+r}, v{SA+r+1}")
    for r in range(0, 16, 2): st(f"v_max3_f32 v{MB}, v{MB}, v{SB+r}, v{SB+r+1}")
    st(f"""
    s_add_u32 s44, s44, 1
    s_cmp_lt_u32 s44, 64
    s_cbranch_scc1 L_max_{name}
    v_mov_b32 v11, v{MA}
    v_permlane32_swap_b32 v11, v{MA}
    v_max_f32 v{MA}, v{MA}, v11
    v_mov_b32 v11, v{MB}
    v_permlane32_swap_b32 v11, v{MB}
    v_max_f32 v{MB}, v{MB}, v11
    """)
    init_acc(st)
    for r in range(8): st(f"v_mov_b32 v{PB+r}, 0\nv_mov_b32 v{VB+8+r}, 0")
    first_reads(st)
    st("s_mov_b32 s44, 0")
    st.label(f"L_att2_{name}")
    for u in range(2):
        iteration(st, u + 2, 64, 2, [], safe=(MA, MB), rolled=True)
    st(f"""
    v_add_u32 v{vK}, {2*1024}, v{vK}
    v_add_u32 v{vV0}, {2*VS}, v{vV0}
    v_add_u32 v{vV1}, {2*VS}, v{vV1}
    s_add_u32 s44, s44, 1
    s_cmp_lt_u32 s44, 32
    s_cbranch_scc1 L_att2_{name}
    """)
    tail(st)
    st.label(f"L_attok_{name}")
    st(f"""
    s_lshl_b32 s23, s21, 11
    s_lshr_b32 s24, s22, 1
    s_lshl_b32 s24, s24, 10
    s_add_u32 s23, s23, s24
    s_and_b32 s24, s22, 1
    s_lshl_b32 s24, s24, 9
    s_add_u32 s23, s23, s24
    s_lshl_b32 s24, s20, 16
    s_add_u32 s23, s23, s24
    s_add_u32 s23, s23, s{sOA}
    v_and_b32 v9, 15, v0
    v_lshlrev_b32 v9, 4, v9
    v_lshrrev_b32 v10, 5, v0
    v_lshl_add_u32 v9, v10, 3, v9
    v_bfe_u32 v10, v0, 4, 1
    v_lshl_add_u32 v9, v10, 14, v9
    v_rcp_f32 v11, v{lA}
    v_rcp_f32 v12, v{lB}
    s_mov_b64 vcc, s[{sSLOWA}:{sSLOWA+1}]
    """)
    for qb, O, rc in ((0, OA_, 11), (1, OB_, 12)):
        for r in range(8): st(f"v_mul_f32 v{O+r}, v{O+r}, v{rc}")
        p = 16 + 4 * qb
        st(f"""
        v_cvt_pk_bf16_f32 v{p}, v{O}, v{O+1}
        v_cvt_pk_bf16_f32 v{p+1}, v{O+2}, v{O+3}
        v_cvt_pk_bf16_f32 v{p+2}, v{O+4}, v{O+5}
        v_cvt_pk_bf16_f32 v{p+3}, v{O+6}, v{O+7}
        """)
        dstore(st, f"buffer_store_dwordx2 {vr(p,2)}, v9, s[8:11], s23 offen")
        dstore(st, f"buffer_store_dwordx2 {vr(p+2,2)}, v9, s[8:11], s23 offen offset:256")
        if qb == 0: st("s_add_u32 s23, s23, 32768")

def phase_p13(st, name, which):
    ns = 4
    slow = sSLOWB if which == 1 else sSLOWA
    lane_consts(st)
    xa_setup(st, ns, 0)
    st("s_lshl_b32 s26, s20, 2")
    tag = f"x{which}"
    vActA, vRowA = 44, 45
    act_addr(st, vActA, vTMP)
    acc = 64
    for s in range(ns):
        a = acc + 4 * s
        st(f"""
        v_lshlrev_b32 v{a}, 16, v{vRES+2*s}
        v_and_b32 v{a+1}, 0xffff0000, v{vRES+2*s}
        v_lshlrev_b32 v{a+2}, 16, v{vRES+2*s+1}
        v_and_b32 v{a+3}, 0xffff0000, v{vRES+2*s+1}
        """)
    if which == 3:
        row_addr(st, vRowA)
        st(f"""
        s_cmp_eq_u32 s{sL}, 0
        s_cselect_b32 s{SRD_OUT}, s8, s12
        s_cselect_b32 s{SRD_OUT+1}, s9, s13
        s_cselect_b32 s{SRD_OUT+2}, s10, s14
        s_mov_b32 s{SRD_OUT+3}, 0x00020000
        s_cselect_b32 s46, {B0 + BS + XIN}, 0
        s_cselect_b64 s[28:29], -1, 0
        v_cndmask_b32_e64 v{vActA}, v{vRowA}, v{vActA}, s[28:29]
        """)
    dma = dma_slots(st, ns, 0, f"s{sOA if which == 1 else sOB}", lambda e, s: e(f"s_add_u32 s23, s26, {s}"), tag)
    stamp(st, f"p{which}")
    sync_wait(st, 0 if which == 1 else 2, name, slow=slow)
    stamp(st, f"p{which}")
    steps = gemm_steps(ns, lambda s: [((acc + 4 * s, False), W_O, True)], tag, dma, 3, fine=f"p{which}")
    def epi(s):
        e = St()
        a = acc + 4 * s
        p = (vRES if which == 1 else 88) + 2 * s
        e(f"""
        v_cvt_pk_bf16_f32 v{p}, v{a}, v{a+1}
        v_cvt_pk_bf16_f32 v{p+1}, v{a+2}, v{a+3}
        s_add_u32 s47, s26, {s}
        s_lshl_b32 s47, s47, 14
        """)
        if which == 1:
            e(f"s_add_u32 s47, s47, s{sX1}")
            dstore(e, f"buffer_store_dwordx2 {vr(p,2)}, v{vActA}, s[8:11], s47 offen")
        else:
            e("s_add_u32 s47, s47, s46")
            dstore(e, f"buffer_store_dwordx2 {vr(p,2)}, v{vActA}, s[{SRD_OUT}:{SRD_OUT+3}], s47 offen")
        return e
    st.ext(steps[0]); st.ext(steps[1])
    pb = []
    for s in range(ns - 1): pb += prog(16 * (s + 1) + 3, epi(s))
    st.ext(strip_marks(weave2(steps[2:], [pb], per=2)))
    st.ext(epi(ns - 1))
    stamp(st, f"p{which}")

def phase_p2(st, name):
    ns = 5
    SBASE = ns * 16384
    lane_consts(st)
    xa_setup(st, ns, 0)
    stats_setup(st, SBASE)
    Wq, Wk, Wv = W_Q2, W_K2, W_V2
    st("s_lshl_b32 s26, s20, 2\ns_sub_u32 s26, s26, 1")
    vActA = 96
    act_addr(st, vActA, vTMP)
    vMo, vMp, vMp0 = 100, 104, 108
    st(f"v_mov_b32 v{vTMP+2}, {f32(-1.0e30)}")
    for r in range(4):
        st(f"""
        v_lshl_add_u32 v{vTMP}, v{vG}, 2, {r}
        v_sub_u32 v{vTMP}, v{vT}, v{vTMP}
        v_and_b32 v{vTMP+1}, 0x80000001, v{vTMP}
        v_cmp_eq_u32 s[28:29], 0, v{vTMP+1}
        v_cndmask_b32_e64 v{vMo+r}, v{vTMP+2}, 0, s[28:29]
        v_cmp_gt_i32 s[38:39], -1, v{vTMP}
        v_and_b32 v{vTMP+1}, 1, v{vTMP}
        v_cmp_eq_u32 s[28:29], 0, v{vTMP+1}
        s_and_b64 s[28:29], s[28:29], s[38:39]
        v_cndmask_b32_e64 v{vMp+r}, v{vTMP+2}, 0, s[28:29]
        """)
    st("s_cmp_eq_u32 s20, 0\ns_cselect_b64 s[28:29], -1, 0")
    for r in range(4): st(f"v_cndmask_b32_e64 v{vMp0+r}, v{vMp+r}, v{vTMP+2}, s[28:29]")
    vCSq, vCSk, vCSv = 112, 116, 120
    def tile_of_slot(e, s):
        if s == 0: e("s_max_i32 s23, s26, 0")
        else: e(f"s_add_u32 s23, s26, {s}")
    dma = dma_slots(st, ns, 0, f"s{sX1}", tile_of_slot, "x2")
    csum = St()
    if "cslate" not in OPT:
        colsum(st, vCSq, Wq, True); colsum(st, vCSk, Wk, True); colsum(st, vCSv, Wv, False)
    stamp(st, "p2")
    sync_wait(st, 1, name, halo=True, slow=sSLOWA)
    stamp(st, "p2")
    wob = w_loads(W_O, T_WOB, "wob")
    accq, acck, accv = 64, 68, 72
    def A(base, s): return base + 12 * (s & 1)
    vSG, vSS = 88, 92
    def chains(s):
        c = []
        if s > 0: c.append(((A(accq, s), True), Wq, True))
        c.append(((A(acck, s), True), Wk, True))
        c.append(((A(accv, s), True), Wv, False))
        return c
    steps = gemm_steps(ns, chains, "x2", dma, 2, stats=lambda s: (vSG, vSS), fine="p2")
    for jj in range(16): steps[2 + 16 * 4 + jj].ext(wob[jj])
    last = steps[2 + 16 * 4 + 8]
    last.it.append(("mark", "bar4", None, None)); last("s_barrier")
    vR, vN = 124, 125
    vRq, vNq = 128, 129
    vR4, vN4 = 132, 136
    pq, pk, pv = 140, 142, 148
    tmp = 56
    S, P, MX, T2, PO = 158, 132, 97, 98, 146
    O, L = S, S + 4
    def statsA(s):
        b = 16 * s
        p = []
        e = St(); stats_extract(e, s, vSG, vSS, vTMP, f"sw{s}"); e.wl(f"sw{s}")
        p += prog(b + 5, e); p.append((b + 5, ("before", f"bar{s}", None, None)))
        e = St(); stats_read(e, s, vTMP, f"sr{s}"); p += prog(b + 9, e)
        e = St(); e.wl(f"sr{s}")
        R, N = vR + 2 * (s & 1), vN + 2 * (s & 1)
        for x in stats_math(vTMP, R, N): e(x)
        e.i(f"ds_write_b32 v{vSTA}, v{R}")
        e.i(f"ds_write_b32 v{vSTA}, v{N} offset:64", lds=f"pw{s}")
        p += prog(b + 12, e)
        p.append((b + 12, ("before", f"sl{s}", None, None)))
        return p
    def epi(s):
        e = St()
        R, N = vR + 2 * (s & 1), vN + 2 * (s & 1)
        e.wl(f"pw{s}")
        e.i(f"ds_read_b128 {vr(vR4,4)}, v{vPRR}")
        e.i(f"ds_read_b128 {vr(vN4,4)}, v{vPRR} offset:64", lds=f"pr{s}")
        ln_epi(e, A(acck, s), [R]*4, [N]*4, [vCSk+r for r in range(4)], pk + 2 * (s & 1), tmp)
        if s > 0:
            e(f"v_mul_f32 v{vRq}, {f32(CQ)}, v{R}\nv_mul_f32 v{vNq}, {f32(CQ)}, v{N}")
            ln_epi(e, A(accq, s), [vRq]*4, [vNq]*4, [vCSq+r for r in range(4)], pq, tmp)
            kp = pk + 2 * ((s - 1) & 1); ko = pk + 2 * (s & 1)
            mp = vMp0 if s == 1 else vMp
            e(f"v_mfma_f32_16x16x16_bf16 {vr(S,4)}, {vr(kp,2)}, {vr(pq,2)}, {vr(mp,4)}")
            e(f"v_mfma_f32_16x16x16_bf16 {vr(S+4,4)}, {vr(ko,2)}, {vr(pq,2)}, {vr(vMo,4)}")
        e.wl(f"pr{s}")
        ln_epi(e, A(accv, s), [vR4+r for r in range(4)], [vN4+r for r in range(4)], [vCSv]*4, pv + 2 * s, tmp)
        if s == 0: return e
        e(f"""
        v_max3_f32 v{MX}, v{S}, v{S+1}, v{S+2}
        v_max3_f32 v{T2}, v{S+3}, v{S+4}, v{S+5}
        v_max3_f32 v{MX}, v{MX}, v{S+6}, v{S+7}
        v_max_f32 v{MX}, v{MX}, v{T2}
        v_mov_b32 v{T2}, v{MX}
        v_permlane32_swap_b32 v{T2}, v{MX}
        v_max_f32 v{MX}, v{MX}, v{T2}
        v_mov_b32 v{T2}, v{MX}
        v_permlane16_swap_b32 v{T2}, v{MX}
        v_max_f32 v{MX}, v{MX}, v{T2}
        """)
        for r in range(8): e(f"v_sub_f32 v{S+r}, v{S+r}, v{MX}")
        for r in range(8): e(f"v_exp_f32 v{S+r}, v{S+r}")
        for r in range(4): e(f"v_cvt_pk_bf16_f32 v{P+r}, v{S+2*r}, v{S+2*r+1}")
        e(f"v_mfma_f32_16x16x32_bf16 {vr(O,4)}, {vr(pv+2*(s-1),4)}, {vr(P,4)}, 0")
        e(f"v_mfma_f32_16x16x32_bf16 {vr(L,4)}, {vr(vONES,4)}, {vr(P,4)}, 0")
        e.it.append(("gap", 4, None, None))
        e(f"v_rcp_f32 v{L}, v{L}")
        e(f"s_add_u32 s47, s26, {s}\ns_lshl_b32 s47, s47, 14\ns_add_u32 s47, s47, s{sOB}")
        for r in range(4): e(f"v_mul_f32 v{O+r}, v{O+r}, v{L}")
        e(f"v_cvt_pk_bf16_f32 v{PO}, v{O}, v{O+1}\nv_cvt_pk_bf16_f32 v{PO+1}, v{O+2}, v{O+3}")
        dstore(e, f"buffer_store_dwordx2 {vr(PO,2)}, v{vActA}, s[8:11], s47 offen")
        return e
    st.ext(steps[0]); st.ext(steps[1])
    main = steps[2:]
    for s in range(ns - 1):
        main[16 * (s + 1)].it.insert(0, ("mark", f"sl{s}", None, None))
    pa, pb = [], []
    for s in range(ns): pa += statsA(s)
    for s in range(ns - 1):
        pb += prog(16 * (s + 1) + 1, epi(s)); pb.append((16 * (s + 1) + 1, ("before", f"ep{s}", None, None)))
    for s in range(ns - 2):
        main[16 * (s + 2)].it.insert(0, ("mark", f"ep{s}", None, None))
    st.ext(strip_marks(weave2(main, [pa, pb], per=2)))
    st.ext(strip_marks(epi(ns - 1)))

def gen_main(names):
    body_name = names[0]
    st = St()
    st(f"s_mov_b32 s{sL}, 0")
    st.label("L_main_common")
    NST[0] = 0
    stamp(st)
    if INSTR: st("s_memrealtime s[96:97]")
    prologue(st, body_name, "s_load_dwordx2 s[6:7], s[0:1], 64")
    srd_io(st, 6, 2048 * 1024)
    st(f"""
    s_mul_i32 s23, s{sL}, {KVS}
    s_add_u32 s{sKF}, s23, {KF0}
    s_add_u32 s{sVF}, s23, {VF0}
    s_mul_i32 s23, s{sL}, {BS}
    s_add_u32 s{sXIN}, s23, {B0 + XIN}
    s_add_u32 s{sOA}, s23, {B0 + OA}
    s_add_u32 s{sX1}, s23, {B0 + X1}
    s_add_u32 s{sOB}, s23, {B0 + OB}
    s_lshl_b32 s23, s{sL}, 14
    s_add_u32 s{sFLAG}, s23, {FLAGS}
    """)
    phase_q(st, body_name)
    xcc_publish(st, body_name)
    stamp(st)
    phase_att(st, body_name)
    stamp(st)
    sync_publish(st, 0, body_name, sSLOWA)
    phase_p13(st, body_name + "_1", 1)
    stamp(st)
    sync_publish(st, 1, body_name, sSLOWB)
    phase_p2(st, body_name + "_2")
    stamp(st)
    sync_publish(st, 2, body_name, sSLOWA)
    phase_p13(st, body_name + "_3", 3)
    stamp(st)
    st(f"s_cmp_lg_u32 s{sL}, 0\ns_cbranch_scc1 L_fin_{body_name}")
    sync_publish(st, 3, body_name, sSLOWA)
    xloads, setup, cs, main = phase_kv(st, body_name + "_4", 1, "act", 0)
    setup(st); cs(st)
    sync_wait(st, 3, body_name + "_4")
    xloads(st)
    main(st)
    st.label(f"L_fin_{body_name}")
    st("s_waitcnt vmcnt(0)")
    stamp(st)
    stamp_dump(st, f"s{sL}")
    txt = kernel_text(body_name, st)
    n2 = names[1]
    desc = txt[txt.index(".section .rodata"):].replace(body_name, n2)
    txt += f""".text
.globl {n2}
.p2align 8
.type {n2},@function
{n2}:
    s_mov_b32 s{sL}, 1
    s_branch L_main_common
""" + desc
    return txt

def build(path):
    ks = [("init_kernel", INIT_LDS), ("main0_kernel", MAIN_LDS), ("main1_kernel", MAIN_LDS)]
    hdr = open("cdna_kernels/" + NAME + ".s.ref").read().split("; Override launch geometry")[0]
    out = hdr
    for n, lds in ks:
        out += f"; @launch kernel={n} grid=(256,1,1) block=(256,1,1) lds={lds}\n"
    out += '.amdgcn_target "amdgcn-amd-amdhsa--gfx950"\n'
    out += gen_init("init_kernel")
    out += gen_main(("main0_kernel", "main1_kernel"))
    open(path, "w").write(out)

if __name__ == "__main__":
    build(sys.argv[1] if len(sys.argv) > 1 else "stage4.s")
```

```python
import sys, os
sys.path.insert(0, os.path.dirname(os.path.abspath(__file__)))
import gen
from gen import (St, resolve, weave, vr, ar, rr, f32, CQ, srd_io, emit_selectors,
                 T_WQ, T_WOA, T_WOB, T_WQKV, T_WK, T_WV, NFRAG, NAME, WS_SIZE)
from asmlib import fix_hazards
INSTR = os.environ.get("INSTR")
OPT = os.environ.get("OPT", "")
FAST = "nofast" not in OPT

KF0, VF0, KVS = 0x310000, 0x320000, 0x20000
B0, BS = 0x800000, 0x800000
XIN, OA, X1, OB = 0, 0x200000, 0x400000, 0x600000
FLAGS = 0x1900000
XCCT = FLAGS + 0x8000
FLAG_BYTES = 0xA000
TS_OFF = 0x1800000
S_G, S_M, S_W = 20, 21, 22
sROT = 16
sSLOWA, sSLOWB = 40, 42
sSPIN = 45
sKF, sVF, sXIN, sOA, sX1, sOB, sL, sFLAG = 48, 49, 51, 52, 53, 54, 55, 56
sWT = 57
SRD_OUT = 60
W_Q2, W_K2, W_V2, W_O = ("a", 0), ("a", 64), ("a", 128), ("a", 192)
W_QA = ("a", 0)
W_KV = ("v", 230)
vRES = 246
vL16, vXA, vT, vG, vONES, vRING, RING = 1, 2, 6, 7, 8, 12, 8
vSTA, vSTW, vSTR, vPRR, vTMP = 44, 45, 46, 47, 48
vFLO, vFLP = 62, 63

NST = [0]
def stamp(st, fine=None):
    if not INSTR: return
    if INSTR == "1":
        if fine: return
        k = NST[0]; NST[0] += 1
        st(f"s_memtime s[{64+2*k}:{65+2*k}]\ns_waitcnt lgkmcnt(0)")
    else:
        if fine != INSTR and not (fine is None and NST[0] == 0): return
        k = NST[0]; NST[0] += 1
        assert k < 16
        st(f"s_memtime s[{64+2*k}:{65+2*k}]")
def stamp_dump(st, slot):
    if not INSTR: return
    st("s_memrealtime s[98:99]\ns_waitcnt lgkmcnt(0)")
    for k in range(16): st(f"v_mov_b32 v{16+k}, s{64+2*k if k < NST[0] else 98}")
    st(f"""
    v_mov_b32 v31, s98
    v_mov_b32 v30, s96
    s_lshl_b32 s23, s2, 2
    s_add_u32 s23, s23, s22
    s_lshl_b32 s23, s23, 6
    s_mul_i32 s24, {slot}, 65536
    s_add_u32 s23, s23, s24
    s_add_u32 s23, s23, {TS_OFF}
    v_mov_b32 v8, 0
    s_mov_b64 exec, 1
    buffer_store_dwordx4 v[16:19], v8, s[8:11], s23 offen
    buffer_store_dwordx4 v[20:23], v8, s[8:11], s23 offen offset:16
    buffer_store_dwordx4 v[24:27], v8, s[8:11], s23 offen offset:32
    buffer_store_dwordx4 v[28:31], v8, s[8:11], s23 offen offset:48
    s_waitcnt vmcnt(0)
    s_mov_b64 exec, -1
    """)

def prologue(st, name, extra_loads=""):
    st(f"""
    s_cmp_ge_u32 s2, 256
    s_cbranch_scc1 L_end_{name}
    s_load_dwordx2 s[4:5], s[0:1], 80
    {extra_loads}
    v_lshrrev_b32 v1, 6, v0
    v_and_b32 v0, 63, v0
    s_and_b32 s20, s2, 7
    s_lshr_b32 s21, s2, 3
    s_lshl_b32 s20, s20, 2
    s_lshr_b32 s23, s21, 3
    s_add_u32 s20, s20, s23
    s_and_b32 s21, s21, 7
    v_readfirstlane_b32 s22, v1
    v_lshlrev_b32 v{vL16}, 4, v0
    s_waitcnt lgkmcnt(0)
    s_mov_b32 s8, s4
    s_mov_b32 s9, s5
    s_mov_b32 s10, {WS_SIZE}
    s_mov_b32 s11, 0x00020000
    """)

OUTLINE = []
def dstore(e, text):
    if not FAST:
        e.i(text + " sc1"); return
    k = len(OUTLINE)
    e.it.append(("grp", [f"s_cbranch_vccnz L_slow_{k}", text, f"L_back_{k}:"], None, None))
    OUTLINE.append(text + " sc1")

def expand_groups(st):
    o = St()
    for it in st.it:
        if it[0] == "grp":
            for l in it[1]: o.it.append(("i", l, None, None))
        else: o.it.append(it)
    return o

def kernel_text(name, st, vgpr=512, accum=256, sgpr=100):
    lines = resolve(expand_groups(st))
    lines.append("s_endpgm")
    for k, t in enumerate(OUTLINE):
        lines += [f"L_slow_{k}:", t, f"s_branch L_back_{k}"]
    OUTLINE.clear()
    lines, nins = fix_hazards(lines)
    body = "\n".join(("    " + l) if not l.endswith(":") else l for l in lines)
    return f""".text
.globl {name}
.p2align 8
.type {name},@function
{name}:
{body}
L_end_{name}:
    s_endpgm
.section .rodata,"a"
.p2align 6
.amdhsa_kernel {name}
  .amdhsa_next_free_vgpr {vgpr}
  .amdhsa_next_free_sgpr {sgpr}
  .amdhsa_accum_offset {accum}
  .amdhsa_group_segment_fixed_size 0
  .amdhsa_kernarg_size 88
  .amdhsa_user_sgpr_count 2
  .amdhsa_user_sgpr_kernarg_segment_ptr 1
  .amdhsa_system_sgpr_workgroup_id_x 1
  .amdhsa_float_denorm_mode_32 3
.end_amdhsa_kernel
"""

def lane_consts(st):
    st(f"v_and_b32 v{vT}, 15, v0\nv_lshrrev_b32 v{vG}, 4, v0")
    for q in range(4): st(f"v_mov_b32 v{vONES+q}, 0x3f803f80")

def xa_setup(st, ns, xb):
    for jg in range(4):
        st(f"""
        s_add_u32 s23, s22, {jg}
        s_and_b32 s23, s23, 3
        s_mul_i32 s23, s23, {ns*4096}
        s_add_u32 s23, s23, {xb}
        v_add_u32 v{vXA+jg}, s23, v{vL16}
        """)

def wave_scalars(st):
    for jg in range(4):
        st(f"""
        s_add_u32 s23, s22, {jg}
        s_and_b32 s23, s23, 3
        s_lshl_b32 s{sROT+jg}, s23, 12
        """)
    st(f"""
    s_lshl_b32 s{sWT}, s21, 2
    s_add_u32 s{sWT}, s{sWT}, s22
    s_lshl_b32 s{sWT}, s{sWT}, 14
    """)

def w_loads(dst, T0, tag):
    out = []
    for jg in range(4):
        for q in range(4):
            e = St()
            if q == 0:
                e(f"s_add_u32 s58, s{sWT}, s{sROT+jg}")
                if T0: e(f"s_add_u32 s58, s58, {T0*16384}")
            b = dst[1] + 4 * (4 * jg + q)
            e.i(f"buffer_load_dwordx4 {rr((dst[0], b), 4)}, v{vL16}, s[8:11], s58 offen offset:{q*1024}", vm=f"{tag}{4*jg+q}")
            out.append(e)
    return out

def kv_loads(tag):
    out = []
    for q in range(4):
        e = St()
        if q == 0:
            e(f"""
            s_and_b32 s58, s21, 1
            s_add_u32 s58, s58, {T_WK}
            s_lshl_b32 s58, s58, 14
            s_add_u32 s58, s58, s{sROT}
            """)
        e.i(f"buffer_load_dwordx4 {rr((W_KV[0], W_KV[1] + 4*q), 4)}, v{vL16}, s[8:11], s58 offen offset:{q*1024}", vm=f"{tag}{q}")
        out.append(e)
    return out

def act_addr(st, vdst, tmp):
    st(f"""
    s_lshl_b32 s23, s21, 11
    s_lshr_b32 s28, s22, 1
    s_lshl_b32 s28, s28, 10
    s_add_u32 s23, s23, s28
    s_and_b32 s28, s22, 1
    s_lshl_b32 s28, s28, 9
    s_add_u32 s23, s23, s28
    v_lshrrev_b32 v{tmp}, 1, v{vG}
    v_lshlrev_b32 v{tmp}, 8, v{tmp}
    v_lshl_add_u32 v{tmp}, v{vT}, 4, v{tmp}
    v_and_b32 v{vdst}, 1, v{vG}
    v_lshl_add_u32 v{vdst}, v{vdst}, 3, v{tmp}
    v_add_u32 v{vdst}, s23, v{vdst}
    """)

def row_addr(st, vdst):
    st(f"""
    s_lshl_b32 s23, s21, 7
    s_lshl_b32 s28, s22, 5
    s_add_u32 s23, s23, s28
    v_lshlrev_b32 v{vdst}, 10, v{vT}
    v_lshl_add_u32 v{vdst}, v{vG}, 3, v{vdst}
    v_add_u32 v{vdst}, s23, v{vdst}
    """)

def colsum(st, dst, W, w_is_A, n=16):
    for jj in range(n):
        wreg = rr((W[0], W[1] + 4 * jj), 4)
        c = "0" if jj == 0 else vr(dst, 4)
        if w_is_A: st(f"v_mfma_f32_16x16x32_bf16 {vr(dst,4)}, {wreg}, {vr(vONES,4)}, {c}")
        else:      st(f"v_mfma_f32_16x16x32_bf16 {vr(dst,4)}, {vr(vONES,4)}, {wreg}, {c}")

def stats_setup(st, sb):
    pb = sb + 2560; dummy = pb + 512
    st(f"""
    v_lshrrev_b32 v{vTMP}, 2, v{vT}
    v_cmp_eq_u32 s[30:31], v{vTMP}, v{vG}
    v_lshlrev_b32 v{vSTW}, 5, v{vT}
    s_lshl_b32 s23, s22, 2
    s_add_u32 s23, s23, {sb}
    v_add_u32 v{vSTW}, s23, v{vSTW}
    v_mov_b32 v{vTMP}, {dummy}
    v_cndmask_b32_e64 v{vSTW}, v{vTMP}, v{vSTW}, s[30:31]
    v_lshlrev_b32 v{vSTR}, 5, v{vT}
    v_add_u32 v{vSTR}, {sb}, v{vSTR}
    s_lshl_b32 s23, s22, 7
    s_add_u32 s23, s23, {pb}
    v_lshlrev_b32 v{vSTA}, 2, v{vT}
    v_add_u32 v{vSTA}, s23, v{vSTA}
    v_lshlrev_b32 v{vPRR}, 4, v{vG}
    v_add_u32 v{vPRR}, s23, v{vPRR}
    s_mov_b32 s32, 0x22222222
    s_mov_b32 s33, 0x22222222
    s_mov_b32 s34, 0x44444444
    s_mov_b32 s35, 0x44444444
    s_mov_b32 s36, 0x88888888
    s_mov_b32 s37, 0x88888888
    """)
STAT_BYTES = 2560 + 512 + 2600

def stats_extract(e, s, vSG, vSS, t, tag):
    e(f"""
    v_cndmask_b32_e64 v{t}, v{vSG}, v{vSG+1}, s[32:33]
    v_cndmask_b32_e64 v{t}, v{t}, v{vSG+2}, s[34:35]
    v_cndmask_b32_e64 v{t}, v{t}, v{vSG+3}, s[36:37]
    """)
    e.i(f"ds_write_b32 v{vSTW}, v{vSS} offset:{s*512}")
    e.i(f"ds_write_b32 v{vSTW}, v{t} offset:{s*512 + 16}", lds=tag)

def stats_read(e, s, a, tag):
    e.i(f"ds_read_b128 {vr(a,4)}, v{vSTR} offset:{s*512}")
    e.i(f"ds_read_b128 {vr(a+4,4)}, v{vSTR} offset:{s*512+16}", lds=tag)

def stats_math(a, vR, vN):
    return f"""
    v_add_f32 v{a}, v{a}, v{a+1}
    v_add_f32 v{a+4}, v{a+4}, v{a+5}
    v_add_f32 v{a+2}, v{a+2}, v{a+3}
    v_add_f32 v{a+6}, v{a+6}, v{a+7}
    v_add_f32 v{a}, v{a}, v{a+2}
    v_add_f32 v{a+4}, v{a+4}, v{a+6}
    v_mul_f32 v{a}, {f32(1.0/512)}, v{a}
    v_mul_f32 v{a+4}, {f32(1.0/512)}, v{a+4}
    v_fma_f32 v{a+4}, -v{a}, v{a}, v{a+4}
    v_max_f32 v{a+4}, 0, v{a+4}
    v_add_f32 v{a+4}, {f32(1e-5)}, v{a+4}
    v_rsq_f32 v{vR}, v{a+4}
    v_sub_f32 v{a}, 0, v{a}
    v_mul_f32 v{vN}, v{a}, v{vR}
    """.strip().split("\n")

def ln_epi(e, acc, R, N, CS, pk, tmp):
    for r in range(4): e(f"v_mul_f32 v{tmp+r}, v{N[r]}, v{CS[r]}")
    for r in range(4): e(f"v_fma_f32 v{tmp+r}, v{acc+r}, v{R[r]}, v{tmp+r}")
    e(f"v_cvt_pk_bf16_f32 v{pk}, v{tmp}, v{tmp+1}")
    e(f"v_cvt_pk_bf16_f32 v{pk+1}, v{tmp+2}, v{tmp+3}")

def sync_publish(st, e, name, slow):
    st(f"""
    s_waitcnt vmcnt(0)
    s_barrier
    s_cmp_lg_u32 s22, 0
    s_cbranch_scc1 L_np{e}_{name}
    s_lshl_b32 s23, s20, 7
    s_lshl_b32 s28, s21, 2
    s_add_u32 s23, s23, s28
    s_add_u32 s23, s23, s{sFLAG}
    s_add_u32 s23, s23, {e*0x1000}
    v_mov_b32 v{vFLO}, 1
    v_mov_b32 v{vFLP}, 0
    s_mov_b64 vcc, s[{slow}:{slow+1}]
    s_mov_b64 exec, 1
    """)
    dstore(st, f"buffer_store_dword v{vFLO}, v{vFLP}, s[8:11], s23 offen")
    st("s_mov_b64 exec, -1")
    st.label(f"L_np{e}_{name}")

def sync_wait(st, e, name, halo=False, slow=None):
    st(f"""
    v_and_b32 v{vFLP}, 7, v0
    v_lshlrev_b32 v{vFLP}, 2, v{vFLP}
    s_lshl_b32 s23, s20, 7
    """)
    if halo:
        st(f"""
        s_sub_u32 s28, s20, 1
        s_max_i32 s28, s28, 0
        s_lshl_b32 s28, s28, 7
        s_sub_u32 s28, s28, s23
        v_bfe_u32 v{vFLO}, v0, 3, 1
        v_mul_lo_u32 v{vFLO}, v{vFLO}, s28
        v_add_u32 v{vFLP}, v{vFLP}, v{vFLO}
        """)
    st(f"""
    v_add_u32 v{vFLP}, s23, v{vFLP}
    s_add_u32 s23, s{sFLAG}, {e*0x1000}
    s_mov_b32 s{sSPIN}, 0x10000
    """)
    st.label(f"L_poll{e}_{name}")
    st(f"""
    buffer_load_dword v{vFLO}, v{vFLP}, s[8:11], s23 offen sc1
    s_waitcnt vmcnt(0)
    v_cmp_ne_u32 vcc, 1, v{vFLO}
    s_sub_u32 s{sSPIN}, s{sSPIN}, 1
    s_cmp_eq_u32 s{sSPIN}, 0
    s_cbranch_scc1 L_pdone{e}_{name}
    s_cbranch_vccnz L_poll{e}_{name}
    """)
    st.label(f"L_pdone{e}_{name}")
    if slow is not None: st(f"s_mov_b64 vcc, s[{slow}:{slow+1}]")
    stamp(st)

def xcc_publish(st, name):
    if not FAST: return
    st(f"""
    s_getreg_b32 s39, hwreg(HW_REG_XCC_ID)
    s_and_b32 s39, s39, 15
    s_add_u32 s39, s39, 1
    s_cmp_lg_u32 s22, 0
    s_cbranch_scc1 L_nx_{name}
    s_lshl_b32 s23, s20, 5
    s_lshl_b32 s28, s21, 2
    s_add_u32 s23, s23, s28
    s_lshl_b32 s28, s{sL}, 12
    s_add_u32 s23, s23, s28
    s_add_u32 s23, s23, {XCCT}
    v_mov_b32 v{vFLO}, s39
    v_mov_b32 v{vFLP}, 0
    s_mov_b64 exec, 1
    buffer_store_dword v{vFLO}, v{vFLP}, s[8:11], s23 offen sc1
    s_mov_b64 exec, -1
    """)
    st.label(f"L_nx_{name}")

vXCA, vXCV = 254, 255
def xcc_issue():
    e = St()
    e(f"""
    v_and_b32 v{vXCA}, 7, v0
    v_lshlrev_b32 v{vXCA}, 2, v{vXCA}
    s_add_u32 s28, s20, 1
    s_min_u32 s28, s28, 31
    s_sub_u32 s28, s28, s20
    s_lshl_b32 s28, s28, 5
    v_bfe_u32 v{vXCV}, v0, 3, 1
    v_mul_lo_u32 v{vXCV}, v{vXCV}, s28
    v_add_u32 v{vXCA}, v{vXCA}, v{vXCV}
    s_lshl_b32 s28, s20, 5
    v_add_u32 v{vXCA}, s28, v{vXCA}
    s_lshl_b32 s38, s{sL}, 12
    s_add_u32 s38, s38, {XCCT}
    """)
    e2 = St()
    e2.i(f"buffer_load_dword v{vXCV}, v{vXCA}, s[8:11], s38 offen sc1", vm="xcc")
    return [e, e2]

def xcc_check(st, name):
    if not FAST:
        st(f"s_mov_b64 s[{sSLOWA}:{sSLOWA+1}], -1\ns_mov_b64 s[{sSLOWB}:{sSLOWB+1}], -1"); return
    st.wv("xcc")
    st(f"""
    v_cmp_eq_u32 vcc, 0, v{vXCV}
    s_mov_b32 s{sSPIN}, 0x10000
    s_nop 0
    s_cbranch_vccz L_xd_{name}
    """)
    st.label(f"L_xp_{name}")
    st(f"""
    buffer_load_dword v{vXCV}, v{vXCA}, s[8:11], s38 offen sc1
    s_waitcnt vmcnt(0)
    v_cmp_eq_u32 vcc, 0, v{vXCV}
    s_sub_u32 s{sSPIN}, s{sSPIN}, 1
    s_cmp_eq_u32 s{sSPIN}, 0
    s_cbranch_scc1 L_xd_{name}
    s_cbranch_vccnz L_xp_{name}
    """)
    st.label(f"L_xd_{name}")
    st(f"""
    v_cmp_ne_u32 s[{sSLOWB}:{sSLOWB+1}], s39, v{vXCV}
    s_nop 1
    s_and_b32 s{sSLOWA}, s{sSLOWB}, 0xff
    s_mov_b32 s{sSLOWA+1}, 0
    """)
    if "forceslow" in OPT:
        st(f"s_mov_b64 s[{sSLOWA}:{sSLOWA+1}], -1\ns_mov_b64 s[{sSLOWB}:{sSLOWB+1}], -1")

def dma_slots(st, ns, xb, sSrc, tile_of_slot, tag):
    st(f"""
    s_mul_i32 s25, s22, {ns*4096}
    s_add_u32 s25, s25, {xb}
    s_lshl_b32 s24, s22, 12
    s_add_u32 s24, s24, {sSrc}
    """)
    slots = []
    for s in range(ns):
        L = []
        for q in range(4):
            e = St()
            if q == 0:
                tile_of_slot(e, s)
                e(f"s_lshl_b32 s23, s23, 14\ns_add_u32 s27, s23, s24\ns_add_u32 m0, s25, {s*4096}")
            e.i(f"buffer_load_dwordx4 v{vL16}, s[8:11], s27 offen offset:{q*1024} sc1 lds", vm=f"{tag}{s}_{q}")
            L.append(e)
        slots.append(L)
    return slots

def gemm_steps(ns, chains, tagx, dma, upfront, stats=None, fine=None, wtags=None, pre_mid=None):
    steps = []
    total = ns * 16
    def rd(idx):
        s, jj = divmod(idx, 16)
        return f"ds_read_b128 {vr(vRING + 4*(idx % RING), 4)}, v{vXA + (jj >> 2)} offset:{s*4096 + (jj & 3)*1024}"
    pre = St()
    for s in range(upfront):
        for e in dma[s]: pre.ext(e)
        if s == 0 and pre_mid is not None: pre.ext(pre_mid)
        if s + 1 < upfront: pre("s_barrier")
    stamp(pre, fine)
    steps.append(pre)
    pre2 = St()
    pre2.wv(f"{tagx}0_3")
    pre2("s_barrier")
    stamp(pre2, fine)
    for idx in range(RING): pre2.i(rd(idx), lds=f"x{idx}")
    steps.append(pre2)
    for idx in range(total):
        s, jj = divmod(idx, 16)
        stp = St()
        ring = vRING + 4 * (idx % RING)
        if wtags and s == 0 and jj % 4 == 0: stp.wv(wtags[jj // 4])
        if idx % 2 == 0: stp.wl(f"x{min(idx+1, total-1)}")
        for (acc, w, w_is_A) in chains(s):
            wreg = rr((w[0], w[1] + 4 * jj), 4)
            c = "0" if jj == 0 and acc[1] else vr(acc[0], 4)
            if w_is_A: stp(f"v_mfma_f32_16x16x32_bf16 {vr(acc[0],4)}, {wreg}, {vr(ring,4)}, {c}")
            else:      stp(f"v_mfma_f32_16x16x32_bf16 {vr(acc[0],4)}, {vr(ring,4)}, {wreg}, {c}")
        if stats and jj < 4:
            sg, ss = stats(s)
            stp(f"v_mfma_f32_16x16x32_bf16 {vr(sg,4)}, {vr(ring,4)}, {vr(ring,4)}, {'0' if jj == 0 else vr(sg,4)}")
            stp(f"v_mfma_f32_16x16x32_bf16 {vr(ss,4)}, {vr(vONES,4)}, {vr(ring,4)}, {'0' if jj == 0 else vr(ss,4)}")
        nxt = idx + RING
        if nxt < total:
            if nxt % 16 == 0:
                stp.it.append(("mark", f"bar{s}", None, None))
                stp.wv(f"{tagx}{nxt//16}_3")
                stp("s_barrier")
            stp.i(rd(nxt), lds=f"x{nxt}")
        sd = s + upfront
        if sd < ns and jj < 4: stp.ext(dma[sd][jj])
        if jj == 15 or jj == 7: stamp(stp, fine)
        steps.append(stp)
    return steps

def weave2(steps, progs, per=2):
    out = St()
    qs = [list(p) for p in progs]
    skip = [0] * len(qs)
    def emit_forced(name):
        for qi, q in enumerate(qs):
            last = max([i for i, (ms, it) in enumerate(q) if it[0] == "before" and it[1] == name], default=-1)
            for _ in range(last + 1):
                ms, it = q.pop(0)
                if it[0] not in ("gap", "before"): out.it.append(it)
    for si, stp in enumerate(steps):
        for it in stp.it:
            if it[0] == "mark":
                emit_forced(it[1]); continue
            out.it.append(it)
            if it[0] == "i" and it[1].startswith("v_mfma"):
                n = 0
                for qi, q in enumerate(qs):
                    if skip[qi] > 0:
                        skip[qi] -= 1; continue
                    while q and n < per and q[0][0] <= si:
                        ms, x = q.pop(0)
                        if x[0] == "gap":
                            skip[qi] = x[1]; break
                        if x[0] == "before": continue
                        out.it.append(x)
                        if x[0] in ("i", "grp"): n += 1
    for q in qs:
        for ms, x in q:
            if x[0] not in ("gap", "before"): out.it.append(x)
    return out

def prog(ms, st_): return [(ms, it) for it in st_.it]
def strip_marks(st_):
    o = St(); o.it = [it for it in st_.it if it[0] != "mark"]; return o

def phase_kv(st, name, layer_out, src, kvb):
    XR = 64
    accK, accV, csK, csV, SG, SS = 80, 84, 88, 92, 96, 100
    vA0, vA1, vKW, vKR = 104, 105, 106, 107
    t = vTMP
    lane_consts(st)
    sb = kvb + 8192
    stats_setup(st, sb)
    st(f"""
    s_lshl_b32 s26, s20, 2
    s_lshr_b32 s28, s21, 1
    s_add_u32 s26, s26, s28
    s_bitcmp1_b32 s21, 0
    s_cselect_b64 s[38:39], -1, 0
    """)
    def xloads(e):
        if src == "row":
            e(f"""
            v_lshlrev_b32 v{t+12}, 10, v{vT}
            v_lshl_add_u32 v{t+12}, v{vG}, 4, v{t+12}
            s_lshl_b32 s23, s26, 14
            s_lshl_b32 s28, s22, 8
            s_add_u32 s23, s23, s28
            """)
            for q in range(4):
                e.i(f"buffer_load_dwordx4 {vr(XR+4*q,4)}, v{t+12}, s[12:15], s23 offen offset:{q*64}", vm=f"xk{q}")
        else:
            e(f"""
            s_lshl_b32 s23, s26, 14
            s_lshl_b32 s28, s22, 12
            s_add_u32 s23, s23, s28
            s_add_u32 s23, s23, {B0 + BS*layer_out + XIN}
            """)
            for q in range(4):
                e.i(f"buffer_load_dwordx4 {vr(XR+4*q,4)}, v{vL16}, s[8:11], s23 offen offset:{q*1024} sc1", vm=f"xk{q}")
    def setup(e):
        e(f"""
        v_lshrrev_b32 v{t}, 1, v{vG}
        v_and_b32 v{t+1}, 1, v{vG}
        v_lshlrev_b32 v{t+2}, 9, v{t}
        v_lshl_add_u32 v{t+2}, v{vT}, 4, v{t+2}
        v_lshl_add_u32 v{t+2}, v{t+1}, 3, v{t+2}
        v_lshlrev_b32 v{t+4}, 8, v{t+1}
        v_lshl_add_u32 v{t+4}, v{vT}, 4, v{t+4}
        v_lshl_add_u32 v{t+4}, v{t}, 3, v{t+4}
        v_cndmask_b32_e64 v{vA0}, v{t+2}, v{t+4}, s[38:39]
        s_lshl_b32 s23, s22, 11
        s_add_u32 s23, s23, {kvb}
        v_add_u32 v{vKW}, s23, v{vL16}
        v_add_u32 v{vKR}, {kvb}, v{vL16}
        s_lshr_b32 s23, s26, 1
        s_lshl_b32 s23, s23, 10
        s_and_b32 s28, s26, 1
        s_lshl_b32 s29, s28, 8
        s_add_u32 s29, s29, {KF0 + KVS*layer_out}
        s_lshl_b32 s28, s28, 9
        s_add_u32 s28, s28, {VF0 + KVS*layer_out}
        s_bitcmp1_b32 s21, 0
        s_cselect_b32 s28, s28, s29
        s_add_u32 s59, s23, s28
        """)
    def cs(e):
        for jj in range(4):
            w = rr((W_KV[0], W_KV[1] + 4 * jj), 4)
            e(f"v_mfma_f32_16x16x32_bf16 {vr(csK,4)}, {w}, {vr(vONES,4)}, {'0' if jj == 0 else vr(csK,4)}")
            e(f"v_mfma_f32_16x16x32_bf16 {vr(csV,4)}, {vr(vONES,4)}, {w}, {'0' if jj == 0 else vr(csV,4)}")
        for r in range(4): e(f"v_cndmask_b32_e64 v{csK+r}, v{csK+r}, v{csV}, s[38:39]")
        e.i(f"ds_write_b128 v{vKW}, {vr(csK,4)} offset:1024")
    def main(e):
        for q in range(4):
            e.wv(f"xk{q}")
            w = rr((W_KV[0], W_KV[1] + 4 * q), 4); x = vr(XR + 4 * q, 4)
            z = lambda r: "0" if q == 0 else vr(r, 4)
            e(f"v_mfma_f32_16x16x32_bf16 {vr(SG,4)}, {x}, {x}, {z(SG)}")
            e(f"v_mfma_f32_16x16x32_bf16 {vr(SS,4)}, {vr(vONES,4)}, {x}, {z(SS)}")
            e(f"v_mfma_f32_16x16x32_bf16 {vr(accK,4)}, {w}, {x}, {z(accK)}")
            e(f"v_mfma_f32_16x16x32_bf16 {vr(accV,4)}, {x}, {w}, {z(accV)}")
        stats_extract(e, 0, SG, SS, t, "ksw")
        for r in range(4): e(f"v_cndmask_b32_e64 v{accK+r}, v{accK+r}, v{accV+r}, s[38:39]")
        e.i(f"ds_write_b128 v{vKW}, {vr(accK,4)}", lds="kaw")
        e("s_waitcnt lgkmcnt(0)\ns_barrier")
        e(f"s_cmp_lg_u32 s22, 0\ns_cbranch_scc1 L_kvdone_{name}")
        stats_read(e, 0, t, "ksr")
        F = 108
        for w in range(4): e.i(f"ds_read_b128 {vr(F+4*w,4)}, v{vKR} offset:{w*2048}")
        for w in range(4): e.i(f"ds_read_b128 {vr(F+16+4*w,4)}, v{vKR} offset:{w*2048+1024}", lds=f"kr{w}")
        e.wl("ksr")
        R, N = 140, 141
        for x in stats_math(t, R, N): e(x)
        e.i(f"ds_write_b32 v{vSTA}, v{R}")
        e.i(f"ds_write_b32 v{vSTA}, v{N} offset:64", lds="kpw")
        e.wl("kpw")
        R4, N4 = 144, 148
        e.i(f"ds_read_b128 {vr(R4,4)}, v{vPRR}")
        e.i(f"ds_read_b128 {vr(N4,4)}, v{vPRR} offset:64", lds="kpr")
        for b in (F, F + 16):
            for r in range(4): e(f"v_add_f32 v{b+r}, v{b+r}, v{b+4+r}\nv_add_f32 v{b+8+r}, v{b+8+r}, v{b+12+r}")
            for r in range(4): e(f"v_add_f32 v{b+r}, v{b+r}, v{b+8+r}")
        e.wl("kpr")
        for r in range(4):
            e(f"v_cndmask_b32_e64 v{R4+r}, v{R}, v{R4+r}, s[38:39]\nv_cndmask_b32_e64 v{N4+r}, v{N}, v{N4+r}, s[38:39]")
        ln_epi(e, F, [R4+r for r in range(4)], [N4+r for r in range(4)], [F+16+r for r in range(4)], 152, 156)
        e.i(f"buffer_store_dwordx2 v[152:153], v{vA0}, s[8:11], s59 offen")
        e.label(f"L_kvdone_{name}")
    return xloads, setup, cs, main

def gen_init(name):
    st = St()
    NST[0] = 0
    stamp(st)
    if INSTR: st("s_memrealtime s[96:97]")
    prologue(st, name, """
    s_load_dwordx2 s[64+0:64+1], s[0:1], 8
    s_load_dwordx4 s[68:71], s[0:1], 16
    s_load_dwordx2 s[72:73], s[0:1], 32
    s_load_dwordx4 s[76:79], s[0:1], 48
    s_load_dwordx2 s[6:7], s[0:1], 0
    """.replace("s[64+0:64+1]", "s[66:67]"))
    pWQ, pWK, pWV, pWOA, pWQKV, pWOB = 66, 68, 70, 72, 76, 78
    srd_io(st, 6, 2048 * 1024)
    KVB = 0
    xloads, setup, cs, main = phase_kv(st, name, 0, "row", KVB)
    xloads(st)
    vKap, vCol = 160, 161
    st(f"""
    v_lshrrev_b32 v{vKap}, 2, v{vT}
    v_lshlrev_b32 v{vKap}, 3, v{vKap}
    v_and_b32 v{vCol}, 3, v{vT}
    v_add_u32 v{vKap}, v{vKap}, v{vCol}
    v_lshrrev_b32 v{vCol}, 1, v{vG}
    v_lshl_add_u32 v{vKap}, v{vCol}, 2, v{vKap}
    v_and_b32 v{vCol}, 1, v{vG}
    v_lshlrev_b32 v{vCol}, 4, v{vCol}
    s_bitcmp1_b32 s21, 0
    s_cselect_b32 s28, s{pWV}, s{pWK}
    s_cselect_b32 s29, s{pWV+1}, s{pWK+1}
    v_lshl_add_u32 v162, v{vKap}, 5, v{vCol}
    s_lshl_b32 s23, s22, 12
    v_add_u32 v162, s23, v162
    """)
    for q in range(4):
        st.i(f"global_load_dwordx4 {vr(164+4*q,4)}, v162, s[28:29] offset:{q*1024}", vm=f"rw{q}")
    st(f"""
    s_lshl_b32 s46, s2, 2
    s_add_u32 s46, s46, s22
    v_lshlrev_b32 v163, 10, v{vT}
    v_lshl_add_u32 v163, v{vG}, 4, v163
    s_lshr_b32 s27, s46, 3
    s_lshl_b32 s27, s27, 14
    s_and_b32 s28, s46, 7
    s_lshl_b32 s28, s28, 7
    s_add_u32 s27, s27, s28
    """)
    st.i("buffer_load_dwordx4 v[180:183], v163, s[12:15], s27 offen")
    st.i("buffer_load_dwordx4 v[184:187], v163, s[12:15], s27 offen offset:64", vm="xc")
    for i in range(4):
        st(f"""
        s_add_u32 s27, s46, {1024*i}
        s_min_u32 s27, s27, {NFRAG-1}
        s_lshr_b32 s28, s27, 4
        s_and_b32 s29, s27, 15
        s_mov_b32 s80, s{pWQ}
        s_mov_b32 s81, s{pWQ+1}
        s_mov_b32 s82, s28
        s_mov_b32 s83, 1024
        """)
        for T0, reg, stride in ((T_WOA, pWOA, 1024), (T_WOB, pWOB, 1024), (T_WQKV, pWQKV, 3072), (T_WK, pWK, 32), (T_WV, pWV, 32)):
            st(f"""
            s_sub_u32 s84, s28, {T0}
            s_cmp_ge_u32 s28, {T0}
            s_cselect_b32 s80, s{reg}, s80
            s_cselect_b32 s81, s{reg+1}, s81
            s_cselect_b32 s82, s84, s82
            s_cselect_b32 s83, {stride}, s83
            """)
        st(f"""
        s_lshl_b32 s29, s29, 5
        s_lshl_b32 s82, s82, 5
        v_add_u32 v162, s29, v{vKap}
        v_mul_lo_u32 v162, v162, s83
        v_add_u32 v162, v162, v{vCol}
        v_add_u32 v162, s82, v162
        """)
        st.i(f"global_load_dwordx4 {vr(188+4*i,4)}, v162, s[80:81]", vm=f"pw{i}")
    if "nocode" not in OPT:
        st(f"""
        s_getpc_b64 s[86:87]
        """)
        st.label("L_pc_anchor")
        st(f"""
        s_add_u32 s86, s86, main0_kernel-L_pc_anchor
        s_addc_u32 s87, s87, 0
        s_lshr_b32 s27, s2, 3
        s_lshl_b32 s27, s27, 2
        s_add_u32 s27, s27, s22
        s_lshl_b32 s27, s27, 9
        v_lshlrev_b32 v228, 3, v0
        v_add_u32 v228, s27, v228
        v_min_u32 v228, L_code_end-main0_kernel-8, v228
        global_load_dwordx2 v[228:229], v228, s[86:87]
        """)
    vB0, vB1 = 208, 212
    emit_selectors(st, vB0, vB1, 216)
    setup(st)
    def transpose(e, src, dst):
        e(f"v_mfma_f32_16x16x32_bf16 v[220:223], {vr(src,4)}, {vr(vB0,4)}, 0")
        e(f"v_mfma_f32_16x16x32_bf16 v[224:227], {vr(src,4)}, {vr(vB1,4)}, 0")
        e(f"""
        v_cvt_pk_bf16_f32 v{dst}, v220, v221
        v_cvt_pk_bf16_f32 v{dst+1}, v222, v223
        v_cvt_pk_bf16_f32 v{dst+2}, v224, v225
        v_cvt_pk_bf16_f32 v{dst+3}, v226, v227
        """)
    for q in range(4):
        st.wv(f"rw{q}")
        transpose(st, 164 + 4 * q, W_KV[1] + 4 * q)
    cs(st)
    main(st)
    st(f"s_lshl_b32 s27, s46, 11\ns_add_u32 s27, s27, {B0 + XIN}")
    st("s_waitcnt vmcnt(0)")
    st(f"buffer_store_dwordx4 v[180:183], v{vL16}, s[8:11], s27 offen")
    st(f"buffer_store_dwordx4 v[184:187], v{vL16}, s[8:11], s27 offen offset:1024")
    st(f"""
    s_cmp_ge_u32 s46, {FLAG_BYTES // 1024}
    s_cbranch_scc1 L_nofl_{name}
    v_mov_b32 v204, 0
    v_mov_b32 v205, 0
    v_mov_b32 v206, 0
    v_mov_b32 v207, 0
    s_lshl_b32 s27, s46, 10
    s_add_u32 s27, s27, {FLAGS}
    buffer_store_dwordx4 v[204:207], v{vL16}, s[8:11], s27 offen
    """)
    st.label(f"L_nofl_{name}")
    for i in range(4):
        st(f"""
        s_add_u32 s27, s46, {1024*i}
        s_cmp_ge_u32 s27, {NFRAG}
        s_cbranch_scc1 L_done_{name}
        s_lshl_b32 s27, s27, 10
        """)
        transpose(st, 188 + 4 * i, 164 + 4 * i)
        st(f"buffer_store_dwordx4 {vr(164+4*i,4)}, v{vL16}, s[8:11], s27 offen")
    st.label(f"L_done_{name}")
    st("s_waitcnt vmcnt(0)")
    stamp(st)
    stamp_dump(st, 2)
    return kernel_text(name, st, vgpr=256, accum=256)
INIT_LDS = 86016

LDS_K, LDS_V, VS = 0, 65536, 1056
XB_Q = 74752
SB_Q = XB_Q + 65536
MAIN_LDS = SB_Q + STAT_BYTES
SA, SB, OA_, OB_ = 16, 32, 48, 64
PA, PB, QA, QB, KB, VB = 80, 88, 96, 100, 104, 112
vK, vV0, vV1 = 2, 3, 4

def kv_group(gi, tag):
    out = []
    e = St(); e(f"s_add_u32 s23, s34, {gi*8192}\ns_add_u32 m0, s36, {gi*8192}")
    e.i(f"buffer_load_dwordx4 v{vL16}, s[8:11], s23 offen lds"); out.append(e)
    e = St(); e.i(f"buffer_load_dwordx4 v{vL16}, s[8:11], s23 offen offset:1024 lds"); out.append(e)
    e = St(); e(f"s_add_u32 s23, s35, {gi*8192}\ns_add_u32 m0, s37, {gi*8*VS}")
    e.i(f"buffer_load_dwordx4 v{vL16}, s[8:11], s23 offen lds"); out.append(e)
    e = St(); e(f"s_add_u32 m0, s37, {gi*8*VS + VS - 1024}")
    e.i(f"buffer_load_dwordx4 v{vL16}, s[8:11], s23 offen offset:1024 lds", vm=tag); out.append(e)
    return out

def phase_q(st, name):
    ns = 4
    wave_scalars(st)
    wl = w_loads(W_QA, 0, "wq")
    dma = dma_slots(st, ns, XB_Q, f"s{sXIN}", lambda e, s: e(f"s_add_u32 s23, s26, {s}"), "xq")
    st("s_lshl_b32 s26, s20, 2")
    for e in wl[:4]: st.ext(e)
    mid = St()
    for e in wl[4:]: mid.ext(e)
    lane_consts(mid)
    xa_setup(mid, ns, XB_Q)
    stats_setup(mid, SB_Q)
    acc, vCS = 64, 124
    SGs = [80, 84, 88, 92]; SSs = [104, 108, 112, 116]
    steps = gemm_steps(ns, lambda s: [((acc + 4 * s, True), W_QA, True)], "xq", dma, 3,
                       stats=lambda s: (SGs[s], SSs[s]), fine="q", wtags=["wq3", "wq7", "wq11", "wq15"], pre_mid=mid)
    pa = []
    for s in range(ns):
        e = St(); stats_extract(e, s, SGs[s], SSs[s], vTMP, f"qsw{s}")
        pa += prog(2 + 16 * s + 6, e)
    kv0 = St()
    kv0(f"""
    s_lshl_b32 s36, s22, 11
    s_add_u32 s34, s36, s{sKF}
    s_add_u32 s35, s36, s{sVF}
    s_mul_i32 s37, s22, {2*VS}
    s_add_u32 s37, s37, {LDS_V}
    """)
    body = St()
    body.ext(steps[0]); body.ext(steps[1])
    rest = steps[2:]
    csum = St(); colsum(csum, vCS, W_QA, True)
    body.ext(strip_marks(weave2(rest, [[(ms - 2, it) for ms, it in pa], prog(20, csum)], per=1)))
    st.ext(body)
    st.ext(kv0)
    for e in kv_group(0, "c0"): st.ext(e)
    st("s_waitcnt lgkmcnt(0)\ns_barrier")
    A8 = [16, 24, 32, 40]
    for s in range(ns): stats_read(st, s, A8[s], f"qsr{s}")
    R = [48 + s for s in range(ns)]; N = [52 + s for s in range(ns)]
    st.wl("qsr3")
    maths = [stats_math(A8[s], R[s], N[s]) for s in range(ns)]
    for i in range(len(maths[0])):
        for s in range(ns): st(maths[s][i])
    for s in range(ns):
        st(f"v_mul_f32 v{R[s]}, {f32(CQ)}, v{R[s]}\nv_mul_f32 v{N[s]}, {f32(CQ)}, v{N[s]}")
    for s in range(ns):
        ln_epi(st, acc + 4 * s, [R[s]] * 4, [N[s]] * 4, [vCS + r for r in range(4)], QA + 2 * s, 16 + 4 * s)
    st(f"""
    v_permlane16_swap_b32 v{QA}, v{QA+2}
    v_permlane16_swap_b32 v{QA+1}, v{QA+3}
    v_permlane16_swap_b32 v{QB}, v{QB+2}
    v_permlane16_swap_b32 v{QB+1}, v{QB+3}
    """)

def phase_att(st, name):
    st(f"""
    v_mov_b32 v{vK}, v{vL16}
    v_and_b32 v5, 31, v0
    v_lshrrev_b32 v6, 5, v0
    v_lshlrev_b32 v7, 8, v6
    v_lshl_add_u32 v7, v5, 4, v7
    v_add_u32 v7, {LDS_V}, v7
    v_mov_b32 v16, {LDS_V + 1024 + 16}
    v_mov_b32 v17, {LDS_V + 1024}
    v_and_b32 v18, 27, v5
    v_cmp_eq_u32 s[28:29], 16, v18
    v_cndmask_b32_e64 v16, v16, v17, s[28:29]
    v_cmp_gt_u32 s[28:29], 16, v5
    v_cndmask_b32_e64 v{vV0}, v16, v7, s[28:29]
    v_add_u32 v7, 512, v7
    v_cndmask_b32_e64 v{vV1}, v16, v7, s[28:29]
    v_mov_b32 v16, 0x3f803f80
    v_mov_b32 v17, v16
    v_mov_b32 v18, v16
    v_mov_b32 v19, v16
    v_mul_u32_u24 v20, {VS}, v0
    v_add_u32 v20, {LDS_V + 1024}, v20
    s_cmp_lg_u32 s22, 0
    s_cbranch_scc1 L_noones_{name}
    ds_write_b128 v20, v[16:19]
    v_mov_b32 v16, 0
    v_mov_b32 v17, 0
    v_mov_b32 v18, 0
    v_mov_b32 v19, 0
    ds_write_b128 v20, v[16:19] offset:16
    """)
    st.label(f"L_noones_{name}")
    st(f"""
    v_and_b32 v9, 15, v0
    v_lshrrev_b32 v10, 4, v0
    s_lshl_b32 s23, s21, 11
    s_lshr_b32 s28, s22, 1
    s_lshl_b32 s28, s28, 10
    s_add_u32 s23, s23, s28
    s_and_b32 s28, s22, 1
    s_lshl_b32 s28, s28, 9
    s_add_u32 s23, s23, s28
    v_lshrrev_b32 v11, 1, v10
    v_lshlrev_b32 v11, 8, v11
    v_lshl_add_u32 v11, v9, 4, v11
    v_and_b32 v8, 1, v10
    v_lshl_add_u32 v8, v8, 3, v11
    v_add_u32 v8, s23, v8
    s_lshl_b32 s59, s20, 16
    s_add_u32 s59, s59, s{sXIN}
    """)
    def init_acc(s):
        for r in range(16): s(f"v_mov_b32 v{OA_+r}, 0\nv_mov_b32 v{OB_+r}, 0")
    def rdK(t, base): return f"ds_read_b128 {vr(KB + 4*(t&1),4)}, v{vK} offset:{(t-base)*1024}"
    def rdV(t, base):
        b = VB + 8 * (t & 1)
        return [f"ds_read_b128 {vr(b,4)}, v{vV0} offset:{(t-base)*VS}", f"ds_read_b128 {vr(b+4,4)}, v{vV1} offset:{(t-base)*VS}"]
    def qk(S, t, Q): return f"v_mfma_f32_32x32x16_bf16 {vr(S,16)}, {vr(KB + 4*(t&1),4)}, {vr(Q,4)}, 0"
    def pv(O, t, P):
        b = VB + 8 * (t & 1)
        return [f"v_mfma_f32_32x32x16_bf16 {vr(O,16)}, {vr(b,4)}, {vr(P,4)}, {vr(O,16)}",
                f"v_mfma_f32_32x32x16_bf16 {vr(O,16)}, {vr(b+4,4)}, {vr(P+4,4)}, {vr(O,16)}"]
    def softmax(S, P, M):
        ins = []
        if M is not None:
            for r in range(16): ins.append(f"v_sub_f32 v{S+r}, v{S+r}, v{M}")
        for i in range(8):
            ins.append(f"v_exp_f32 v{S+2*i}, v{S+2*i}")
            ins.append(f"v_exp_f32 v{S+2*i+1}, v{S+2*i+1}")
            if i > 0: ins.append(f"v_cvt_pk_bf16_f32 v{P+i-1}, v{S+2*i-2}, v{S+2*i-1}")
        ins.append(f"v_cvt_pk_bf16_f32 v{P+7}, v{S+14}, v{S+15}")
        return ins
    def mix(s, valu, groups):
        n = len(valu); k = len(groups)
        for j in range(k):
            for x in groups[j]:
                if isinstance(x, St): s.ext(x)
                else: s(x)
            for x in valu[j * n // k:(j + 1) * n // k]: s(x)
    def iteration(s, t, nt, base, extras, safe=None, first=False, rolled=False):
        MA, MB = safe if safe else (None, None)
        ex = list(extras)
        def pop(): return [ex.pop(0)] if ex else []
        g1 = [[qk(SB, t, QB)] + ([rdK(t + 2, base)] if (rolled or t + 2 < nt) else [])]
        pvb = [] if first else pv(OB_, t - 1, PB)
        rv = rdV(t + 1, base) if (rolled or t + 1 < nt) else []
        if pvb:
            g1.append([pvb[0]] + rv[:1]); g1.append([pvb[1]] + rv[1:])
        else:
            g1.append(rv)
        mix(s, softmax(SA, PA, MA), g1)
        pva = pv(OA_, t, PA)
        g2 = [([qk(SA, t + 1, QA)] if (rolled or t + 1 < nt) else []) + pop(), [pva[0]] + pop(), [pva[1], "s_waitcnt lgkmcnt(0)"]]
        mix(s, softmax(SB, PB, MB), g2)
        for x in ex: s.ext(x)
    def first_reads(s):
        s(rdK(0, 0)); s(rdK(1, 0))
        for x in rdV(0, 0): s(x)
        s("s_waitcnt lgkmcnt(0)")
        s(qk(SA, 0, QA))
    init_acc(st)
    st.wv("c0")
    st("s_waitcnt lgkmcnt(0)\ns_barrier")
    first_reads(st)
    stamp(st)
    extras = {t: [] for t in range(64)}
    for gi in range(1, 8): extras[gi - 1] += kv_group(gi, f"kv{gi}")
    pre = []
    pre += w_loads(W_O, T_WOA, "woa")
    for q in range(4):
        e = St()
        if q: e("s_add_u32 s59, s59, 16384")
        e.i(f"buffer_load_dwordx2 {vr(vRES+2*q,2)}, v8, s[8:11], s59 offen"); pre.append(e)
    pre += w_loads(W_Q2, T_WQKV, "wq2")
    pre += w_loads(W_K2, T_WQKV + 32, "wk2")
    pre += w_loads(W_V2, T_WQKV + 64, "wv2")
    pre += kv_loads("wk4")
    if FAST: pre += xcc_issue()
    t = 14
    while pre:
        extras[t] += pre[:2]; pre = pre[2:]; t += 1
    warm = []
    if "nowarm" not in OPT:
        e = St()
        e(f"""
        v_lshrrev_b32 v9, 4, v0
        v_bfe_u32 v10, v0, 2, 2
        v_and_b32 v11, 3, v0
        v_lshlrev_b32 v10, 14, v10
        v_lshl_add_u32 v10, v11, 7, v10
        s_lshl_b32 s28, s21, 11
        s_lshl_b32 s29, s22, 9
        s_add_u32 s28, s28, s29
        s_lshl_b32 s29, s20, 16
        s_add_u32 s28, s28, s29
        v_add_u32 v10, s28, v10
        v_add_u32 v9, 1, v9
        v_lshlrev_b32 v9, 21, v9
        v_add_u32 v10, v10, v9
        """)
        e.i(f"buffer_load_dword v253, v10, s[8:11], s{sXIN} offen".replace("v253", "v13"))
        warm = [e]
    WT = int(os.environ.get("WARMT", t))
    extras[WT] += warm
    assert t <= 62
    base = 0
    for t in range(64):
        if t == 6: st.wv("kv1"); st("s_barrier")
        if t == 14: st.wv("kv7"); st("s_barrier")
        if t == 32:
            st(f"v_add_u32 v{vK}, {32*1024}, v{vK}\nv_add_u32 v{vV0}, {32*VS}, v{vV0}\nv_add_u32 v{vV1}, {32*VS}, v{vV1}")
            base = 32
        iteration(st, t, 64, base, extras[t], first=(t == 0))
    stamp(st)
    def tail(s):
        for x in pv(OB_, 63, PB): s(x)
    lA, lB = OA_ + 8, OB_ + 8
    tail(st)
    xcc_check(st, name)
    st(f"v_mul_f32 v9, 0, v{OA_}\nv_mul_f32 v10, 0, v{OB_}")
    for r in range(1, 8):
        st(f"v_fma_f32 v9, v{OA_+r}, 0, v9\nv_fma_f32 v10, v{OB_+r}, 0, v10")
    st(f"""
    v_add_f32 v9, v9, v10
    v_min_f32 v10, v{lA}, v{lB}
    v_max_f32 v11, v{lA}, v{lB}
    v_add_f32 v10, v10, v9
    v_add_f32 v11, v11, v9
    v_cmp_u_f32 s[28:29], v{lA}, v{lB}
    v_mov_b32 v20, {f32(2.0**-40)}
    v_cmp_nge_f32 vcc, v10, v20
    s_or_b64 s[28:29], s[28:29], vcc
    v_mov_b32 v20, {f32(2.0**100)}
    v_cmp_nle_f32 vcc, v11, v20
    s_or_b64 s[28:29], s[28:29], vcc
    s_cmp_eq_u64 s[28:29], 0
    s_cbranch_scc1 L_attok_{name}
    """)
    MA, MB = 9, 10
    st(f"""
    v_subrev_u32 v{vK}, {32*1024}, v{vK}
    v_subrev_u32 v{vV0}, {32*VS}, v{vV0}
    v_subrev_u32 v{vV1}, {32*VS}, v{vV1}
    v_mov_b32 v{MA}, {f32(-3.0e38)}
    v_mov_b32 v{MB}, {f32(-3.0e38)}
    v_mov_b32 v11, v{vK}
    s_mov_b32 s44, 0
    """)
    st.label(f"L_max_{name}")
    st(f"""
    ds_read_b128 {vr(KB,4)}, v11
    s_waitcnt lgkmcnt(0)
    v_mfma_f32_32x32x16_bf16 {vr(SA,16)}, {vr(KB,4)}, {vr(QA,4)}, 0
    v_mfma_f32_32x32x16_bf16 {vr(SB,16)}, {vr(KB,4)}, {vr(QB,4)}, 0
    v_add_u32 v11, 1024, v11
    """)
    for r in range(0, 16, 2): st(f"v_max3_f32 v{MA}, v{MA}, v{SA+r}, v{SA+r+1}")
    for r in range(0, 16, 2): st(f"v_max3_f32 v{MB}, v{MB}, v{SB+r}, v{SB+r+1}")
    st(f"""
    s_add_u32 s44, s44, 1
    s_cmp_lt_u32 s44, 64
    s_cbranch_scc1 L_max_{name}
    v_mov_b32 v11, v{MA}
    v_permlane32_swap_b32 v11, v{MA}
    v_max_f32 v{MA}, v{MA}, v11
    v_mov_b32 v11, v{MB}
    v_permlane32_swap_b32 v11, v{MB}
    v_max_f32 v{MB}, v{MB}, v11
    """)
    init_acc(st)
    for r in range(8): st(f"v_mov_b32 v{PB+r}, 0\nv_mov_b32 v{VB+8+r}, 0")
    first_reads(st)
    st("s_mov_b32 s44, 0")
    st.label(f"L_att2_{name}")
    for u in range(2):
        iteration(st, u + 2, 64, 2, [], safe=(MA, MB), rolled=True)
    st(f"""
    v_add_u32 v{vK}, {2*1024}, v{vK}
    v_add_u32 v{vV0}, {2*VS}, v{vV0}
    v_add_u32 v{vV1}, {2*VS}, v{vV1}
    s_add_u32 s44, s44, 1
    s_cmp_lt_u32 s44, 32
    s_cbranch_scc1 L_att2_{name}
    """)
    tail(st)
    st.label(f"L_attok_{name}")
    st(f"""
    s_lshl_b32 s23, s21, 11
    s_lshr_b32 s24, s22, 1
    s_lshl_b32 s24, s24, 10
    s_add_u32 s23, s23, s24
    s_and_b32 s24, s22, 1
    s_lshl_b32 s24, s24, 9
    s_add_u32 s23, s23, s24
    s_lshl_b32 s24, s20, 16
    s_add_u32 s23, s23, s24
    s_add_u32 s23, s23, s{sOA}
    v_and_b32 v9, 15, v0
    v_lshlrev_b32 v9, 4, v9
    v_lshrrev_b32 v10, 5, v0
    v_lshl_add_u32 v9, v10, 3, v9
    v_bfe_u32 v10, v0, 4, 1
    v_lshl_add_u32 v9, v10, 14, v9
    v_rcp_f32 v11, v{lA}
    v_rcp_f32 v12, v{lB}
    s_mov_b64 vcc, s[{sSLOWA}:{sSLOWA+1}]
    """)
    for qb, O, rc in ((0, OA_, 11), (1, OB_, 12)):
        for r in range(8): st(f"v_mul_f32 v{O+r}, v{O+r}, v{rc}")
        p = 16 + 4 * qb
        st(f"""
        v_cvt_pk_bf16_f32 v{p}, v{O}, v{O+1}
        v_cvt_pk_bf16_f32 v{p+1}, v{O+2}, v{O+3}
        v_cvt_pk_bf16_f32 v{p+2}, v{O+4}, v{O+5}
        v_cvt_pk_bf16_f32 v{p+3}, v{O+6}, v{O+7}
        """)
        dstore(st, f"buffer_store_dwordx2 {vr(p,2)}, v9, s[8:11], s23 offen")
        dstore(st, f"buffer_store_dwordx2 {vr(p+2,2)}, v9, s[8:11], s23 offen offset:256")
        if qb == 0: st("s_add_u32 s23, s23, 32768")

def phase_p13(st, name, which):
    ns = 4
    slow = sSLOWB if which == 1 else sSLOWA
    lane_consts(st)
    xa_setup(st, ns, 0)
    st("s_lshl_b32 s26, s20, 2")
    tag = f"x{which}"
    vActA, vRowA = 44, 45
    act_addr(st, vActA, vTMP)
    acc = 64
    for s in range(ns):
        a = acc + 4 * s
        st(f"""
        v_lshlrev_b32 v{a}, 16, v{vRES+2*s}
        v_and_b32 v{a+1}, 0xffff0000, v{vRES+2*s}
        v_lshlrev_b32 v{a+2}, 16, v{vRES+2*s+1}
        v_and_b32 v{a+3}, 0xffff0000, v{vRES+2*s+1}
        """)
    if which == 3:
        row_addr(st, vRowA)
        st(f"""
        s_cmp_eq_u32 s{sL}, 0
        s_cselect_b32 s{SRD_OUT}, s8, s12
        s_cselect_b32 s{SRD_OUT+1}, s9, s13
        s_cselect_b32 s{SRD_OUT+2}, s10, s14
        s_mov_b32 s{SRD_OUT+3}, 0x00020000
        s_cselect_b32 s46, {B0 + BS + XIN}, 0
        s_cselect_b64 s[28:29], -1, 0
        v_cndmask_b32_e64 v{vActA}, v{vRowA}, v{vActA}, s[28:29]
        """)
    dma = dma_slots(st, ns, 0, f"s{sOA if which == 1 else sOB}", lambda e, s: e(f"s_add_u32 s23, s26, {s}"), tag)
    stamp(st, f"p{which}")
    sync_wait(st, 0 if which == 1 else 2, name, slow=slow)
    stamp(st, f"p{which}")
    steps = gemm_steps(ns, lambda s: [((acc + 4 * s, False), W_O, True)], tag, dma, 3, fine=f"p{which}")
    def epi(s):
        e = St()
        a = acc + 4 * s
        p = (vRES if which == 1 else 88) + 2 * s
        e(f"""
        v_cvt_pk_bf16_f32 v{p}, v{a}, v{a+1}
        v_cvt_pk_bf16_f32 v{p+1}, v{a+2}, v{a+3}
        s_add_u32 s47, s26, {s}
        s_lshl_b32 s47, s47, 14
        """)
        if which == 1:
            e(f"s_add_u32 s47, s47, s{sX1}")
            dstore(e, f"buffer_store_dwordx2 {vr(p,2)}, v{vActA}, s[8:11], s47 offen")
        else:
            e("s_add_u32 s47, s47, s46")
            dstore(e, f"buffer_store_dwordx2 {vr(p,2)}, v{vActA}, s[{SRD_OUT}:{SRD_OUT+3}], s47 offen")
        return e
    st.ext(steps[0]); st.ext(steps[1])
    pb = []
    for s in range(ns - 1): pb += prog(16 * (s + 1) + 3, epi(s))
    st.ext(strip_marks(weave2(steps[2:], [pb], per=2)))
    st.ext(epi(ns - 1))
    stamp(st, f"p{which}")

def phase_p2(st, name):
    ns = 5
    SBASE = ns * 16384
    lane_consts(st)
    xa_setup(st, ns, 0)
    stats_setup(st, SBASE)
    Wq, Wk, Wv = W_Q2, W_K2, W_V2
    st("s_lshl_b32 s26, s20, 2\ns_sub_u32 s26, s26, 1")
    vActA = 96
    act_addr(st, vActA, vTMP)
    vMo, vMp, vMp0 = 100, 104, 108
    st(f"v_mov_b32 v{vTMP+2}, {f32(-1.0e30)}")
    for r in range(4):
        st(f"""
        v_lshl_add_u32 v{vTMP}, v{vG}, 2, {r}
        v_sub_u32 v{vTMP}, v{vT}, v{vTMP}
        v_and_b32 v{vTMP+1}, 0x80000001, v{vTMP}
        v_cmp_eq_u32 s[28:29], 0, v{vTMP+1}
        v_cndmask_b32_e64 v{vMo+r}, v{vTMP+2}, 0, s[28:29]
        v_cmp_gt_i32 s[38:39], -1, v{vTMP}
        v_and_b32 v{vTMP+1}, 1, v{vTMP}
        v_cmp_eq_u32 s[28:29], 0, v{vTMP+1}
        s_and_b64 s[28:29], s[28:29], s[38:39]
        v_cndmask_b32_e64 v{vMp+r}, v{vTMP+2}, 0, s[28:29]
        """)
    st("s_cmp_eq_u32 s20, 0\ns_cselect_b64 s[28:29], -1, 0")
    for r in range(4): st(f"v_cndmask_b32_e64 v{vMp0+r}, v{vMp+r}, v{vTMP+2}, s[28:29]")
    vCSq, vCSk, vCSv = 112, 116, 120
    def tile_of_slot(e, s):
        if s == 0: e("s_max_i32 s23, s26, 0")
        else: e(f"s_add_u32 s23, s26, {s}")
    dma = dma_slots(st, ns, 0, f"s{sX1}", tile_of_slot, "x2")
    csum = St()
    if "cslate" not in OPT:
        colsum(st, vCSq, Wq, True); colsum(st, vCSk, Wk, True); colsum(st, vCSv, Wv, False)
    stamp(st, "p2")
    sync_wait(st, 1, name, halo=True, slow=sSLOWA)
    stamp(st, "p2")
    wob = w_loads(W_O, T_WOB, "wob")
    accq, acck, accv = 64, 68, 72
    def A(base, s): return base + 12 * (s & 1)
    vSG, vSS = 88, 92
    def chains(s):
        c = []
        if s > 0: c.append(((A(accq, s), True), Wq, True))
        c.append(((A(acck, s), True), Wk, True))
        c.append(((A(accv, s), True), Wv, False))
        return c
    steps = gemm_steps(ns, chains, "x2", dma, 2, stats=lambda s: (vSG, vSS), fine="p2")
    for jj in range(16): steps[2 + 16 * 4 + jj].ext(wob[jj])
    last = steps[2 + 16 * 4 + 8]
    last.it.append(("mark", "bar4", None, None)); last("s_barrier")
    vR, vN = 124, 125
    vRq, vNq = 128, 129
    vR4, vN4 = 132, 136
    pq, pk, pv = 140, 142, 148
    tmp = 56
    S, P, MX, T2, PO = 158, 132, 97, 98, 146
    O, L = S, S + 4
    def statsA(s):
        b = 16 * s
        p = []
        e = St(); stats_extract(e, s, vSG, vSS, vTMP, f"sw{s}"); e.wl(f"sw{s}")
        p += prog(b + 5, e); p.append((b + 5, ("before", f"bar{s}", None, None)))
        e = St(); stats_read(e, s, vTMP, f"sr{s}"); p += prog(b + 9, e)
        e = St(); e.wl(f"sr{s}")
        R, N = vR + 2 * (s & 1), vN + 2 * (s & 1)
        for x in stats_math(vTMP, R, N): e(x)
        e.i(f"ds_write_b32 v{vSTA}, v{R}")
        e.i(f"ds_write_b32 v{vSTA}, v{N} offset:64", lds=f"pw{s}")
        p += prog(b + 12, e)
        p.append((b + 12, ("before", f"sl{s}", None, None)))
        return p
    def epi(s):
        e = St()
        R, N = vR + 2 * (s & 1), vN + 2 * (s & 1)
        e.wl(f"pw{s}")
        e.i(f"ds_read_b128 {vr(vR4,4)}, v{vPRR}")
        e.i(f"ds_read_b128 {vr(vN4,4)}, v{vPRR} offset:64", lds=f"pr{s}")
        ln_epi(e, A(acck, s), [R]*4, [N]*4, [vCSk+r for r in range(4)], pk + 2 * (s & 1), tmp)
        if s > 0:
            e(f"v_mul_f32 v{vRq}, {f32(CQ)}, v{R}\nv_mul_f32 v{vNq}, {f32(CQ)}, v{N}")
            ln_epi(e, A(accq, s), [vRq]*4, [vNq]*4, [vCSq+r for r in range(4)], pq, tmp)
            kp = pk + 2 * ((s - 1) & 1); ko = pk + 2 * (s & 1)
            mp = vMp0 if s == 1 else vMp
            e(f"v_mfma_f32_16x16x16_bf16 {vr(S,4)}, {vr(kp,2)}, {vr(pq,2)}, {vr(mp,4)}")
            e(f"v_mfma_f32_16x16x16_bf16 {vr(S+4,4)}, {vr(ko,2)}, {vr(pq,2)}, {vr(vMo,4)}")
        e.wl(f"pr{s}")
        ln_epi(e, A(accv, s), [vR4+r for r in range(4)], [vN4+r for r in range(4)], [vCSv]*4, pv + 2 * s, tmp)
        if s == 0: return e
        e(f"""
        v_max3_f32 v{MX}, v{S}, v{S+1}, v{S+2}
        v_max3_f32 v{T2}, v{S+3}, v{S+4}, v{S+5}
        v_max3_f32 v{MX}, v{MX}, v{S+6}, v{S+7}
        v_max_f32 v{MX}, v{MX}, v{T2}
        v_mov_b32 v{T2}, v{MX}
        v_permlane32_swap_b32 v{T2}, v{MX}
        v_max_f32 v{MX}, v{MX}, v{T2}
        v_mov_b32 v{T2}, v{MX}
        v_permlane16_swap_b32 v{T2}, v{MX}
        v_max_f32 v{MX}, v{MX}, v{T2}
        """)
        for r in range(8): e(f"v_sub_f32 v{S+r}, v{S+r}, v{MX}")
        for r in range(8): e(f"v_exp_f32 v{S+r}, v{S+r}")
        for r in range(4): e(f"v_cvt_pk_bf16_f32 v{P+r}, v{S+2*r}, v{S+2*r+1}")
        e(f"v_mfma_f32_16x16x32_bf16 {vr(O,4)}, {vr(pv+2*(s-1),4)}, {vr(P,4)}, 0")
        e(f"v_mfma_f32_16x16x32_bf16 {vr(L,4)}, {vr(vONES,4)}, {vr(P,4)}, 0")
        e.it.append(("gap", 4, None, None))
        e(f"v_rcp_f32 v{L}, v{L}")
        e(f"s_add_u32 s47, s26, {s}\ns_lshl_b32 s47, s47, 14\ns_add_u32 s47, s47, s{sOB}")
        for r in range(4): e(f"v_mul_f32 v{O+r}, v{O+r}, v{L}")
        e(f"v_cvt_pk_bf16_f32 v{PO}, v{O}, v{O+1}\nv_cvt_pk_bf16_f32 v{PO+1}, v{O+2}, v{O+3}")
        dstore(e, f"buffer_store_dwordx2 {vr(PO,2)}, v{vActA}, s[8:11], s47 offen")
        return e
    st.ext(steps[0]); st.ext(steps[1])
    main = steps[2:]
    for s in range(ns - 1):
        main[16 * (s + 1)].it.insert(0, ("mark", f"sl{s}", None, None))
    pa, pb = [], []
    for s in range(ns): pa += statsA(s)
    for s in range(ns - 1):
        pb += prog(16 * (s + 1) + 1, epi(s)); pb.append((16 * (s + 1) + 1, ("before", f"ep{s}", None, None)))
    for s in range(ns - 2):
        main[16 * (s + 2)].it.insert(0, ("mark", f"ep{s}", None, None))
    st.ext(strip_marks(weave2(main, [pa, pb], per=2)))
    st.ext(strip_marks(epi(ns - 1)))

def gen_main(names):
    body_name = names[0]
    st = St()
    st(f"s_mov_b32 s{sL}, 0")
    st.label("L_main_common")
    NST[0] = 0
    stamp(st)
    if INSTR: st("s_memrealtime s[96:97]")
    prologue(st, body_name, "s_load_dwordx2 s[6:7], s[0:1], 64")
    srd_io(st, 6, 2048 * 1024)
    st(f"""
    s_mul_i32 s23, s{sL}, {KVS}
    s_add_u32 s{sKF}, s23, {KF0}
    s_add_u32 s{sVF}, s23, {VF0}
    s_mul_i32 s23, s{sL}, {BS}
    s_add_u32 s{sXIN}, s23, {B0 + XIN}
    s_add_u32 s{sOA}, s23, {B0 + OA}
    s_add_u32 s{sX1}, s23, {B0 + X1}
    s_add_u32 s{sOB}, s23, {B0 + OB}
    s_lshl_b32 s23, s{sL}, 14
    s_add_u32 s{sFLAG}, s23, {FLAGS}
    """)
    phase_q(st, body_name)
    xcc_publish(st, body_name)
    stamp(st)
    phase_att(st, body_name)
    stamp(st)
    sync_publish(st, 0, body_name, sSLOWA)
    phase_p13(st, body_name + "_1", 1)
    stamp(st)
    sync_publish(st, 1, body_name, sSLOWB)
    phase_p2(st, body_name + "_2")
    stamp(st)
    sync_publish(st, 2, body_name, sSLOWA)
    phase_p13(st, body_name + "_3", 3)
    stamp(st)
    st(f"s_cmp_lg_u32 s{sL}, 0\ns_cbranch_scc1 L_fin_{body_name}")
    sync_publish(st, 3, body_name, sSLOWA)
    xloads, setup, cs, main = phase_kv(st, body_name + "_4", 1, "act", 0)
    setup(st); cs(st)
    sync_wait(st, 3, body_name + "_4")
    xloads(st)
    main(st)
    st.label(f"L_fin_{body_name}")
    st("s_waitcnt vmcnt(0)")
    stamp(st)
    stamp_dump(st, f"s{sL}")
    txt = kernel_text(body_name, st)
    n2 = names[1]
    desc = txt[txt.index(".section .rodata"):].replace(body_name, n2)
    txt += f""".text
.globl {n2}
.p2align 8
.type {n2},@function
{n2}:
    s_mov_b32 s{sL}, 1
    s_branch L_main_common
""" + desc
    return txt

def build(path):
    ks = [("init_kernel", INIT_LDS), ("main0_kernel", MAIN_LDS), ("main1_kernel", MAIN_LDS)]
    hdr = open("cdna_kernels/" + NAME + ".s.ref").read().split("; Override launch geometry")[0]
    out = hdr
    for n, lds in ks:
        out += f"; @launch kernel={n} grid=(256,1,1) block=(256,1,1) lds={lds}\n"
    out += '.amdgcn_target "amdgcn-amd-amdhsa--gfx950"\n'
    out += gen_init("init_kernel")
    out += gen_main(("main0_kernel", "main1_kernel")).replace("L_end_main0_kernel:", "L_code_end:\nL_end_main0_kernel:")
    open(path, "w").write(out)

if __name__ == "__main__":
    build(sys.argv[1] if len(sys.argv) > 1 else "stage4.s")
```

```python
import sys, os
sys.path.insert(0, os.path.dirname(os.path.abspath(__file__)))
import gen
from gen import (St, resolve, weave, vr, ar, rr, f32, CQ, srd_io, emit_selectors,
                 T_WQ, T_WOA, T_WOB, T_WQKV, T_WK, T_WV, NFRAG, NAME, WS_SIZE)
from asmlib import fix_hazards
INSTR = os.environ.get("INSTR")
OPT = os.environ.get("OPT", "")
FAST = "nofast" not in OPT

KF0, VF0, KVS = 0x310000, 0x320000, 0x20000
B0, BS = 0x800000, 0x800000
XIN, OA, X1, OB = 0, 0x200000, 0x400000, 0x600000
FLAGS = 0x1900000
KVFL = FLAGS + 0x8000
PREPF = FLAGS + 0x10000
XCCT = FLAGS + 0x14000
EPOCH = FLAGS + 0x15000
TS_OFF = 0x1800000
S_G, S_M, S_W = 20, 21, 22
sROT = 16
sSLOWA, sSLOWB = 40, 42
sSPIN = 45
sKF, sVF, sXIN, sOA, sX1, sOB, sL, sFLAG = 48, 49, 51, 52, 53, 54, 55, 56
sTLO, sTHI = 50, 3
sEP = 14 + 86
sWT = 57
SRD_OUT = 60
W_Q2, W_K2, W_V2, W_O = ("a", 0), ("a", 64), ("a", 128), ("a", 192)
W_QA = ("v", 166)
W_KV = ("v", 230)
vRES = 246
vL16, vXA, vT, vG, vONES, vRING, RING = 1, 2, 6, 7, 8, 12, 8
vSTA, vSTW, vSTR, vPRR, vTMP = 44, 45, 46, 47, 48
vFLO, vFLP = 62, 63

NST = [0]
def stamp(st, fine=None):
    if not INSTR: return
    if INSTR == "1":
        if fine: return
        k = NST[0]; NST[0] += 1
        st(f"s_memtime s[{64+2*k}:{65+2*k}]\ns_waitcnt lgkmcnt(0)")
    else:
        if fine != INSTR and not (fine is None and NST[0] == 0): return
        k = NST[0]; NST[0] += 1
        assert k < 16
        st(f"s_memtime s[{64+2*k}:{65+2*k}]")
def stamp_dump(st, slot):
    if not INSTR: return
    st("s_memrealtime s[98:99]\ns_waitcnt lgkmcnt(0)")
    for k in range(16): st(f"v_mov_b32 v{16+k}, s{64+2*k if k < NST[0] else 98}")
    st(f"""
    v_mov_b32 v31, s98
    v_mov_b32 v30, s96
    s_lshl_b32 s23, s2, 2
    s_add_u32 s23, s23, s22
    s_lshl_b32 s23, s23, 6
    s_mul_i32 s24, {slot}, 65536
    s_add_u32 s23, s23, s24
    s_add_u32 s23, s23, {TS_OFF}
    v_mov_b32 v8, 0
    s_mov_b64 exec, 1
    buffer_store_dwordx4 v[16:19], v8, s[8:11], s23 offen
    buffer_store_dwordx4 v[20:23], v8, s[8:11], s23 offen offset:16
    buffer_store_dwordx4 v[24:27], v8, s[8:11], s23 offen offset:32
    buffer_store_dwordx4 v[28:31], v8, s[8:11], s23 offen offset:48
    s_waitcnt vmcnt(0)
    s_mov_b64 exec, -1
    """)

def prologue(st, name, extra_loads=""):
    st(f"""
    s_cmp_ge_u32 s2, 256
    s_cbranch_scc1 L_end_{name}
    s_load_dwordx2 s[4:5], s[0:1], 80
    {extra_loads}
    v_lshrrev_b32 v1, 6, v0
    v_and_b32 v0, 63, v0
    s_and_b32 s20, s2, 7
    s_lshr_b32 s21, s2, 3
    s_lshl_b32 s20, s20, 2
    s_lshr_b32 s23, s21, 3
    s_add_u32 s20, s20, s23
    s_and_b32 s21, s21, 7
    v_readfirstlane_b32 s22, v1
    v_lshlrev_b32 v{vL16}, 4, v0
    s_waitcnt lgkmcnt(0)
    s_mov_b32 s8, s4
    s_mov_b32 s9, s5
    s_mov_b32 s10, {WS_SIZE}
    s_mov_b32 s11, 0x00020000
    """)

OUTLINE = []
def dstore(e, text):
    if not FAST:
        e.i(text + " sc1"); return
    k = len(OUTLINE)
    e.it.append(("grp", [f"s_cbranch_vccnz L_slow_{k}", text, f"L_back_{k}:"], None, None))
    OUTLINE.append(text + " sc1")

def expand_groups(st):
    o = St()
    for it in st.it:
        if it[0] in ("grp", "grpv"):
            for l in it[1]: o.it.append(("i", l, None, None))
        else: o.it.append(it)
    return o

def kernel_text(name, st, vgpr=512, accum=256, sgpr=100):
    lines = resolve(expand_groups(st))
    lines.append("s_endpgm")
    for k, t in enumerate(OUTLINE):
        lines += [f"L_slow_{k}:", t, f"s_branch L_back_{k}"]
    OUTLINE.clear()
    lines, nins = fix_hazards(lines)
    body = "\n".join(("    " + l) if not l.endswith(":") else l for l in lines)
    return f""".text
.globl {name}
.p2align 8
.type {name},@function
{name}:
{body}
L_end_{name}:
    s_endpgm
.section .rodata,"a"
.p2align 6
.amdhsa_kernel {name}
  .amdhsa_next_free_vgpr {vgpr}
  .amdhsa_next_free_sgpr {sgpr}
  .amdhsa_accum_offset {accum}
  .amdhsa_group_segment_fixed_size 0
  .amdhsa_kernarg_size 88
  .amdhsa_user_sgpr_count 2
  .amdhsa_user_sgpr_kernarg_segment_ptr 1
  .amdhsa_system_sgpr_workgroup_id_x 1
  .amdhsa_float_denorm_mode_32 3
.end_amdhsa_kernel
"""

def lane_consts(st):
    st(f"v_and_b32 v{vT}, 15, v0\nv_lshrrev_b32 v{vG}, 4, v0")
    for q in range(4): st(f"v_mov_b32 v{vONES+q}, 0x3f803f80")

def xa_setup(st, ns, xb):
    for jg in range(4):
        st(f"""
        s_add_u32 s23, s22, {jg}
        s_and_b32 s23, s23, 3
        s_mul_i32 s23, s23, {ns*4096}
        s_add_u32 s23, s23, {xb}
        v_add_u32 v{vXA+jg}, s23, v{vL16}
        """)

def wave_scalars(st):
    for jg in range(4):
        st(f"""
        s_add_u32 s23, s22, {jg}
        s_and_b32 s23, s23, 3
        s_lshl_b32 s{sROT+jg}, s23, 12
        """)
    st(f"""
    s_lshl_b32 s{sWT}, s21, 2
    s_add_u32 s{sWT}, s{sWT}, s22
    s_lshl_b32 s{sWT}, s{sWT}, 14
    """)

def w_loads(dst, T0, tag):
    out = []
    for jg in range(4):
        for q in range(4):
            e = St()
            if q == 0:
                e(f"s_add_u32 s58, s{sWT}, s{sROT+jg}")
                if T0: e(f"s_add_u32 s58, s58, {T0*16384}")
            b = dst[1] + 4 * (4 * jg + q)
            e.i(f"buffer_load_dwordx4 {rr((dst[0], b), 4)}, v{vL16}, s[8:11], s58 offen offset:{q*1024} sc1", vm=f"{tag}{4*jg+q}")
            out.append(e)
    return out

def kv_loads(tag):
    out = []
    for q in range(4):
        e = St()
        if q == 0:
            e(f"""
            s_and_b32 s58, s21, 1
            s_add_u32 s58, s58, {T_WK}
            s_lshl_b32 s58, s58, 14
            s_add_u32 s58, s58, s{sROT}
            """)
        e.i(f"buffer_load_dwordx4 {rr((W_KV[0], W_KV[1] + 4*q), 4)}, v{vL16}, s[8:11], s58 offen offset:{q*1024}", vm=f"{tag}{q}")
        out.append(e)
    return out

def act_addr(st, vdst, tmp):
    st(f"""
    s_lshl_b32 s23, s21, 11
    s_lshr_b32 s28, s22, 1
    s_lshl_b32 s28, s28, 10
    s_add_u32 s23, s23, s28
    s_and_b32 s28, s22, 1
    s_lshl_b32 s28, s28, 9
    s_add_u32 s23, s23, s28
    v_lshrrev_b32 v{tmp}, 1, v{vG}
    v_lshlrev_b32 v{tmp}, 8, v{tmp}
    v_lshl_add_u32 v{tmp}, v{vT}, 4, v{tmp}
    v_and_b32 v{vdst}, 1, v{vG}
    v_lshl_add_u32 v{vdst}, v{vdst}, 3, v{tmp}
    v_add_u32 v{vdst}, s23, v{vdst}
    """)

def row_addr(st, vdst):
    st(f"""
    s_lshl_b32 s23, s21, 7
    s_lshl_b32 s28, s22, 5
    s_add_u32 s23, s23, s28
    v_lshlrev_b32 v{vdst}, 10, v{vT}
    v_lshl_add_u32 v{vdst}, v{vG}, 3, v{vdst}
    v_add_u32 v{vdst}, s23, v{vdst}
    """)

def colsum(st, dst, W, w_is_A, n=16):
    for jj in range(n):
        wreg = rr((W[0], W[1] + 4 * jj), 4)
        c = "0" if jj == 0 else vr(dst, 4)
        if w_is_A: st(f"v_mfma_f32_16x16x32_bf16 {vr(dst,4)}, {wreg}, {vr(vONES,4)}, {c}")
        else:      st(f"v_mfma_f32_16x16x32_bf16 {vr(dst,4)}, {vr(vONES,4)}, {wreg}, {c}")

def stats_setup(st, sb, regs=None):
    pb = sb + 2560; dummy = pb + 512
    vSTA, vSTW, vSTR, vPRR = regs or (44, 45, 46, 47)
    st(f"""
    v_lshrrev_b32 v{vTMP}, 2, v{vT}
    v_cmp_eq_u32 s[30:31], v{vTMP}, v{vG}
    v_lshlrev_b32 v{vSTW}, 5, v{vT}
    s_lshl_b32 s23, s22, 2
    s_add_u32 s23, s23, {sb}
    v_add_u32 v{vSTW}, s23, v{vSTW}
    v_mov_b32 v{vTMP}, {dummy}
    v_cndmask_b32_e64 v{vSTW}, v{vTMP}, v{vSTW}, s[30:31]
    v_lshlrev_b32 v{vSTR}, 5, v{vT}
    v_add_u32 v{vSTR}, {sb}, v{vSTR}
    s_lshl_b32 s23, s22, 7
    s_add_u32 s23, s23, {pb}
    v_lshlrev_b32 v{vSTA}, 2, v{vT}
    v_add_u32 v{vSTA}, s23, v{vSTA}
    v_lshlrev_b32 v{vPRR}, 4, v{vG}
    v_add_u32 v{vPRR}, s23, v{vPRR}
    s_mov_b32 s32, 0x22222222
    s_mov_b32 s33, 0x22222222
    s_mov_b32 s34, 0x44444444
    s_mov_b32 s35, 0x44444444
    s_mov_b32 s36, 0x88888888
    s_mov_b32 s37, 0x88888888
    """)
STAT_BYTES = 2560 + 512 + 2600

def stats_extract(e, s, vSG, vSS, t, tag, vSTW=45):
    e(f"""
    v_cndmask_b32_e64 v{t}, v{vSG}, v{vSG+1}, s[32:33]
    v_cndmask_b32_e64 v{t}, v{t}, v{vSG+2}, s[34:35]
    v_cndmask_b32_e64 v{t}, v{t}, v{vSG+3}, s[36:37]
    """)
    e.i(f"ds_write_b32 v{vSTW}, v{vSS} offset:{s*512}")
    e.i(f"ds_write_b32 v{vSTW}, v{t} offset:{s*512 + 16}", lds=tag)

def stats_read(e, s, a, tag, vSTR=46):
    e.i(f"ds_read_b128 {vr(a,4)}, v{vSTR} offset:{s*512}")
    e.i(f"ds_read_b128 {vr(a+4,4)}, v{vSTR} offset:{s*512+16}", lds=tag)

def stats_math(a, vR, vN):
    return f"""
    v_add_f32 v{a}, v{a}, v{a+1}
    v_add_f32 v{a+4}, v{a+4}, v{a+5}
    v_add_f32 v{a+2}, v{a+2}, v{a+3}
    v_add_f32 v{a+6}, v{a+6}, v{a+7}
    v_add_f32 v{a}, v{a}, v{a+2}
    v_add_f32 v{a+4}, v{a+4}, v{a+6}
    v_mul_f32 v{a}, {f32(1.0/512)}, v{a}
    v_mul_f32 v{a+4}, {f32(1.0/512)}, v{a+4}
    v_fma_f32 v{a+4}, -v{a}, v{a}, v{a+4}
    v_max_f32 v{a+4}, 0, v{a+4}
    v_add_f32 v{a+4}, {f32(1e-5)}, v{a+4}
    v_rsq_f32 v{vR}, v{a+4}
    v_sub_f32 v{a}, 0, v{a}
    v_mul_f32 v{vN}, v{a}, v{vR}
    """.strip().split("\n")

def ln_epi(e, acc, R, N, CS, pk, tmp):
    for r in range(4): e(f"v_mul_f32 v{tmp+r}, v{N[r]}, v{CS[r]}")
    for r in range(4): e(f"v_fma_f32 v{tmp+r}, v{acc+r}, v{R[r]}, v{tmp+r}")
    e(f"v_cvt_pk_bf16_f32 v{pk}, v{tmp}, v{tmp+1}")
    e(f"v_cvt_pk_bf16_f32 v{pk+1}, v{tmp+2}, v{tmp+3}")

def flag_value(st):
    st(f"v_mov_b32 v{vFLO}, s{sTLO}\nv_mov_b32 v{vFLO+1}, s{sTHI}")

vFLA = 61
def sync_publish(st, e, name, slow):
    st(f"""
    s_waitcnt vmcnt(0)
    s_barrier
    s_cmp_lg_u32 s22, 0
    s_cbranch_scc1 L_np{e}_{name}
    s_lshl_b32 s23, s20, 7
    s_lshl_b32 s28, s21, 3
    s_add_u32 s23, s23, s28
    s_add_u32 s23, s23, s{sFLAG}
    s_add_u32 s23, s23, {e*0x1000}
    v_mov_b32 v{vFLA}, 0
    """)
    flag_value(st)
    st(f"s_mov_b64 vcc, s[{slow}:{slow+1}]\ns_mov_b64 exec, 1")
    dstore(st, f"buffer_store_dwordx2 v[{vFLO}:{vFLO+1}], v{vFLA}, s[8:11], s23 offen")
    st("s_mov_b64 exec, -1")
    st.label(f"L_np{e}_{name}")

def poll_pairs(st, label, regs, loads, sleep=False):
    st(f"s_mov_b32 s{sSPIN}, 0x10000")
    st.label(label)
    if sleep: st("s_sleep 2")
    for l in loads: st(l)
    st("s_waitcnt vmcnt(0)")
    check_pairs(st, regs)
    st(f"""
    s_sub_u32 s{sSPIN}, s{sSPIN}, 1
    s_cmp_eq_u32 s{sSPIN}, 0
    s_cbranch_scc1 {label}_d
    s_cbranch_vccnz {label}
    """)
    st.label(label + "_d")

def check_pairs(st, regs):
    for k, r in enumerate(regs):
        if k == 0: st(f"v_cmp_ne_u32 vcc, s{sTLO}, v{r}")
        else: st(f"v_cmp_ne_u32 s[28:29], s{sTLO}, v{r}\ns_or_b64 vcc, vcc, s[28:29]")
        st(f"v_cmp_ne_u32 s[28:29], s{sTHI}, v{r+1}\ns_or_b64 vcc, vcc, s[28:29]")

def sync_wait(st, e, name, halo=False, slow=None):
    st(f"""
    v_and_b32 v{vFLA}, 7, v0
    v_lshlrev_b32 v{vFLA}, 3, v{vFLA}
    s_lshl_b32 s23, s20, 7
    """)
    if halo:
        st(f"""
        s_sub_u32 s28, s20, 1
        s_max_i32 s28, s28, 0
        s_lshl_b32 s28, s28, 7
        s_sub_u32 s28, s28, s23
        v_bfe_u32 v{vFLO}, v0, 3, 1
        v_mul_lo_u32 v{vFLO}, v{vFLO}, s28
        v_add_u32 v{vFLA}, v{vFLA}, v{vFLO}
        """)
    st(f"""
    v_add_u32 v{vFLA}, s23, v{vFLA}
    s_add_u32 s23, s{sFLAG}, {e*0x1000}
    """)
    poll_pairs(st, f"L_poll{e}_{name}", [vFLO], [f"buffer_load_dwordx2 v[{vFLO}:{vFLO+1}], v{vFLA}, s[8:11], s23 offen sc1"])
    if slow is not None: st(f"s_mov_b64 vcc, s[{slow}:{slow+1}]")
    stamp(st)

def wg_flag_store(e, off_expr, lo_add=None, regs=None, replicas=1):
    vA, vV = regs or (61, 62)
    e(f"""
    s_lshl_b32 s28, s20, 3
    s_add_u32 s28, s28, s21
    s_lshl_b32 s28, s28, 3
    s_add_u32 s28, s28, {off_expr}
    v_lshlrev_b32 v{vA}, 11, v0
    v_mov_b32 v{vV}, s{sTLO if lo_add is None else lo_add}
    v_mov_b32 v{vV+1}, s{sTHI}
    s_cmp_eq_u32 s22, 0
    s_cselect_b64 exec, {(1 << replicas) - 1 if replicas < 7 else hex((1 << replicas) - 1)}, 0
    """)
    e.i(f"buffer_store_dwordx2 v[{vV}:{vV+1}], v{vA}, s[8:11], s28 offen sc1")
    e("s_mov_b64 exec, -1")

def w0_exec(e):
    e("s_cmp_eq_u32 s22, 0\ns_cselect_b64 exec, -1, 0")

vXCA, vXCV = 13, 14
def xcc_publish(st):
    if not FAST: return
    st(f"""
    s_getreg_b32 s39, hwreg(HW_REG_XCC_ID)
    s_and_b32 s39, s39, 7
    s_add_u32 s39, s39, 16
    s_add_u32 s39, s39, s{sTLO}
    """)
    wg_flag_store(st, f"{XCCT}", lo_add=39)
    st(f"s_mov_b32 s{sXCC}, s39")
sXCC = 95

def xcc_issue():
    e = St()
    e(f"""
    v_and_b32 v{vXCA}, 7, v0
    s_add_u32 s28, s20, 1
    s_min_u32 s28, s28, 31
    s_sub_u32 s28, s28, s20
    s_lshl_b32 s28, s28, 3
    v_bfe_u32 v{vXCV}, v0, 3, 1
    v_mul_lo_u32 v{vXCV}, v{vXCV}, s28
    v_add_u32 v{vXCA}, v{vXCA}, v{vXCV}
    s_lshl_b32 s28, s20, 3
    v_add_u32 v{vXCA}, s28, v{vXCA}
    v_lshlrev_b32 v{vXCA}, 3, v{vXCA}
    s_mov_b32 s38, {XCCT}
    """)
    e2 = St()
    e2.i(f"buffer_load_dwordx2 v[{vXCV}:{vXCV+1}], v{vXCA}, s[8:11], s38 offen sc1", vm="xcc")
    return [e, e2]

def xcc_check(st, name):
    if not FAST:
        st(f"s_mov_b64 s[{sSLOWA}:{sSLOWA+1}], -1\ns_mov_b64 s[{sSLOWB}:{sSLOWB+1}], -1"); return
    def chk():
        st(f"""
        v_subrev_u32 v9, s{sTLO}, v{vXCV}
        v_subrev_u32 v9, 16, v9
        v_cmp_le_u32 vcc, 8, v9
        v_cmp_ne_u32 s[28:29], s{sTHI}, v{vXCV+1}
        s_or_b64 vcc, vcc, s[28:29]
        """)
    st.wv("xcc")
    chk()
    st(f"s_mov_b32 s{sSPIN}, 0x10000\ns_cbranch_vccz L_xd_{name}")
    st.label(f"L_xp_{name}")
    st(f"buffer_load_dwordx2 v[{vXCV}:{vXCV+1}], v{vXCA}, s[8:11], s38 offen sc1\ns_waitcnt vmcnt(0)")
    chk()
    st(f"""
    s_sub_u32 s{sSPIN}, s{sSPIN}, 1
    s_cmp_eq_u32 s{sSPIN}, 0
    s_cbranch_scc1 L_xd_{name}
    s_cbranch_vccnz L_xp_{name}
    """)
    st.label(f"L_xd_{name}")
    st(f"""
    v_cmp_ne_u32 s[{sSLOWB}:{sSLOWB+1}], s{sXCC}, v{vXCV}
    s_nop 1
    s_and_b32 s{sSLOWA}, s{sSLOWB}, 0xff
    s_mov_b32 s{sSLOWA+1}, 0
    """)
    if "forceslow" in OPT:
        st(f"s_mov_b64 s[{sSLOWA}:{sSLOWA+1}], -1\ns_mov_b64 s[{sSLOWB}:{sSLOWB+1}], -1")

def dma_slots(st, ns, xb, sSrc, tile_of_slot, tag):
    st(f"""
    s_mul_i32 s25, s22, {ns*4096}
    s_add_u32 s25, s25, {xb}
    s_lshl_b32 s24, s22, 12
    s_add_u32 s24, s24, {sSrc}
    """)
    slots = []
    for s in range(ns):
        L = []
        for q in range(4):
            e = St()
            if q == 0:
                tile_of_slot(e, s)
                e(f"s_lshl_b32 s23, s23, 14\ns_add_u32 s27, s23, s24\ns_add_u32 m0, s25, {s*4096}")
            e.i(f"buffer_load_dwordx4 v{vL16}, s[8:11], s27 offen offset:{q*1024} sc1 lds", vm=f"{tag}{s}_{q}")
            L.append(e)
        slots.append(L)
    return slots

def gemm_steps(ns, chains, tagx, dma, upfront, stats=None, fine=None, wtags=None, pre_mid=None):
    steps = []
    total = ns * 16
    def rd(idx):
        s, jj = divmod(idx, 16)
        return f"ds_read_b128 {vr(vRING + 4*(idx % RING), 4)}, v{vXA + (jj >> 2)} offset:{s*4096 + (jj & 3)*1024}"
    pre = St()
    for s in range(upfront):
        for e in dma[s]: pre.ext(e)
        if s == 0 and pre_mid is not None: pre.ext(pre_mid)
        if s + 1 < upfront: pre("s_barrier")
    stamp(pre, fine)
    steps.append(pre)
    pre2 = St()
    pre2.wv(f"{tagx}0_3")
    pre2("s_barrier")
    stamp(pre2, fine)
    for idx in range(RING): pre2.i(rd(idx), lds=f"x{idx}")
    steps.append(pre2)
    for idx in range(total):
        s, jj = divmod(idx, 16)
        stp = St()
        ring = vRING + 4 * (idx % RING)
        if wtags and s == 0 and jj % 4 == 0: stp.wv(wtags[jj // 4])
        if idx % 2 == 0: stp.wl(f"x{min(idx+1, total-1)}")
        for (acc, w, w_is_A) in chains(s):
            wreg = rr((w[0], w[1] + 4 * jj), 4)
            c = "0" if jj == 0 and acc[1] else vr(acc[0], 4)
            if w_is_A: stp(f"v_mfma_f32_16x16x32_bf16 {vr(acc[0],4)}, {wreg}, {vr(ring,4)}, {c}")
            else:      stp(f"v_mfma_f32_16x16x32_bf16 {vr(acc[0],4)}, {vr(ring,4)}, {wreg}, {c}")
        if stats and jj < 4:
            sg, ss = stats(s)
            stp(f"v_mfma_f32_16x16x32_bf16 {vr(sg,4)}, {vr(ring,4)}, {vr(ring,4)}, {'0' if jj == 0 else vr(sg,4)}")
            stp(f"v_mfma_f32_16x16x32_bf16 {vr(ss,4)}, {vr(vONES,4)}, {vr(ring,4)}, {'0' if jj == 0 else vr(ss,4)}")
        nxt = idx + RING
        if nxt < total:
            if nxt % 16 == 0:
                stp.it.append(("mark", f"bar{s}", None, None))
                stp.wv(f"{tagx}{nxt//16}_3")
                stp("s_barrier")
            stp.i(rd(nxt), lds=f"x{nxt}")
        sd = s + upfront
        if sd < ns and jj < 4: stp.ext(dma[sd][jj])
        if jj == 15 or jj == 7: stamp(stp, fine)
        steps.append(stp)
    return steps

def weave2(steps, progs, per=2):
    out = St()
    qs = [list(p) for p in progs]
    skip = [0] * len(qs)
    def emit_forced(name):
        for qi, q in enumerate(qs):
            last = max([i for i, (ms, it) in enumerate(q) if it[0] == "before" and it[1] == name], default=-1)
            for _ in range(last + 1):
                ms, it = q.pop(0)
                if it[0] not in ("gap", "before"): out.it.append(it)
    for si, stp in enumerate(steps):
        for it in stp.it:
            if it[0] == "mark":
                emit_forced(it[1]); continue
            out.it.append(it)
            if it[0] == "i" and it[1].startswith("v_mfma"):
                n = 0
                for qi, q in enumerate(qs):
                    if skip[qi] > 0:
                        skip[qi] -= 1; continue
                    while q and n < per and q[0][0] <= si:
                        ms, x = q.pop(0)
                        if x[0] == "gap":
                            skip[qi] = x[1]; break
                        if x[0] == "before": continue
                        out.it.append(x)
                        if x[0] in ("i", "grp", "grpv"): n += 1
    for q in qs:
        for ms, x in q:
            if x[0] not in ("gap", "before"): out.it.append(x)
    return out

def prog(ms, st_): return [(ms, it) for it in st_.it]
def strip_marks(st_):
    o = St(); o.it = [it for it in st_.it if it[0] != "mark"]; return o

def phase_kv(st, name, layer_out, src, kvb):
    XR = 64
    accK, accV, csK, csV, SG, SS = 80, 84, 88, 92, 96, 100
    vA0, vA1, vKW, vKR = 104, 105, 106, 107
    t = vTMP
    sb = kvb + 8192
    kA, kW, kR, kP = 28, 29, 30, 31
    stats_setup(st, sb, (kA, kW, kR, kP))
    st(f"""
    s_lshl_b32 s26, s20, 2
    s_lshr_b32 s28, s21, 1
    s_add_u32 s26, s26, s28
    s_bitcmp1_b32 s21, 0
    s_cselect_b64 s[38:39], -1, 0
    """)
    def xloads(e):
        if src == "row":
            e(f"""
            v_lshlrev_b32 v{t+12}, 10, v{vT}
            v_lshl_add_u32 v{t+12}, v{vG}, 4, v{t+12}
            s_lshl_b32 s23, s26, 14
            s_lshl_b32 s28, s22, 8
            s_add_u32 s23, s23, s28
            """)
            for q in range(4):
                e.i(f"buffer_load_dwordx4 {vr(XR+4*q,4)}, v{t+12}, s[12:15], s23 offen offset:{q*64}", vm=f"xk{q}")
        else:
            e(f"""
            s_lshl_b32 s23, s26, 14
            s_lshl_b32 s28, s22, 12
            s_add_u32 s23, s23, s28
            s_add_u32 s23, s23, {B0 + BS*layer_out + XIN}
            """)
            for q in range(4):
                e.i(f"buffer_load_dwordx4 {vr(XR+4*q,4)}, v{vL16}, s[8:11], s23 offen offset:{q*1024} sc1", vm=f"xk{q}")
    def setup(e):
        e(f"""
        s_bitcmp1_b32 s21, 0
        s_cselect_b64 s[38:39], -1, 0
        v_lshrrev_b32 v{t}, 1, v{vG}
        v_and_b32 v{t+1}, 1, v{vG}
        v_lshlrev_b32 v{t+2}, 9, v{t}
        v_lshl_add_u32 v{t+2}, v{vT}, 4, v{t+2}
        v_lshl_add_u32 v{t+2}, v{t+1}, 3, v{t+2}
        v_lshlrev_b32 v{t+4}, 8, v{t+1}
        v_lshl_add_u32 v{t+4}, v{vT}, 4, v{t+4}
        v_lshl_add_u32 v{t+4}, v{t}, 3, v{t+4}
        v_cndmask_b32_e64 v{vA0}, v{t+2}, v{t+4}, s[38:39]
        s_lshl_b32 s23, s22, 11
        s_add_u32 s23, s23, {kvb}
        v_add_u32 v{vKW}, s23, v{vL16}
        v_add_u32 v{vKR}, {kvb}, v{vL16}
        s_lshr_b32 s23, s26, 1
        s_lshl_b32 s23, s23, 10
        s_and_b32 s28, s26, 1
        s_lshl_b32 s29, s28, 8
        s_add_u32 s29, s29, {KF0 + KVS*layer_out}
        s_lshl_b32 s28, s28, 9
        s_add_u32 s28, s28, {VF0 + KVS*layer_out}
        s_bitcmp1_b32 s21, 0
        s_cselect_b32 s28, s28, s29
        s_add_u32 s59, s23, s28
        """)
    def cs(e):
        for jj in range(4):
            w = rr((W_KV[0], W_KV[1] + 4 * jj), 4)
            e(f"v_mfma_f32_16x16x32_bf16 {vr(csK,4)}, {w}, {vr(vONES,4)}, {'0' if jj == 0 else vr(csK,4)}")
            e(f"v_mfma_f32_16x16x32_bf16 {vr(csV,4)}, {vr(vONES,4)}, {w}, {'0' if jj == 0 else vr(csV,4)}")
        for r in range(4): e(f"v_cndmask_b32_e64 v{csK+r}, v{csK+r}, v{csV}, s[38:39]")
        e.i(f"ds_write_b128 v{vKW}, {vr(csK,4)} offset:1024")
    def main(e):
        for q in range(4):
            e.wv(f"xk{q}")
            w = rr((W_KV[0], W_KV[1] + 4 * q), 4); x = vr(XR + 4 * q, 4)
            z = lambda r: "0" if q == 0 else vr(r, 4)
            e(f"v_mfma_f32_16x16x32_bf16 {vr(SG,4)}, {x}, {x}, {z(SG)}")
            e(f"v_mfma_f32_16x16x32_bf16 {vr(SS,4)}, {vr(vONES,4)}, {x}, {z(SS)}")
            e(f"v_mfma_f32_16x16x32_bf16 {vr(accK,4)}, {w}, {x}, {z(accK)}")
            e(f"v_mfma_f32_16x16x32_bf16 {vr(accV,4)}, {x}, {w}, {z(accV)}")
        stats_extract(e, 0, SG, SS, t, "ksw", kW)
        for r in range(4): e(f"v_cndmask_b32_e64 v{accK+r}, v{accK+r}, v{accV+r}, s[38:39]")
        e.i(f"ds_write_b128 v{vKW}, {vr(accK,4)}", lds="kaw")
        e("s_waitcnt lgkmcnt(0)\ns_barrier")
        stats_read(e, 0, t, "ksr", kR)
        F = 108
        for w in range(4): e.i(f"ds_read_b128 {vr(F+4*w,4)}, v{vKR} offset:{w*2048}")
        for w in range(4): e.i(f"ds_read_b128 {vr(F+16+4*w,4)}, v{vKR} offset:{w*2048+1024}", lds=f"kr{w}")
        e.wl("ksr")
        R, N = 140, 141
        for x in stats_math(t, R, N): e(x)
        e.i(f"ds_write_b32 v{kA}, v{R}")
        e.i(f"ds_write_b32 v{kA}, v{N} offset:64", lds="kpw")
        e.wl("kpw")
        R4, N4 = 144, 148
        e.i(f"ds_read_b128 {vr(R4,4)}, v{kP}")
        e.i(f"ds_read_b128 {vr(N4,4)}, v{kP} offset:64", lds="kpr")
        for b in (F, F + 16):
            for r in range(4): e(f"v_add_f32 v{b+r}, v{b+r}, v{b+4+r}\nv_add_f32 v{b+8+r}, v{b+8+r}, v{b+12+r}")
            for r in range(4): e(f"v_add_f32 v{b+r}, v{b+r}, v{b+8+r}")
        e.wl("kpr")
        for r in range(4):
            e(f"v_cndmask_b32_e64 v{R4+r}, v{R}, v{R4+r}, s[38:39]\nv_cndmask_b32_e64 v{N4+r}, v{N}, v{N4+r}, s[38:39]")
        ln_epi(e, F, [R4+r for r in range(4)], [N4+r for r in range(4)], [F+16+r for r in range(4)], 152, 154)
        e("s_cmp_eq_u32 s22, 0\ns_cselect_b64 exec, -1, 0")
        e.i(f"buffer_store_dwordx2 v[152:153], v{vA0}, s[8:11], s59 offen sc1", vm="kvst")
        e("s_mov_b64 exec, -1")
    return xloads, setup, cs, main

LDS_K, LDS_V, VS = 0, 65536, 1056
XB_Q = 74752
SB_Q = XB_Q + 65536
SA, SB, OA_, OB_ = 16, 32, 48, 64
PA, PB, QA, QB, KB, VB = 80, 88, 96, 100, 104, 112
vK, vV0, vV1 = 2, 3, 4

def kv_group(gi, tag):
    out = []
    e = St(); e(f"s_add_u32 s23, s34, {gi*8192}\ns_add_u32 m0, s36, {gi*8192}")
    e.i(f"buffer_load_dwordx4 v{vL16}, s[8:11], s23 offen sc1 lds"); out.append(e)
    e = St(); e.i(f"buffer_load_dwordx4 v{vL16}, s[8:11], s23 offen offset:1024 sc1 lds"); out.append(e)
    e = St(); e(f"s_add_u32 s23, s35, {gi*8192}\ns_add_u32 m0, s37, {gi*8*VS}")
    e.i(f"buffer_load_dwordx4 v{vL16}, s[8:11], s23 offen sc1 lds"); out.append(e)
    e = St(); e(f"s_add_u32 m0, s37, {gi*8*VS + VS - 1024}")
    e.i(f"buffer_load_dwordx4 v{vL16}, s[8:11], s23 offen offset:1024 sc1 lds", vm=tag); out.append(e)
    return out

KVB = 147456
MAIN_LDS = 163840
vB0, vB1 = 158, 162
A_WQ, A_WKV, A_PREP, A_XC = 0, 64, 80, 92

def transpose(e, src, dst, tmp=16):
    e(f"v_mfma_f32_16x16x32_bf16 {vr(tmp,4)}, {src}, {vr(vB0,4)}, 0")
    e(f"v_mfma_f32_16x16x32_bf16 {vr(tmp+4,4)}, {src}, {vr(vB1,4)}, 0")
    e(f"""
    v_cvt_pk_bf16_f32 v{dst}, v{tmp}, v{tmp+1}
    v_cvt_pk_bf16_f32 v{dst+1}, v{tmp+2}, v{tmp+3}
    v_cvt_pk_bf16_f32 v{dst+2}, v{tmp+4}, v{tmp+5}
    v_cvt_pk_bf16_f32 v{dst+3}, v{tmp+6}, v{tmp+7}
    """)

def q_setup(st):
    xa_setup(st, 4, XB_Q)
    stats_setup(st, SB_Q)

def q_dma_act(st):
    dma = dma_slots(st, 4, XB_Q, f"s{sXIN}", lambda e, s: e(f"s_add_u32 s23, s26, {s}"), "xq")
    return dma

def phase_q(st, name, dma):
    ns = 4
    acc, vCS = 64, 124
    SGs = [80, 84, 88, 92]; SSs = [104, 108, 112, 116]
    steps = gemm_steps(ns, lambda s: [((acc + 4 * s, True), W_QA, True)], "xq", [[], [], dma[2], dma[3]], 2,
                       stats=lambda s: (SGs[s], SSs[s]), fine="q")
    pa = []
    for s in range(ns):
        e = St(); stats_extract(e, s, SGs[s], SSs[s], vTMP, f"qsw{s}")
        pa += prog(16 * s + 6, e)
    pub = St(); pub.wv("kvst")
    pub(f"s_lshl_b32 s29, s{sL}, 14\ns_add_u32 s29, s29, {KVFL}")
    g = St(); wg_flag_store(g, "s29", replicas=8)
    pub.it.append(("grpv", [it[1] for it in g.it], None, None))
    ld = [f"buffer_load_dwordx4 v[128:131], v60, s[8:11], s47 offen sc1", f"buffer_load_dwordx4 v[132:135], v60, s[8:11], s47 offen offset:16 sc1"]
    look = St()
    look(f"""
    v_lshlrev_b32 v60, 5, v0
    s_lshl_b32 s47, s{sL}, 14
    s_add_u32 s47, s47, {KVFL}
    s_lshr_b32 s28, s20, 2
    s_lshl_b32 s28, s28, 11
    s_add_u32 s47, s47, s28
    """)
    look.it.append(("grpv", ["s_cmp_eq_u32 s22, 0", "s_cselect_b64 exec, -1, 0", ld[0], ld[1], "s_mov_b64 exec, -1"], None, None))
    csum = St(); colsum(csum, vCS, W_QA, True)
    PUBS = int(os.environ.get("PUBS", "12")); LOOK = int(os.environ.get("LOOKS", "56"))
    body = St()
    body.ext(steps[1])
    body.ext(strip_marks(weave2(steps[2:], [pa, prog(PUBS, pub) + prog(LOOK, look), prog(4, csum)], per=1)))
    st.ext(body)
    st("s_waitcnt lgkmcnt(0)\ns_barrier")
    A8 = [16, 24, 32, 40]
    for s in range(ns): stats_read(st, s, A8[s], f"qsr{s}")
    stamp(st)
    st("s_waitcnt vmcnt(0)")
    w0_exec(st)
    check_pairs(st, [128, 130, 132, 134])
    st(f"s_cbranch_vccz L_kvok_{name}")
    poll_pairs(st, f"L_kvp_{name}", [128, 130, 132, 134], ld, sleep=True)
    st.label(f"L_kvok_{name}")
    st("s_mov_b64 exec, -1\ns_barrier")
    st(f"""
    s_lshl_b32 s36, s22, 11
    s_add_u32 s34, s36, s{sKF}
    s_add_u32 s35, s36, s{sVF}
    s_mul_i32 s37, s22, {2*VS}
    s_add_u32 s37, s37, {LDS_V}
    """)
    for e in kv_group(0, "c0"): st.ext(e)
    R = [48 + s for s in range(ns)]; N = [52 + s for s in range(ns)]
    st.wl("qsr3")
    maths = [stats_math(A8[s], R[s], N[s]) for s in range(ns)]
    for i in range(len(maths[0])):
        for s in range(ns): st(maths[s][i])
    for s in range(ns):
        st(f"v_mul_f32 v{R[s]}, {f32(CQ)}, v{R[s]}\nv_mul_f32 v{N[s]}, {f32(CQ)}, v{N[s]}")
    for s in range(ns):
        ln_epi(st, acc + 4 * s, [R[s]] * 4, [N[s]] * 4, [vCS + r for r in range(4)], QA + 2 * s, 16 + 4 * s)
    st(f"""
    v_permlane16_swap_b32 v{QA}, v{QA+2}
    v_permlane16_swap_b32 v{QA+1}, v{QA+3}
    v_permlane16_swap_b32 v{QB}, v{QB+2}
    v_permlane16_swap_b32 v{QB+1}, v{QB+3}
    """)

def phase_att(st, name):
    st(f"""
    v_mov_b32 v{vK}, v{vL16}
    v_and_b32 v5, 31, v0
    v_lshrrev_b32 v6, 5, v0
    v_lshlrev_b32 v7, 8, v6
    v_lshl_add_u32 v7, v5, 4, v7
    v_add_u32 v7, {LDS_V}, v7
    v_mov_b32 v16, {LDS_V + 1024 + 16}
    v_mov_b32 v17, {LDS_V + 1024}
    v_and_b32 v18, 27, v5
    v_cmp_eq_u32 s[28:29], 16, v18
    v_cndmask_b32_e64 v16, v16, v17, s[28:29]
    v_cmp_gt_u32 s[28:29], 16, v5
    v_cndmask_b32_e64 v{vV0}, v16, v7, s[28:29]
    v_add_u32 v7, 512, v7
    v_cndmask_b32_e64 v{vV1}, v16, v7, s[28:29]
    v_mov_b32 v16, 0x3f803f80
    v_mov_b32 v17, v16
    v_mov_b32 v18, v16
    v_mov_b32 v19, v16
    v_mul_u32_u24 v20, {VS}, v0
    v_add_u32 v20, {LDS_V + 1024}, v20
    s_cmp_lg_u32 s22, 0
    s_cbranch_scc1 L_noones_{name}
    ds_write_b128 v20, v[16:19]
    v_mov_b32 v16, 0
    v_mov_b32 v17, 0
    v_mov_b32 v18, 0
    v_mov_b32 v19, 0
    ds_write_b128 v20, v[16:19] offset:16
    """)
    st.label(f"L_noones_{name}")
    st(f"""
    v_and_b32 v9, 15, v0
    v_lshrrev_b32 v10, 4, v0
    s_lshl_b32 s23, s21, 11
    s_lshr_b32 s28, s22, 1
    s_lshl_b32 s28, s28, 10
    s_add_u32 s23, s23, s28
    s_and_b32 s28, s22, 1
    s_lshl_b32 s28, s28, 9
    s_add_u32 s23, s23, s28
    v_lshrrev_b32 v11, 1, v10
    v_lshlrev_b32 v11, 8, v11
    v_lshl_add_u32 v11, v9, 4, v11
    v_and_b32 v8, 1, v10
    v_lshl_add_u32 v8, v8, 3, v11
    v_add_u32 v8, s23, v8
    s_lshl_b32 s59, s20, 16
    s_add_u32 s59, s59, s{sXIN}
    """)
    def init_acc(s):
        for r in range(16): s(f"v_mov_b32 v{OA_+r}, 0\nv_mov_b32 v{OB_+r}, 0")
    def rdK(t, base): return f"ds_read_b128 {vr(KB + 4*(t&1),4)}, v{vK} offset:{(t-base)*1024}"
    def rdV(t, base):
        b = VB + 8 * (t & 1)
        return [f"ds_read_b128 {vr(b,4)}, v{vV0} offset:{(t-base)*VS}", f"ds_read_b128 {vr(b+4,4)}, v{vV1} offset:{(t-base)*VS}"]
    def qk(S, t, Q): return f"v_mfma_f32_32x32x16_bf16 {vr(S,16)}, {vr(KB + 4*(t&1),4)}, {vr(Q,4)}, 0"
    def pv(O, t, P):
        b = VB + 8 * (t & 1)
        return [f"v_mfma_f32_32x32x16_bf16 {vr(O,16)}, {vr(b,4)}, {vr(P,4)}, {vr(O,16)}",
                f"v_mfma_f32_32x32x16_bf16 {vr(O,16)}, {vr(b+4,4)}, {vr(P+4,4)}, {vr(O,16)}"]
    def softmax(S, P, M):
        ins = []
        if M is not None:
            for r in range(16): ins.append(f"v_sub_f32 v{S+r}, v{S+r}, v{M}")
        for i in range(8):
            ins.append(f"v_exp_f32 v{S+2*i}, v{S+2*i}")
            ins.append(f"v_exp_f32 v{S+2*i+1}, v{S+2*i+1}")
            if i > 0: ins.append(f"v_cvt_pk_bf16_f32 v{P+i-1}, v{S+2*i-2}, v{S+2*i-1}")
        ins.append(f"v_cvt_pk_bf16_f32 v{P+7}, v{S+14}, v{S+15}")
        return ins
    def mix(s, valu, groups):
        n = len(valu); k = len(groups)
        for j in range(k):
            for x in groups[j]:
                if isinstance(x, St): s.ext(x)
                else: s(x)
            for x in valu[j * n // k:(j + 1) * n // k]: s(x)
    def iteration(s, t, nt, base, extras, safe=None, first=False, rolled=False):
        MA, MB = safe if safe else (None, None)
        ex = list(extras)
        def pop(): return [ex.pop(0)] if ex else []
        g1 = [[qk(SB, t, QB)] + ([rdK(t + 2, base)] if (rolled or t + 2 < nt) else [])]
        pvb = [] if first else pv(OB_, t - 1, PB)
        rv = rdV(t + 1, base) if (rolled or t + 1 < nt) else []
        if pvb:
            g1.append([pvb[0]] + rv[:1]); g1.append([pvb[1]] + rv[1:])
        else:
            g1.append(rv)
        mix(s, softmax(SA, PA, MA), g1)
        pva = pv(OA_, t, PA)
        g2 = [([qk(SA, t + 1, QA)] if (rolled or t + 1 < nt) else []) + pop(), [pva[0]] + pop(), [pva[1], "s_waitcnt lgkmcnt(0)"]]
        mix(s, softmax(SB, PB, MB), g2)
        for x in ex: s.ext(x)
    def first_reads(s):
        s(rdK(0, 0)); s(rdK(1, 0))
        for x in rdV(0, 0): s(x)
        s("s_waitcnt lgkmcnt(0)")
        s(qk(SA, 0, QA))
    init_acc(st)
    st.wv("c0")
    st("s_waitcnt lgkmcnt(0)\ns_barrier")
    first_reads(st)
    stamp(st)
    extras = {t: [] for t in range(64)}
    for gi in range(1, 8): extras[gi - 1] += kv_group(gi, f"kv{gi}")
    pre = []
    pre += w_loads(W_O, T_WOA, "woa")
    for q in range(4):
        e = St()
        if q: e("s_add_u32 s59, s59, 16384")
        e.i(f"buffer_load_dwordx2 {vr(vRES+2*q,2)}, v8, s[8:11], s59 offen sc1"); pre.append(e)
    pre += w_loads(W_Q2, T_WQKV, "wq2")
    pre += w_loads(W_K2, T_WQKV + 32, "wk2")
    pre += w_loads(W_V2, T_WQKV + 64, "wv2")
    if FAST: pre += xcc_issue()
    t = 14
    while pre:
        extras[t] += pre[:2]; pre = pre[2:]; t += 1
    warm = []
    if "nowarm" not in OPT:
        e = St()
        e(f"""
        v_lshrrev_b32 v9, 4, v0
        v_bfe_u32 v10, v0, 2, 2
        v_and_b32 v11, 3, v0
        v_lshlrev_b32 v10, 14, v10
        v_lshl_add_u32 v10, v11, 7, v10
        s_lshl_b32 s28, s21, 11
        s_lshl_b32 s29, s22, 9
        s_add_u32 s28, s28, s29
        s_lshl_b32 s29, s20, 16
        s_add_u32 s28, s28, s29
        v_add_u32 v10, s28, v10
        v_add_u32 v9, 1, v9
        v_lshlrev_b32 v9, 21, v9
        v_add_u32 v10, v10, v9
        """)
        e.i(f"buffer_load_dword v253, v10, s[8:11], s{sXIN} offen".replace("v253", "v5"))
        warm = [e]
    WT = int(os.environ.get("WARMT", t))
    extras[WT] += warm
    assert t <= 62
    base = 0
    for t in range(64):
        if t == 6: st.wv("kv1"); st("s_barrier")
        if t == 14: st.wv("kv7"); st("s_barrier")
        if t == 32:
            st(f"v_add_u32 v{vK}, {32*1024}, v{vK}\nv_add_u32 v{vV0}, {32*VS}, v{vV0}\nv_add_u32 v{vV1}, {32*VS}, v{vV1}")
            base = 32
        iteration(st, t, 64, base, extras[t], first=(t == 0))
    stamp(st)
    def tail(s):
        for x in pv(OB_, 63, PB): s(x)
    lA, lB = OA_ + 8, OB_ + 8
    tail(st)
    xcc_check(st, name)
    st(f"v_mul_f32 v9, 0, v{OA_}\nv_mul_f32 v10, 0, v{OB_}")
    for r in range(1, 8):
        st(f"v_fma_f32 v9, v{OA_+r}, 0, v9\nv_fma_f32 v10, v{OB_+r}, 0, v10")
    st(f"""
    v_add_f32 v9, v9, v10
    v_min_f32 v10, v{lA}, v{lB}
    v_max_f32 v11, v{lA}, v{lB}
    v_add_f32 v10, v10, v9
    v_add_f32 v11, v11, v9
    v_cmp_u_f32 s[28:29], v{lA}, v{lB}
    v_mov_b32 v20, {f32(2.0**-40)}
    v_cmp_nge_f32 vcc, v10, v20
    s_or_b64 s[28:29], s[28:29], vcc
    v_mov_b32 v20, {f32(2.0**100)}
    v_cmp_nle_f32 vcc, v11, v20
    s_or_b64 s[28:29], s[28:29], vcc
    s_cmp_eq_u64 s[28:29], 0
    s_cbranch_scc1 L_attok_{name}
    """)
    MA, MB = 9, 10
    st(f"""
    v_subrev_u32 v{vK}, {32*1024}, v{vK}
    v_subrev_u32 v{vV0}, {32*VS}, v{vV0}
    v_subrev_u32 v{vV1}, {32*VS}, v{vV1}
    v_mov_b32 v{MA}, {f32(-3.0e38)}
    v_mov_b32 v{MB}, {f32(-3.0e38)}
    v_mov_b32 v11, v{vK}
    s_mov_b32 s44, 0
    """)
    st.label(f"L_max_{name}")
    st(f"""
    ds_read_b128 {vr(KB,4)}, v11
    s_waitcnt lgkmcnt(0)
    v_mfma_f32_32x32x16_bf16 {vr(SA,16)}, {vr(KB,4)}, {vr(QA,4)}, 0
    v_mfma_f32_32x32x16_bf16 {vr(SB,16)}, {vr(KB,4)}, {vr(QB,4)}, 0
    v_add_u32 v11, 1024, v11
    """)
    for r in range(0, 16, 2): st(f"v_max3_f32 v{MA}, v{MA}, v{SA+r}, v{SA+r+1}")
    for r in range(0, 16, 2): st(f"v_max3_f32 v{MB}, v{MB}, v{SB+r}, v{SB+r+1}")
    st(f"""
    s_add_u32 s44, s44, 1
    s_cmp_lt_u32 s44, 64
    s_cbranch_scc1 L_max_{name}
    v_mov_b32 v11, v{MA}
    v_permlane32_swap_b32 v11, v{MA}
    v_max_f32 v{MA}, v{MA}, v11
    v_mov_b32 v11, v{MB}
    v_permlane32_swap_b32 v11, v{MB}
    v_max_f32 v{MB}, v{MB}, v11
    """)
    init_acc(st)
    for r in range(8): st(f"v_mov_b32 v{PB+r}, 0\nv_mov_b32 v{VB+8+r}, 0")
    first_reads(st)
    st("s_mov_b32 s44, 0")
    st.label(f"L_att2_{name}")
    for u in range(2):
        iteration(st, u + 2, 64, 2, [], safe=(MA, MB), rolled=True)
    st(f"""
    v_add_u32 v{vK}, {2*1024}, v{vK}
    v_add_u32 v{vV0}, {2*VS}, v{vV0}
    v_add_u32 v{vV1}, {2*VS}, v{vV1}
    s_add_u32 s44, s44, 1
    s_cmp_lt_u32 s44, 32
    s_cbranch_scc1 L_att2_{name}
    """)
    tail(st)
    st.label(f"L_attok_{name}")
    st(f"""
    s_lshl_b32 s23, s21, 11
    s_lshr_b32 s24, s22, 1
    s_lshl_b32 s24, s24, 10
    s_add_u32 s23, s23, s24
    s_and_b32 s24, s22, 1
    s_lshl_b32 s24, s24, 9
    s_add_u32 s23, s23, s24
    s_lshl_b32 s24, s20, 16
    s_add_u32 s23, s23, s24
    s_add_u32 s23, s23, s{sOA}
    v_and_b32 v9, 15, v0
    v_lshlrev_b32 v9, 4, v9
    v_lshrrev_b32 v10, 5, v0
    v_lshl_add_u32 v9, v10, 3, v9
    v_bfe_u32 v10, v0, 4, 1
    v_lshl_add_u32 v9, v10, 14, v9
    v_rcp_f32 v11, v{lA}
    v_rcp_f32 v12, v{lB}
    s_mov_b64 vcc, s[{sSLOWA}:{sSLOWA+1}]
    """)
    for qb, O, rc in ((0, OA_, 11), (1, OB_, 12)):
        for r in range(8): st(f"v_mul_f32 v{O+r}, v{O+r}, v{rc}")
        p = 16 + 4 * qb
        st(f"""
        v_cvt_pk_bf16_f32 v{p}, v{O}, v{O+1}
        v_cvt_pk_bf16_f32 v{p+1}, v{O+2}, v{O+3}
        v_cvt_pk_bf16_f32 v{p+2}, v{O+4}, v{O+5}
        v_cvt_pk_bf16_f32 v{p+3}, v{O+6}, v{O+7}
        """)
        dstore(st, f"buffer_store_dwordx2 {vr(p,2)}, v9, s[8:11], s23 offen")
        dstore(st, f"buffer_store_dwordx2 {vr(p+2,2)}, v9, s[8:11], s23 offen offset:256")
        if qb == 0: st("s_add_u32 s23, s23, 32768")

def phase_p13(st, name, which):
    ns = 4
    slow = sSLOWB if which == 1 else sSLOWA
    lane_consts(st)
    xa_setup(st, ns, 0)
    st("s_lshl_b32 s26, s20, 2")
    tag = f"x{which}"
    vActA, vRowA = 44, 45
    act_addr(st, vActA, vTMP)
    acc = 64
    for s in range(ns):
        a = acc + 4 * s
        st(f"""
        v_lshlrev_b32 v{a}, 16, v{vRES+2*s}
        v_and_b32 v{a+1}, 0xffff0000, v{vRES+2*s}
        v_lshlrev_b32 v{a+2}, 16, v{vRES+2*s+1}
        v_and_b32 v{a+3}, 0xffff0000, v{vRES+2*s+1}
        """)
    if which == 3:
        row_addr(st, vRowA)
        st(f"""
        s_cmp_eq_u32 s{sL}, 0
        s_cselect_b32 s{SRD_OUT}, s8, s12
        s_cselect_b32 s{SRD_OUT+1}, s9, s13
        s_cselect_b32 s{SRD_OUT+2}, s10, s14
        s_mov_b32 s{SRD_OUT+3}, 0x00020000
        s_cselect_b32 s46, {B0 + BS + XIN}, 0
        s_cselect_b64 s[28:29], -1, 0
        v_cndmask_b32_e64 v{vActA}, v{vRowA}, v{vActA}, s[28:29]
        """)
    dma = dma_slots(st, ns, 0, f"s{sOA if which == 1 else sOB}", lambda e, s: e(f"s_add_u32 s23, s26, {s}"), tag)
    stamp(st, f"p{which}")
    sync_wait(st, 0 if which == 1 else 2, name, slow=slow)
    stamp(st, f"p{which}")
    steps = gemm_steps(ns, lambda s: [((acc + 4 * s, False), W_O, True)], tag, dma, 3, fine=f"p{which}")
    def epi(s):
        e = St()
        a = acc + 4 * s
        p = (vRES if which == 1 else 88) + 2 * s
        e(f"""
        v_cvt_pk_bf16_f32 v{p}, v{a}, v{a+1}
        v_cvt_pk_bf16_f32 v{p+1}, v{a+2}, v{a+3}
        s_add_u32 s47, s26, {s}
        s_lshl_b32 s47, s47, 14
        """)
        if which == 1:
            e(f"s_add_u32 s47, s47, s{sX1}")
            dstore(e, f"buffer_store_dwordx2 {vr(p,2)}, v{vActA}, s[8:11], s47 offen")
        else:
            e("s_add_u32 s47, s47, s46")
            dstore(e, f"buffer_store_dwordx2 {vr(p,2)}, v{vActA}, s[{SRD_OUT}:{SRD_OUT+3}], s47 offen")
        return e
    st.ext(steps[0]); st.ext(steps[1])
    pb = []
    for s in range(ns - 1): pb += prog(16 * (s + 1) + 3, epi(s))
    st.ext(strip_marks(weave2(steps[2:], [pb], per=2)))
    st.ext(epi(ns - 1))
    stamp(st, f"p{which}")

def phase_p2(st, name):
    ns = 5
    SBASE = ns * 16384
    lane_consts(st)
    xa_setup(st, ns, 0)
    stats_setup(st, SBASE)
    Wq, Wk, Wv = W_Q2, W_K2, W_V2
    st("s_lshl_b32 s26, s20, 2\ns_sub_u32 s26, s26, 1")
    vActA = 96
    act_addr(st, vActA, vTMP)
    vMo, vMp, vMp0 = 100, 104, 108
    st(f"v_mov_b32 v{vTMP+2}, {f32(-1.0e30)}")
    for r in range(4):
        st(f"""
        v_lshl_add_u32 v{vTMP}, v{vG}, 2, {r}
        v_sub_u32 v{vTMP}, v{vT}, v{vTMP}
        v_and_b32 v{vTMP+1}, 0x80000001, v{vTMP}
        v_cmp_eq_u32 s[28:29], 0, v{vTMP+1}
        v_cndmask_b32_e64 v{vMo+r}, v{vTMP+2}, 0, s[28:29]
        v_cmp_gt_i32 s[38:39], -1, v{vTMP}
        v_and_b32 v{vTMP+1}, 1, v{vTMP}
        v_cmp_eq_u32 s[28:29], 0, v{vTMP+1}
        s_and_b64 s[28:29], s[28:29], s[38:39]
        v_cndmask_b32_e64 v{vMp+r}, v{vTMP+2}, 0, s[28:29]
        """)
    st("s_cmp_eq_u32 s20, 0\ns_cselect_b64 s[28:29], -1, 0")
    for r in range(4): st(f"v_cndmask_b32_e64 v{vMp0+r}, v{vMp+r}, v{vTMP+2}, s[28:29]")
    vCSq, vCSk, vCSv = 112, 116, 120
    def tile_of_slot(e, s):
        if s == 0: e("s_max_i32 s23, s26, 0")
        else: e(f"s_add_u32 s23, s26, {s}")
    dma = dma_slots(st, ns, 0, f"s{sX1}", tile_of_slot, "x2")
    csum = St()
    if "cslate" not in OPT:
        colsum(st, vCSq, Wq, True); colsum(st, vCSk, Wk, True); colsum(st, vCSv, Wv, False)
    stamp(st, "p2")
    sync_wait(st, 1, name, halo=True, slow=sSLOWA)
    stamp(st, "p2")
    wob = w_loads(W_O, T_WOB, "wob")
    accq, acck, accv = 64, 68, 72
    def A(base, s): return base + 12 * (s & 1)
    vSG, vSS = 88, 92
    def chains(s):
        c = []
        if s > 0: c.append(((A(accq, s), True), Wq, True))
        c.append(((A(acck, s), True), Wk, True))
        c.append(((A(accv, s), True), Wv, False))
        return c
    steps = gemm_steps(ns, chains, "x2", dma, 2, stats=lambda s: (vSG, vSS), fine="p2")
    for jj in range(16): steps[2 + 16 * 4 + jj].ext(wob[jj])
    last = steps[2 + 16 * 4 + 8]
    last.it.append(("mark", "bar4", None, None)); last("s_barrier")
    vR, vN = 124, 125
    vRq, vNq = 128, 129
    vR4, vN4 = 132, 136
    pq, pk, pv = 140, 142, 148
    tmp = 56
    S, P, MX, T2, PO = 158, 132, 97, 98, 146
    O, L = S, S + 4
    def statsA(s):
        b = 16 * s
        p = []
        e = St(); stats_extract(e, s, vSG, vSS, vTMP, f"sw{s}"); e.wl(f"sw{s}")
        p += prog(b + 5, e); p.append((b + 5, ("before", f"bar{s}", None, None)))
        e = St(); stats_read(e, s, vTMP, f"sr{s}"); p += prog(b + 9, e)
        e = St(); e.wl(f"sr{s}")
        R, N = vR + 2 * (s & 1), vN + 2 * (s & 1)
        for x in stats_math(vTMP, R, N): e(x)
        e.i(f"ds_write_b32 v{vSTA}, v{R}")
        e.i(f"ds_write_b32 v{vSTA}, v{N} offset:64", lds=f"pw{s}")
        p += prog(b + 12, e)
        p.append((b + 12, ("before", f"sl{s}", None, None)))
        return p
    def epi(s):
        e = St()
        R, N = vR + 2 * (s & 1), vN + 2 * (s & 1)
        e.wl(f"pw{s}")
        e.i(f"ds_read_b128 {vr(vR4,4)}, v{vPRR}")
        e.i(f"ds_read_b128 {vr(vN4,4)}, v{vPRR} offset:64", lds=f"pr{s}")
        ln_epi(e, A(acck, s), [R]*4, [N]*4, [vCSk+r for r in range(4)], pk + 2 * (s & 1), tmp)
        if s > 0:
            e(f"v_mul_f32 v{vRq}, {f32(CQ)}, v{R}\nv_mul_f32 v{vNq}, {f32(CQ)}, v{N}")
            ln_epi(e, A(accq, s), [vRq]*4, [vNq]*4, [vCSq+r for r in range(4)], pq, tmp)
            kp = pk + 2 * ((s - 1) & 1); ko = pk + 2 * (s & 1)
            mp = vMp0 if s == 1 else vMp
            e(f"v_mfma_f32_16x16x16_bf16 {vr(S,4)}, {vr(kp,2)}, {vr(pq,2)}, {vr(mp,4)}")
            e(f"v_mfma_f32_16x16x16_bf16 {vr(S+4,4)}, {vr(ko,2)}, {vr(pq,2)}, {vr(vMo,4)}")
        e.wl(f"pr{s}")
        ln_epi(e, A(accv, s), [vR4+r for r in range(4)], [vN4+r for r in range(4)], [vCSv]*4, pv + 2 * s, tmp)
        if s == 0: return e
        e(f"""
        v_max3_f32 v{MX}, v{S}, v{S+1}, v{S+2}
        v_max3_f32 v{T2}, v{S+3}, v{S+4}, v{S+5}
        v_max3_f32 v{MX}, v{MX}, v{S+6}, v{S+7}
        v_max_f32 v{MX}, v{MX}, v{T2}
        v_mov_b32 v{T2}, v{MX}
        v_permlane32_swap_b32 v{T2}, v{MX}
        v_max_f32 v{MX}, v{MX}, v{T2}
        v_mov_b32 v{T2}, v{MX}
        v_permlane16_swap_b32 v{T2}, v{MX}
        v_max_f32 v{MX}, v{MX}, v{T2}
        """)
        for r in range(8): e(f"v_sub_f32 v{S+r}, v{S+r}, v{MX}")
        for r in range(8): e(f"v_exp_f32 v{S+r}, v{S+r}")
        for r in range(4): e(f"v_cvt_pk_bf16_f32 v{P+r}, v{S+2*r}, v{S+2*r+1}")
        e(f"v_mfma_f32_16x16x32_bf16 {vr(O,4)}, {vr(pv+2*(s-1),4)}, {vr(P,4)}, 0")
        e(f"v_mfma_f32_16x16x32_bf16 {vr(L,4)}, {vr(vONES,4)}, {vr(P,4)}, 0")
        e.it.append(("gap", 4, None, None))
        e(f"v_rcp_f32 v{L}, v{L}")
        e(f"s_add_u32 s47, s26, {s}\ns_lshl_b32 s47, s47, 14\ns_add_u32 s47, s47, s{sOB}")
        for r in range(4): e(f"v_mul_f32 v{O+r}, v{O+r}, v{L}")
        e(f"v_cvt_pk_bf16_f32 v{PO}, v{O}, v{O+1}\nv_cvt_pk_bf16_f32 v{PO+1}, v{O+2}, v{O+3}")
        dstore(e, f"buffer_store_dwordx2 {vr(PO,2)}, v{vActA}, s[8:11], s47 offen")
        return e
    st.ext(steps[0]); st.ext(steps[1])
    main = steps[2:]
    for s in range(ns - 1):
        main[16 * (s + 1)].it.insert(0, ("mark", f"sl{s}", None, None))
    pa, pb = [], []
    for s in range(ns): pa += statsA(s)
    for s in range(ns - 1):
        pb += prog(16 * (s + 1) + 1, epi(s)); pb.append((16 * (s + 1) + 1, ("before", f"ep{s}", None, None)))
    for s in range(ns - 2):
        main[16 * (s + 2)].it.insert(0, ("mark", f"ep{s}", None, None))
    st.ext(strip_marks(weave2(main, [pa, pb], per=2)))
    st.ext(strip_marks(epi(ns - 1)))

def layer_scalars(st):
    st(f"""
    s_mul_i32 s23, s{sL}, {KVS}
    s_add_u32 s{sKF}, s23, {KF0}
    s_add_u32 s{sVF}, s23, {VF0}
    s_mul_i32 s23, s{sL}, {BS}
    s_add_u32 s{sXIN}, s23, {B0 + XIN}
    s_add_u32 s{sOA}, s23, {B0 + OA}
    s_add_u32 s{sX1}, s23, {B0 + X1}
    s_add_u32 s{sOB}, s23, {B0 + OB}
    s_lshl_b32 s23, s{sL}, 14
    s_add_u32 s{sFLAG}, s23, {FLAGS}
    """)

def q_dma(st):
    st("s_lshl_b32 s46, s20, 2")
    return dma_slots(st, 4, XB_Q, f"s{sXIN}", lambda e, s: e(f"s_add_u32 s23, s46, {s}"), "xq")

def gen_init(st, name):
    pWK, pWV, pWQ, pWOA, pWQKV, pWOB = 40, 42, 44, 46, 60, 62
    prologue(st, name, """
    s_load_dwordx4 s[40:43], s[0:1], 16
    s_load_dwordx2 s[44:45], s[0:1], 8
    s_load_dwordx2 s[46:47], s[0:1], 32
    s_load_dwordx4 s[60:63], s[0:1], 48
    s_load_dwordx2 s[6:7], s[0:1], 0
    """)
    st(f"s_add_u32 s28, s4, {EPOCH}\ns_addc_u32 s29, s5, 0\ns_load_dwordx2 s[{sEP}:{sEP+1}], s[28:29], 0")
    srd_io(st, 6, 2048 * 1024)
    st(f"s_mov_b32 s{sL}, 0")
    lane_consts(st)
    stamp(st, "i")
    xloads, setup, cs, main = phase_kv(st, name + "_i", 0, "row", KVB)
    xloads(st)
    vKap, vCol = 24, 25
    st(f"""
    v_lshrrev_b32 v{vKap}, 2, v{vT}
    v_lshlrev_b32 v{vKap}, 3, v{vKap}
    v_and_b32 v{vCol}, 3, v{vT}
    v_add_u32 v{vKap}, v{vKap}, v{vCol}
    v_lshrrev_b32 v{vCol}, 1, v{vG}
    v_lshl_add_u32 v{vKap}, v{vCol}, 2, v{vKap}
    v_and_b32 v{vCol}, 1, v{vG}
    v_lshlrev_b32 v{vCol}, 4, v{vCol}
    s_bitcmp1_b32 s21, 0
    s_cselect_b32 s28, s{pWV}, s{pWK}
    s_cselect_b32 s29, s{pWV+1}, s{pWK+1}
    v_lshl_add_u32 v142, v{vKap}, 5, v{vCol}
    s_lshl_b32 s23, s22, 12
    v_add_u32 v142, s23, v142
    """)
    for q in range(4):
        st.i(f"global_load_dwordx4 {ar(A_WKV+4*q,4)}, v142, s[28:29] offset:{q*1024}", vm=f"rw{q}")
    stamp(st, "i")
    st("s_getpc_b64 s[28:29]")
    st.label("L_pc_anchor")
    st(f"""
    s_add_u32 s28, s28, {name}-L_pc_anchor
    s_addc_u32 s29, s29, -1
    s_lshr_b32 s27, s2, 3
    s_lshl_b32 s27, s27, 2
    s_add_u32 s27, s27, s22
    s_lshl_b32 s27, s27, 9
    v_lshlrev_b32 v14, 6, v0
    v_add_u32 v14, s27, v14
    v_min_u32 v14, L_code_end-{name}-4, v14
    s_mov_b64 exec, 0xff
    """)
    if "nocode" not in OPT: st.i("global_load_dword v13, v14, s[28:29]")
    st("s_mov_b64 exec, -1")
    st(f"s_lshl_b32 s59, s2, 2\ns_add_u32 s59, s59, s22")
    for i in range(3):
        st(f"""
        s_add_u32 s27, s59, {1024*i}
        s_lshr_b32 s28, s27, 4
        s_and_b32 s29, s27, 15
        s_mov_b32 s24, s{pWQ}
        s_mov_b32 s25, s{pWQ+1}
        s_mov_b32 s38, s28
        s_mov_b32 s39, 1024
        """)
        for T0, reg, stride in ((T_WOA, pWOA, 1024), (T_WOB, pWOB, 1024), (T_WQKV, pWQKV, 3072)):
            st(f"""
            s_sub_u32 s58, s28, {T0}
            s_cmp_ge_u32 s28, {T0}
            s_cselect_b32 s24, s{reg}, s24
            s_cselect_b32 s25, s{reg+1}, s25
            s_cselect_b32 s38, s58, s38
            s_cselect_b32 s39, {stride}, s39
            """)
        st(f"""
        s_lshl_b32 s29, s29, 5
        s_lshl_b32 s38, s38, 5
        v_add_u32 v148, s29, v{vKap}
        v_mul_lo_u32 v148, v148, s39
        v_add_u32 v148, v148, v{vCol}
        v_add_u32 v148, s38, v148
        """)
        st.i(f"global_load_dwordx4 {ar(A_PREP+4*i,4)}, v148, s[24:25]", vm=f"pw{i}")
    st(f"""
    v_lshlrev_b32 v26, 10, v{vT}
    v_lshl_add_u32 v26, v{vG}, 4, v26
    s_lshr_b32 s27, s59, 3
    s_lshl_b32 s27, s27, 14
    s_and_b32 s28, s59, 7
    s_lshl_b32 s28, s28, 7
    s_add_u32 s27, s27, s28
    """)
    st.i(f"buffer_load_dwordx4 {ar(A_XC,4)}, v26, s[12:15], s27 offen")
    st.i(f"buffer_load_dwordx4 {ar(A_XC+4,4)}, v26, s[12:15], s27 offen offset:64", vm="xc")
    if "nowarm" not in OPT:
        st(f"""
        s_lshl_b32 s27, s20, 7
        s_lshl_b32 s28, s21, 3
        s_add_u32 s27, s27, s28
        s_add_u32 s27, s27, {FLAGS}
        v_and_b32 v148, 7, v0
        v_lshlrev_b32 v148, 12, v148
        v_add_u32 v148, s27, v148
        s_lshl_b32 s28, s20, 3
        s_add_u32 s28, s28, s21
        s_lshl_b32 s28, s28, 3
        s_add_u32 s28, s28, {KVFL - 8*0x800}
        v_min_u32 v149, 32, v0
        v_lshlrev_b32 v149, 11, v149
        v_add_u32 v149, s28, v149
        v_cmp_gt_u32 s[38:39], 8, v0
        v_cndmask_b32_e64 v148, v149, v148, s[38:39]
        """)
        w0_exec(st)
        st.i("buffer_load_dword v15, v148, s[8:11], 0 offen")
        st("s_mov_b64 exec, -1")
    stamp(st, "i")
    layer_scalars(st)
    wave_scalars(st)
    emit_selectors(st, vB0, vB1, 16)
    setup(st)
    for q in range(4):
        st.wv(f"rw{q}")
        transpose(st, ar(A_WKV + 4 * q, 4), W_KV[1] + 4 * q)
    stamp(st, "i")
    cs(st)
    stamp(st); stamp(st, "i")
    main(st)
    stamp(st); stamp(st, "i")
    st("s_lshl_b32 s59, s2, 2\ns_add_u32 s59, s59, s22")
    for i in range(3):
        st.wv(f"pw{i}")
        transpose(st, ar(A_PREP + 4 * i, 4), 28 + 0, tmp=16)
        st(f"s_add_u32 s27, s59, {1024*i}\ns_lshl_b32 s27, s27, 10")
        st.i(f"buffer_store_dwordx4 v[28:31], v{vL16}, s[8:11], s27 offen sc1")
    st(f"s_lshl_b32 s27, s59, 11\ns_add_u32 s27, s27, {B0 + XIN}")
    st.wv("xc")
    st.i(f"buffer_store_dwordx4 {ar(A_XC,4)}, v{vL16}, s[8:11], s27 offen sc1")
    st.i(f"buffer_store_dwordx4 {ar(A_XC+4,4)}, v{vL16}, s[8:11], s27 offen offset:1024 sc1")
    st(f"""
    s_load_dwordx2 s[6:7], s[0:1], 64
    s_waitcnt lgkmcnt(0)
    s_mul_i32 s{sTLO}, s{sEP}, 0x9e3779b1
    s_xor_b32 s{sTLO}, s{sTLO}, s{sEP+1}
    s_add_u32 s{sTLO}, s{sTLO}, 0x7f4a7c15
    s_mul_i32 s{sTHI}, s{sEP}, 0x85ebca6b
    s_add_u32 s{sTHI}, s{sTHI}, s{sEP+1}
    s_xor_b32 s{sTHI}, s{sTHI}, 0x5bd1e995
    """)
    srd_io(st, 6, 2048 * 1024)
    q_setup(st)
    stamp(st, "i")
    st("s_waitcnt vmcnt(0)\ns_barrier")
    stamp(st, "i")
    wg_flag_store(st, f"{KVFL}", replicas=8)
    xcc_publish(st)
    ld = [f"buffer_load_dwordx4 v[128:131], v60, s[8:11], s47 offen sc1", f"buffer_load_dwordx4 v[132:135], v60, s[8:11], s47 offen offset:16 sc1"]
    st(f"""
    v_lshlrev_b32 v60, 5, v0
    s_lshr_b32 s47, s20, 2
    s_lshl_b32 s47, s47, 11
    s_add_u32 s47, s47, {KVFL}
    """)
    w0_exec(st)
    poll_pairs(st, "L_initp", [128, 130, 132, 134], ld, sleep=False)
    st("s_mov_b64 exec, -1\ns_barrier")
    stamp(st, "i")
    wl = w_loads(W_QA, 0, "wq")
    for e in wl: st.ext(e)
    dma = q_dma(st)
    for e in dma[0]: st.ext(e)
    st("s_barrier")
    for e in dma[1]: st.ext(e)
    st.i(f"buffer_load_dword v59, v{vL16}, s[8:11], s{sXIN} offen")
    stamp(st, "i")

def gen_persist(name):
    st = St()
    NST[0] = 0
    stamp(st)
    if INSTR: st("s_memrealtime s[96:97]")
    gen_init(st, name)
    st("s_branch L_common")
    st.label("L_layer1")
    sync_publish(st, 3, name, sSLOWA)
    lane_consts(st)
    xloads, setup, cs, main = phase_kv(st, name + "_4", 1, "act", KVB)
    setup(st); cs(st)
    q_setup(st)
    sync_wait(st, 3, name + "_4")
    st(f"s_mov_b32 s{sL}, 1")
    layer_scalars(st)
    xloads(st)
    dma = q_dma(st)
    for e in dma[0]: st.ext(e)
    st("s_barrier")
    for e in dma[1]: st.ext(e)
    main(st)
    st.label("L_common")
    phase_q(st, name, dma)
    phase_att(st, name)
    stamp(st)
    sync_publish(st, 0, name, sSLOWA)
    phase_p13(st, name + "_1", 1)
    stamp(st)
    sync_publish(st, 1, name, sSLOWB)
    phase_p2(st, name + "_2")
    stamp(st)
    sync_publish(st, 2, name, sSLOWA)
    phase_p13(st, name + "_3", 3)
    stamp(st)
    if INSTR:
        st(f"s_cmp_lg_u32 s{sL}, 0\ns_cbranch_scc1 L_fin")
        stamp_dump(st, 0)
        st("s_branch L_layer1")
    else:
        st(f"s_cmp_eq_u32 s{sL}, 0\ns_cbranch_scc1 L_layer1")
    st.label("L_fin")
    st(f"""
    s_or_b32 s23, s2, s22
    s_cmp_lg_u32 s23, 0
    s_cbranch_scc1 L_noep
    s_add_u32 s28, s{sEP}, 1
    s_addc_u32 s29, s{sEP+1}, 0
    v_mov_b32 v2, s28
    v_mov_b32 v3, s29
    v_mov_b32 v4, 0
    s_mov_b32 s23, {EPOCH}
    s_mov_b64 exec, 1
    buffer_store_dwordx2 v[2:3], v4, s[8:11], s23 offen
    s_mov_b64 exec, -1
    """)
    st.label("L_noep")
    st("s_waitcnt vmcnt(0)")
    stamp_dump(st, 1)
    return kernel_text(name, st, sgpr=102).replace(f"L_end_{name}:", f"L_code_end:\nL_end_{name}:")

def build(path):
    hdr = open("cdna_kernels/" + NAME + ".s.ref").read().split("; Override launch geometry")[0]
    out = hdr + f"; @launch grid=(256,1,1) block=(256,1,1) lds={MAIN_LDS}\n"
    out += '.amdgcn_target "amdgcn-amd-amdhsa--gfx950"\n'
    out += gen_persist(NAME + "_kernel")
    open(path, "w").write(out)

if __name__ == "__main__":
    build(sys.argv[1] if len(sys.argv) > 1 else "stage5.s")
```

```python
import sys, os
sys.path.insert(0, os.path.dirname(os.path.abspath(__file__)))
import gen
from gen import (St, resolve, weave, vr, ar, rr, f32, CQ, srd_io, emit_selectors,
                 T_WQ, T_WOA, T_WOB, T_WQKV, T_WK, T_WV, NFRAG, NAME, WS_SIZE)
from asmlib import fix_hazards
INSTR = os.environ.get("INSTR")
OPT = os.environ.get("OPT", "")
DBG = os.environ.get("DBG")
FAST = "nofast" not in OPT

KF0, VF0, KVS = 0x310000, 0x320000, 0x20000
B0, BS = 0x800000, 0x800000
XIN, OA, X1, OB = 0, 0x200000, 0x400000, 0x600000
FLAGS = 0x1900000
KVFL = FLAGS + 0x8000
PREPF = FLAGS + 0x10000
XCCT = FLAGS + 0x14000
EPOCH = FLAGS + 0x15000
TS_OFF = 0x1800000
S_G, S_M, S_W = 20, 21, 22
sROT = 16
sSLOWA, sSLOWB = 40, 42
sSPIN = 45
sKF, sVF, sXIN, sOA, sX1, sOB, sL, sFLAG = 48, 49, 51, 52, 53, 54, 55, 56
sTLO, sTHI = 50, 3
sEP = 14 + 86
sWT = 57
SRD_OUT = 60
W_Q2, W_K2, W_V2, W_O = ("a", 0), ("a", 64), ("a", 128), ("a", 192)
W_QA = ("v", 166)
W_KV = ("v", 230)
vRES = 246
vL16, vXA, vT, vG, vONES, vRING, RING = 1, 2, 6, 7, 8, 12, 8
vSTA, vSTW, vSTR, vPRR, vTMP = 44, 45, 46, 47, 48
vFLO, vFLP = 62, 63

NST = [0]
def stamp(st, fine=None):
    if not INSTR: return
    if INSTR == "1":
        if fine: return
        k = NST[0]; NST[0] += 1
        st(f"s_memtime s[{64+2*k}:{65+2*k}]\ns_waitcnt lgkmcnt(0)")
    else:
        if fine != INSTR and not (fine is None and NST[0] == 0): return
        k = NST[0]; NST[0] += 1
        assert k < 16
        st(f"s_memtime s[{64+2*k}:{65+2*k}]")
def stamp_dump(st, slot):
    if not INSTR: return
    st("s_memrealtime s[98:99]\ns_waitcnt lgkmcnt(0)")
    for k in range(16): st(f"v_mov_b32 v{16+k}, s{64+2*k if k < NST[0] else 98}")
    st(f"""
    v_mov_b32 v31, s98
    v_mov_b32 v30, s96
    s_lshl_b32 s23, s2, 2
    s_add_u32 s23, s23, s22
    s_lshl_b32 s23, s23, 6
    s_mul_i32 s24, {slot}, 65536
    s_add_u32 s23, s23, s24
    s_add_u32 s23, s23, {TS_OFF}
    v_mov_b32 v8, 0
    s_mov_b64 exec, 1
    buffer_store_dwordx4 v[16:19], v8, s[8:11], s23 offen
    buffer_store_dwordx4 v[20:23], v8, s[8:11], s23 offen offset:16
    buffer_store_dwordx4 v[24:27], v8, s[8:11], s23 offen offset:32
    buffer_store_dwordx4 v[28:31], v8, s[8:11], s23 offen offset:48
    s_waitcnt vmcnt(0)
    s_mov_b64 exec, -1
    """)

def prologue(st, name, extra_loads=""):
    st(f"""
    s_cmp_ge_u32 s2, 256
    s_cbranch_scc1 L_end_{name}
    s_load_dwordx2 s[4:5], s[0:1], 80
    {extra_loads}
    v_lshrrev_b32 v1, 6, v0
    v_and_b32 v0, 63, v0
    s_and_b32 s20, s2, 7
    s_lshr_b32 s21, s2, 3
    s_lshl_b32 s20, s20, 2
    s_lshr_b32 s23, s21, 3
    s_add_u32 s20, s20, s23
    s_and_b32 s21, s21, 7
    v_readfirstlane_b32 s22, v1
    v_lshlrev_b32 v{vL16}, 4, v0
    s_waitcnt lgkmcnt(0)
    s_mov_b32 s8, s4
    s_mov_b32 s9, s5
    s_mov_b32 s10, {WS_SIZE}
    s_mov_b32 s11, 0x00020000
    """)

OUTLINE = []
def dstore(e, text):
    if not FAST:
        e.i(text + " sc1"); return
    k = len(OUTLINE)
    e.it.append(("grp", [f"s_cbranch_vccnz L_slow_{k}", text, f"L_back_{k}:"], None, None))
    OUTLINE.append(text + " sc1")

def expand_groups(st):
    o = St()
    for it in st.it:
        if it[0] in ("grp", "grpv"):
            for l in it[1]: o.it.append(("i", l, None, None))
        else: o.it.append(it)
    return o

def kernel_text(name, st, vgpr=512, accum=256, sgpr=100):
    lines = resolve(expand_groups(st))
    lines.append("s_endpgm")
    for k, t in enumerate(OUTLINE):
        lines += [f"L_slow_{k}:", t, f"s_branch L_back_{k}"]
    OUTLINE.clear()
    lines, nins = fix_hazards(lines)
    body = "\n".join(("    " + l) if not l.endswith(":") else l for l in lines)
    return f""".text
.globl {name}
.p2align 8
.type {name},@function
{name}:
{body}
L_end_{name}:
    s_endpgm
.section .rodata,"a"
.p2align 6
.amdhsa_kernel {name}
  .amdhsa_next_free_vgpr {vgpr}
  .amdhsa_next_free_sgpr {sgpr}
  .amdhsa_accum_offset {accum}
  .amdhsa_group_segment_fixed_size 0
  .amdhsa_kernarg_size 88
  .amdhsa_user_sgpr_count 2
  .amdhsa_user_sgpr_kernarg_segment_ptr 1
  .amdhsa_system_sgpr_workgroup_id_x 1
  .amdhsa_float_denorm_mode_32 3
.end_amdhsa_kernel
"""

def lane_consts(st):
    st(f"v_and_b32 v{vT}, 15, v0\nv_lshrrev_b32 v{vG}, 4, v0")
    for q in range(4): st(f"v_mov_b32 v{vONES+q}, 0x3f803f80")

def xa_setup(st, ns, xb):
    for jg in range(4):
        st(f"""
        s_add_u32 s23, s22, {jg}
        s_and_b32 s23, s23, 3
        s_mul_i32 s23, s23, {ns*4096}
        s_add_u32 s23, s23, {xb}
        v_add_u32 v{vXA+jg}, s23, v{vL16}
        """)

def wave_scalars(st):
    for jg in range(4):
        st(f"""
        s_add_u32 s23, s22, {jg}
        s_and_b32 s23, s23, 3
        s_lshl_b32 s{sROT+jg}, s23, 12
        """)
    st(f"""
    s_lshl_b32 s{sWT}, s21, 2
    s_add_u32 s{sWT}, s{sWT}, s22
    s_lshl_b32 s{sWT}, s{sWT}, 14
    """)

def w_loads(dst, T0, tag):
    out = []
    for jg in range(4):
        for q in range(4):
            e = St()
            if q == 0:
                e(f"s_add_u32 s58, s{sWT}, s{sROT+jg}")
                if T0: e(f"s_add_u32 s58, s58, {T0*16384}")
            b = dst[1] + 4 * (4 * jg + q)
            e.i(f"buffer_load_dwordx4 {rr((dst[0], b), 4)}, v{vL16}, s[8:11], s58 offen offset:{q*1024} sc1", vm=f"{tag}{4*jg+q}")
            out.append(e)
    return out

def kv_loads(tag):
    out = []
    for q in range(4):
        e = St()
        if q == 0:
            e(f"""
            s_and_b32 s58, s21, 1
            s_add_u32 s58, s58, {T_WK}
            s_lshl_b32 s58, s58, 14
            s_add_u32 s58, s58, s{sROT}
            """)
        e.i(f"buffer_load_dwordx4 {rr((W_KV[0], W_KV[1] + 4*q), 4)}, v{vL16}, s[8:11], s58 offen offset:{q*1024}", vm=f"{tag}{q}")
        out.append(e)
    return out

def act_addr(st, vdst, tmp):
    st(f"""
    s_lshl_b32 s23, s21, 11
    s_lshr_b32 s28, s22, 1
    s_lshl_b32 s28, s28, 10
    s_add_u32 s23, s23, s28
    s_and_b32 s28, s22, 1
    s_lshl_b32 s28, s28, 9
    s_add_u32 s23, s23, s28
    v_lshrrev_b32 v{tmp}, 1, v{vG}
    v_lshlrev_b32 v{tmp}, 8, v{tmp}
    v_lshl_add_u32 v{tmp}, v{vT}, 4, v{tmp}
    v_and_b32 v{vdst}, 1, v{vG}
    v_lshl_add_u32 v{vdst}, v{vdst}, 3, v{tmp}
    v_add_u32 v{vdst}, s23, v{vdst}
    """)

def row_addr(st, vdst):
    st(f"""
    s_lshl_b32 s23, s21, 7
    s_lshl_b32 s28, s22, 5
    s_add_u32 s23, s23, s28
    v_lshlrev_b32 v{vdst}, 10, v{vT}
    v_lshl_add_u32 v{vdst}, v{vG}, 3, v{vdst}
    v_add_u32 v{vdst}, s23, v{vdst}
    """)

def colsum(st, dst, W, w_is_A, n=16):
    for jj in range(n):
        wreg = rr((W[0], W[1] + 4 * jj), 4)
        c = "0" if jj == 0 else vr(dst, 4)
        if w_is_A: st(f"v_mfma_f32_16x16x32_bf16 {vr(dst,4)}, {wreg}, {vr(vONES,4)}, {c}")
        else:      st(f"v_mfma_f32_16x16x32_bf16 {vr(dst,4)}, {vr(vONES,4)}, {wreg}, {c}")

def stats_setup(st, sb, regs=None):
    pb = sb + 2560; dummy = pb + 512
    vSTA, vSTW, vSTR, vPRR = regs or (44, 45, 46, 47)
    st(f"""
    v_lshrrev_b32 v{vTMP}, 2, v{vT}
    v_cmp_eq_u32 s[30:31], v{vTMP}, v{vG}
    v_lshlrev_b32 v{vSTW}, 5, v{vT}
    s_lshl_b32 s23, s22, 2
    s_add_u32 s23, s23, {sb}
    v_add_u32 v{vSTW}, s23, v{vSTW}
    v_mov_b32 v{vTMP}, {dummy}
    v_cndmask_b32_e64 v{vSTW}, v{vTMP}, v{vSTW}, s[30:31]
    v_lshlrev_b32 v{vSTR}, 5, v{vT}
    v_add_u32 v{vSTR}, {sb}, v{vSTR}
    s_lshl_b32 s23, s22, 7
    s_add_u32 s23, s23, {pb}
    v_lshlrev_b32 v{vSTA}, 2, v{vT}
    v_add_u32 v{vSTA}, s23, v{vSTA}
    v_lshlrev_b32 v{vPRR}, 4, v{vG}
    v_add_u32 v{vPRR}, s23, v{vPRR}
    s_mov_b32 s32, 0x22222222
    s_mov_b32 s33, 0x22222222
    s_mov_b32 s34, 0x44444444
    s_mov_b32 s35, 0x44444444
    s_mov_b32 s36, 0x88888888
    s_mov_b32 s37, 0x88888888
    """)
STAT_BYTES = 2560 + 512 + 2600

def stats_extract(e, s, vSG, vSS, t, tag, vSTW=45):
    e(f"""
    v_cndmask_b32_e64 v{t}, v{vSG}, v{vSG+1}, s[32:33]
    v_cndmask_b32_e64 v{t}, v{t}, v{vSG+2}, s[34:35]
    v_cndmask_b32_e64 v{t}, v{t}, v{vSG+3}, s[36:37]
    """)
    e.i(f"ds_write_b32 v{vSTW}, v{vSS} offset:{s*512}")
    e.i(f"ds_write_b32 v{vSTW}, v{t} offset:{s*512 + 16}", lds=tag)

def stats_read(e, s, a, tag, vSTR=46):
    e.i(f"ds_read_b128 {vr(a,4)}, v{vSTR} offset:{s*512}")
    e.i(f"ds_read_b128 {vr(a+4,4)}, v{vSTR} offset:{s*512+16}", lds=tag)

def stats_math(a, vR, vN):
    return f"""
    v_add_f32 v{a}, v{a}, v{a+1}
    v_add_f32 v{a+4}, v{a+4}, v{a+5}
    v_add_f32 v{a+2}, v{a+2}, v{a+3}
    v_add_f32 v{a+6}, v{a+6}, v{a+7}
    v_add_f32 v{a}, v{a}, v{a+2}
    v_add_f32 v{a+4}, v{a+4}, v{a+6}
    v_mul_f32 v{a}, {f32(1.0/512)}, v{a}
    v_mul_f32 v{a+4}, {f32(1.0/512)}, v{a+4}
    v_fma_f32 v{a+4}, -v{a}, v{a}, v{a+4}
    v_max_f32 v{a+4}, 0, v{a+4}
    v_add_f32 v{a+4}, {f32(1e-5)}, v{a+4}
    v_rsq_f32 v{vR}, v{a+4}
    v_sub_f32 v{a}, 0, v{a}
    v_mul_f32 v{vN}, v{a}, v{vR}
    """.strip().split("\n")

def ln_epi(e, acc, R, N, CS, pk, tmp):
    for r in range(4): e(f"v_mul_f32 v{tmp+r}, v{N[r]}, v{CS[r]}")
    for r in range(4): e(f"v_fma_f32 v{tmp+r}, v{acc+r}, v{R[r]}, v{tmp+r}")
    e(f"v_cvt_pk_bf16_f32 v{pk}, v{tmp}, v{tmp+1}")
    e(f"v_cvt_pk_bf16_f32 v{pk+1}, v{tmp+2}, v{tmp+3}")

def flag_value(st):
    st(f"v_mov_b32 v{vFLO}, s{sTLO}\nv_mov_b32 v{vFLO+1}, s{sTHI}")

vFLA = 61
def sync_publish(st, e, name, slow):
    st(f"""
    s_waitcnt vmcnt(0)
    s_barrier
    s_cmp_lg_u32 s22, 0
    s_cbranch_scc1 L_np{e}_{name}
    s_lshl_b32 s23, s20, 7
    s_lshl_b32 s28, s21, 3
    s_add_u32 s23, s23, s28
    s_add_u32 s23, s23, s{sFLAG}
    s_add_u32 s23, s23, {e*0x1000}
    v_mov_b32 v{vFLA}, 0
    """)
    flag_value(st)
    st(f"s_mov_b64 vcc, s[{slow}:{slow+1}]\ns_mov_b64 exec, 1")
    dstore(st, f"buffer_store_dwordx2 v[{vFLO}:{vFLO+1}], v{vFLA}, s[8:11], s23 offen")
    st("s_mov_b64 exec, -1")
    st.label(f"L_np{e}_{name}")

def poll_pairs(st, label, regs, loads, sleep=False):
    st(f"s_mov_b32 s{sSPIN}, 0x10000")
    st.label(label)
    if sleep: st("s_sleep 2")
    for l in loads: st(l)
    st("s_waitcnt vmcnt(0)")
    check_pairs(st, regs)
    st(f"""
    s_sub_u32 s{sSPIN}, s{sSPIN}, 1
    s_cmp_eq_u32 s{sSPIN}, 0
    s_cbranch_scc1 {label}_d
    s_cbranch_vccnz {label}
    """)
    st.label(label + "_d")

def check_pairs(st, regs):
    for k, r in enumerate(regs):
        if k == 0: st(f"v_cmp_ne_u32 vcc, s{sTLO}, v{r}")
        else: st(f"v_cmp_ne_u32 s[28:29], s{sTLO}, v{r}\ns_or_b64 vcc, vcc, s[28:29]")
        st(f"v_cmp_ne_u32 s[28:29], s{sTHI}, v{r+1}\ns_or_b64 vcc, vcc, s[28:29]")

def sync_wait(st, e, name, halo=False, slow=None):
    st(f"""
    v_and_b32 v{vFLA}, 7, v0
    v_lshlrev_b32 v{vFLA}, 3, v{vFLA}
    s_lshl_b32 s23, s20, 7
    """)
    if halo:
        st(f"""
        s_sub_u32 s28, s20, 1
        s_max_i32 s28, s28, 0
        s_lshl_b32 s28, s28, 7
        s_sub_u32 s28, s28, s23
        v_bfe_u32 v{vFLO}, v0, 3, 1
        v_mul_lo_u32 v{vFLO}, v{vFLO}, s28
        v_add_u32 v{vFLA}, v{vFLA}, v{vFLO}
        """)
    st(f"""
    v_add_u32 v{vFLA}, s23, v{vFLA}
    s_add_u32 s23, s{sFLAG}, {e*0x1000}
    """)
    poll_pairs(st, f"L_poll{e}_{name}", [vFLO], [f"buffer_load_dwordx2 v[{vFLO}:{vFLO+1}], v{vFLA}, s[8:11], s23 offen sc1"])
    if slow is not None: st(f"s_mov_b64 vcc, s[{slow}:{slow+1}]")
    stamp(st)

def wg_flag_store(e, off_expr, lo_add=None, regs=None, replicas=1):
    vA, vV = regs or (61, 62)
    e(f"""
    s_lshl_b32 s28, s20, 3
    s_add_u32 s28, s28, s21
    s_lshl_b32 s28, s28, 3
    s_add_u32 s28, s28, {off_expr}
    v_lshlrev_b32 v{vA}, 11, v0
    v_mov_b32 v{vV}, s{sTLO if lo_add is None else lo_add}
    v_mov_b32 v{vV+1}, s{sTHI}
    s_cmp_eq_u32 s22, 0
    s_cselect_b64 exec, {(1 << replicas) - 1 if replicas < 7 else hex((1 << replicas) - 1)}, 0
    """)
    e.i(f"buffer_store_dwordx2 v[{vV}:{vV+1}], v{vA}, s[8:11], s28 offen sc1")
    e("s_mov_b64 exec, -1")

def w0_exec(e):
    e("s_cmp_eq_u32 s22, 0\ns_cselect_b64 exec, -1, 0")

vXCA, vXCV = 13, 14
def xcc_publish(st):
    if not FAST: return
    st(f"""
    s_getreg_b32 s39, hwreg(HW_REG_XCC_ID)
    s_and_b32 s39, s39, 7
    s_add_u32 s39, s39, 16
    s_add_u32 s39, s39, s{sTLO}
    """)
    wg_flag_store(st, f"{XCCT}", lo_add=39)
    st(f"s_mov_b32 s{sXCC}, s39")
sXCC = 95

def xcc_issue():
    e = St()
    e(f"""
    v_and_b32 v{vXCA}, 7, v0
    s_add_u32 s28, s20, 1
    s_min_u32 s28, s28, 31
    s_sub_u32 s28, s28, s20
    s_lshl_b32 s28, s28, 3
    v_bfe_u32 v{vXCV}, v0, 3, 1
    v_mul_lo_u32 v{vXCV}, v{vXCV}, s28
    v_add_u32 v{vXCA}, v{vXCA}, v{vXCV}
    s_lshl_b32 s28, s20, 3
    v_add_u32 v{vXCA}, s28, v{vXCA}
    v_lshlrev_b32 v{vXCA}, 3, v{vXCA}
    s_mov_b32 s38, {XCCT}
    """)
    e2 = St()
    e2.i(f"buffer_load_dwordx2 v[{vXCV}:{vXCV+1}], v{vXCA}, s[8:11], s38 offen sc1", vm="xcc")
    return [e, e2]

def xcc_check(st, name):
    if not FAST:
        st(f"s_mov_b64 s[{sSLOWA}:{sSLOWA+1}], -1\ns_mov_b64 s[{sSLOWB}:{sSLOWB+1}], -1"); return
    def chk():
        st(f"""
        v_subrev_u32 v9, s{sTLO}, v{vXCV}
        v_subrev_u32 v9, 16, v9
        v_cmp_le_u32 vcc, 8, v9
        v_cmp_ne_u32 s[28:29], s{sTHI}, v{vXCV+1}
        s_or_b64 vcc, vcc, s[28:29]
        """)
    st.wv("xcc")
    chk()
    st(f"s_mov_b32 s{sSPIN}, 0x10000\ns_cbranch_vccz L_xd_{name}")
    st.label(f"L_xp_{name}")
    st(f"buffer_load_dwordx2 v[{vXCV}:{vXCV+1}], v{vXCA}, s[8:11], s38 offen sc1\ns_waitcnt vmcnt(0)")
    chk()
    st(f"""
    s_sub_u32 s{sSPIN}, s{sSPIN}, 1
    s_cmp_eq_u32 s{sSPIN}, 0
    s_cbranch_scc1 L_xd_{name}
    s_cbranch_vccnz L_xp_{name}
    """)
    st.label(f"L_xd_{name}")
    st(f"""
    v_cmp_ne_u32 s[{sSLOWB}:{sSLOWB+1}], s{sXCC}, v{vXCV}
    s_nop 1
    s_and_b32 s{sSLOWA}, s{sSLOWB}, 0xff
    s_mov_b32 s{sSLOWA+1}, 0
    """)
    if "forceslow" in OPT:
        st(f"s_mov_b64 s[{sSLOWA}:{sSLOWA+1}], -1\ns_mov_b64 s[{sSLOWB}:{sSLOWB+1}], -1")

def dma_slots(st, ns, xb, sSrc, tile_of_slot, tag):
    st(f"""
    s_mul_i32 s25, s22, {ns*4096}
    s_add_u32 s25, s25, {xb}
    s_lshl_b32 s24, s22, 12
    s_add_u32 s24, s24, {sSrc}
    """)
    slots = []
    for s in range(ns):
        L = []
        for q in range(4):
            e = St()
            if q == 0:
                tile_of_slot(e, s)
                e(f"s_lshl_b32 s23, s23, 14\ns_add_u32 s27, s23, s24\ns_add_u32 m0, s25, {s*4096}")
            e.i(f"buffer_load_dwordx4 v{vL16}, s[8:11], s27 offen offset:{q*1024} sc1 lds", vm=f"{tag}{s}_{q}")
            L.append(e)
        slots.append(L)
    return slots

def gemm_steps(ns, chains, tagx, dma, upfront, stats=None, fine=None, wtags=None, pre_mid=None):
    steps = []
    total = ns * 16
    def rd(idx):
        s, jj = divmod(idx, 16)
        return f"ds_read_b128 {vr(vRING + 4*(idx % RING), 4)}, v{vXA + (jj >> 2)} offset:{s*4096 + (jj & 3)*1024}"
    pre = St()
    for s in range(upfront):
        for e in dma[s]: pre.ext(e)
        if s == 0 and pre_mid is not None: pre.ext(pre_mid)
        if s + 1 < upfront: pre("s_barrier")
    stamp(pre, fine)
    steps.append(pre)
    pre2 = St()
    pre2.wv(f"{tagx}0_3")
    pre2("s_barrier")
    stamp(pre2, fine)
    for idx in range(RING): pre2.i(rd(idx), lds=f"x{idx}")
    steps.append(pre2)
    for idx in range(total):
        s, jj = divmod(idx, 16)
        stp = St()
        ring = vRING + 4 * (idx % RING)
        if wtags and s == 0 and jj % 4 == 0: stp.wv(wtags[jj // 4])
        if idx % 2 == 0: stp.wl(f"x{min(idx+1, total-1)}")
        for (acc, w, w_is_A) in chains(s):
            wreg = rr((w[0], w[1] + 4 * jj), 4)
            c = "0" if jj == 0 and acc[1] else vr(acc[0], 4)
            if w_is_A: stp(f"v_mfma_f32_16x16x32_bf16 {vr(acc[0],4)}, {wreg}, {vr(ring,4)}, {c}")
            else:      stp(f"v_mfma_f32_16x16x32_bf16 {vr(acc[0],4)}, {vr(ring,4)}, {wreg}, {c}")
        if stats and jj < 4:
            sg, ss = stats(s)
            stp(f"v_mfma_f32_16x16x32_bf16 {vr(sg,4)}, {vr(ring,4)}, {vr(ring,4)}, {'0' if jj == 0 else vr(sg,4)}")
            stp(f"v_mfma_f32_16x16x32_bf16 {vr(ss,4)}, {vr(vONES,4)}, {vr(ring,4)}, {'0' if jj == 0 else vr(ss,4)}")
        nxt = idx + RING
        if nxt < total:
            if nxt % 16 == 0:
                stp.it.append(("mark", f"bar{s}", None, None))
                stp.wv(f"{tagx}{nxt//16}_3")
                stp("s_barrier")
            stp.i(rd(nxt), lds=f"x{nxt}")
        sd = s + upfront
        if sd < ns and jj < 4: stp.ext(dma[sd][jj])
        if jj == 15 or jj == 7: stamp(stp, fine)
        steps.append(stp)
    return steps

def weave2(steps, progs, per=2):
    out = St()
    qs = [list(p) for p in progs]
    skip = [0] * len(qs)
    def emit_forced(name):
        for qi, q in enumerate(qs):
            last = max([i for i, (ms, it) in enumerate(q) if it[0] == "before" and it[1] == name], default=-1)
            for _ in range(last + 1):
                ms, it = q.pop(0)
                if it[0] not in ("gap", "before"): out.it.append(it)
    for si, stp in enumerate(steps):
        for it in stp.it:
            if it[0] == "mark":
                emit_forced(it[1]); continue
            out.it.append(it)
            if it[0] == "i" and it[1].startswith("v_mfma"):
                n = 0
                for qi, q in enumerate(qs):
                    if skip[qi] > 0:
                        skip[qi] -= 1; continue
                    while q and n < per and q[0][0] <= si:
                        ms, x = q.pop(0)
                        if x[0] == "gap":
                            skip[qi] = x[1]; break
                        if x[0] == "before": continue
                        out.it.append(x)
                        if x[0] in ("i", "grp", "grpv"): n += 1
    for q in qs:
        for ms, x in q:
            if x[0] not in ("gap", "before"): out.it.append(x)
    return out

def prog(ms, st_): return [(ms, it) for it in st_.it]
def strip_marks(st_):
    o = St(); o.it = [it for it in st_.it if it[0] != "mark"]; return o

def phase_kv(st, name, layer_out, src, kvb):
    XR = 64
    accK, accV, csK, csV, SG, SS = 80, 84, 88, 92, 96, 100
    vA0, vA1, vKW, vKR = 104, 105, 106, 107
    t = vTMP
    sb = kvb + 8192
    kA, kW, kR, kP = 28, 29, 30, 31
    stats_setup(st, sb, (kA, kW, kR, kP))
    st(f"""
    s_lshl_b32 s26, s20, 2
    s_lshr_b32 s28, s21, 1
    s_add_u32 s26, s26, s28
    s_bitcmp1_b32 s21, 0
    s_cselect_b64 s[38:39], -1, 0
    """)
    def xloads(e):
        if src == "row":
            e(f"""
            v_lshlrev_b32 v{t+12}, 10, v{vT}
            v_lshl_add_u32 v{t+12}, v{vG}, 4, v{t+12}
            s_lshl_b32 s23, s26, 14
            s_lshl_b32 s28, s22, 8
            s_add_u32 s23, s23, s28
            """)
            for q in range(4):
                e.i(f"buffer_load_dwordx4 {vr(XR+4*q,4)}, v{t+12}, s[12:15], s23 offen offset:{q*64}", vm=f"xk{q}")
        else:
            e(f"""
            s_lshl_b32 s23, s26, 14
            s_lshl_b32 s28, s22, 12
            s_add_u32 s23, s23, s28
            s_add_u32 s23, s23, {B0 + BS*layer_out + XIN}
            """)
            for q in range(4):
                e.i(f"buffer_load_dwordx4 {vr(XR+4*q,4)}, v{vL16}, s[8:11], s23 offen offset:{q*1024} sc1", vm=f"xk{q}")
    def setup(e):
        e(f"""
        s_bitcmp1_b32 s21, 0
        s_cselect_b64 s[38:39], -1, 0
        v_lshrrev_b32 v{t}, 1, v{vG}
        v_and_b32 v{t+1}, 1, v{vG}
        v_lshlrev_b32 v{t+2}, 9, v{t}
        v_lshl_add_u32 v{t+2}, v{vT}, 4, v{t+2}
        v_lshl_add_u32 v{t+2}, v{t+1}, 3, v{t+2}
        v_lshlrev_b32 v{t+4}, 8, v{t+1}
        v_lshl_add_u32 v{t+4}, v{vT}, 4, v{t+4}
        v_lshl_add_u32 v{t+4}, v{t}, 3, v{t+4}
        v_cndmask_b32_e64 v{vA0}, v{t+2}, v{t+4}, s[38:39]
        s_lshl_b32 s23, s22, 11
        s_add_u32 s23, s23, {kvb}
        v_add_u32 v{vKW}, s23, v{vL16}
        v_add_u32 v{vKR}, {kvb}, v{vL16}
        s_lshr_b32 s23, s26, 1
        s_lshl_b32 s23, s23, 10
        s_and_b32 s28, s26, 1
        s_lshl_b32 s29, s28, 8
        s_add_u32 s29, s29, {KF0 + KVS*layer_out}
        s_lshl_b32 s28, s28, 9
        s_add_u32 s28, s28, {VF0 + KVS*layer_out}
        s_bitcmp1_b32 s21, 0
        s_cselect_b32 s28, s28, s29
        s_add_u32 s59, s23, s28
        """)
    def cs(e):
        for jj in range(4):
            w = rr((W_KV[0], W_KV[1] + 4 * jj), 4)
            e(f"v_mfma_f32_16x16x32_bf16 {vr(csK,4)}, {w}, {vr(vONES,4)}, {'0' if jj == 0 else vr(csK,4)}")
            e(f"v_mfma_f32_16x16x32_bf16 {vr(csV,4)}, {vr(vONES,4)}, {w}, {'0' if jj == 0 else vr(csV,4)}")
        for r in range(4): e(f"v_cndmask_b32_e64 v{csK+r}, v{csK+r}, v{csV}, s[38:39]")
        e.i(f"ds_write_b128 v{vKW}, {vr(csK,4)} offset:1024")
    def main(e):
        for q in range(4):
            e.wv(f"xk{q}")
            w = rr((W_KV[0], W_KV[1] + 4 * q), 4); x = vr(XR + 4 * q, 4)
            z = lambda r: "0" if q == 0 else vr(r, 4)
            e(f"v_mfma_f32_16x16x32_bf16 {vr(SG,4)}, {x}, {x}, {z(SG)}")
            e(f"v_mfma_f32_16x16x32_bf16 {vr(SS,4)}, {vr(vONES,4)}, {x}, {z(SS)}")
            e(f"v_mfma_f32_16x16x32_bf16 {vr(accK,4)}, {w}, {x}, {z(accK)}")
            e(f"v_mfma_f32_16x16x32_bf16 {vr(accV,4)}, {x}, {w}, {z(accV)}")
        stats_extract(e, 0, SG, SS, t, "ksw", kW)
        for r in range(4): e(f"v_cndmask_b32_e64 v{accK+r}, v{accK+r}, v{accV+r}, s[38:39]")
        e.i(f"ds_write_b128 v{vKW}, {vr(accK,4)}", lds="kaw")
        e("s_waitcnt lgkmcnt(0)\ns_barrier")
        stats_read(e, 0, t, "ksr", kR)
        F = 108
        for w in range(4): e.i(f"ds_read_b128 {vr(F+4*w,4)}, v{vKR} offset:{w*2048}")
        for w in range(4): e.i(f"ds_read_b128 {vr(F+16+4*w,4)}, v{vKR} offset:{w*2048+1024}", lds=f"kr{w}")
        e.wl("ksr")
        R, N = 140, 141
        for x in stats_math(t, R, N): e(x)
        e.i(f"ds_write_b32 v{kA}, v{R}")
        e.i(f"ds_write_b32 v{kA}, v{N} offset:64", lds="kpw")
        e.wl("kpw")
        R4, N4 = 144, 148
        e.i(f"ds_read_b128 {vr(R4,4)}, v{kP}")
        e.i(f"ds_read_b128 {vr(N4,4)}, v{kP} offset:64", lds="kpr")
        for b in (F, F + 16):
            for r in range(4): e(f"v_add_f32 v{b+r}, v{b+r}, v{b+4+r}\nv_add_f32 v{b+8+r}, v{b+8+r}, v{b+12+r}")
            for r in range(4): e(f"v_add_f32 v{b+r}, v{b+r}, v{b+8+r}")
        e.wl("kpr")
        for r in range(4):
            e(f"v_cndmask_b32_e64 v{R4+r}, v{R}, v{R4+r}, s[38:39]\nv_cndmask_b32_e64 v{N4+r}, v{N}, v{N4+r}, s[38:39]")
        ln_epi(e, F, [R4+r for r in range(4)], [N4+r for r in range(4)], [F+16+r for r in range(4)], 152, 154)
        e("s_cmp_eq_u32 s22, 0\ns_cselect_b64 exec, -1, 0")
        e.i(f"buffer_store_dwordx2 v[152:153], v{vA0}, s[8:11], s59 offen sc1", vm="kvst")
        e("s_mov_b64 exec, -1")
    return xloads, setup, cs, main

LDS_K, LDS_V, VS = 0, 65536, 1056
XB_Q = 74752
SB_Q = XB_Q + 65536
SA, SB, OA_, OB_ = 16, 32, 48, 64
PA, PB, QA, QB, KB, VB = 80, 88, 96, 100, 104, 112
vK, vV0, vV1 = 2, 3, 4

def kv_group(gi, tag):
    out = []
    e = St(); e(f"s_add_u32 s23, s34, {gi*8192}\ns_add_u32 m0, s36, {gi*8192}")
    e.i(f"buffer_load_dwordx4 v{vL16}, s[8:11], s23 offen sc1 lds"); out.append(e)
    e = St(); e.i(f"buffer_load_dwordx4 v{vL16}, s[8:11], s23 offen offset:1024 sc1 lds"); out.append(e)
    e = St(); e(f"s_add_u32 s23, s35, {gi*8192}\ns_add_u32 m0, s37, {gi*8*VS}")
    e.i(f"buffer_load_dwordx4 v{vL16}, s[8:11], s23 offen sc1 lds"); out.append(e)
    e = St(); e(f"s_add_u32 m0, s37, {gi*8*VS + VS - 1024}")
    e.i(f"buffer_load_dwordx4 v{vL16}, s[8:11], s23 offen offset:1024 sc1 lds", vm=tag); out.append(e)
    return out

KVB = 147456
MAIN_LDS = 163840
vB0, vB1 = 158, 162
A_WQ, A_WKV, A_PREP, A_XC = 0, 64, 80, 92

def transpose(e, src, dst, tmp=16):
    e(f"v_mfma_f32_16x16x32_bf16 {vr(tmp,4)}, {src}, {vr(vB0,4)}, 0")
    e(f"v_mfma_f32_16x16x32_bf16 {vr(tmp+4,4)}, {src}, {vr(vB1,4)}, 0")
    e(f"""
    v_cvt_pk_bf16_f32 v{dst}, v{tmp}, v{tmp+1}
    v_cvt_pk_bf16_f32 v{dst+1}, v{tmp+2}, v{tmp+3}
    v_cvt_pk_bf16_f32 v{dst+2}, v{tmp+4}, v{tmp+5}
    v_cvt_pk_bf16_f32 v{dst+3}, v{tmp+6}, v{tmp+7}
    """)

def q_setup(st):
    xa_setup(st, 4, XB_Q)
    stats_setup(st, SB_Q)

def q_dma_act(st):
    dma = dma_slots(st, 4, XB_Q, f"s{sXIN}", lambda e, s: e(f"s_add_u32 s23, s26, {s}"), "xq")
    return dma

def phase_q(st, name, dma):
    ns = 4
    acc, vCS = 64, 124
    SGs = [80, 84, 88, 92]; SSs = [104, 108, 112, 116]
    steps = gemm_steps(ns, lambda s: [((acc + 4 * s, True), W_QA, True)], "xq", [[], [], dma[2], dma[3]], 2,
                       stats=lambda s: (SGs[s], SSs[s]), fine="q")
    pa = []
    for s in range(ns):
        e = St(); stats_extract(e, s, SGs[s], SSs[s], vTMP, f"qsw{s}")
        pa += prog(16 * s + 6, e)
    pub = St(); pub.wv("kvst")
    pub(f"s_lshl_b32 s29, s{sL}, 14\ns_add_u32 s29, s29, {KVFL}")
    g = St(); wg_flag_store(g, "s29", replicas=8)
    pub.it.append(("grpv", [it[1] for it in g.it], None, None))
    ld = [f"buffer_load_dwordx4 v[128:131], v60, s[8:11], s47 offen sc1", f"buffer_load_dwordx4 v[132:135], v60, s[8:11], s47 offen offset:16 sc1"]
    look = St()
    look(f"""
    v_lshlrev_b32 v60, 5, v0
    s_lshl_b32 s47, s{sL}, 14
    s_add_u32 s47, s47, {KVFL}
    s_lshr_b32 s28, s20, 2
    s_lshl_b32 s28, s28, 11
    s_add_u32 s47, s47, s28
    """)
    look.it.append(("grpv", ["s_cmp_eq_u32 s22, 0", "s_cselect_b64 exec, -1, 0", ld[0], ld[1], "s_mov_b64 exec, -1"], None, None))
    csum = St(); colsum(csum, vCS, W_QA, True)
    PUBS = int(os.environ.get("PUBS", "12")); LOOK = int(os.environ.get("LOOKS", "56"))
    body = St()
    body.ext(steps[1])
    body.ext(strip_marks(weave2(steps[2:], [pa, prog(PUBS, pub) + prog(LOOK, look), prog(4, csum)], per=1)))
    st.ext(body)
    st("s_waitcnt lgkmcnt(0)\ns_barrier")
    A8 = [16, 24, 32, 40]
    for s in range(ns): stats_read(st, s, A8[s], f"qsr{s}")
    stamp(st)
    st("s_waitcnt vmcnt(0)")
    w0_exec(st)
    check_pairs(st, [128, 130, 132, 134])
    st(f"s_cbranch_vccz L_kvok_{name}")
    poll_pairs(st, f"L_kvp_{name}", [128, 130, 132, 134], ld, sleep=True)
    st.label(f"L_kvok_{name}")
    st("s_mov_b64 exec, -1\ns_barrier")
    st(f"""
    s_lshl_b32 s36, s22, 11
    s_add_u32 s34, s36, s{sKF}
    s_add_u32 s35, s36, s{sVF}
    s_mul_i32 s37, s22, {2*VS}
    s_add_u32 s37, s37, {LDS_V}
    """)
    for e in kv_group(0, "c0"): st.ext(e)
    R = [48 + s for s in range(ns)]; N = [52 + s for s in range(ns)]
    st.wl("qsr3")
    maths = [stats_math(A8[s], R[s], N[s]) for s in range(ns)]
    for i in range(len(maths[0])):
        for s in range(ns): st(maths[s][i])
    for s in range(ns):
        st(f"v_mul_f32 v{R[s]}, {f32(CQ)}, v{R[s]}\nv_mul_f32 v{N[s]}, {f32(CQ)}, v{N[s]}")
    for s in range(ns):
        ln_epi(st, acc + 4 * s, [R[s]] * 4, [N[s]] * 4, [vCS + r for r in range(4)], QA + 2 * s, 16 + 4 * s)
    st(f"""
    v_permlane16_swap_b32 v{QA}, v{QA+2}
    v_permlane16_swap_b32 v{QA+1}, v{QA+3}
    v_permlane16_swap_b32 v{QB}, v{QB+2}
    v_permlane16_swap_b32 v{QB+1}, v{QB+3}
    """)

def phase_att(st, name):
    st(f"""
    v_mov_b32 v{vK}, v{vL16}
    v_and_b32 v5, 31, v0
    v_lshrrev_b32 v6, 5, v0
    v_lshlrev_b32 v7, 8, v6
    v_lshl_add_u32 v7, v5, 4, v7
    v_add_u32 v7, {LDS_V}, v7
    v_mov_b32 v16, {LDS_V + 1024 + 16}
    v_mov_b32 v17, {LDS_V + 1024}
    v_and_b32 v18, 27, v5
    v_cmp_eq_u32 s[28:29], 16, v18
    v_cndmask_b32_e64 v16, v16, v17, s[28:29]
    v_cmp_gt_u32 s[28:29], 16, v5
    v_cndmask_b32_e64 v{vV0}, v16, v7, s[28:29]
    v_add_u32 v7, 512, v7
    v_cndmask_b32_e64 v{vV1}, v16, v7, s[28:29]
    v_mov_b32 v16, 0x3f803f80
    v_mov_b32 v17, v16
    v_mov_b32 v18, v16
    v_mov_b32 v19, v16
    v_mul_u32_u24 v20, {VS}, v0
    v_add_u32 v20, {LDS_V + 1024}, v20
    s_cmp_lg_u32 s22, 0
    s_cbranch_scc1 L_noones_{name}
    ds_write_b128 v20, v[16:19]
    v_mov_b32 v16, 0
    v_mov_b32 v17, 0
    v_mov_b32 v18, 0
    v_mov_b32 v19, 0
    ds_write_b128 v20, v[16:19] offset:16
    """)
    st.label(f"L_noones_{name}")
    st(f"""
    v_and_b32 v9, 15, v0
    v_lshrrev_b32 v10, 4, v0
    s_lshl_b32 s23, s21, 11
    s_lshr_b32 s28, s22, 1
    s_lshl_b32 s28, s28, 10
    s_add_u32 s23, s23, s28
    s_and_b32 s28, s22, 1
    s_lshl_b32 s28, s28, 9
    s_add_u32 s23, s23, s28
    v_lshrrev_b32 v11, 1, v10
    v_lshlrev_b32 v11, 8, v11
    v_lshl_add_u32 v11, v9, 4, v11
    v_and_b32 v8, 1, v10
    v_lshl_add_u32 v8, v8, 3, v11
    v_add_u32 v8, s23, v8
    s_lshl_b32 s59, s20, 16
    s_add_u32 s59, s59, s{sXIN}
    """)
    def init_acc(s):
        for r in range(16): s(f"v_mov_b32 v{OA_+r}, 0\nv_mov_b32 v{OB_+r}, 0")
    def rdK(t, base): return f"ds_read_b128 {vr(KB + 4*(t&1),4)}, v{vK} offset:{(t-base)*1024}"
    def rdV(t, base):
        b = VB + 8 * (t & 1)
        return [f"ds_read_b128 {vr(b,4)}, v{vV0} offset:{(t-base)*VS}", f"ds_read_b128 {vr(b+4,4)}, v{vV1} offset:{(t-base)*VS}"]
    def qk(S, t, Q): return f"v_mfma_f32_32x32x16_bf16 {vr(S,16)}, {vr(KB + 4*(t&1),4)}, {vr(Q,4)}, 0"
    def pv(O, t, P):
        b = VB + 8 * (t & 1)
        return [f"v_mfma_f32_32x32x16_bf16 {vr(O,16)}, {vr(b,4)}, {vr(P,4)}, {vr(O,16)}",
                f"v_mfma_f32_32x32x16_bf16 {vr(O,16)}, {vr(b+4,4)}, {vr(P+4,4)}, {vr(O,16)}"]
    def softmax(S, P, M):
        ins = []
        if M is not None:
            for r in range(16): ins.append(f"v_sub_f32 v{S+r}, v{S+r}, v{M}")
        for i in range(8):
            ins.append(f"v_exp_f32 v{S+2*i}, v{S+2*i}")
            ins.append(f"v_exp_f32 v{S+2*i+1}, v{S+2*i+1}")
            if i > 0: ins.append(f"v_cvt_pk_bf16_f32 v{P+i-1}, v{S+2*i-2}, v{S+2*i-1}")
        ins.append(f"v_cvt_pk_bf16_f32 v{P+7}, v{S+14}, v{S+15}")
        return ins
    def mix(s, valu, groups):
        n = len(valu); k = len(groups)
        for j in range(k):
            for x in groups[j]:
                if isinstance(x, St): s.ext(x)
                else: s(x)
            for x in valu[j * n // k:(j + 1) * n // k]: s(x)
    def iteration(s, t, nt, base, extras, safe=None, first=False, rolled=False):
        MA, MB = safe if safe else (None, None)
        ex = list(extras)
        def pop(): return [ex.pop(0)] if ex else []
        g1 = [[qk(SB, t, QB)] + ([rdK(t + 2, base)] if (rolled or t + 2 < nt) else [])]
        pvb = [] if first else pv(OB_, t - 1, PB)
        rv = rdV(t + 1, base) if (rolled or t + 1 < nt) else []
        if pvb:
            g1.append([pvb[0]] + rv[:1]); g1.append([pvb[1]] + rv[1:])
        else:
            g1.append(rv)
        mix(s, softmax(SA, PA, MA), g1)
        pva = pv(OA_, t, PA)
        g2 = [([qk(SA, t + 1, QA)] if (rolled or t + 1 < nt) else []) + pop(), [pva[0]] + pop(), [pva[1], "s_waitcnt lgkmcnt(0)"]]
        mix(s, softmax(SB, PB, MB), g2)
        for x in ex: s.ext(x)
    def first_reads(s):
        s(rdK(0, 0)); s(rdK(1, 0))
        for x in rdV(0, 0): s(x)
        s("s_waitcnt lgkmcnt(0)")
        s(qk(SA, 0, QA))
    init_acc(st)
    st.wv("c0")
    st("s_waitcnt lgkmcnt(0)\ns_barrier")
    first_reads(st)
    stamp(st)
    extras = {t: [] for t in range(64)}
    for gi in range(1, 8): extras[gi - 1] += kv_group(gi, f"kv{gi}")
    pre = []
    pre += w_loads(W_O, T_WOA, "woa")
    for q in range(4):
        e = St()
        if q: e("s_add_u32 s59, s59, 16384")
        e.i(f"buffer_load_dwordx2 {vr(vRES+2*q,2)}, v8, s[8:11], s59 offen sc1"); pre.append(e)
    pre += w_loads(W_Q2, T_WQKV, "wq2")
    pre += w_loads(W_K2, T_WQKV + 32, "wk2")
    pre += w_loads(W_V2, T_WQKV + 64, "wv2")
    if FAST: pre += xcc_issue()
    t = 14
    while pre:
        extras[t] += pre[:2]; pre = pre[2:]; t += 1
    warm = []
    if "nowarm" not in OPT:
        e = St()
        e(f"""
        v_lshrrev_b32 v9, 4, v0
        v_bfe_u32 v10, v0, 2, 2
        v_and_b32 v11, 3, v0
        v_lshlrev_b32 v10, 14, v10
        v_lshl_add_u32 v10, v11, 7, v10
        s_lshl_b32 s28, s21, 11
        s_lshl_b32 s29, s22, 9
        s_add_u32 s28, s28, s29
        s_lshl_b32 s29, s20, 16
        s_add_u32 s28, s28, s29
        v_add_u32 v10, s28, v10
        v_add_u32 v9, 1, v9
        v_lshlrev_b32 v9, 21, v9
        v_add_u32 v10, v10, v9
        """)
        e.i(f"buffer_load_dword v253, v10, s[8:11], s{sXIN} offen".replace("v253", "v5"))
        warm = [e]
    WT = int(os.environ.get("WARMT", t))
    extras[WT] += warm
    assert t <= 62
    base = 0
    for t in range(64):
        if t == 6: st.wv("kv1"); st("s_barrier")
        if t == 14: st.wv("kv7"); st("s_barrier")
        if t == 32:
            st(f"v_add_u32 v{vK}, {32*1024}, v{vK}\nv_add_u32 v{vV0}, {32*VS}, v{vV0}\nv_add_u32 v{vV1}, {32*VS}, v{vV1}")
            base = 32
        iteration(st, t, 64, base, extras[t], first=(t == 0))
    stamp(st)
    def tail(s):
        for x in pv(OB_, 63, PB): s(x)
    lA, lB = OA_ + 8, OB_ + 8
    tail(st)
    xcc_check(st, name)
    st(f"v_mul_f32 v9, 0, v{OA_}\nv_mul_f32 v10, 0, v{OB_}")
    for r in range(1, 8):
        st(f"v_fma_f32 v9, v{OA_+r}, 0, v9\nv_fma_f32 v10, v{OB_+r}, 0, v10")
    st(f"""
    v_add_f32 v9, v9, v10
    v_min_f32 v10, v{lA}, v{lB}
    v_max_f32 v11, v{lA}, v{lB}
    v_add_f32 v10, v10, v9
    v_add_f32 v11, v11, v9
    v_cmp_u_f32 s[28:29], v{lA}, v{lB}
    v_mov_b32 v20, {f32(2.0**-40)}
    v_cmp_nge_f32 vcc, v10, v20
    s_or_b64 s[28:29], s[28:29], vcc
    v_mov_b32 v20, {f32(2.0**100)}
    v_cmp_nle_f32 vcc, v11, v20
    s_or_b64 s[28:29], s[28:29], vcc
    s_cmp_eq_u64 s[28:29], 0
    s_cbranch_scc1 L_attok_{name}
    """)
    MA, MB = 9, 10
    st(f"""
    v_subrev_u32 v{vK}, {32*1024}, v{vK}
    v_subrev_u32 v{vV0}, {32*VS}, v{vV0}
    v_subrev_u32 v{vV1}, {32*VS}, v{vV1}
    v_mov_b32 v{MA}, {f32(-3.0e38)}
    v_mov_b32 v{MB}, {f32(-3.0e38)}
    v_mov_b32 v11, v{vK}
    s_mov_b32 s44, 0
    """)
    st.label(f"L_max_{name}")
    st(f"""
    ds_read_b128 {vr(KB,4)}, v11
    s_waitcnt lgkmcnt(0)
    v_mfma_f32_32x32x16_bf16 {vr(SA,16)}, {vr(KB,4)}, {vr(QA,4)}, 0
    v_mfma_f32_32x32x16_bf16 {vr(SB,16)}, {vr(KB,4)}, {vr(QB,4)}, 0
    v_add_u32 v11, 1024, v11
    """)
    for r in range(0, 16, 2): st(f"v_max3_f32 v{MA}, v{MA}, v{SA+r}, v{SA+r+1}")
    for r in range(0, 16, 2): st(f"v_max3_f32 v{MB}, v{MB}, v{SB+r}, v{SB+r+1}")
    st(f"""
    s_add_u32 s44, s44, 1
    s_cmp_lt_u32 s44, 64
    s_cbranch_scc1 L_max_{name}
    v_mov_b32 v11, v{MA}
    v_permlane32_swap_b32 v11, v{MA}
    v_max_f32 v{MA}, v{MA}, v11
    v_mov_b32 v11, v{MB}
    v_permlane32_swap_b32 v11, v{MB}
    v_max_f32 v{MB}, v{MB}, v11
    """)
    init_acc(st)
    for r in range(8): st(f"v_mov_b32 v{PB+r}, 0\nv_mov_b32 v{VB+8+r}, 0")
    first_reads(st)
    st("s_mov_b32 s44, 0")
    st.label(f"L_att2_{name}")
    for u in range(2):
        iteration(st, u + 2, 64, 2, [], safe=(MA, MB), rolled=True)
    st(f"""
    v_add_u32 v{vK}, {2*1024}, v{vK}
    v_add_u32 v{vV0}, {2*VS}, v{vV0}
    v_add_u32 v{vV1}, {2*VS}, v{vV1}
    s_add_u32 s44, s44, 1
    s_cmp_lt_u32 s44, 32
    s_cbranch_scc1 L_att2_{name}
    """)
    tail(st)
    st.label(f"L_attok_{name}")
    st(f"""
    s_lshl_b32 s23, s21, 11
    s_lshr_b32 s24, s22, 1
    s_lshl_b32 s24, s24, 10
    s_add_u32 s23, s23, s24
    s_and_b32 s24, s22, 1
    s_lshl_b32 s24, s24, 9
    s_add_u32 s23, s23, s24
    s_lshl_b32 s24, s20, 16
    s_add_u32 s23, s23, s24
    s_add_u32 s23, s23, s{sOA}
    v_and_b32 v9, 15, v0
    v_lshlrev_b32 v9, 4, v9
    v_lshrrev_b32 v10, 5, v0
    v_lshl_add_u32 v9, v10, 3, v9
    v_bfe_u32 v10, v0, 4, 1
    v_lshl_add_u32 v9, v10, 14, v9
    v_rcp_f32 v11, v{lA}
    v_rcp_f32 v12, v{lB}
    s_mov_b64 vcc, s[{sSLOWA}:{sSLOWA+1}]
    """)
    for qb, O, rc in ((0, OA_, 11), (1, OB_, 12)):
        for r in range(8): st(f"v_mul_f32 v{O+r}, v{O+r}, v{rc}")
        p = 16 + 4 * qb
        st(f"""
        v_cvt_pk_bf16_f32 v{p}, v{O}, v{O+1}
        v_cvt_pk_bf16_f32 v{p+1}, v{O+2}, v{O+3}
        v_cvt_pk_bf16_f32 v{p+2}, v{O+4}, v{O+5}
        v_cvt_pk_bf16_f32 v{p+3}, v{O+6}, v{O+7}
        """)
        dstore(st, f"buffer_store_dwordx2 {vr(p,2)}, v9, s[8:11], s23 offen")
        dstore(st, f"buffer_store_dwordx2 {vr(p+2,2)}, v9, s[8:11], s23 offen offset:256")
        if qb == 0: st("s_add_u32 s23, s23, 32768")

def phase_p13(st, name, which):
    ns = 4
    slow = sSLOWB if which == 1 else sSLOWA
    lane_consts(st)
    xa_setup(st, ns, 0)
    st("s_lshl_b32 s26, s20, 2")
    tag = f"x{which}"
    vActA, vRowA = 44, 45
    act_addr(st, vActA, vTMP)
    acc = 64
    for s in range(ns):
        a = acc + 4 * s
        st(f"""
        v_lshlrev_b32 v{a}, 16, v{vRES+2*s}
        v_and_b32 v{a+1}, 0xffff0000, v{vRES+2*s}
        v_lshlrev_b32 v{a+2}, 16, v{vRES+2*s+1}
        v_and_b32 v{a+3}, 0xffff0000, v{vRES+2*s+1}
        """)
    if which == 3:
        row_addr(st, vRowA)
        st(f"""
        s_cmp_eq_u32 s{sL}, 0
        s_cselect_b32 s{SRD_OUT}, s8, s12
        s_cselect_b32 s{SRD_OUT+1}, s9, s13
        s_cselect_b32 s{SRD_OUT+2}, s10, s14
        s_mov_b32 s{SRD_OUT+3}, 0x00020000
        s_cselect_b32 s46, {B0 + BS + XIN}, 0
        s_cselect_b64 s[28:29], -1, 0
        v_cndmask_b32_e64 v{vActA}, v{vRowA}, v{vActA}, s[28:29]
        """)
    dma = dma_slots(st, ns, 0, f"s{sOA if which == 1 else sOB}", lambda e, s: e(f"s_add_u32 s23, s26, {s}"), tag)
    stamp(st, f"p{which}")
    sync_wait(st, 0 if which == 1 else 2, name, slow=slow)
    stamp(st, f"p{which}")
    steps = gemm_steps(ns, lambda s: [((acc + 4 * s, False), W_O, True)], tag, dma, 3, fine=f"p{which}")
    def epi(s):
        e = St()
        a = acc + 4 * s
        p = (vRES if which == 1 else 88) + 2 * s
        e(f"""
        v_cvt_pk_bf16_f32 v{p}, v{a}, v{a+1}
        v_cvt_pk_bf16_f32 v{p+1}, v{a+2}, v{a+3}
        s_add_u32 s47, s26, {s}
        s_lshl_b32 s47, s47, 14
        """)
        if which == 1:
            e(f"s_add_u32 s47, s47, s{sX1}")
            dstore(e, f"buffer_store_dwordx2 {vr(p,2)}, v{vActA}, s[8:11], s47 offen")
        else:
            e("s_add_u32 s47, s47, s46")
            dstore(e, f"buffer_store_dwordx2 {vr(p,2)}, v{vActA}, s[{SRD_OUT}:{SRD_OUT+3}], s47 offen")
        return e
    st.ext(steps[0]); st.ext(steps[1])
    pb = []
    for s in range(ns - 1): pb += prog(16 * (s + 1) + 3, epi(s))
    st.ext(strip_marks(weave2(steps[2:], [pb], per=2)))
    st.ext(epi(ns - 1))
    stamp(st, f"p{which}")

def phase_p2(st, name):
    ns = 5
    SBASE = ns * 16384
    lane_consts(st)
    xa_setup(st, ns, 0)
    stats_setup(st, SBASE)
    Wq, Wk, Wv = W_Q2, W_K2, W_V2
    st("s_lshl_b32 s26, s20, 2\ns_sub_u32 s26, s26, 1")
    vActA = 96
    act_addr(st, vActA, vTMP)
    vMo, vMp, vMp0 = 100, 104, 108
    st(f"v_mov_b32 v{vTMP+2}, {f32(-1.0e30)}")
    for r in range(4):
        st(f"""
        v_lshl_add_u32 v{vTMP}, v{vG}, 2, {r}
        v_sub_u32 v{vTMP}, v{vT}, v{vTMP}
        v_and_b32 v{vTMP+1}, 0x80000001, v{vTMP}
        v_cmp_eq_u32 s[28:29], 0, v{vTMP+1}
        v_cndmask_b32_e64 v{vMo+r}, v{vTMP+2}, 0, s[28:29]
        v_cmp_gt_i32 s[38:39], -1, v{vTMP}
        v_and_b32 v{vTMP+1}, 1, v{vTMP}
        v_cmp_eq_u32 s[28:29], 0, v{vTMP+1}
        s_and_b64 s[28:29], s[28:29], s[38:39]
        v_cndmask_b32_e64 v{vMp+r}, v{vTMP+2}, 0, s[28:29]
        """)
    st("s_cmp_eq_u32 s20, 0\ns_cselect_b64 s[28:29], -1, 0")
    for r in range(4): st(f"v_cndmask_b32_e64 v{vMp0+r}, v{vMp+r}, v{vTMP+2}, s[28:29]")
    vCSq, vCSk, vCSv = 112, 116, 120
    def tile_of_slot(e, s):
        if s == 0: e("s_max_i32 s23, s26, 0")
        else: e(f"s_add_u32 s23, s26, {s}")
    dma = dma_slots(st, ns, 0, f"s{sX1}", tile_of_slot, "x2")
    csum = St()
    if "cslate" not in OPT:
        colsum(st, vCSq, Wq, True); colsum(st, vCSk, Wk, True); colsum(st, vCSv, Wv, False)
    stamp(st, "p2")
    sync_wait(st, 1, name, halo=True, slow=sSLOWA)
    stamp(st, "p2")
    wob = w_loads(W_O, T_WOB, "wob")
    accq, acck, accv = 64, 68, 72
    def A(base, s): return base + 12 * (s & 1)
    vSG, vSS = 88, 92
    def chains(s):
        c = []
        if s > 0: c.append(((A(accq, s), True), Wq, True))
        c.append(((A(acck, s), True), Wk, True))
        c.append(((A(accv, s), True), Wv, False))
        return c
    steps = gemm_steps(ns, chains, "x2", dma, 2, stats=lambda s: (vSG, vSS), fine="p2")
    for jj in range(16): steps[2 + 16 * 4 + jj].ext(wob[jj])
    last = steps[2 + 16 * 4 + 8]
    last.it.append(("mark", "bar4", None, None)); last("s_barrier")
    vR, vN = 124, 125
    vRq, vNq = 128, 129
    vR4, vN4 = 132, 136
    pq, pk, pv = 140, 142, 148
    tmp = 56
    S, P, MX, T2, PO = 158, 132, 97, 98, 146
    O, L = S, S + 4
    def statsA(s):
        b = 16 * s
        p = []
        e = St(); stats_extract(e, s, vSG, vSS, vTMP, f"sw{s}"); e.wl(f"sw{s}")
        p += prog(b + 5, e); p.append((b + 5, ("before", f"bar{s}", None, None)))
        e = St(); stats_read(e, s, vTMP, f"sr{s}"); p += prog(b + 9, e)
        e = St(); e.wl(f"sr{s}")
        R, N = vR + 2 * (s & 1), vN + 2 * (s & 1)
        for x in stats_math(vTMP, R, N): e(x)
        e.i(f"ds_write_b32 v{vSTA}, v{R}")
        e.i(f"ds_write_b32 v{vSTA}, v{N} offset:64", lds=f"pw{s}")
        p += prog(b + 12, e)
        p.append((b + 12, ("before", f"sl{s}", None, None)))
        return p
    def epi(s):
        e = St()
        R, N = vR + 2 * (s & 1), vN + 2 * (s & 1)
        e.wl(f"pw{s}")
        e.i(f"ds_read_b128 {vr(vR4,4)}, v{vPRR}")
        e.i(f"ds_read_b128 {vr(vN4,4)}, v{vPRR} offset:64", lds=f"pr{s}")
        ln_epi(e, A(acck, s), [R]*4, [N]*4, [vCSk+r for r in range(4)], pk + 2 * (s & 1), tmp)
        if s > 0:
            e(f"v_mul_f32 v{vRq}, {f32(CQ)}, v{R}\nv_mul_f32 v{vNq}, {f32(CQ)}, v{N}")
            ln_epi(e, A(accq, s), [vRq]*4, [vNq]*4, [vCSq+r for r in range(4)], pq, tmp)
            kp = pk + 2 * ((s - 1) & 1); ko = pk + 2 * (s & 1)
            mp = vMp0 if s == 1 else vMp
            e(f"v_mfma_f32_16x16x16_bf16 {vr(S,4)}, {vr(kp,2)}, {vr(pq,2)}, {vr(mp,4)}")
            e(f"v_mfma_f32_16x16x16_bf16 {vr(S+4,4)}, {vr(ko,2)}, {vr(pq,2)}, {vr(vMo,4)}")
        e.wl(f"pr{s}")
        ln_epi(e, A(accv, s), [vR4+r for r in range(4)], [vN4+r for r in range(4)], [vCSv]*4, pv + 2 * s, tmp)
        if s == 0: return e
        e(f"""
        v_max3_f32 v{MX}, v{S}, v{S+1}, v{S+2}
        v_max3_f32 v{T2}, v{S+3}, v{S+4}, v{S+5}
        v_max3_f32 v{MX}, v{MX}, v{S+6}, v{S+7}
        v_max_f32 v{MX}, v{MX}, v{T2}
        v_mov_b32 v{T2}, v{MX}
        v_permlane32_swap_b32 v{T2}, v{MX}
        v_max_f32 v{MX}, v{MX}, v{T2}
        v_mov_b32 v{T2}, v{MX}
        v_permlane16_swap_b32 v{T2}, v{MX}
        v_max_f32 v{MX}, v{MX}, v{T2}
        """)
        for r in range(8): e(f"v_sub_f32 v{S+r}, v{S+r}, v{MX}")
        for r in range(8): e(f"v_exp_f32 v{S+r}, v{S+r}")
        for r in range(4): e(f"v_cvt_pk_bf16_f32 v{P+r}, v{S+2*r}, v{S+2*r+1}")
        e(f"v_mfma_f32_16x16x32_bf16 {vr(O,4)}, {vr(pv+2*(s-1),4)}, {vr(P,4)}, 0")
        e(f"v_mfma_f32_16x16x32_bf16 {vr(L,4)}, {vr(vONES,4)}, {vr(P,4)}, 0")
        e.it.append(("gap", 4, None, None))
        e(f"v_rcp_f32 v{L}, v{L}")
        e(f"s_add_u32 s47, s26, {s}\ns_lshl_b32 s47, s47, 14\ns_add_u32 s47, s47, s{sOB}")
        for r in range(4): e(f"v_mul_f32 v{O+r}, v{O+r}, v{L}")
        e(f"v_cvt_pk_bf16_f32 v{PO}, v{O}, v{O+1}\nv_cvt_pk_bf16_f32 v{PO+1}, v{O+2}, v{O+3}")
        dstore(e, f"buffer_store_dwordx2 {vr(PO,2)}, v{vActA}, s[8:11], s47 offen")
        return e
    st.ext(steps[0]); st.ext(steps[1])
    main = steps[2:]
    for s in range(ns - 1):
        main[16 * (s + 1)].it.insert(0, ("mark", f"sl{s}", None, None))
    pa, pb = [], []
    for s in range(ns): pa += statsA(s)
    for s in range(ns - 1):
        pb += prog(16 * (s + 1) + 1, epi(s)); pb.append((16 * (s + 1) + 1, ("before", f"ep{s}", None, None)))
    for s in range(ns - 2):
        main[16 * (s + 2)].it.insert(0, ("mark", f"ep{s}", None, None))
    st.ext(strip_marks(weave2(main, [pa, pb], per=2)))
    st.ext(strip_marks(epi(ns - 1)))

def layer_scalars(st):
    st(f"""
    s_mul_i32 s23, s{sL}, {KVS}
    s_add_u32 s{sKF}, s23, {KF0}
    s_add_u32 s{sVF}, s23, {VF0}
    s_mul_i32 s23, s{sL}, {BS}
    s_add_u32 s{sXIN}, s23, {B0 + XIN}
    s_add_u32 s{sOA}, s23, {B0 + OA}
    s_add_u32 s{sX1}, s23, {B0 + X1}
    s_add_u32 s{sOB}, s23, {B0 + OB}
    s_lshl_b32 s23, s{sL}, 14
    s_add_u32 s{sFLAG}, s23, {FLAGS}
    """)

def q_dma(st):
    st("s_lshl_b32 s46, s20, 2")
    return dma_slots(st, 4, XB_Q, f"s{sXIN}", lambda e, s: e(f"s_add_u32 s23, s46, {s}"), "xq")

def gen_init(st, name):
    pWK, pWV, pWQ, pWOA, pWQKV, pWOB = 40, 42, 44, 46, 60, 62
    prologue(st, name, """
    s_load_dwordx4 s[40:43], s[0:1], 16
    s_load_dwordx2 s[44:45], s[0:1], 8
    s_load_dwordx2 s[46:47], s[0:1], 32
    s_load_dwordx4 s[60:63], s[0:1], 48
    s_load_dwordx2 s[6:7], s[0:1], 0
    """)
    st(f"s_add_u32 s28, s4, {EPOCH}\ns_addc_u32 s29, s5, 0\ns_load_dwordx2 s[{sEP}:{sEP+1}], s[28:29], 0")
    srd_io(st, 6, 2048 * 1024)
    st(f"s_mov_b32 s{sL}, 0")
    lane_consts(st)
    stamp(st, "i")
    xloads, setup, cs, main = phase_kv(st, name + "_i", 0, "row", KVB)
    xloads(st)
    vKap, vCol = 24, 25
    st(f"""
    v_lshrrev_b32 v{vKap}, 2, v{vT}
    v_lshlrev_b32 v{vKap}, 3, v{vKap}
    v_and_b32 v{vCol}, 3, v{vT}
    v_add_u32 v{vKap}, v{vKap}, v{vCol}
    v_lshrrev_b32 v{vCol}, 1, v{vG}
    v_lshl_add_u32 v{vKap}, v{vCol}, 2, v{vKap}
    v_and_b32 v{vCol}, 1, v{vG}
    v_lshlrev_b32 v{vCol}, 4, v{vCol}
    s_bitcmp1_b32 s21, 0
    s_cselect_b32 s28, s{pWV}, s{pWK}
    s_cselect_b32 s29, s{pWV+1}, s{pWK+1}
    v_lshl_add_u32 v142, v{vKap}, 5, v{vCol}
    s_lshl_b32 s23, s22, 12
    v_add_u32 v142, s23, v142
    """)
    for q in range(4):
        st.i(f"global_load_dwordx4 {ar(A_WKV+4*q,4)}, v142, s[28:29] offset:{q*1024}", vm=f"rw{q}")
    stamp(st, "i")
    st("s_getpc_b64 s[28:29]")
    st.label("L_pc_anchor")
    st(f"""
    s_add_u32 s28, s28, {name}-L_pc_anchor
    s_addc_u32 s29, s29, -1
    s_lshr_b32 s27, s2, 3
    s_lshl_b32 s27, s27, 2
    s_add_u32 s27, s27, s22
    s_lshl_b32 s27, s27, 9
    v_lshlrev_b32 v14, 6, v0
    v_add_u32 v14, s27, v14
    v_min_u32 v14, L_code_end-{name}-4, v14
    s_mov_b64 exec, 0xff
    """)
    if "nocode" not in OPT: st.i("global_load_dword v13, v14, s[28:29]")
    st("s_mov_b64 exec, -1")
    st(f"s_lshl_b32 s59, s2, 2\ns_add_u32 s59, s59, s22")
    for i in range(3):
        st(f"""
        s_add_u32 s27, s59, {1024*i}
        s_lshr_b32 s28, s27, 4
        s_and_b32 s29, s27, 15
        s_mov_b32 s24, s{pWQ}
        s_mov_b32 s25, s{pWQ+1}
        s_mov_b32 s38, s28
        s_mov_b32 s39, 1024
        """)
        for T0, reg, stride in ((T_WOA, pWOA, 1024), (T_WOB, pWOB, 1024), (T_WQKV, pWQKV, 3072)):
            st(f"""
            s_sub_u32 s58, s28, {T0}
            s_cmp_ge_u32 s28, {T0}
            s_cselect_b32 s24, s{reg}, s24
            s_cselect_b32 s25, s{reg+1}, s25
            s_cselect_b32 s38, s58, s38
            s_cselect_b32 s39, {stride}, s39
            """)
        st(f"""
        s_lshl_b32 s29, s29, 5
        s_lshl_b32 s38, s38, 5
        v_add_u32 v148, s29, v{vKap}
        v_mul_lo_u32 v148, v148, s39
        v_add_u32 v148, v148, v{vCol}
        v_add_u32 v148, s38, v148
        """)
        st.i(f"global_load_dwordx4 {ar(A_PREP+4*i,4)}, v148, s[24:25]", vm=f"pw{i}")
    st(f"""
    v_lshlrev_b32 v26, 10, v{vT}
    v_lshl_add_u32 v26, v{vG}, 4, v26
    s_lshr_b32 s27, s59, 3
    s_lshl_b32 s27, s27, 14
    s_and_b32 s28, s59, 7
    s_lshl_b32 s28, s28, 7
    s_add_u32 s27, s27, s28
    """)
    st.i(f"buffer_load_dwordx4 {ar(A_XC,4)}, v26, s[12:15], s27 offen")
    st.i(f"buffer_load_dwordx4 {ar(A_XC+4,4)}, v26, s[12:15], s27 offen offset:64", vm="xc")
    if "nowarm" not in OPT:
        st(f"""
        s_lshl_b32 s27, s20, 7
        s_lshl_b32 s28, s21, 3
        s_add_u32 s27, s27, s28
        s_add_u32 s27, s27, {FLAGS}
        v_and_b32 v148, 7, v0
        v_lshlrev_b32 v148, 12, v148
        v_add_u32 v148, s27, v148
        s_lshl_b32 s28, s20, 3
        s_add_u32 s28, s28, s21
        s_lshl_b32 s28, s28, 3
        s_add_u32 s28, s28, {KVFL - 8*0x800}
        v_min_u32 v149, 32, v0
        v_lshlrev_b32 v149, 11, v149
        v_add_u32 v149, s28, v149
        v_cmp_gt_u32 s[38:39], 8, v0
        v_cndmask_b32_e64 v148, v149, v148, s[38:39]
        """)
        w0_exec(st)
        st.i("buffer_load_dword v15, v148, s[8:11], 0 offen")
        st("s_mov_b64 exec, -1")
    stamp(st, "i")
    layer_scalars(st)
    wave_scalars(st)
    emit_selectors(st, vB0, vB1, 16)
    setup(st)
    for q in range(4):
        st.wv(f"rw{q}")
        transpose(st, ar(A_WKV + 4 * q, 4), W_KV[1] + 4 * q)
    stamp(st, "i")
    cs(st)
    stamp(st); stamp(st, "i")
    main(st)
    stamp(st); stamp(st, "i")
    st("s_lshl_b32 s59, s2, 2\ns_add_u32 s59, s59, s22")
    for i in range(3):
        st.wv(f"pw{i}")
        transpose(st, ar(A_PREP + 4 * i, 4), 28 + 0, tmp=16)
        st(f"s_add_u32 s27, s59, {1024*i}\ns_lshl_b32 s27, s27, 10")
        st.i(f"buffer_store_dwordx4 v[28:31], v{vL16}, s[8:11], s27 offen sc1")
    st(f"s_lshl_b32 s27, s59, 11\ns_add_u32 s27, s27, {B0 + XIN}")
    st.wv("xc")
    st.i(f"buffer_store_dwordx4 {ar(A_XC,4)}, v{vL16}, s[8:11], s27 offen sc1")
    st.i(f"buffer_store_dwordx4 {ar(A_XC+4,4)}, v{vL16}, s[8:11], s27 offen offset:1024 sc1")
    st(f"""
    s_load_dwordx2 s[6:7], s[0:1], 64
    s_waitcnt lgkmcnt(0)
    s_mul_i32 s{sTLO}, s{sEP}, 0x9e3779b1
    s_xor_b32 s{sTLO}, s{sTLO}, s{sEP+1}
    s_add_u32 s{sTLO}, s{sTLO}, 0x7f4a7c15
    s_mul_i32 s{sTHI}, s{sEP}, 0x85ebca6b
    s_add_u32 s{sTHI}, s{sTHI}, s{sEP+1}
    s_xor_b32 s{sTHI}, s{sTHI}, 0x5bd1e995
    """)
    srd_io(st, 6, 2048 * 1024)
    q_setup(st)
    stamp(st, "i")
    st("s_waitcnt vmcnt(0)\ns_barrier")
    stamp(st, "i")
    wg_flag_store(st, f"{KVFL}", replicas=8)
    xcc_publish(st)
    ld = [f"buffer_load_dwordx4 v[128:131], v60, s[8:11], s47 offen sc1", f"buffer_load_dwordx4 v[132:135], v60, s[8:11], s47 offen offset:16 sc1"]
    st(f"""
    v_lshlrev_b32 v60, 5, v0
    s_lshr_b32 s47, s20, 2
    s_lshl_b32 s47, s47, 11
    s_add_u32 s47, s47, {KVFL}
    """)
    w0_exec(st)
    poll_pairs(st, "L_initp", [128, 130, 132, 134], ld, sleep=False)
    st("s_mov_b64 exec, -1\ns_barrier")
    stamp(st, "i")
    wl = w_loads(W_QA, 0, "wq")
    for e in wl: st.ext(e)
    dma = q_dma(st)
    for e in dma[0]: st.ext(e)
    st("s_barrier")
    for e in dma[1]: st.ext(e)
    st.i(f"buffer_load_dword v59, v{vL16}, s[8:11], s{sXIN} offen")
    stamp(st, "i")

def gen_persist(name):
    st = St()
    NST[0] = 0
    stamp(st)
    if INSTR: st("s_memrealtime s[96:97]")
    if DBG: st("s_memrealtime s[96:97]\ns_memtime s[64:65]")
    gen_init(st, name)
    st("s_branch L_common")
    st.label("L_layer1")
    sync_publish(st, 3, name, sSLOWA)
    lane_consts(st)
    xloads, setup, cs, main = phase_kv(st, name + "_4", 1, "act", KVB)
    setup(st); cs(st)
    q_setup(st)
    sync_wait(st, 3, name + "_4")
    st(f"s_mov_b32 s{sL}, 1")
    layer_scalars(st)
    xloads(st)
    dma = q_dma(st)
    for e in dma[0]: st.ext(e)
    st("s_barrier")
    for e in dma[1]: st.ext(e)
    main(st)
    st.label("L_common")
    if DBG: st(f"s_cmp_lg_u32 s{sL}, 0\ns_cbranch_scc1 L_dbg_a\ns_memrealtime s[66:67]\ns_branch L_dbg_b\nL_dbg_a:\ns_memrealtime s[68:69]\nL_dbg_b:")
    phase_q(st, name, dma)
    phase_att(st, name)
    stamp(st)
    sync_publish(st, 0, name, sSLOWA)
    phase_p13(st, name + "_1", 1)
    stamp(st)
    sync_publish(st, 1, name, sSLOWB)
    phase_p2(st, name + "_2")
    stamp(st)
    sync_publish(st, 2, name, sSLOWA)
    phase_p13(st, name + "_3", 3)
    stamp(st)
    if INSTR:
        st(f"s_cmp_lg_u32 s{sL}, 0\ns_cbranch_scc1 L_fin")
        stamp_dump(st, 0)
        st("s_branch L_layer1")
    else:
        st(f"s_cmp_eq_u32 s{sL}, 0\ns_cbranch_scc1 L_layer1")
    st.label("L_fin")
    st(f"""
    s_or_b32 s23, s2, s22
    s_cmp_lg_u32 s23, 0
    s_cbranch_scc1 L_noep
    s_add_u32 s28, s{sEP}, 1
    s_addc_u32 s29, s{sEP+1}, 0
    v_mov_b32 v2, s28
    v_mov_b32 v3, s29
    v_mov_b32 v4, 0
    s_mov_b32 s23, {EPOCH}
    s_mov_b64 exec, 1
    buffer_store_dwordx2 v[2:3], v4, s[8:11], s23 offen
    s_mov_b64 exec, -1
    """)
    st.label("L_noep")
    st("s_waitcnt vmcnt(0)")
    if DBG:
        st(f"""
        s_memrealtime s[98:99]
        s_memtime s[70:71]
        s_load_dwordx2 s[28:29], s[0:1], 72
        s_waitcnt lgkmcnt(0)
        s_cmp_lg_u32 s22, 0
        s_cbranch_scc1 L_nodbg
        s_cmp_ge_u32 s2, 4
        s_cbranch_scc1 L_nodbg
        s_sub_u32 s66, s66, s96
        s_sub_u32 s68, s68, s96
        s_sub_u32 s98, s98, s96
        s_sub_u32 s70, s70, s64
        v_mov_b32 v4, s66
        v_mov_b32 v5, s68
        v_mov_b32 v6, s98
        v_mov_b32 v7, s70
        s_lshl_b32 s23, s2, 4
        v_mov_b32 v8, s23
        s_mov_b64 exec, 1
        global_store_dwordx4 v8, v[4:7], s[28:29]
        s_waitcnt vmcnt(0)
        """)
        st.label("L_nodbg")
    stamp_dump(st, 1)
    return kernel_text(name, st, sgpr=102).replace(f"L_end_{name}:", f"L_code_end:\nL_end_{name}:")

def build(path):
    hdr = open("cdna_kernels/" + NAME + ".s.ref").read().split("; Override launch geometry")[0]
    out = hdr + f"; @launch grid=(256,1,1) block=(256,1,1) lds={MAIN_LDS}\n"
    out += '.amdgcn_target "amdgcn-amd-amdhsa--gfx950"\n'
    out += gen_persist(NAME + "_kernel")
    open(path, "w").write(out)

if __name__ == "__main__":
    build(sys.argv[1] if len(sys.argv) > 1 else "stage5.s")
```

```python
import sys, os
sys.path.insert(0, os.path.dirname(os.path.abspath(__file__)))
import gen
from gen import (St, resolve, weave, vr, ar, rr, f32, CQ, srd_io, emit_selectors,
                 T_WQ, T_WOA, T_WOB, T_WQKV, T_WK, T_WV, NFRAG, NAME, WS_SIZE)
from asmlib import fix_hazards
INSTR = os.environ.get("INSTR")
OPT = os.environ.get("OPT", "")
DBG = os.environ.get("DBG")
FAST = "nofast" not in OPT

KF0, VF0, KVS = 0x310000, 0x320000, 0x20000
B0, BS = 0x800000, 0x800000
XIN, OA, X1, OB = 0, 0x200000, 0x400000, 0x600000
FLAGS = 0x1900000
KVFL = FLAGS + 0x8000
PREPF = FLAGS + 0x10000
XCCT = FLAGS + 0x14000
EPOCH = FLAGS + 0x15000
TS_OFF = 0x1800000
S_G, S_M, S_W = 20, 21, 22
sROT = 16
sSLOWA, sSLOWB = 40, 42
sSPIN = 45
sKF, sVF, sXIN, sOA, sX1, sOB, sL, sFLAG = 48, 49, 51, 52, 53, 54, 55, 56
sTLO, sTHI = 50, 3
sEP = 14 + 86
sWT = 57
SRD_OUT = 60
W_Q2, W_K2, W_V2, W_O = ("a", 0), ("a", 64), ("a", 128), ("a", 192)
W_QA = ("v", 166)
W_KV = ("v", 230)
vRES = 246
vL16, vXA, vT, vG, vONES, vRING, RING = 1, 2, 6, 7, 8, 12, 8
vSTA, vSTW, vSTR, vPRR, vTMP = 44, 45, 46, 47, 48
vFLO, vFLP = 62, 63

NST = [0]
def stamp(st, fine=None):
    if not INSTR: return
    if INSTR == "1":
        if fine: return
        k = NST[0]; NST[0] += 1
        st(f"s_memtime s[{64+2*k}:{65+2*k}]\ns_waitcnt lgkmcnt(0)")
    else:
        if fine != INSTR and not (fine is None and NST[0] == 0): return
        k = NST[0]; NST[0] += 1
        assert k < 16
        st(f"s_memtime s[{64+2*k}:{65+2*k}]")
def stamp_dump(st, slot):
    if not INSTR: return
    st("s_memrealtime s[98:99]\ns_waitcnt lgkmcnt(0)")
    for k in range(16): st(f"v_mov_b32 v{16+k}, s{64+2*k if k < NST[0] else 98}")
    st(f"""
    v_mov_b32 v31, s98
    v_mov_b32 v30, s96
    s_lshl_b32 s23, s2, 2
    s_add_u32 s23, s23, s22
    s_lshl_b32 s23, s23, 6
    s_mul_i32 s24, {slot}, 65536
    s_add_u32 s23, s23, s24
    s_add_u32 s23, s23, {TS_OFF}
    v_mov_b32 v8, 0
    s_mov_b64 exec, 1
    buffer_store_dwordx4 v[16:19], v8, s[8:11], s23 offen
    buffer_store_dwordx4 v[20:23], v8, s[8:11], s23 offen offset:16
    buffer_store_dwordx4 v[24:27], v8, s[8:11], s23 offen offset:32
    buffer_store_dwordx4 v[28:31], v8, s[8:11], s23 offen offset:48
    s_waitcnt vmcnt(0)
    s_mov_b64 exec, -1
    """)

def prologue(st, name, extra_loads=""):
    st(f"""
    s_cmp_ge_u32 s2, 256
    s_cbranch_scc1 L_end_{name}
    s_load_dwordx2 s[4:5], s[0:1], 80
    {extra_loads}
    v_lshrrev_b32 v1, 6, v0
    v_and_b32 v0, 63, v0
    s_and_b32 s20, s2, 7
    s_lshr_b32 s21, s2, 3
    s_lshl_b32 s20, s20, 2
    s_lshr_b32 s23, s21, 3
    s_add_u32 s20, s20, s23
    s_and_b32 s21, s21, 7
    v_readfirstlane_b32 s22, v1
    v_lshlrev_b32 v{vL16}, 4, v0
    s_waitcnt lgkmcnt(0)
    s_mov_b32 s8, s4
    s_mov_b32 s9, s5
    s_mov_b32 s10, {WS_SIZE}
    s_mov_b32 s11, 0x00020000
    """)

OUTLINE = []
def dstore(e, text):
    if not FAST:
        e.i(text + " sc1"); return
    k = len(OUTLINE)
    e.it.append(("grp", [f"s_cbranch_vccnz L_slow_{k}", text, f"L_back_{k}:"], None, None))
    OUTLINE.append(text + " sc1")

def expand_groups(st):
    o = St()
    for it in st.it:
        if it[0] in ("grp", "grpv"):
            for l in it[1]: o.it.append(("i", l, None, None))
        else: o.it.append(it)
    return o

def kernel_text(name, st, vgpr=512, accum=256, sgpr=100):
    lines = resolve(expand_groups(st))
    lines.append("s_endpgm")
    for k, t in enumerate(OUTLINE):
        lines += [f"L_slow_{k}:", t, f"s_branch L_back_{k}"]
    OUTLINE.clear()
    lines, nins = fix_hazards(lines)
    body = "\n".join(("    " + l) if not l.endswith(":") else l for l in lines)
    return f""".text
.globl {name}
.p2align 8
.type {name},@function
{name}:
{body}
L_end_{name}:
    s_endpgm
.section .rodata,"a"
.p2align 6
.amdhsa_kernel {name}
  .amdhsa_next_free_vgpr {vgpr}
  .amdhsa_next_free_sgpr {sgpr}
  .amdhsa_accum_offset {accum}
  .amdhsa_group_segment_fixed_size 0
  .amdhsa_kernarg_size 88
  .amdhsa_user_sgpr_count 2
  .amdhsa_user_sgpr_kernarg_segment_ptr 1
  .amdhsa_system_sgpr_workgroup_id_x 1
  .amdhsa_float_denorm_mode_32 3
.end_amdhsa_kernel
"""

def lane_consts(st):
    st(f"v_and_b32 v{vT}, 15, v0\nv_lshrrev_b32 v{vG}, 4, v0")
    for q in range(4): st(f"v_mov_b32 v{vONES+q}, 0x3f803f80")

def xa_setup(st, ns, xb):
    for jg in range(4):
        st(f"""
        s_add_u32 s23, s22, {jg}
        s_and_b32 s23, s23, 3
        s_mul_i32 s23, s23, {ns*4096}
        s_add_u32 s23, s23, {xb}
        v_add_u32 v{vXA+jg}, s23, v{vL16}
        """)

def wave_scalars(st):
    for jg in range(4):
        st(f"""
        s_add_u32 s23, s22, {jg}
        s_and_b32 s23, s23, 3
        s_lshl_b32 s{sROT+jg}, s23, 12
        """)
    st(f"""
    s_lshl_b32 s{sWT}, s21, 2
    s_add_u32 s{sWT}, s{sWT}, s22
    s_lshl_b32 s{sWT}, s{sWT}, 14
    """)

def w_loads(dst, T0, tag):
    out = []
    for jg in range(4):
        for q in range(4):
            e = St()
            if q == 0:
                e(f"s_add_u32 s58, s{sWT}, s{sROT+jg}")
                if T0: e(f"s_add_u32 s58, s58, {T0*16384}")
            b = dst[1] + 4 * (4 * jg + q)
            e.i(f"buffer_load_dwordx4 {rr((dst[0], b), 4)}, v{vL16}, s[8:11], s58 offen offset:{q*1024} sc1", vm=f"{tag}{4*jg+q}")
            out.append(e)
    return out

def kv_loads(tag):
    out = []
    for q in range(4):
        e = St()
        if q == 0:
            e(f"""
            s_and_b32 s58, s21, 1
            s_add_u32 s58, s58, {T_WK}
            s_lshl_b32 s58, s58, 14
            s_add_u32 s58, s58, s{sROT}
            """)
        e.i(f"buffer_load_dwordx4 {rr((W_KV[0], W_KV[1] + 4*q), 4)}, v{vL16}, s[8:11], s58 offen offset:{q*1024}", vm=f"{tag}{q}")
        out.append(e)
    return out

def act_addr(st, vdst, tmp):
    st(f"""
    s_lshl_b32 s23, s21, 11
    s_lshr_b32 s28, s22, 1
    s_lshl_b32 s28, s28, 10
    s_add_u32 s23, s23, s28
    s_and_b32 s28, s22, 1
    s_lshl_b32 s28, s28, 9
    s_add_u32 s23, s23, s28
    v_lshrrev_b32 v{tmp}, 1, v{vG}
    v_lshlrev_b32 v{tmp}, 8, v{tmp}
    v_lshl_add_u32 v{tmp}, v{vT}, 4, v{tmp}
    v_and_b32 v{vdst}, 1, v{vG}
    v_lshl_add_u32 v{vdst}, v{vdst}, 3, v{tmp}
    v_add_u32 v{vdst}, s23, v{vdst}
    """)

def row_addr(st, vdst):
    st(f"""
    s_lshl_b32 s23, s21, 7
    s_lshl_b32 s28, s22, 5
    s_add_u32 s23, s23, s28
    v_lshlrev_b32 v{vdst}, 10, v{vT}
    v_lshl_add_u32 v{vdst}, v{vG}, 3, v{vdst}
    v_add_u32 v{vdst}, s23, v{vdst}
    """)

def colsum(st, dst, W, w_is_A, n=16):
    for jj in range(n):
        wreg = rr((W[0], W[1] + 4 * jj), 4)
        c = "0" if jj == 0 else vr(dst, 4)
        if w_is_A: st(f"v_mfma_f32_16x16x32_bf16 {vr(dst,4)}, {wreg}, {vr(vONES,4)}, {c}")
        else:      st(f"v_mfma_f32_16x16x32_bf16 {vr(dst,4)}, {vr(vONES,4)}, {wreg}, {c}")

def stats_setup(st, sb, regs=None):
    pb = sb + 2560; dummy = pb + 512
    vSTA, vSTW, vSTR, vPRR = regs or (44, 45, 46, 47)
    st(f"""
    v_lshrrev_b32 v{vTMP}, 2, v{vT}
    v_cmp_eq_u32 s[30:31], v{vTMP}, v{vG}
    v_lshlrev_b32 v{vSTW}, 5, v{vT}
    s_lshl_b32 s23, s22, 2
    s_add_u32 s23, s23, {sb}
    v_add_u32 v{vSTW}, s23, v{vSTW}
    v_mov_b32 v{vTMP}, {dummy}
    v_cndmask_b32_e64 v{vSTW}, v{vTMP}, v{vSTW}, s[30:31]
    v_lshlrev_b32 v{vSTR}, 5, v{vT}
    v_add_u32 v{vSTR}, {sb}, v{vSTR}
    s_lshl_b32 s23, s22, 7
    s_add_u32 s23, s23, {pb}
    v_lshlrev_b32 v{vSTA}, 2, v{vT}
    v_add_u32 v{vSTA}, s23, v{vSTA}
    v_lshlrev_b32 v{vPRR}, 4, v{vG}
    v_add_u32 v{vPRR}, s23, v{vPRR}
    s_mov_b32 s32, 0x22222222
    s_mov_b32 s33, 0x22222222
    s_mov_b32 s34, 0x44444444
    s_mov_b32 s35, 0x44444444
    s_mov_b32 s36, 0x88888888
    s_mov_b32 s37, 0x88888888
    """)
STAT_BYTES = 2560 + 512 + 2600

def stats_extract(e, s, vSG, vSS, t, tag, vSTW=45):
    e(f"""
    v_cndmask_b32_e64 v{t}, v{vSG}, v{vSG+1}, s[32:33]
    v_cndmask_b32_e64 v{t}, v{t}, v{vSG+2}, s[34:35]
    v_cndmask_b32_e64 v{t}, v{t}, v{vSG+3}, s[36:37]
    """)
    e.i(f"ds_write_b32 v{vSTW}, v{vSS} offset:{s*512}")
    e.i(f"ds_write_b32 v{vSTW}, v{t} offset:{s*512 + 16}", lds=tag)

def stats_read(e, s, a, tag, vSTR=46):
    e.i(f"ds_read_b128 {vr(a,4)}, v{vSTR} offset:{s*512}")
    e.i(f"ds_read_b128 {vr(a+4,4)}, v{vSTR} offset:{s*512+16}", lds=tag)

def stats_math(a, vR, vN):
    return f"""
    v_add_f32 v{a}, v{a}, v{a+1}
    v_add_f32 v{a+4}, v{a+4}, v{a+5}
    v_add_f32 v{a+2}, v{a+2}, v{a+3}
    v_add_f32 v{a+6}, v{a+6}, v{a+7}
    v_add_f32 v{a}, v{a}, v{a+2}
    v_add_f32 v{a+4}, v{a+4}, v{a+6}
    v_mul_f32 v{a}, {f32(1.0/512)}, v{a}
    v_mul_f32 v{a+4}, {f32(1.0/512)}, v{a+4}
    v_fma_f32 v{a+4}, -v{a}, v{a}, v{a+4}
    v_max_f32 v{a+4}, 0, v{a+4}
    v_add_f32 v{a+4}, {f32(1e-5)}, v{a+4}
    v_rsq_f32 v{vR}, v{a+4}
    v_sub_f32 v{a}, 0, v{a}
    v_mul_f32 v{vN}, v{a}, v{vR}
    """.strip().split("\n")

def ln_epi(e, acc, R, N, CS, pk, tmp):
    for r in range(4): e(f"v_mul_f32 v{tmp+r}, v{N[r]}, v{CS[r]}")
    for r in range(4): e(f"v_fma_f32 v{tmp+r}, v{acc+r}, v{R[r]}, v{tmp+r}")
    e(f"v_cvt_pk_bf16_f32 v{pk}, v{tmp}, v{tmp+1}")
    e(f"v_cvt_pk_bf16_f32 v{pk+1}, v{tmp+2}, v{tmp+3}")

def flag_value(st):
    st(f"v_mov_b32 v{vFLO}, s{sTLO}\nv_mov_b32 v{vFLO+1}, s{sTHI}")

vFLA = 61
def sync_publish(st, e, name, slow):
    st(f"""
    s_waitcnt vmcnt(0)
    s_barrier
    s_cmp_lg_u32 s22, 0
    s_cbranch_scc1 L_np{e}_{name}
    s_lshl_b32 s23, s20, 7
    s_lshl_b32 s28, s21, 3
    s_add_u32 s23, s23, s28
    s_add_u32 s23, s23, s{sFLAG}
    s_add_u32 s23, s23, {e*0x1000}
    v_mov_b32 v{vFLA}, 0
    """)
    flag_value(st)
    st(f"s_mov_b64 vcc, s[{slow}:{slow+1}]\ns_mov_b64 exec, 1")
    dstore(st, f"buffer_store_dwordx2 v[{vFLO}:{vFLO+1}], v{vFLA}, s[8:11], s23 offen")
    st("s_mov_b64 exec, -1")
    st.label(f"L_np{e}_{name}")

def poll_pairs(st, label, regs, loads, sleep=False):
    st(f"s_mov_b32 s{sSPIN}, 0x10000")
    st.label(label)
    if sleep: st("s_sleep 2")
    for l in loads: st(l)
    st("s_waitcnt vmcnt(0)")
    check_pairs(st, regs)
    st(f"""
    s_sub_u32 s{sSPIN}, s{sSPIN}, 1
    s_cmp_eq_u32 s{sSPIN}, 0
    s_cbranch_scc1 {label}_d
    s_cbranch_vccnz {label}
    """)
    st.label(label + "_d")

def check_pairs(st, regs):
    for k, r in enumerate(regs):
        if k == 0: st(f"v_cmp_ne_u32 vcc, s{sTLO}, v{r}")
        else: st(f"v_cmp_ne_u32 s[28:29], s{sTLO}, v{r}\ns_or_b64 vcc, vcc, s[28:29]")
        st(f"v_cmp_ne_u32 s[28:29], s{sTHI}, v{r+1}\ns_or_b64 vcc, vcc, s[28:29]")

def sync_wait(st, e, name, halo=False, slow=None):
    st(f"""
    v_and_b32 v{vFLA}, 7, v0
    v_lshlrev_b32 v{vFLA}, 3, v{vFLA}
    s_lshl_b32 s23, s20, 7
    """)
    if halo:
        st(f"""
        s_sub_u32 s28, s20, 1
        s_max_i32 s28, s28, 0
        s_lshl_b32 s28, s28, 7
        s_sub_u32 s28, s28, s23
        v_bfe_u32 v{vFLO}, v0, 3, 1
        v_mul_lo_u32 v{vFLO}, v{vFLO}, s28
        v_add_u32 v{vFLA}, v{vFLA}, v{vFLO}
        """)
    st(f"""
    v_add_u32 v{vFLA}, s23, v{vFLA}
    s_add_u32 s23, s{sFLAG}, {e*0x1000}
    """)
    poll_pairs(st, f"L_poll{e}_{name}", [vFLO], [f"buffer_load_dwordx2 v[{vFLO}:{vFLO+1}], v{vFLA}, s[8:11], s23 offen sc1"])
    if slow is not None: st(f"s_mov_b64 vcc, s[{slow}:{slow+1}]")
    stamp(st)

def wg_flag_store(e, off_expr, lo_add=None, regs=None, replicas=1):
    vA, vV = regs or (61, 62)
    e(f"""
    s_lshl_b32 s28, s20, 3
    s_add_u32 s28, s28, s21
    s_lshl_b32 s28, s28, 3
    s_add_u32 s28, s28, {off_expr}
    v_lshlrev_b32 v{vA}, 11, v0
    v_mov_b32 v{vV}, s{sTLO if lo_add is None else lo_add}
    v_mov_b32 v{vV+1}, s{sTHI}
    s_cmp_eq_u32 s22, 0
    s_cselect_b64 exec, {(1 << replicas) - 1 if replicas < 7 else hex((1 << replicas) - 1)}, 0
    """)
    e.i(f"buffer_store_dwordx2 v[{vV}:{vV+1}], v{vA}, s[8:11], s28 offen sc1")
    e("s_mov_b64 exec, -1")

def w0_exec(e):
    e("s_cmp_eq_u32 s22, 0\ns_cselect_b64 exec, -1, 0")

vXCA, vXCV = 13, 14
def xcc_publish(st):
    if not FAST: return
    st(f"""
    s_getreg_b32 s39, hwreg(HW_REG_XCC_ID)
    s_and_b32 s39, s39, 7
    s_add_u32 s39, s39, 16
    s_add_u32 s39, s39, s{sTLO}
    """)
    wg_flag_store(st, f"{XCCT}", lo_add=39)
    st(f"s_mov_b32 s{sXCC}, s39")
sXCC = 95

def xcc_issue():
    e = St()
    e(f"""
    v_and_b32 v{vXCA}, 7, v0
    s_add_u32 s28, s20, 1
    s_min_u32 s28, s28, 31
    s_sub_u32 s28, s28, s20
    s_lshl_b32 s28, s28, 3
    v_bfe_u32 v{vXCV}, v0, 3, 1
    v_mul_lo_u32 v{vXCV}, v{vXCV}, s28
    v_add_u32 v{vXCA}, v{vXCA}, v{vXCV}
    s_lshl_b32 s28, s20, 3
    v_add_u32 v{vXCA}, s28, v{vXCA}
    v_lshlrev_b32 v{vXCA}, 3, v{vXCA}
    s_mov_b32 s38, {XCCT}
    """)
    e2 = St()
    e2.i(f"buffer_load_dwordx2 v[{vXCV}:{vXCV+1}], v{vXCA}, s[8:11], s38 offen sc1", vm="xcc")
    return [e, e2]

def xcc_check(st, name):
    if not FAST:
        st(f"s_mov_b64 s[{sSLOWA}:{sSLOWA+1}], -1\ns_mov_b64 s[{sSLOWB}:{sSLOWB+1}], -1"); return
    def chk():
        st(f"""
        v_subrev_u32 v9, s{sTLO}, v{vXCV}
        v_subrev_u32 v9, 16, v9
        v_cmp_le_u32 vcc, 8, v9
        v_cmp_ne_u32 s[28:29], s{sTHI}, v{vXCV+1}
        s_or_b64 vcc, vcc, s[28:29]
        """)
    st.wv("xcc")
    chk()
    st(f"s_mov_b32 s{sSPIN}, 0x10000\ns_cbranch_vccz L_xd_{name}")
    st.label(f"L_xp_{name}")
    st(f"buffer_load_dwordx2 v[{vXCV}:{vXCV+1}], v{vXCA}, s[8:11], s38 offen sc1\ns_waitcnt vmcnt(0)")
    chk()
    st(f"""
    s_sub_u32 s{sSPIN}, s{sSPIN}, 1
    s_cmp_eq_u32 s{sSPIN}, 0
    s_cbranch_scc1 L_xd_{name}
    s_cbranch_vccnz L_xp_{name}
    """)
    st.label(f"L_xd_{name}")
    st(f"""
    v_cmp_ne_u32 s[{sSLOWB}:{sSLOWB+1}], s{sXCC}, v{vXCV}
    s_nop 1
    s_and_b32 s{sSLOWA}, s{sSLOWB}, 0xff
    s_mov_b32 s{sSLOWA+1}, 0
    """)
    if "forceslow" in OPT:
        st(f"s_mov_b64 s[{sSLOWA}:{sSLOWA+1}], -1\ns_mov_b64 s[{sSLOWB}:{sSLOWB+1}], -1")

def dma_slots(st, ns, xb, sSrc, tile_of_slot, tag):
    st(f"""
    s_mul_i32 s25, s22, {ns*4096}
    s_add_u32 s25, s25, {xb}
    s_lshl_b32 s24, s22, 12
    s_add_u32 s24, s24, {sSrc}
    """)
    slots = []
    for s in range(ns):
        L = []
        for q in range(4):
            e = St()
            if q == 0:
                tile_of_slot(e, s)
                e(f"s_lshl_b32 s23, s23, 14\ns_add_u32 s27, s23, s24\ns_add_u32 m0, s25, {s*4096}")
            e.i(f"buffer_load_dwordx4 v{vL16}, s[8:11], s27 offen offset:{q*1024} sc1 lds", vm=f"{tag}{s}_{q}")
            L.append(e)
        slots.append(L)
    return slots

def gemm_steps(ns, chains, tagx, dma, upfront, stats=None, fine=None, wtags=None, pre_mid=None):
    steps = []
    total = ns * 16
    def rd(idx):
        s, jj = divmod(idx, 16)
        return f"ds_read_b128 {vr(vRING + 4*(idx % RING), 4)}, v{vXA + (jj >> 2)} offset:{s*4096 + (jj & 3)*1024}"
    pre = St()
    for s in range(upfront):
        for e in dma[s]: pre.ext(e)
        if s == 0 and pre_mid is not None: pre.ext(pre_mid)
        if s + 1 < upfront: pre("s_barrier")
    stamp(pre, fine)
    steps.append(pre)
    pre2 = St()
    pre2.wv(f"{tagx}0_3")
    pre2("s_barrier")
    stamp(pre2, fine)
    for idx in range(RING): pre2.i(rd(idx), lds=f"x{idx}")
    steps.append(pre2)
    for idx in range(total):
        s, jj = divmod(idx, 16)
        stp = St()
        ring = vRING + 4 * (idx % RING)
        if wtags and s == 0 and jj % 4 == 0: stp.wv(wtags[jj // 4])
        if idx % 2 == 0: stp.wl(f"x{min(idx+1, total-1)}")
        for (acc, w, w_is_A) in chains(s):
            wreg = rr((w[0], w[1] + 4 * jj), 4)
            c = "0" if jj == 0 and acc[1] else vr(acc[0], 4)
            if w_is_A: stp(f"v_mfma_f32_16x16x32_bf16 {vr(acc[0],4)}, {wreg}, {vr(ring,4)}, {c}")
            else:      stp(f"v_mfma_f32_16x16x32_bf16 {vr(acc[0],4)}, {vr(ring,4)}, {wreg}, {c}")
        if stats and jj < 4:
            sg, ss = stats(s)
            stp(f"v_mfma_f32_16x16x32_bf16 {vr(sg,4)}, {vr(ring,4)}, {vr(ring,4)}, {'0' if jj == 0 else vr(sg,4)}")
            stp(f"v_mfma_f32_16x16x32_bf16 {vr(ss,4)}, {vr(vONES,4)}, {vr(ring,4)}, {'0' if jj == 0 else vr(ss,4)}")
        nxt = idx + RING
        if nxt < total:
            if nxt % 16 == 0:
                stp.it.append(("mark", f"bar{s}", None, None))
                stp.wv(f"{tagx}{nxt//16}_3")
                stp("s_barrier")
            stp.i(rd(nxt), lds=f"x{nxt}")
        sd = s + upfront
        if sd < ns and jj < 4: stp.ext(dma[sd][jj])
        if jj == 15 or jj == 7: stamp(stp, fine)
        steps.append(stp)
    return steps

def weave2(steps, progs, per=2):
    out = St()
    qs = [list(p) for p in progs]
    skip = [0] * len(qs)
    def emit_forced(name):
        for qi, q in enumerate(qs):
            last = max([i for i, (ms, it) in enumerate(q) if it[0] == "before" and it[1] == name], default=-1)
            for _ in range(last + 1):
                ms, it = q.pop(0)
                if it[0] not in ("gap", "before"): out.it.append(it)
    for si, stp in enumerate(steps):
        for it in stp.it:
            if it[0] == "mark":
                emit_forced(it[1]); continue
            out.it.append(it)
            if it[0] == "i" and it[1].startswith("v_mfma"):
                n = 0
                for qi, q in enumerate(qs):
                    if skip[qi] > 0:
                        skip[qi] -= 1; continue
                    while q and n < per and q[0][0] <= si:
                        ms, x = q.pop(0)
                        if x[0] == "gap":
                            skip[qi] = x[1]; break
                        if x[0] == "before": continue
                        out.it.append(x)
                        if x[0] in ("i", "grp", "grpv"): n += 1
    for q in qs:
        for ms, x in q:
            if x[0] not in ("gap", "before"): out.it.append(x)
    return out

def prog(ms, st_): return [(ms, it) for it in st_.it]
def strip_marks(st_):
    o = St(); o.it = [it for it in st_.it if it[0] != "mark"]; return o

def phase_kv(st, name, layer_out, src, kvb):
    XR = 64
    accK, accV, csK, csV, SG, SS = 80, 84, 88, 92, 96, 100
    vA0, vA1, vKW, vKR = 104, 105, 106, 107
    t = vTMP
    sb = kvb + 8192
    kA, kW, kR, kP = 28, 29, 30, 31
    stats_setup(st, sb, (kA, kW, kR, kP))
    st(f"""
    s_lshl_b32 s26, s20, 2
    s_lshr_b32 s28, s21, 1
    s_add_u32 s26, s26, s28
    s_bitcmp1_b32 s21, 0
    s_cselect_b64 s[38:39], -1, 0
    """)
    def xloads(e):
        if src == "row":
            e(f"""
            v_lshlrev_b32 v{t+12}, 10, v{vT}
            v_lshl_add_u32 v{t+12}, v{vG}, 4, v{t+12}
            s_lshl_b32 s23, s26, 14
            s_lshl_b32 s28, s22, 8
            s_add_u32 s23, s23, s28
            """)
            for q in range(4):
                e.i(f"buffer_load_dwordx4 {vr(XR+4*q,4)}, v{t+12}, s[12:15], s23 offen offset:{q*64}", vm=f"xk{q}")
        else:
            e(f"""
            s_lshl_b32 s23, s26, 14
            s_lshl_b32 s28, s22, 12
            s_add_u32 s23, s23, s28
            s_add_u32 s23, s23, {B0 + BS*layer_out + XIN}
            """)
            for q in range(4):
                e.i(f"buffer_load_dwordx4 {vr(XR+4*q,4)}, v{vL16}, s[8:11], s23 offen offset:{q*1024} sc1", vm=f"xk{q}")
    def setup(e):
        e(f"""
        s_bitcmp1_b32 s21, 0
        s_cselect_b64 s[38:39], -1, 0
        v_lshrrev_b32 v{t}, 1, v{vG}
        v_and_b32 v{t+1}, 1, v{vG}
        v_lshlrev_b32 v{t+2}, 9, v{t}
        v_lshl_add_u32 v{t+2}, v{vT}, 4, v{t+2}
        v_lshl_add_u32 v{t+2}, v{t+1}, 3, v{t+2}
        v_lshlrev_b32 v{t+4}, 8, v{t+1}
        v_lshl_add_u32 v{t+4}, v{vT}, 4, v{t+4}
        v_lshl_add_u32 v{t+4}, v{t}, 3, v{t+4}
        v_cndmask_b32_e64 v{vA0}, v{t+2}, v{t+4}, s[38:39]
        s_lshl_b32 s23, s22, 11
        s_add_u32 s23, s23, {kvb}
        v_add_u32 v{vKW}, s23, v{vL16}
        v_add_u32 v{vKR}, {kvb}, v{vL16}
        s_lshr_b32 s23, s26, 1
        s_lshl_b32 s23, s23, 10
        s_and_b32 s28, s26, 1
        s_lshl_b32 s29, s28, 8
        s_add_u32 s29, s29, {KF0 + KVS*layer_out}
        s_lshl_b32 s28, s28, 9
        s_add_u32 s28, s28, {VF0 + KVS*layer_out}
        s_bitcmp1_b32 s21, 0
        s_cselect_b32 s28, s28, s29
        s_add_u32 s59, s23, s28
        """)
    def cs(e):
        for jj in range(4):
            w = rr((W_KV[0], W_KV[1] + 4 * jj), 4)
            e(f"v_mfma_f32_16x16x32_bf16 {vr(csK,4)}, {w}, {vr(vONES,4)}, {'0' if jj == 0 else vr(csK,4)}")
            e(f"v_mfma_f32_16x16x32_bf16 {vr(csV,4)}, {vr(vONES,4)}, {w}, {'0' if jj == 0 else vr(csV,4)}")
        for r in range(4): e(f"v_cndmask_b32_e64 v{csK+r}, v{csK+r}, v{csV}, s[38:39]")
        e.i(f"ds_write_b128 v{vKW}, {vr(csK,4)} offset:1024")
    def main(e):
        for q in range(4):
            e.wv(f"xk{q}")
            w = rr((W_KV[0], W_KV[1] + 4 * q), 4); x = vr(XR + 4 * q, 4)
            z = lambda r: "0" if q == 0 else vr(r, 4)
            e(f"v_mfma_f32_16x16x32_bf16 {vr(SG,4)}, {x}, {x}, {z(SG)}")
            e(f"v_mfma_f32_16x16x32_bf16 {vr(SS,4)}, {vr(vONES,4)}, {x}, {z(SS)}")
            e(f"v_mfma_f32_16x16x32_bf16 {vr(accK,4)}, {w}, {x}, {z(accK)}")
            e(f"v_mfma_f32_16x16x32_bf16 {vr(accV,4)}, {x}, {w}, {z(accV)}")
        stats_extract(e, 0, SG, SS, t, "ksw", kW)
        for r in range(4): e(f"v_cndmask_b32_e64 v{accK+r}, v{accK+r}, v{accV+r}, s[38:39]")
        e.i(f"ds_write_b128 v{vKW}, {vr(accK,4)}", lds="kaw")
        e("s_waitcnt lgkmcnt(0)\ns_barrier")
        stats_read(e, 0, t, "ksr", kR)
        F = 108
        for w in range(4): e.i(f"ds_read_b128 {vr(F+4*w,4)}, v{vKR} offset:{w*2048}")
        for w in range(4): e.i(f"ds_read_b128 {vr(F+16+4*w,4)}, v{vKR} offset:{w*2048+1024}", lds=f"kr{w}")
        e.wl("ksr")
        R, N = 140, 141
        for x in stats_math(t, R, N): e(x)
        e.i(f"ds_write_b32 v{kA}, v{R}")
        e.i(f"ds_write_b32 v{kA}, v{N} offset:64", lds="kpw")
        e.wl("kpw")
        R4, N4 = 144, 148
        e.i(f"ds_read_b128 {vr(R4,4)}, v{kP}")
        e.i(f"ds_read_b128 {vr(N4,4)}, v{kP} offset:64", lds="kpr")
        for b in (F, F + 16):
            for r in range(4): e(f"v_add_f32 v{b+r}, v{b+r}, v{b+4+r}\nv_add_f32 v{b+8+r}, v{b+8+r}, v{b+12+r}")
            for r in range(4): e(f"v_add_f32 v{b+r}, v{b+r}, v{b+8+r}")
        e.wl("kpr")
        for r in range(4):
            e(f"v_cndmask_b32_e64 v{R4+r}, v{R}, v{R4+r}, s[38:39]\nv_cndmask_b32_e64 v{N4+r}, v{N}, v{N4+r}, s[38:39]")
        ln_epi(e, F, [R4+r for r in range(4)], [N4+r for r in range(4)], [F+16+r for r in range(4)], 152, 154)
        e("s_cmp_eq_u32 s22, 0\ns_cselect_b64 exec, -1, 0")
        e.i(f"buffer_store_dwordx2 v[152:153], v{vA0}, s[8:11], s59 offen sc1", vm="kvst")
        e("s_mov_b64 exec, -1")
    return xloads, setup, cs, main

LDS_K, LDS_V, VS = 0, 65536, 1056
XB_Q = 74752
SB_Q = XB_Q + 65536
SA, SB, OA_, OB_ = 16, 32, 48, 64
PA, PB, QA, QB, KB, VB = 80, 88, 96, 100, 104, 112
vK, vV0, vV1 = 2, 3, 4

def kv_group(gi, tag):
    out = []
    e = St(); e(f"s_add_u32 s23, s34, {gi*8192}\ns_add_u32 m0, s36, {gi*8192}")
    e.i(f"buffer_load_dwordx4 v{vL16}, s[8:11], s23 offen sc1 lds"); out.append(e)
    e = St(); e.i(f"buffer_load_dwordx4 v{vL16}, s[8:11], s23 offen offset:1024 sc1 lds"); out.append(e)
    e = St(); e(f"s_add_u32 s23, s35, {gi*8192}\ns_add_u32 m0, s37, {gi*8*VS}")
    e.i(f"buffer_load_dwordx4 v{vL16}, s[8:11], s23 offen sc1 lds"); out.append(e)
    e = St(); e(f"s_add_u32 m0, s37, {gi*8*VS + VS - 1024}")
    e.i(f"buffer_load_dwordx4 v{vL16}, s[8:11], s23 offen offset:1024 sc1 lds", vm=tag); out.append(e)
    return out

KVB = 147456
MAIN_LDS = 163840
vB0, vB1 = 158, 162
A_WQ, A_WKV, A_PREP, A_XC = 0, 64, 80, 92

def transpose(e, src, dst, tmp=16):
    e(f"v_mfma_f32_16x16x32_bf16 {vr(tmp,4)}, {src}, {vr(vB0,4)}, 0")
    e(f"v_mfma_f32_16x16x32_bf16 {vr(tmp+4,4)}, {src}, {vr(vB1,4)}, 0")
    e(f"""
    v_cvt_pk_bf16_f32 v{dst}, v{tmp}, v{tmp+1}
    v_cvt_pk_bf16_f32 v{dst+1}, v{tmp+2}, v{tmp+3}
    v_cvt_pk_bf16_f32 v{dst+2}, v{tmp+4}, v{tmp+5}
    v_cvt_pk_bf16_f32 v{dst+3}, v{tmp+6}, v{tmp+7}
    """)

def q_setup(st):
    xa_setup(st, 4, XB_Q)
    stats_setup(st, SB_Q)

def q_dma_act(st):
    dma = dma_slots(st, 4, XB_Q, f"s{sXIN}", lambda e, s: e(f"s_add_u32 s23, s26, {s}"), "xq")
    return dma

def phase_q(st, name, dma):
    ns = 4
    acc, vCS = 64, 124
    SGs = [80, 84, 88, 92]; SSs = [104, 108, 112, 116]
    steps = gemm_steps(ns, lambda s: [((acc + 4 * s, True), W_QA, True)], "xq", [[], [], dma[2], dma[3]], 2,
                       stats=lambda s: (SGs[s], SSs[s]), fine="q")
    pa = []
    for s in range(ns):
        e = St(); stats_extract(e, s, SGs[s], SSs[s], vTMP, f"qsw{s}")
        pa += prog(16 * s + 6, e)
    pub = St(); pub.wv("kvst")
    pub(f"s_lshl_b32 s29, s{sL}, 14\ns_add_u32 s29, s29, {KVFL}")
    g = St(); wg_flag_store(g, "s29", replicas=8)
    pub.it.append(("grpv", [it[1] for it in g.it], None, None))
    ld = [f"buffer_load_dwordx4 v[128:131], v60, s[8:11], s47 offen sc1", f"buffer_load_dwordx4 v[132:135], v60, s[8:11], s47 offen offset:16 sc1"]
    look = St()
    look(f"""
    v_lshlrev_b32 v60, 5, v0
    s_lshl_b32 s47, s{sL}, 14
    s_add_u32 s47, s47, {KVFL}
    s_lshr_b32 s28, s20, 2
    s_lshl_b32 s28, s28, 11
    s_add_u32 s47, s47, s28
    """)
    look.it.append(("grpv", ["s_cmp_eq_u32 s22, 0", "s_cselect_b64 exec, -1, 0", ld[0], ld[1], "s_mov_b64 exec, -1"], None, None))
    csum = St(); colsum(csum, vCS, W_QA, True)
    PUBS = int(os.environ.get("PUBS", "12")); LOOK = int(os.environ.get("LOOKS", "56"))
    body = St()
    body.ext(steps[1])
    body.ext(strip_marks(weave2(steps[2:], [pa, prog(PUBS, pub) + prog(LOOK, look), prog(4, csum)], per=1)))
    st.ext(body)
    st("s_waitcnt lgkmcnt(0)\ns_barrier")
    A8 = [16, 24, 32, 40]
    for s in range(ns): stats_read(st, s, A8[s], f"qsr{s}")
    stamp(st)
    st("s_waitcnt vmcnt(0)")
    w0_exec(st)
    check_pairs(st, [128, 130, 132, 134])
    st(f"s_cbranch_vccz L_kvok_{name}")
    poll_pairs(st, f"L_kvp_{name}", [128, 130, 132, 134], ld, sleep=True)
    st.label(f"L_kvok_{name}")
    st("s_mov_b64 exec, -1\ns_barrier")
    st(f"""
    s_lshl_b32 s36, s22, 11
    s_add_u32 s34, s36, s{sKF}
    s_add_u32 s35, s36, s{sVF}
    s_mul_i32 s37, s22, {2*VS}
    s_add_u32 s37, s37, {LDS_V}
    """)
    for e in kv_group(0, "c0"): st.ext(e)
    R = [48 + s for s in range(ns)]; N = [52 + s for s in range(ns)]
    st.wl("qsr3")
    maths = [stats_math(A8[s], R[s], N[s]) for s in range(ns)]
    for i in range(len(maths[0])):
        for s in range(ns): st(maths[s][i])
    for s in range(ns):
        st(f"v_mul_f32 v{R[s]}, {f32(CQ)}, v{R[s]}\nv_mul_f32 v{N[s]}, {f32(CQ)}, v{N[s]}")
    for s in range(ns):
        ln_epi(st, acc + 4 * s, [R[s]] * 4, [N[s]] * 4, [vCS + r for r in range(4)], QA + 2 * s, 16 + 4 * s)
    st(f"""
    v_permlane16_swap_b32 v{QA}, v{QA+2}
    v_permlane16_swap_b32 v{QA+1}, v{QA+3}
    v_permlane16_swap_b32 v{QB}, v{QB+2}
    v_permlane16_swap_b32 v{QB+1}, v{QB+3}
    """)

def phase_att(st, name):
    st(f"""
    v_mov_b32 v{vK}, v{vL16}
    v_and_b32 v5, 31, v0
    v_lshrrev_b32 v6, 5, v0
    v_lshlrev_b32 v7, 8, v6
    v_lshl_add_u32 v7, v5, 4, v7
    v_add_u32 v7, {LDS_V}, v7
    v_mov_b32 v16, {LDS_V + 1024 + 16}
    v_mov_b32 v17, {LDS_V + 1024}
    v_and_b32 v18, 27, v5
    v_cmp_eq_u32 s[28:29], 16, v18
    v_cndmask_b32_e64 v16, v16, v17, s[28:29]
    v_cmp_gt_u32 s[28:29], 16, v5
    v_cndmask_b32_e64 v{vV0}, v16, v7, s[28:29]
    v_add_u32 v7, 512, v7
    v_cndmask_b32_e64 v{vV1}, v16, v7, s[28:29]
    v_mov_b32 v16, 0x3f803f80
    v_mov_b32 v17, v16
    v_mov_b32 v18, v16
    v_mov_b32 v19, v16
    v_mul_u32_u24 v20, {VS}, v0
    v_add_u32 v20, {LDS_V + 1024}, v20
    s_cmp_lg_u32 s22, 0
    s_cbranch_scc1 L_noones_{name}
    ds_write_b128 v20, v[16:19]
    v_mov_b32 v16, 0
    v_mov_b32 v17, 0
    v_mov_b32 v18, 0
    v_mov_b32 v19, 0
    ds_write_b128 v20, v[16:19] offset:16
    """)
    st.label(f"L_noones_{name}")
    st(f"""
    v_and_b32 v9, 15, v0
    v_lshrrev_b32 v10, 4, v0
    s_lshl_b32 s23, s21, 11
    s_lshr_b32 s28, s22, 1
    s_lshl_b32 s28, s28, 10
    s_add_u32 s23, s23, s28
    s_and_b32 s28, s22, 1
    s_lshl_b32 s28, s28, 9
    s_add_u32 s23, s23, s28
    v_lshrrev_b32 v11, 1, v10
    v_lshlrev_b32 v11, 8, v11
    v_lshl_add_u32 v11, v9, 4, v11
    v_and_b32 v8, 1, v10
    v_lshl_add_u32 v8, v8, 3, v11
    v_add_u32 v8, s23, v8
    s_lshl_b32 s59, s20, 16
    s_add_u32 s59, s59, s{sXIN}
    """)
    def init_acc(s):
        for r in range(16): s(f"v_mov_b32 v{OA_+r}, 0\nv_mov_b32 v{OB_+r}, 0")
    def rdK(t, base): return f"ds_read_b128 {vr(KB + 4*(t&1),4)}, v{vK} offset:{(t-base)*1024}"
    def rdV(t, base):
        b = VB + 8 * (t & 1)
        return [f"ds_read_b128 {vr(b,4)}, v{vV0} offset:{(t-base)*VS}", f"ds_read_b128 {vr(b+4,4)}, v{vV1} offset:{(t-base)*VS}"]
    def qk(S, t, Q): return f"v_mfma_f32_32x32x16_bf16 {vr(S,16)}, {vr(KB + 4*(t&1),4)}, {vr(Q,4)}, 0"
    def pv(O, t, P):
        b = VB + 8 * (t & 1)
        return [f"v_mfma_f32_32x32x16_bf16 {vr(O,16)}, {vr(b,4)}, {vr(P,4)}, {vr(O,16)}",
                f"v_mfma_f32_32x32x16_bf16 {vr(O,16)}, {vr(b+4,4)}, {vr(P+4,4)}, {vr(O,16)}"]
    def softmax(S, P, M):
        ins = []
        if M is not None:
            for r in range(16): ins.append(f"v_sub_f32 v{S+r}, v{S+r}, v{M}")
        for i in range(8):
            ins.append(f"v_exp_f32 v{S+2*i}, v{S+2*i}")
            ins.append(f"v_exp_f32 v{S+2*i+1}, v{S+2*i+1}")
            if i > 0: ins.append(f"v_cvt_pk_bf16_f32 v{P+i-1}, v{S+2*i-2}, v{S+2*i-1}")
        ins.append(f"v_cvt_pk_bf16_f32 v{P+7}, v{S+14}, v{S+15}")
        return ins
    def mix(s, valu, groups):
        n = len(valu); k = len(groups)
        for j in range(k):
            for x in groups[j]:
                if isinstance(x, St): s.ext(x)
                else: s(x)
            for x in valu[j * n // k:(j + 1) * n // k]: s(x)
    def iteration(s, t, nt, base, extras, safe=None, first=False, rolled=False):
        MA, MB = safe if safe else (None, None)
        ex = list(extras)
        def pop(): return [ex.pop(0)] if ex else []
        g1 = [[qk(SB, t, QB)] + ([rdK(t + 2, base)] if (rolled or t + 2 < nt) else [])]
        pvb = [] if first else pv(OB_, t - 1, PB)
        rv = rdV(t + 1, base) if (rolled or t + 1 < nt) else []
        if pvb:
            g1.append([pvb[0]] + rv[:1]); g1.append([pvb[1]] + rv[1:])
        else:
            g1.append(rv)
        mix(s, softmax(SA, PA, MA), g1)
        pva = pv(OA_, t, PA)
        g2 = [([qk(SA, t + 1, QA)] if (rolled or t + 1 < nt) else []) + pop(), [pva[0]] + pop(), [pva[1], "s_waitcnt lgkmcnt(0)"]]
        mix(s, softmax(SB, PB, MB), g2)
        for x in ex: s.ext(x)
    def first_reads(s):
        s(rdK(0, 0)); s(rdK(1, 0))
        for x in rdV(0, 0): s(x)
        s("s_waitcnt lgkmcnt(0)")
        s(qk(SA, 0, QA))
    init_acc(st)
    st.wv("c0")
    st("s_waitcnt lgkmcnt(0)\ns_barrier")
    first_reads(st)
    stamp(st)
    extras = {t: [] for t in range(64)}
    for gi in range(1, 8): extras[gi - 1] += kv_group(gi, f"kv{gi}")
    pre = []
    pre += w_loads(W_O, T_WOA, "woa")
    for q in range(4):
        e = St()
        if q: e("s_add_u32 s59, s59, 16384")
        e.i(f"buffer_load_dwordx2 {vr(vRES+2*q,2)}, v8, s[8:11], s59 offen sc1"); pre.append(e)
    pre += w_loads(W_Q2, T_WQKV, "wq2")
    pre += w_loads(W_K2, T_WQKV + 32, "wk2")
    pre += w_loads(W_V2, T_WQKV + 64, "wv2")
    if FAST: pre += xcc_issue()
    t = 14
    while pre:
        extras[t] += pre[:2]; pre = pre[2:]; t += 1
    warm = []
    if "nowarm" not in OPT:
        e = St()
        e(f"""
        v_lshrrev_b32 v9, 4, v0
        v_bfe_u32 v10, v0, 2, 2
        v_and_b32 v11, 3, v0
        v_lshlrev_b32 v10, 14, v10
        v_lshl_add_u32 v10, v11, 7, v10
        s_lshl_b32 s28, s21, 11
        s_lshl_b32 s29, s22, 9
        s_add_u32 s28, s28, s29
        s_lshl_b32 s29, s20, 16
        s_add_u32 s28, s28, s29
        v_add_u32 v10, s28, v10
        v_add_u32 v9, 1, v9
        v_lshlrev_b32 v9, 21, v9
        v_add_u32 v10, v10, v9
        """)
        e.i(f"buffer_load_dword v253, v10, s[8:11], s{sXIN} offen".replace("v253", "v5"))
        warm = [e]
    if "wbl2" in OPT:
        e = St()
        lines = [f"s_lshr_b32 s28, s2, 3", f"s_or_b32 s28, s28, s22", f"s_xor_b32 s29, s{sL}, 1", "s_or_b32 s28, s28, s29", "s_cmp_lg_u32 s28, 0",
                 "s_cbranch_scc1 L_nowb", "buffer_wbl2 sc1", "L_nowb:"]
        e.it.append(("grp", lines, None, None))
        extras[15].append(e)
    WT = int(os.environ.get("WARMT", t))
    extras[WT] += warm
    assert t <= 62
    base = 0
    for t in range(64):
        if t == 6: st.wv("kv1"); st("s_barrier")
        if t == 14: st.wv("kv7"); st("s_barrier")
        if t == 32:
            st(f"v_add_u32 v{vK}, {32*1024}, v{vK}\nv_add_u32 v{vV0}, {32*VS}, v{vV0}\nv_add_u32 v{vV1}, {32*VS}, v{vV1}")
            base = 32
        iteration(st, t, 64, base, extras[t], first=(t == 0))
    stamp(st)
    def tail(s):
        for x in pv(OB_, 63, PB): s(x)
    lA, lB = OA_ + 8, OB_ + 8
    tail(st)
    xcc_check(st, name)
    st(f"v_mul_f32 v9, 0, v{OA_}\nv_mul_f32 v10, 0, v{OB_}")
    for r in range(1, 8):
        st(f"v_fma_f32 v9, v{OA_+r}, 0, v9\nv_fma_f32 v10, v{OB_+r}, 0, v10")
    st(f"""
    v_add_f32 v9, v9, v10
    v_min_f32 v10, v{lA}, v{lB}
    v_max_f32 v11, v{lA}, v{lB}
    v_add_f32 v10, v10, v9
    v_add_f32 v11, v11, v9
    v_cmp_u_f32 s[28:29], v{lA}, v{lB}
    v_mov_b32 v20, {f32(2.0**-40)}
    v_cmp_nge_f32 vcc, v10, v20
    s_or_b64 s[28:29], s[28:29], vcc
    v_mov_b32 v20, {f32(2.0**100)}
    v_cmp_nle_f32 vcc, v11, v20
    s_or_b64 s[28:29], s[28:29], vcc
    s_cmp_eq_u64 s[28:29], 0
    s_cbranch_scc1 L_attok_{name}
    """)
    MA, MB = 9, 10
    st(f"""
    v_subrev_u32 v{vK}, {32*1024}, v{vK}
    v_subrev_u32 v{vV0}, {32*VS}, v{vV0}
    v_subrev_u32 v{vV1}, {32*VS}, v{vV1}
    v_mov_b32 v{MA}, {f32(-3.0e38)}
    v_mov_b32 v{MB}, {f32(-3.0e38)}
    v_mov_b32 v11, v{vK}
    s_mov_b32 s44, 0
    """)
    st.label(f"L_max_{name}")
    st(f"""
    ds_read_b128 {vr(KB,4)}, v11
    s_waitcnt lgkmcnt(0)
    v_mfma_f32_32x32x16_bf16 {vr(SA,16)}, {vr(KB,4)}, {vr(QA,4)}, 0
    v_mfma_f32_32x32x16_bf16 {vr(SB,16)}, {vr(KB,4)}, {vr(QB,4)}, 0
    v_add_u32 v11, 1024, v11
    """)
    for r in range(0, 16, 2): st(f"v_max3_f32 v{MA}, v{MA}, v{SA+r}, v{SA+r+1}")
    for r in range(0, 16, 2): st(f"v_max3_f32 v{MB}, v{MB}, v{SB+r}, v{SB+r+1}")
    st(f"""
    s_add_u32 s44, s44, 1
    s_cmp_lt_u32 s44, 64
    s_cbranch_scc1 L_max_{name}
    v_mov_b32 v11, v{MA}
    v_permlane32_swap_b32 v11, v{MA}
    v_max_f32 v{MA}, v{MA}, v11
    v_mov_b32 v11, v{MB}
    v_permlane32_swap_b32 v11, v{MB}
    v_max_f32 v{MB}, v{MB}, v11
    """)
    init_acc(st)
    for r in range(8): st(f"v_mov_b32 v{PB+r}, 0\nv_mov_b32 v{VB+8+r}, 0")
    first_reads(st)
    st("s_mov_b32 s44, 0")
    st.label(f"L_att2_{name}")
    for u in range(2):
        iteration(st, u + 2, 64, 2, [], safe=(MA, MB), rolled=True)
    st(f"""
    v_add_u32 v{vK}, {2*1024}, v{vK}
    v_add_u32 v{vV0}, {2*VS}, v{vV0}
    v_add_u32 v{vV1}, {2*VS}, v{vV1}
    s_add_u32 s44, s44, 1
    s_cmp_lt_u32 s44, 32
    s_cbranch_scc1 L_att2_{name}
    """)
    tail(st)
    st.label(f"L_attok_{name}")
    st(f"""
    s_lshl_b32 s23, s21, 11
    s_lshr_b32 s24, s22, 1
    s_lshl_b32 s24, s24, 10
    s_add_u32 s23, s23, s24
    s_and_b32 s24, s22, 1
    s_lshl_b32 s24, s24, 9
    s_add_u32 s23, s23, s24
    s_lshl_b32 s24, s20, 16
    s_add_u32 s23, s23, s24
    s_add_u32 s23, s23, s{sOA}
    v_and_b32 v9, 15, v0
    v_lshlrev_b32 v9, 4, v9
    v_lshrrev_b32 v10, 5, v0
    v_lshl_add_u32 v9, v10, 3, v9
    v_bfe_u32 v10, v0, 4, 1
    v_lshl_add_u32 v9, v10, 14, v9
    v_rcp_f32 v11, v{lA}
    v_rcp_f32 v12, v{lB}
    s_mov_b64 vcc, s[{sSLOWA}:{sSLOWA+1}]
    """)
    for qb, O, rc in ((0, OA_, 11), (1, OB_, 12)):
        for r in range(8): st(f"v_mul_f32 v{O+r}, v{O+r}, v{rc}")
        p = 16 + 4 * qb
        st(f"""
        v_cvt_pk_bf16_f32 v{p}, v{O}, v{O+1}
        v_cvt_pk_bf16_f32 v{p+1}, v{O+2}, v{O+3}
        v_cvt_pk_bf16_f32 v{p+2}, v{O+4}, v{O+5}
        v_cvt_pk_bf16_f32 v{p+3}, v{O+6}, v{O+7}
        """)
        dstore(st, f"buffer_store_dwordx2 {vr(p,2)}, v9, s[8:11], s23 offen")
        dstore(st, f"buffer_store_dwordx2 {vr(p+2,2)}, v9, s[8:11], s23 offen offset:256")
        if qb == 0: st("s_add_u32 s23, s23, 32768")

def phase_p13(st, name, which):
    ns = 4
    slow = sSLOWB if which == 1 else sSLOWA
    lane_consts(st)
    xa_setup(st, ns, 0)
    st("s_lshl_b32 s26, s20, 2")
    tag = f"x{which}"
    vActA, vRowA = 44, 45
    act_addr(st, vActA, vTMP)
    acc = 64
    for s in range(ns):
        a = acc + 4 * s
        st(f"""
        v_lshlrev_b32 v{a}, 16, v{vRES+2*s}
        v_and_b32 v{a+1}, 0xffff0000, v{vRES+2*s}
        v_lshlrev_b32 v{a+2}, 16, v{vRES+2*s+1}
        v_and_b32 v{a+3}, 0xffff0000, v{vRES+2*s+1}
        """)
    if which == 3:
        row_addr(st, vRowA)
        st(f"""
        s_cmp_eq_u32 s{sL}, 0
        s_cselect_b32 s{SRD_OUT}, s8, s12
        s_cselect_b32 s{SRD_OUT+1}, s9, s13
        s_cselect_b32 s{SRD_OUT+2}, s10, s14
        s_mov_b32 s{SRD_OUT+3}, 0x00020000
        s_cselect_b32 s46, {B0 + BS + XIN}, 0
        s_cselect_b64 s[28:29], -1, 0
        v_cndmask_b32_e64 v{vActA}, v{vRowA}, v{vActA}, s[28:29]
        """)
    dma = dma_slots(st, ns, 0, f"s{sOA if which == 1 else sOB}", lambda e, s: e(f"s_add_u32 s23, s26, {s}"), tag)
    stamp(st, f"p{which}")
    sync_wait(st, 0 if which == 1 else 2, name, slow=slow)
    if which == 3 and "outwt" in OPT:
        st(f"s_cmp_eq_u32 s{sL}, 1\ns_cselect_b64 vcc, -1, vcc")
    stamp(st, f"p{which}")
    steps = gemm_steps(ns, lambda s: [((acc + 4 * s, False), W_O, True)], tag, dma, 3, fine=f"p{which}")
    def epi(s):
        e = St()
        a = acc + 4 * s
        p = (vRES if which == 1 else 88) + 2 * s
        e(f"""
        v_cvt_pk_bf16_f32 v{p}, v{a}, v{a+1}
        v_cvt_pk_bf16_f32 v{p+1}, v{a+2}, v{a+3}
        s_add_u32 s47, s26, {s}
        s_lshl_b32 s47, s47, 14
        """)
        if which == 1:
            e(f"s_add_u32 s47, s47, s{sX1}")
            dstore(e, f"buffer_store_dwordx2 {vr(p,2)}, v{vActA}, s[8:11], s47 offen")
        else:
            e("s_add_u32 s47, s47, s46")
            dstore(e, f"buffer_store_dwordx2 {vr(p,2)}, v{vActA}, s[{SRD_OUT}:{SRD_OUT+3}], s47 offen")
        return e
    st.ext(steps[0]); st.ext(steps[1])
    pb = []
    for s in range(ns - 1): pb += prog(16 * (s + 1) + 3, epi(s))
    st.ext(strip_marks(weave2(steps[2:], [pb], per=2)))
    st.ext(epi(ns - 1))
    stamp(st, f"p{which}")

def phase_p2(st, name):
    ns = 5
    SBASE = ns * 16384
    lane_consts(st)
    xa_setup(st, ns, 0)
    stats_setup(st, SBASE)
    Wq, Wk, Wv = W_Q2, W_K2, W_V2
    st("s_lshl_b32 s26, s20, 2\ns_sub_u32 s26, s26, 1")
    vActA = 96
    act_addr(st, vActA, vTMP)
    vMo, vMp, vMp0 = 100, 104, 108
    st(f"v_mov_b32 v{vTMP+2}, {f32(-1.0e30)}")
    for r in range(4):
        st(f"""
        v_lshl_add_u32 v{vTMP}, v{vG}, 2, {r}
        v_sub_u32 v{vTMP}, v{vT}, v{vTMP}
        v_and_b32 v{vTMP+1}, 0x80000001, v{vTMP}
        v_cmp_eq_u32 s[28:29], 0, v{vTMP+1}
        v_cndmask_b32_e64 v{vMo+r}, v{vTMP+2}, 0, s[28:29]
        v_cmp_gt_i32 s[38:39], -1, v{vTMP}
        v_and_b32 v{vTMP+1}, 1, v{vTMP}
        v_cmp_eq_u32 s[28:29], 0, v{vTMP+1}
        s_and_b64 s[28:29], s[28:29], s[38:39]
        v_cndmask_b32_e64 v{vMp+r}, v{vTMP+2}, 0, s[28:29]
        """)
    st("s_cmp_eq_u32 s20, 0\ns_cselect_b64 s[28:29], -1, 0")
    for r in range(4): st(f"v_cndmask_b32_e64 v{vMp0+r}, v{vMp+r}, v{vTMP+2}, s[28:29]")
    vCSq, vCSk, vCSv = 112, 116, 120
    def tile_of_slot(e, s):
        if s == 0: e("s_max_i32 s23, s26, 0")
        else: e(f"s_add_u32 s23, s26, {s}")
    dma = dma_slots(st, ns, 0, f"s{sX1}", tile_of_slot, "x2")
    csum = St()
    if "cslate" not in OPT:
        colsum(st, vCSq, Wq, True); colsum(st, vCSk, Wk, True); colsum(st, vCSv, Wv, False)
    stamp(st, "p2")
    sync_wait(st, 1, name, halo=True, slow=sSLOWA)
    stamp(st, "p2")
    wob = w_loads(W_O, T_WOB, "wob")
    accq, acck, accv = 64, 68, 72
    def A(base, s): return base + 12 * (s & 1)
    vSG, vSS = 88, 92
    def chains(s):
        c = []
        if s > 0: c.append(((A(accq, s), True), Wq, True))
        c.append(((A(acck, s), True), Wk, True))
        c.append(((A(accv, s), True), Wv, False))
        return c
    steps = gemm_steps(ns, chains, "x2", dma, 2, stats=lambda s: (vSG, vSS), fine="p2")
    for jj in range(16): steps[2 + 16 * 4 + jj].ext(wob[jj])
    last = steps[2 + 16 * 4 + 8]
    last.it.append(("mark", "bar4", None, None)); last("s_barrier")
    vR, vN = 124, 125
    vRq, vNq = 128, 129
    vR4, vN4 = 132, 136
    pq, pk, pv = 140, 142, 148
    tmp = 56
    S, P, MX, T2, PO = 158, 132, 97, 98, 146
    O, L = S, S + 4
    def statsA(s):
        b = 16 * s
        p = []
        e = St(); stats_extract(e, s, vSG, vSS, vTMP, f"sw{s}"); e.wl(f"sw{s}")
        p += prog(b + 5, e); p.append((b + 5, ("before", f"bar{s}", None, None)))
        e = St(); stats_read(e, s, vTMP, f"sr{s}"); p += prog(b + 9, e)
        e = St(); e.wl(f"sr{s}")
        R, N = vR + 2 * (s & 1), vN + 2 * (s & 1)
        for x in stats_math(vTMP, R, N): e(x)
        e.i(f"ds_write_b32 v{vSTA}, v{R}")
        e.i(f"ds_write_b32 v{vSTA}, v{N} offset:64", lds=f"pw{s}")
        p += prog(b + 12, e)
        p.append((b + 12, ("before", f"sl{s}", None, None)))
        return p
    def epi(s):
        e = St()
        R, N = vR + 2 * (s & 1), vN + 2 * (s & 1)
        e.wl(f"pw{s}")
        e.i(f"ds_read_b128 {vr(vR4,4)}, v{vPRR}")
        e.i(f"ds_read_b128 {vr(vN4,4)}, v{vPRR} offset:64", lds=f"pr{s}")
        ln_epi(e, A(acck, s), [R]*4, [N]*4, [vCSk+r for r in range(4)], pk + 2 * (s & 1), tmp)
        if s > 0:
            e(f"v_mul_f32 v{vRq}, {f32(CQ)}, v{R}\nv_mul_f32 v{vNq}, {f32(CQ)}, v{N}")
            ln_epi(e, A(accq, s), [vRq]*4, [vNq]*4, [vCSq+r for r in range(4)], pq, tmp)
            kp = pk + 2 * ((s - 1) & 1); ko = pk + 2 * (s & 1)
            mp = vMp0 if s == 1 else vMp
            e(f"v_mfma_f32_16x16x16_bf16 {vr(S,4)}, {vr(kp,2)}, {vr(pq,2)}, {vr(mp,4)}")
            e(f"v_mfma_f32_16x16x16_bf16 {vr(S+4,4)}, {vr(ko,2)}, {vr(pq,2)}, {vr(vMo,4)}")
        e.wl(f"pr{s}")
        ln_epi(e, A(accv, s), [vR4+r for r in range(4)], [vN4+r for r in range(4)], [vCSv]*4, pv + 2 * s, tmp)
        if s == 0: return e
        e(f"""
        v_max3_f32 v{MX}, v{S}, v{S+1}, v{S+2}
        v_max3_f32 v{T2}, v{S+3}, v{S+4}, v{S+5}
        v_max3_f32 v{MX}, v{MX}, v{S+6}, v{S+7}
        v_max_f32 v{MX}, v{MX}, v{T2}
        v_mov_b32 v{T2}, v{MX}
        v_permlane32_swap_b32 v{T2}, v{MX}
        v_max_f32 v{MX}, v{MX}, v{T2}
        v_mov_b32 v{T2}, v{MX}
        v_permlane16_swap_b32 v{T2}, v{MX}
        v_max_f32 v{MX}, v{MX}, v{T2}
        """)
        for r in range(8): e(f"v_sub_f32 v{S+r}, v{S+r}, v{MX}")
        for r in range(8): e(f"v_exp_f32 v{S+r}, v{S+r}")
        for r in range(4): e(f"v_cvt_pk_bf16_f32 v{P+r}, v{S+2*r}, v{S+2*r+1}")
        e(f"v_mfma_f32_16x16x32_bf16 {vr(O,4)}, {vr(pv+2*(s-1),4)}, {vr(P,4)}, 0")
        e(f"v_mfma_f32_16x16x32_bf16 {vr(L,4)}, {vr(vONES,4)}, {vr(P,4)}, 0")
        e.it.append(("gap", 4, None, None))
        e(f"v_rcp_f32 v{L}, v{L}")
        e(f"s_add_u32 s47, s26, {s}\ns_lshl_b32 s47, s47, 14\ns_add_u32 s47, s47, s{sOB}")
        for r in range(4): e(f"v_mul_f32 v{O+r}, v{O+r}, v{L}")
        e(f"v_cvt_pk_bf16_f32 v{PO}, v{O}, v{O+1}\nv_cvt_pk_bf16_f32 v{PO+1}, v{O+2}, v{O+3}")
        dstore(e, f"buffer_store_dwordx2 {vr(PO,2)}, v{vActA}, s[8:11], s47 offen")
        return e
    st.ext(steps[0]); st.ext(steps[1])
    main = steps[2:]
    for s in range(ns - 1):
        main[16 * (s + 1)].it.insert(0, ("mark", f"sl{s}", None, None))
    pa, pb = [], []
    for s in range(ns): pa += statsA(s)
    for s in range(ns - 1):
        pb += prog(16 * (s + 1) + 1, epi(s)); pb.append((16 * (s + 1) + 1, ("before", f"ep{s}", None, None)))
    for s in range(ns - 2):
        main[16 * (s + 2)].it.insert(0, ("mark", f"ep{s}", None, None))
    st.ext(strip_marks(weave2(main, [pa, pb], per=2)))
    st.ext(strip_marks(epi(ns - 1)))

def layer_scalars(st):
    st(f"""
    s_mul_i32 s23, s{sL}, {KVS}
    s_add_u32 s{sKF}, s23, {KF0}
    s_add_u32 s{sVF}, s23, {VF0}
    s_mul_i32 s23, s{sL}, {BS}
    s_add_u32 s{sXIN}, s23, {B0 + XIN}
    s_add_u32 s{sOA}, s23, {B0 + OA}
    s_add_u32 s{sX1}, s23, {B0 + X1}
    s_add_u32 s{sOB}, s23, {B0 + OB}
    s_lshl_b32 s23, s{sL}, 14
    s_add_u32 s{sFLAG}, s23, {FLAGS}
    """)

def q_dma(st):
    st("s_lshl_b32 s46, s20, 2")
    return dma_slots(st, 4, XB_Q, f"s{sXIN}", lambda e, s: e(f"s_add_u32 s23, s46, {s}"), "xq")

def gen_init(st, name):
    pWK, pWV, pWQ, pWOA, pWQKV, pWOB = 40, 42, 44, 46, 60, 62
    prologue(st, name, """
    s_load_dwordx4 s[40:43], s[0:1], 16
    s_load_dwordx2 s[44:45], s[0:1], 8
    s_load_dwordx2 s[46:47], s[0:1], 32
    s_load_dwordx4 s[60:63], s[0:1], 48
    s_load_dwordx2 s[6:7], s[0:1], 0
    """)
    st(f"s_add_u32 s28, s4, {EPOCH}\ns_addc_u32 s29, s5, 0\ns_load_dwordx2 s[{sEP}:{sEP+1}], s[28:29], 0")
    srd_io(st, 6, 2048 * 1024)
    st(f"s_mov_b32 s{sL}, 0")
    lane_consts(st)
    stamp(st, "i")
    xloads, setup, cs, main = phase_kv(st, name + "_i", 0, "row", KVB)
    xloads(st)
    vKap, vCol = 24, 25
    st(f"""
    v_lshrrev_b32 v{vKap}, 2, v{vT}
    v_lshlrev_b32 v{vKap}, 3, v{vKap}
    v_and_b32 v{vCol}, 3, v{vT}
    v_add_u32 v{vKap}, v{vKap}, v{vCol}
    v_lshrrev_b32 v{vCol}, 1, v{vG}
    v_lshl_add_u32 v{vKap}, v{vCol}, 2, v{vKap}
    v_and_b32 v{vCol}, 1, v{vG}
    v_lshlrev_b32 v{vCol}, 4, v{vCol}
    s_bitcmp1_b32 s21, 0
    s_cselect_b32 s28, s{pWV}, s{pWK}
    s_cselect_b32 s29, s{pWV+1}, s{pWK+1}
    v_lshl_add_u32 v142, v{vKap}, 5, v{vCol}
    s_lshl_b32 s23, s22, 12
    v_add_u32 v142, s23, v142
    """)
    for q in range(4):
        st.i(f"global_load_dwordx4 {ar(A_WKV+4*q,4)}, v142, s[28:29] offset:{q*1024}", vm=f"rw{q}")
    stamp(st, "i")
    st("s_getpc_b64 s[28:29]")
    st.label("L_pc_anchor")
    st(f"""
    s_add_u32 s28, s28, {name}-L_pc_anchor
    s_addc_u32 s29, s29, -1
    s_lshr_b32 s27, s2, 3
    s_lshl_b32 s27, s27, 2
    s_add_u32 s27, s27, s22
    s_lshl_b32 s27, s27, 9
    v_lshlrev_b32 v14, 6, v0
    v_add_u32 v14, s27, v14
    v_min_u32 v14, L_code_end-{name}-4, v14
    s_mov_b64 exec, 0xff
    """)
    if "nocode" not in OPT: st.i("global_load_dword v13, v14, s[28:29]")
    st("s_mov_b64 exec, -1")
    st(f"s_lshl_b32 s59, s2, 2\ns_add_u32 s59, s59, s22")
    for i in range(3):
        st(f"""
        s_add_u32 s27, s59, {1024*i}
        s_lshr_b32 s28, s27, 4
        s_and_b32 s29, s27, 15
        s_mov_b32 s24, s{pWQ}
        s_mov_b32 s25, s{pWQ+1}
        s_mov_b32 s38, s28
        s_mov_b32 s39, 1024
        """)
        for T0, reg, stride in ((T_WOA, pWOA, 1024), (T_WOB, pWOB, 1024), (T_WQKV, pWQKV, 3072)):
            st(f"""
            s_sub_u32 s58, s28, {T0}
            s_cmp_ge_u32 s28, {T0}
            s_cselect_b32 s24, s{reg}, s24
            s_cselect_b32 s25, s{reg+1}, s25
            s_cselect_b32 s38, s58, s38
            s_cselect_b32 s39, {stride}, s39
            """)
        st(f"""
        s_lshl_b32 s29, s29, 5
        s_lshl_b32 s38, s38, 5
        v_add_u32 v148, s29, v{vKap}
        v_mul_lo_u32 v148, v148, s39
        v_add_u32 v148, v148, v{vCol}
        v_add_u32 v148, s38, v148
        """)
        st.i(f"global_load_dwordx4 {ar(A_PREP+4*i,4)}, v148, s[24:25]", vm=f"pw{i}")
    st(f"""
    v_lshlrev_b32 v26, 10, v{vT}
    v_lshl_add_u32 v26, v{vG}, 4, v26
    s_lshr_b32 s27, s59, 3
    s_lshl_b32 s27, s27, 14
    s_and_b32 s28, s59, 7
    s_lshl_b32 s28, s28, 7
    s_add_u32 s27, s27, s28
    """)
    st.i(f"buffer_load_dwordx4 {ar(A_XC,4)}, v26, s[12:15], s27 offen")
    st.i(f"buffer_load_dwordx4 {ar(A_XC+4,4)}, v26, s[12:15], s27 offen offset:64", vm="xc")
    if "nowarm" not in OPT:
        st(f"""
        s_lshl_b32 s27, s20, 7
        s_lshl_b32 s28, s21, 3
        s_add_u32 s27, s27, s28
        s_add_u32 s27, s27, {FLAGS}
        v_and_b32 v148, 7, v0
        v_lshlrev_b32 v148, 12, v148
        v_add_u32 v148, s27, v148
        s_lshl_b32 s28, s20, 3
        s_add_u32 s28, s28, s21
        s_lshl_b32 s28, s28, 3
        s_add_u32 s28, s28, {KVFL - 8*0x800}
        v_min_u32 v149, 32, v0
        v_lshlrev_b32 v149, 11, v149
        v_add_u32 v149, s28, v149
        v_cmp_gt_u32 s[38:39], 8, v0
        v_cndmask_b32_e64 v148, v149, v148, s[38:39]
        """)
        w0_exec(st)
        st.i("buffer_load_dword v15, v148, s[8:11], 0 offen")
        st("s_mov_b64 exec, -1")
    stamp(st, "i")
    layer_scalars(st)
    wave_scalars(st)
    emit_selectors(st, vB0, vB1, 16)
    setup(st)
    for q in range(4):
        st.wv(f"rw{q}")
        transpose(st, ar(A_WKV + 4 * q, 4), W_KV[1] + 4 * q)
    stamp(st, "i")
    cs(st)
    stamp(st); stamp(st, "i")
    main(st)
    stamp(st); stamp(st, "i")
    st("s_lshl_b32 s59, s2, 2\ns_add_u32 s59, s59, s22")
    for i in range(3):
        st.wv(f"pw{i}")
        transpose(st, ar(A_PREP + 4 * i, 4), 28 + 0, tmp=16)
        st(f"s_add_u32 s27, s59, {1024*i}\ns_lshl_b32 s27, s27, 10")
        st.i(f"buffer_store_dwordx4 v[28:31], v{vL16}, s[8:11], s27 offen sc1")
    st(f"s_lshl_b32 s27, s59, 11\ns_add_u32 s27, s27, {B0 + XIN}")
    st.wv("xc")
    st.i(f"buffer_store_dwordx4 {ar(A_XC,4)}, v{vL16}, s[8:11], s27 offen sc1")
    st.i(f"buffer_store_dwordx4 {ar(A_XC+4,4)}, v{vL16}, s[8:11], s27 offen offset:1024 sc1")
    st(f"""
    s_load_dwordx2 s[6:7], s[0:1], 64
    s_waitcnt lgkmcnt(0)
    s_mul_i32 s{sTLO}, s{sEP}, 0x9e3779b1
    s_xor_b32 s{sTLO}, s{sTLO}, s{sEP+1}
    s_add_u32 s{sTLO}, s{sTLO}, 0x7f4a7c15
    s_mul_i32 s{sTHI}, s{sEP}, 0x85ebca6b
    s_add_u32 s{sTHI}, s{sTHI}, s{sEP+1}
    s_xor_b32 s{sTHI}, s{sTHI}, 0x5bd1e995
    """)
    srd_io(st, 6, 2048 * 1024)
    q_setup(st)
    stamp(st, "i")
    st("s_waitcnt vmcnt(0)\ns_barrier")
    stamp(st, "i")
    wg_flag_store(st, f"{KVFL}", replicas=8)
    xcc_publish(st)
    ld = [f"buffer_load_dwordx4 v[128:131], v60, s[8:11], s47 offen sc1", f"buffer_load_dwordx4 v[132:135], v60, s[8:11], s47 offen offset:16 sc1"]
    st(f"""
    v_lshlrev_b32 v60, 5, v0
    s_lshr_b32 s47, s20, 2
    s_lshl_b32 s47, s47, 11
    s_add_u32 s47, s47, {KVFL}
    """)
    w0_exec(st)
    poll_pairs(st, "L_initp", [128, 130, 132, 134], ld, sleep=False)
    st("s_mov_b64 exec, -1\ns_barrier")
    stamp(st, "i")
    wl = w_loads(W_QA, 0, "wq")
    for e in wl: st.ext(e)
    dma = q_dma(st)
    for e in dma[0]: st.ext(e)
    st("s_barrier")
    for e in dma[1]: st.ext(e)
    st.i(f"buffer_load_dword v59, v{vL16}, s[8:11], s{sXIN} offen")
    stamp(st, "i")

def gen_persist(name):
    st = St()
    NST[0] = 0
    stamp(st)
    if INSTR: st("s_memrealtime s[96:97]")
    if DBG: st("s_memrealtime s[96:97]\ns_memtime s[64:65]")
    gen_init(st, name)
    st("s_branch L_common")
    st.label("L_layer1")
    sync_publish(st, 3, name, sSLOWA)
    lane_consts(st)
    xloads, setup, cs, main = phase_kv(st, name + "_4", 1, "act", KVB)
    setup(st); cs(st)
    q_setup(st)
    sync_wait(st, 3, name + "_4")
    st(f"s_mov_b32 s{sL}, 1")
    layer_scalars(st)
    xloads(st)
    dma = q_dma(st)
    for e in dma[0]: st.ext(e)
    st("s_barrier")
    for e in dma[1]: st.ext(e)
    main(st)
    st.label("L_common")
    if DBG: st(f"s_cmp_lg_u32 s{sL}, 0\ns_cbranch_scc1 L_dbg_a\ns_memrealtime s[66:67]\ns_branch L_dbg_b\nL_dbg_a:\ns_memrealtime s[68:69]\nL_dbg_b:")
    phase_q(st, name, dma)
    phase_att(st, name)
    stamp(st)
    sync_publish(st, 0, name, sSLOWA)
    phase_p13(st, name + "_1", 1)
    stamp(st)
    sync_publish(st, 1, name, sSLOWB)
    phase_p2(st, name + "_2")
    stamp(st)
    sync_publish(st, 2, name, sSLOWA)
    phase_p13(st, name + "_3", 3)
    stamp(st)
    if INSTR:
        st(f"s_cmp_lg_u32 s{sL}, 0\ns_cbranch_scc1 L_fin")
        stamp_dump(st, 0)
        st("s_branch L_layer1")
    else:
        st(f"s_cmp_eq_u32 s{sL}, 0\ns_cbranch_scc1 L_layer1")
    st.label("L_fin")
    st(f"""
    s_or_b32 s23, s2, s22
    s_cmp_lg_u32 s23, 0
    s_cbranch_scc1 L_noep
    s_add_u32 s28, s{sEP}, 1
    s_addc_u32 s29, s{sEP+1}, 0
    v_mov_b32 v2, s28
    v_mov_b32 v3, s29
    v_mov_b32 v4, 0
    s_mov_b32 s23, {EPOCH}
    s_mov_b64 exec, 1
    buffer_store_dwordx2 v[2:3], v4, s[8:11], s23 offen
    s_mov_b64 exec, -1
    """)
    st.label("L_noep")
    st("s_waitcnt vmcnt(0)")
    if DBG:
        st(f"""
        s_memrealtime s[98:99]
        s_memtime s[70:71]
        s_load_dwordx2 s[28:29], s[0:1], 72
        s_waitcnt lgkmcnt(0)
        s_cmp_lg_u32 s22, 0
        s_cbranch_scc1 L_nodbg
        s_cmp_ge_u32 s2, 4
        s_cbranch_scc1 L_nodbg
        s_sub_u32 s66, s66, s96
        s_sub_u32 s68, s68, s96
        s_sub_u32 s98, s98, s96
        s_sub_u32 s70, s70, s64
        v_mov_b32 v4, s66
        v_mov_b32 v5, s68
        v_mov_b32 v6, s98
        v_mov_b32 v7, s70
        s_lshl_b32 s23, s2, 4
        v_mov_b32 v8, s23
        s_mov_b64 exec, 1
        global_store_dwordx4 v8, v[4:7], s[28:29]
        s_waitcnt vmcnt(0)
        """)
        st.label("L_nodbg")
    stamp_dump(st, 1)
    return kernel_text(name, st, sgpr=102).replace(f"L_end_{name}:", f"L_code_end:\nL_end_{name}:")

def build(path):
    hdr = open("cdna_kernels/" + NAME + ".s.ref").read().split("; Override launch geometry")[0]
    out = hdr + f"; @launch grid=(256,1,1) block=(256,1,1) lds={MAIN_LDS}\n"
    out += '.amdgcn_target "amdgcn-amd-amdhsa--gfx950"\n'
    out += gen_persist(NAME + "_kernel")
    open(path, "w").write(out)

if __name__ == "__main__":
    build(sys.argv[1] if len(sys.argv) > 1 else "stage5.s")
```

```python
import sys, os
sys.path.insert(0, os.path.dirname(os.path.abspath(__file__)))
import gen
from gen import (St, resolve, weave, vr, ar, rr, f32, CQ, srd_io, emit_selectors,
                 T_WQ, T_WOA, T_WOB, T_WQKV, T_WK, T_WV, NFRAG, NAME, WS_SIZE)
from asmlib import fix_hazards
INSTR = os.environ.get("INSTR")
OPT = os.environ.get("OPT", "")
DBG = os.environ.get("DBG")
SPINRT = int(os.environ.get("SPINRT", "0"))
FAST = "nofast" not in OPT

KF0, VF0, KVS = 0x310000, 0x320000, 0x20000
B0, BS = 0x800000, 0x800000
XIN, OA, X1, OB = 0, 0x200000, 0x400000, 0x600000
FLAGS = 0x1900000
KVFL = FLAGS + 0x8000
PREPF = FLAGS + 0x10000
XCCT = FLAGS + 0x14000
EPOCH = FLAGS + 0x15000
TS_OFF = 0x1800000
S_G, S_M, S_W = 20, 21, 22
sROT = 16
sSLOWA, sSLOWB = 40, 42
sSPIN = 45
sKF, sVF, sXIN, sOA, sX1, sOB, sL, sFLAG = 48, 49, 51, 52, 53, 54, 55, 56
sTLO, sTHI = 50, 3
sEP = 14 + 86
sWT = 57
SRD_OUT = 60
W_Q2, W_K2, W_V2, W_O = ("a", 0), ("a", 64), ("a", 128), ("a", 192)
W_QA = ("v", 166)
W_KV = ("v", 230)
vRES = 246
vL16, vXA, vT, vG, vONES, vRING, RING = 1, 2, 6, 7, 8, 12, 8
vSTA, vSTW, vSTR, vPRR, vTMP = 44, 45, 46, 47, 48
vFLO, vFLP = 62, 63

NST = [0]
def stamp(st, fine=None):
    if not INSTR: return
    if INSTR == "1":
        if fine: return
        k = NST[0]; NST[0] += 1
        st(f"s_memtime s[{64+2*k}:{65+2*k}]\ns_waitcnt lgkmcnt(0)")
    else:
        if fine != INSTR and not (fine is None and NST[0] == 0): return
        k = NST[0]; NST[0] += 1
        assert k < 16
        st(f"s_memtime s[{64+2*k}:{65+2*k}]")
def stamp_dump(st, slot):
    if not INSTR: return
    st("s_memrealtime s[98:99]\ns_waitcnt lgkmcnt(0)")
    for k in range(16): st(f"v_mov_b32 v{16+k}, s{64+2*k if k < NST[0] else 98}")
    st(f"""
    v_mov_b32 v31, s98
    v_mov_b32 v30, s96
    s_lshl_b32 s23, s2, 2
    s_add_u32 s23, s23, s22
    s_lshl_b32 s23, s23, 6
    s_mul_i32 s24, {slot}, 65536
    s_add_u32 s23, s23, s24
    s_add_u32 s23, s23, {TS_OFF}
    v_mov_b32 v8, 0
    s_mov_b64 exec, 1
    buffer_store_dwordx4 v[16:19], v8, s[8:11], s23 offen
    buffer_store_dwordx4 v[20:23], v8, s[8:11], s23 offen offset:16
    buffer_store_dwordx4 v[24:27], v8, s[8:11], s23 offen offset:32
    buffer_store_dwordx4 v[28:31], v8, s[8:11], s23 offen offset:48
    s_waitcnt vmcnt(0)
    s_mov_b64 exec, -1
    """)

def prologue(st, name, extra_loads=""):
    st(f"""
    s_cmp_ge_u32 s2, 256
    s_cbranch_scc1 L_end_{name}
    s_load_dwordx2 s[4:5], s[0:1], 80
    {extra_loads}
    v_lshrrev_b32 v1, 6, v0
    v_and_b32 v0, 63, v0
    s_and_b32 s20, s2, 7
    s_lshr_b32 s21, s2, 3
    s_lshl_b32 s20, s20, 2
    s_lshr_b32 s23, s21, 3
    s_add_u32 s20, s20, s23
    s_and_b32 s21, s21, 7
    v_readfirstlane_b32 s22, v1
    v_lshlrev_b32 v{vL16}, 4, v0
    s_waitcnt lgkmcnt(0)
    s_mov_b32 s8, s4
    s_mov_b32 s9, s5
    s_mov_b32 s10, {WS_SIZE}
    s_mov_b32 s11, 0x00020000
    """)

OUTLINE = []
def dstore(e, text):
    if not FAST:
        e.i(text + " sc1"); return
    k = len(OUTLINE)
    e.it.append(("grp", [f"s_cbranch_vccnz L_slow_{k}", text, f"L_back_{k}:"], None, None))
    OUTLINE.append(text + " sc1")

def expand_groups(st):
    o = St()
    for it in st.it:
        if it[0] in ("grp", "grpv"):
            for l in it[1]: o.it.append(("i", l, None, None))
        else: o.it.append(it)
    return o

def kernel_text(name, st, vgpr=512, accum=256, sgpr=100):
    lines = resolve(expand_groups(st))
    lines.append("s_endpgm")
    for k, t in enumerate(OUTLINE):
        lines += [f"L_slow_{k}:", t, f"s_branch L_back_{k}"]
    OUTLINE.clear()
    lines, nins = fix_hazards(lines)
    body = "\n".join(("    " + l) if not l.endswith(":") else l for l in lines)
    return f""".text
.globl {name}
.p2align 8
.type {name},@function
{name}:
{body}
L_end_{name}:
    s_endpgm
.section .rodata,"a"
.p2align 6
.amdhsa_kernel {name}
  .amdhsa_next_free_vgpr {vgpr}
  .amdhsa_next_free_sgpr {sgpr}
  .amdhsa_accum_offset {accum}
  .amdhsa_group_segment_fixed_size 0
  .amdhsa_kernarg_size 88
  .amdhsa_user_sgpr_count 2
  .amdhsa_user_sgpr_kernarg_segment_ptr 1
  .amdhsa_system_sgpr_workgroup_id_x 1
  .amdhsa_float_denorm_mode_32 3
.end_amdhsa_kernel
"""

def lane_consts(st):
    st(f"v_and_b32 v{vT}, 15, v0\nv_lshrrev_b32 v{vG}, 4, v0")
    for q in range(4): st(f"v_mov_b32 v{vONES+q}, 0x3f803f80")

def xa_setup(st, ns, xb):
    for jg in range(4):
        st(f"""
        s_add_u32 s23, s22, {jg}
        s_and_b32 s23, s23, 3
        s_mul_i32 s23, s23, {ns*4096}
        s_add_u32 s23, s23, {xb}
        v_add_u32 v{vXA+jg}, s23, v{vL16}
        """)

def wave_scalars(st):
    for jg in range(4):
        st(f"""
        s_add_u32 s23, s22, {jg}
        s_and_b32 s23, s23, 3
        s_lshl_b32 s{sROT+jg}, s23, 12
        """)
    st(f"""
    s_lshl_b32 s{sWT}, s21, 2
    s_add_u32 s{sWT}, s{sWT}, s22
    s_lshl_b32 s{sWT}, s{sWT}, 14
    """)

def w_loads(dst, T0, tag):
    out = []
    for jg in range(4):
        for q in range(4):
            e = St()
            if q == 0:
                e(f"s_add_u32 s58, s{sWT}, s{sROT+jg}")
                if T0: e(f"s_add_u32 s58, s58, {T0*16384}")
            b = dst[1] + 4 * (4 * jg + q)
            e.i(f"buffer_load_dwordx4 {rr((dst[0], b), 4)}, v{vL16}, s[8:11], s58 offen offset:{q*1024} sc1", vm=f"{tag}{4*jg+q}")
            out.append(e)
    return out

def kv_loads(tag):
    out = []
    for q in range(4):
        e = St()
        if q == 0:
            e(f"""
            s_and_b32 s58, s21, 1
            s_add_u32 s58, s58, {T_WK}
            s_lshl_b32 s58, s58, 14
            s_add_u32 s58, s58, s{sROT}
            """)
        e.i(f"buffer_load_dwordx4 {rr((W_KV[0], W_KV[1] + 4*q), 4)}, v{vL16}, s[8:11], s58 offen offset:{q*1024}", vm=f"{tag}{q}")
        out.append(e)
    return out

def act_addr(st, vdst, tmp):
    st(f"""
    s_lshl_b32 s23, s21, 11
    s_lshr_b32 s28, s22, 1
    s_lshl_b32 s28, s28, 10
    s_add_u32 s23, s23, s28
    s_and_b32 s28, s22, 1
    s_lshl_b32 s28, s28, 9
    s_add_u32 s23, s23, s28
    v_lshrrev_b32 v{tmp}, 1, v{vG}
    v_lshlrev_b32 v{tmp}, 8, v{tmp}
    v_lshl_add_u32 v{tmp}, v{vT}, 4, v{tmp}
    v_and_b32 v{vdst}, 1, v{vG}
    v_lshl_add_u32 v{vdst}, v{vdst}, 3, v{tmp}
    v_add_u32 v{vdst}, s23, v{vdst}
    """)

def row_addr(st, vdst):
    st(f"""
    s_lshl_b32 s23, s21, 7
    s_lshl_b32 s28, s22, 5
    s_add_u32 s23, s23, s28
    v_lshlrev_b32 v{vdst}, 10, v{vT}
    v_lshl_add_u32 v{vdst}, v{vG}, 3, v{vdst}
    v_add_u32 v{vdst}, s23, v{vdst}
    """)

def colsum(st, dst, W, w_is_A, n=16):
    for jj in range(n):
        wreg = rr((W[0], W[1] + 4 * jj), 4)
        c = "0" if jj == 0 else vr(dst, 4)
        if w_is_A: st(f"v_mfma_f32_16x16x32_bf16 {vr(dst,4)}, {wreg}, {vr(vONES,4)}, {c}")
        else:      st(f"v_mfma_f32_16x16x32_bf16 {vr(dst,4)}, {vr(vONES,4)}, {wreg}, {c}")

def stats_setup(st, sb, regs=None):
    pb = sb + 2560; dummy = pb + 512
    vSTA, vSTW, vSTR, vPRR = regs or (44, 45, 46, 47)
    st(f"""
    v_lshrrev_b32 v{vTMP}, 2, v{vT}
    v_cmp_eq_u32 s[30:31], v{vTMP}, v{vG}
    v_lshlrev_b32 v{vSTW}, 5, v{vT}
    s_lshl_b32 s23, s22, 2
    s_add_u32 s23, s23, {sb}
    v_add_u32 v{vSTW}, s23, v{vSTW}
    v_mov_b32 v{vTMP}, {dummy}
    v_cndmask_b32_e64 v{vSTW}, v{vTMP}, v{vSTW}, s[30:31]
    v_lshlrev_b32 v{vSTR}, 5, v{vT}
    v_add_u32 v{vSTR}, {sb}, v{vSTR}
    s_lshl_b32 s23, s22, 7
    s_add_u32 s23, s23, {pb}
    v_lshlrev_b32 v{vSTA}, 2, v{vT}
    v_add_u32 v{vSTA}, s23, v{vSTA}
    v_lshlrev_b32 v{vPRR}, 4, v{vG}
    v_add_u32 v{vPRR}, s23, v{vPRR}
    s_mov_b32 s32, 0x22222222
    s_mov_b32 s33, 0x22222222
    s_mov_b32 s34, 0x44444444
    s_mov_b32 s35, 0x44444444
    s_mov_b32 s36, 0x88888888
    s_mov_b32 s37, 0x88888888
    """)
STAT_BYTES = 2560 + 512 + 2600

def stats_extract(e, s, vSG, vSS, t, tag, vSTW=45):
    e(f"""
    v_cndmask_b32_e64 v{t}, v{vSG}, v{vSG+1}, s[32:33]
    v_cndmask_b32_e64 v{t}, v{t}, v{vSG+2}, s[34:35]
    v_cndmask_b32_e64 v{t}, v{t}, v{vSG+3}, s[36:37]
    """)
    e.i(f"ds_write_b32 v{vSTW}, v{vSS} offset:{s*512}")
    e.i(f"ds_write_b32 v{vSTW}, v{t} offset:{s*512 + 16}", lds=tag)

def stats_read(e, s, a, tag, vSTR=46):
    e.i(f"ds_read_b128 {vr(a,4)}, v{vSTR} offset:{s*512}")
    e.i(f"ds_read_b128 {vr(a+4,4)}, v{vSTR} offset:{s*512+16}", lds=tag)

def stats_math(a, vR, vN):
    return f"""
    v_add_f32 v{a}, v{a}, v{a+1}
    v_add_f32 v{a+4}, v{a+4}, v{a+5}
    v_add_f32 v{a+2}, v{a+2}, v{a+3}
    v_add_f32 v{a+6}, v{a+6}, v{a+7}
    v_add_f32 v{a}, v{a}, v{a+2}
    v_add_f32 v{a+4}, v{a+4}, v{a+6}
    v_mul_f32 v{a}, {f32(1.0/512)}, v{a}
    v_mul_f32 v{a+4}, {f32(1.0/512)}, v{a+4}
    v_fma_f32 v{a+4}, -v{a}, v{a}, v{a+4}
    v_max_f32 v{a+4}, 0, v{a+4}
    v_add_f32 v{a+4}, {f32(1e-5)}, v{a+4}
    v_rsq_f32 v{vR}, v{a+4}
    v_sub_f32 v{a}, 0, v{a}
    v_mul_f32 v{vN}, v{a}, v{vR}
    """.strip().split("\n")

def ln_epi(e, acc, R, N, CS, pk, tmp):
    for r in range(4): e(f"v_mul_f32 v{tmp+r}, v{N[r]}, v{CS[r]}")
    for r in range(4): e(f"v_fma_f32 v{tmp+r}, v{acc+r}, v{R[r]}, v{tmp+r}")
    e(f"v_cvt_pk_bf16_f32 v{pk}, v{tmp}, v{tmp+1}")
    e(f"v_cvt_pk_bf16_f32 v{pk+1}, v{tmp+2}, v{tmp+3}")

def flag_value(st):
    st(f"v_mov_b32 v{vFLO}, s{sTLO}\nv_mov_b32 v{vFLO+1}, s{sTHI}")

vFLA = 61
def sync_publish(st, e, name, slow):
    st(f"""
    s_waitcnt vmcnt(0)
    s_barrier
    s_cmp_lg_u32 s22, 0
    s_cbranch_scc1 L_np{e}_{name}
    s_lshl_b32 s23, s20, 7
    s_lshl_b32 s28, s21, 3
    s_add_u32 s23, s23, s28
    s_add_u32 s23, s23, s{sFLAG}
    s_add_u32 s23, s23, {e*0x1000}
    v_mov_b32 v{vFLA}, 0
    """)
    flag_value(st)
    st(f"s_mov_b64 vcc, s[{slow}:{slow+1}]\ns_mov_b64 exec, 1")
    dstore(st, f"buffer_store_dwordx2 v[{vFLO}:{vFLO+1}], v{vFLA}, s[8:11], s23 offen")
    st("s_mov_b64 exec, -1")
    st.label(f"L_np{e}_{name}")

def poll_pairs(st, label, regs, loads, sleep=False):
    st(f"s_mov_b32 s{sSPIN}, 0x10000")
    st.label(label)
    if sleep: st("s_sleep 2")
    for l in loads: st(l)
    st("s_waitcnt vmcnt(0)")
    check_pairs(st, regs)
    st(f"""
    s_sub_u32 s{sSPIN}, s{sSPIN}, 1
    s_cmp_eq_u32 s{sSPIN}, 0
    s_cbranch_scc1 {label}_d
    s_cbranch_vccnz {label}
    """)
    st.label(label + "_d")

def check_pairs(st, regs):
    for k, r in enumerate(regs):
        if k == 0: st(f"v_cmp_ne_u32 vcc, s{sTLO}, v{r}")
        else: st(f"v_cmp_ne_u32 s[28:29], s{sTLO}, v{r}\ns_or_b64 vcc, vcc, s[28:29]")
        st(f"v_cmp_ne_u32 s[28:29], s{sTHI}, v{r+1}\ns_or_b64 vcc, vcc, s[28:29]")

def sync_wait(st, e, name, halo=False, slow=None):
    st(f"""
    v_and_b32 v{vFLA}, 7, v0
    v_lshlrev_b32 v{vFLA}, 3, v{vFLA}
    s_lshl_b32 s23, s20, 7
    """)
    if halo:
        st(f"""
        s_sub_u32 s28, s20, 1
        s_max_i32 s28, s28, 0
        s_lshl_b32 s28, s28, 7
        s_sub_u32 s28, s28, s23
        v_bfe_u32 v{vFLO}, v0, 3, 1
        v_mul_lo_u32 v{vFLO}, v{vFLO}, s28
        v_add_u32 v{vFLA}, v{vFLA}, v{vFLO}
        """)
    st(f"""
    v_add_u32 v{vFLA}, s23, v{vFLA}
    s_add_u32 s23, s{sFLAG}, {e*0x1000}
    """)
    poll_pairs(st, f"L_poll{e}_{name}", [vFLO], [f"buffer_load_dwordx2 v[{vFLO}:{vFLO+1}], v{vFLA}, s[8:11], s23 offen sc1"])
    if slow is not None: st(f"s_mov_b64 vcc, s[{slow}:{slow+1}]")
    stamp(st)

def wg_flag_store(e, off_expr, lo_add=None, regs=None, replicas=1):
    vA, vV = regs or (61, 62)
    e(f"""
    s_lshl_b32 s28, s20, 3
    s_add_u32 s28, s28, s21
    s_lshl_b32 s28, s28, 3
    s_add_u32 s28, s28, {off_expr}
    v_lshlrev_b32 v{vA}, 11, v0
    v_mov_b32 v{vV}, s{sTLO if lo_add is None else lo_add}
    v_mov_b32 v{vV+1}, s{sTHI}
    s_cmp_eq_u32 s22, 0
    s_cselect_b64 exec, {(1 << replicas) - 1 if replicas < 7 else hex((1 << replicas) - 1)}, 0
    """)
    e.i(f"buffer_store_dwordx2 v[{vV}:{vV+1}], v{vA}, s[8:11], s28 offen sc1")
    e("s_mov_b64 exec, -1")

def w0_exec(e):
    e("s_cmp_eq_u32 s22, 0\ns_cselect_b64 exec, -1, 0")

vXCA, vXCV = 13, 14
def xcc_publish(st):
    if not FAST: return
    st(f"""
    s_getreg_b32 s39, hwreg(HW_REG_XCC_ID)
    s_and_b32 s39, s39, 7
    s_add_u32 s39, s39, 16
    s_add_u32 s39, s39, s{sTLO}
    """)
    wg_flag_store(st, f"{XCCT}", lo_add=39)
    st(f"s_mov_b32 s{sXCC}, s39")
sXCC = 95

def xcc_issue():
    e = St()
    e(f"""
    v_and_b32 v{vXCA}, 7, v0
    s_add_u32 s28, s20, 1
    s_min_u32 s28, s28, 31
    s_sub_u32 s28, s28, s20
    s_lshl_b32 s28, s28, 3
    v_bfe_u32 v{vXCV}, v0, 3, 1
    v_mul_lo_u32 v{vXCV}, v{vXCV}, s28
    v_add_u32 v{vXCA}, v{vXCA}, v{vXCV}
    s_lshl_b32 s28, s20, 3
    v_add_u32 v{vXCA}, s28, v{vXCA}
    v_lshlrev_b32 v{vXCA}, 3, v{vXCA}
    s_mov_b32 s38, {XCCT}
    """)
    e2 = St()
    e2.i(f"buffer_load_dwordx2 v[{vXCV}:{vXCV+1}], v{vXCA}, s[8:11], s38 offen sc1", vm="xcc")
    return [e, e2]

def xcc_check(st, name):
    if not FAST:
        st(f"s_mov_b64 s[{sSLOWA}:{sSLOWA+1}], -1\ns_mov_b64 s[{sSLOWB}:{sSLOWB+1}], -1"); return
    def chk():
        st(f"""
        v_subrev_u32 v9, s{sTLO}, v{vXCV}
        v_subrev_u32 v9, 16, v9
        v_cmp_le_u32 vcc, 8, v9
        v_cmp_ne_u32 s[28:29], s{sTHI}, v{vXCV+1}
        s_or_b64 vcc, vcc, s[28:29]
        """)
    st.wv("xcc")
    chk()
    st(f"s_mov_b32 s{sSPIN}, 0x10000\ns_cbranch_vccz L_xd_{name}")
    st.label(f"L_xp_{name}")
    st(f"buffer_load_dwordx2 v[{vXCV}:{vXCV+1}], v{vXCA}, s[8:11], s38 offen sc1\ns_waitcnt vmcnt(0)")
    chk()
    st(f"""
    s_sub_u32 s{sSPIN}, s{sSPIN}, 1
    s_cmp_eq_u32 s{sSPIN}, 0
    s_cbranch_scc1 L_xd_{name}
    s_cbranch_vccnz L_xp_{name}
    """)
    st.label(f"L_xd_{name}")
    st(f"""
    v_cmp_ne_u32 s[{sSLOWB}:{sSLOWB+1}], s{sXCC}, v{vXCV}
    s_nop 1
    s_and_b32 s{sSLOWA}, s{sSLOWB}, 0xff
    s_mov_b32 s{sSLOWA+1}, 0
    """)
    if "forceslow" in OPT:
        st(f"s_mov_b64 s[{sSLOWA}:{sSLOWA+1}], -1\ns_mov_b64 s[{sSLOWB}:{sSLOWB+1}], -1")

def dma_slots(st, ns, xb, sSrc, tile_of_slot, tag):
    st(f"""
    s_mul_i32 s25, s22, {ns*4096}
    s_add_u32 s25, s25, {xb}
    s_lshl_b32 s24, s22, 12
    s_add_u32 s24, s24, {sSrc}
    """)
    slots = []
    for s in range(ns):
        L = []
        for q in range(4):
            e = St()
            if q == 0:
                tile_of_slot(e, s)
                e(f"s_lshl_b32 s23, s23, 14\ns_add_u32 s27, s23, s24\ns_add_u32 m0, s25, {s*4096}")
            e.i(f"buffer_load_dwordx4 v{vL16}, s[8:11], s27 offen offset:{q*1024} sc1 lds", vm=f"{tag}{s}_{q}")
            L.append(e)
        slots.append(L)
    return slots

def gemm_steps(ns, chains, tagx, dma, upfront, stats=None, fine=None, wtags=None, pre_mid=None):
    steps = []
    total = ns * 16
    def rd(idx):
        s, jj = divmod(idx, 16)
        return f"ds_read_b128 {vr(vRING + 4*(idx % RING), 4)}, v{vXA + (jj >> 2)} offset:{s*4096 + (jj & 3)*1024}"
    pre = St()
    for s in range(upfront):
        for e in dma[s]: pre.ext(e)
        if s == 0 and pre_mid is not None: pre.ext(pre_mid)
        if s + 1 < upfront: pre("s_barrier")
    stamp(pre, fine)
    steps.append(pre)
    pre2 = St()
    pre2.wv(f"{tagx}0_3")
    pre2("s_barrier")
    stamp(pre2, fine)
    for idx in range(RING): pre2.i(rd(idx), lds=f"x{idx}")
    steps.append(pre2)
    for idx in range(total):
        s, jj = divmod(idx, 16)
        stp = St()
        ring = vRING + 4 * (idx % RING)
        if wtags and s == 0 and jj % 4 == 0: stp.wv(wtags[jj // 4])
        if idx % 2 == 0: stp.wl(f"x{min(idx+1, total-1)}")
        for (acc, w, w_is_A) in chains(s):
            wreg = rr((w[0], w[1] + 4 * jj), 4)
            c = "0" if jj == 0 and acc[1] else vr(acc[0], 4)
            if w_is_A: stp(f"v_mfma_f32_16x16x32_bf16 {vr(acc[0],4)}, {wreg}, {vr(ring,4)}, {c}")
            else:      stp(f"v_mfma_f32_16x16x32_bf16 {vr(acc[0],4)}, {vr(ring,4)}, {wreg}, {c}")
        if stats and jj < 4:
            sg, ss = stats(s)
            stp(f"v_mfma_f32_16x16x32_bf16 {vr(sg,4)}, {vr(ring,4)}, {vr(ring,4)}, {'0' if jj == 0 else vr(sg,4)}")
            stp(f"v_mfma_f32_16x16x32_bf16 {vr(ss,4)}, {vr(vONES,4)}, {vr(ring,4)}, {'0' if jj == 0 else vr(ss,4)}")
        nxt = idx + RING
        if nxt < total:
            if nxt % 16 == 0:
                stp.it.append(("mark", f"bar{s}", None, None))
                stp.wv(f"{tagx}{nxt//16}_3")
                stp("s_barrier")
            stp.i(rd(nxt), lds=f"x{nxt}")
        sd = s + upfront
        if sd < ns and jj < 4: stp.ext(dma[sd][jj])
        if jj == 15 or jj == 7: stamp(stp, fine)
        steps.append(stp)
    return steps

def weave2(steps, progs, per=2):
    out = St()
    qs = [list(p) for p in progs]
    skip = [0] * len(qs)
    def emit_forced(name):
        for qi, q in enumerate(qs):
            last = max([i for i, (ms, it) in enumerate(q) if it[0] == "before" and it[1] == name], default=-1)
            for _ in range(last + 1):
                ms, it = q.pop(0)
                if it[0] not in ("gap", "before"): out.it.append(it)
    for si, stp in enumerate(steps):
        for it in stp.it:
            if it[0] == "mark":
                emit_forced(it[1]); continue
            out.it.append(it)
            if it[0] == "i" and it[1].startswith("v_mfma"):
                n = 0
                for qi, q in enumerate(qs):
                    if skip[qi] > 0:
                        skip[qi] -= 1; continue
                    while q and n < per and q[0][0] <= si:
                        ms, x = q.pop(0)
                        if x[0] == "gap":
                            skip[qi] = x[1]; break
                        if x[0] == "before": continue
                        out.it.append(x)
                        if x[0] in ("i", "grp", "grpv"): n += 1
    for q in qs:
        for ms, x in q:
            if x[0] not in ("gap", "before"): out.it.append(x)
    return out

def prog(ms, st_): return [(ms, it) for it in st_.it]
def strip_marks(st_):
    o = St(); o.it = [it for it in st_.it if it[0] != "mark"]; return o

def phase_kv(st, name, layer_out, src, kvb):
    XR = 64
    accK, accV, csK, csV, SG, SS = 80, 84, 88, 92, 96, 100
    vA0, vA1, vKW, vKR = 104, 105, 106, 107
    t = vTMP
    sb = kvb + 8192
    kA, kW, kR, kP = 28, 29, 30, 31
    stats_setup(st, sb, (kA, kW, kR, kP))
    st(f"""
    s_lshl_b32 s26, s20, 2
    s_lshr_b32 s28, s21, 1
    s_add_u32 s26, s26, s28
    s_bitcmp1_b32 s21, 0
    s_cselect_b64 s[38:39], -1, 0
    """)
    def xloads(e):
        if src == "row":
            e(f"""
            v_lshlrev_b32 v{t+12}, 10, v{vT}
            v_lshl_add_u32 v{t+12}, v{vG}, 4, v{t+12}
            s_lshl_b32 s23, s26, 14
            s_lshl_b32 s28, s22, 8
            s_add_u32 s23, s23, s28
            """)
            for q in range(4):
                e.i(f"buffer_load_dwordx4 {vr(XR+4*q,4)}, v{t+12}, s[12:15], s23 offen offset:{q*64}", vm=f"xk{q}")
        else:
            e(f"""
            s_lshl_b32 s23, s26, 14
            s_lshl_b32 s28, s22, 12
            s_add_u32 s23, s23, s28
            s_add_u32 s23, s23, {B0 + BS*layer_out + XIN}
            """)
            for q in range(4):
                e.i(f"buffer_load_dwordx4 {vr(XR+4*q,4)}, v{vL16}, s[8:11], s23 offen offset:{q*1024} sc1", vm=f"xk{q}")
    def setup(e):
        e(f"""
        s_bitcmp1_b32 s21, 0
        s_cselect_b64 s[38:39], -1, 0
        v_lshrrev_b32 v{t}, 1, v{vG}
        v_and_b32 v{t+1}, 1, v{vG}
        v_lshlrev_b32 v{t+2}, 9, v{t}
        v_lshl_add_u32 v{t+2}, v{vT}, 4, v{t+2}
        v_lshl_add_u32 v{t+2}, v{t+1}, 3, v{t+2}
        v_lshlrev_b32 v{t+4}, 8, v{t+1}
        v_lshl_add_u32 v{t+4}, v{vT}, 4, v{t+4}
        v_lshl_add_u32 v{t+4}, v{t}, 3, v{t+4}
        v_cndmask_b32_e64 v{vA0}, v{t+2}, v{t+4}, s[38:39]
        s_lshl_b32 s23, s22, 11
        s_add_u32 s23, s23, {kvb}
        v_add_u32 v{vKW}, s23, v{vL16}
        v_add_u32 v{vKR}, {kvb}, v{vL16}
        s_lshr_b32 s23, s26, 1
        s_lshl_b32 s23, s23, 10
        s_and_b32 s28, s26, 1
        s_lshl_b32 s29, s28, 8
        s_add_u32 s29, s29, {KF0 + KVS*layer_out}
        s_lshl_b32 s28, s28, 9
        s_add_u32 s28, s28, {VF0 + KVS*layer_out}
        s_bitcmp1_b32 s21, 0
        s_cselect_b32 s28, s28, s29
        s_add_u32 s59, s23, s28
        """)
    def cs(e):
        for jj in range(4):
            w = rr((W_KV[0], W_KV[1] + 4 * jj), 4)
            e(f"v_mfma_f32_16x16x32_bf16 {vr(csK,4)}, {w}, {vr(vONES,4)}, {'0' if jj == 0 else vr(csK,4)}")
            e(f"v_mfma_f32_16x16x32_bf16 {vr(csV,4)}, {vr(vONES,4)}, {w}, {'0' if jj == 0 else vr(csV,4)}")
        for r in range(4): e(f"v_cndmask_b32_e64 v{csK+r}, v{csK+r}, v{csV}, s[38:39]")
        e.i(f"ds_write_b128 v{vKW}, {vr(csK,4)} offset:1024")
    def main(e):
        for q in range(4):
            e.wv(f"xk{q}")
            w = rr((W_KV[0], W_KV[1] + 4 * q), 4); x = vr(XR + 4 * q, 4)
            z = lambda r: "0" if q == 0 else vr(r, 4)
            e(f"v_mfma_f32_16x16x32_bf16 {vr(SG,4)}, {x}, {x}, {z(SG)}")
            e(f"v_mfma_f32_16x16x32_bf16 {vr(SS,4)}, {vr(vONES,4)}, {x}, {z(SS)}")
            e(f"v_mfma_f32_16x16x32_bf16 {vr(accK,4)}, {w}, {x}, {z(accK)}")
            e(f"v_mfma_f32_16x16x32_bf16 {vr(accV,4)}, {x}, {w}, {z(accV)}")
        stats_extract(e, 0, SG, SS, t, "ksw", kW)
        for r in range(4): e(f"v_cndmask_b32_e64 v{accK+r}, v{accK+r}, v{accV+r}, s[38:39]")
        e.i(f"ds_write_b128 v{vKW}, {vr(accK,4)}", lds="kaw")
        e("s_waitcnt lgkmcnt(0)\ns_barrier")
        stats_read(e, 0, t, "ksr", kR)
        F = 108
        for w in range(4): e.i(f"ds_read_b128 {vr(F+4*w,4)}, v{vKR} offset:{w*2048}")
        for w in range(4): e.i(f"ds_read_b128 {vr(F+16+4*w,4)}, v{vKR} offset:{w*2048+1024}", lds=f"kr{w}")
        e.wl("ksr")
        R, N = 140, 141
        for x in stats_math(t, R, N): e(x)
        e.i(f"ds_write_b32 v{kA}, v{R}")
        e.i(f"ds_write_b32 v{kA}, v{N} offset:64", lds="kpw")
        e.wl("kpw")
        R4, N4 = 144, 148
        e.i(f"ds_read_b128 {vr(R4,4)}, v{kP}")
        e.i(f"ds_read_b128 {vr(N4,4)}, v{kP} offset:64", lds="kpr")
        for b in (F, F + 16):
            for r in range(4): e(f"v_add_f32 v{b+r}, v{b+r}, v{b+4+r}\nv_add_f32 v{b+8+r}, v{b+8+r}, v{b+12+r}")
            for r in range(4): e(f"v_add_f32 v{b+r}, v{b+r}, v{b+8+r}")
        e.wl("kpr")
        for r in range(4):
            e(f"v_cndmask_b32_e64 v{R4+r}, v{R}, v{R4+r}, s[38:39]\nv_cndmask_b32_e64 v{N4+r}, v{N}, v{N4+r}, s[38:39]")
        ln_epi(e, F, [R4+r for r in range(4)], [N4+r for r in range(4)], [F+16+r for r in range(4)], 152, 154)
        e("s_cmp_eq_u32 s22, 0\ns_cselect_b64 exec, -1, 0")
        e.i(f"buffer_store_dwordx2 v[152:153], v{vA0}, s[8:11], s59 offen sc1", vm="kvst")
        e("s_mov_b64 exec, -1")
    return xloads, setup, cs, main

LDS_K, LDS_V, VS = 0, 65536, 1056
XB_Q = 74752
SB_Q = XB_Q + 65536
SA, SB, OA_, OB_ = 16, 32, 48, 64
PA, PB, QA, QB, KB, VB = 80, 88, 96, 100, 104, 112
vK, vV0, vV1 = 2, 3, 4

def kv_group(gi, tag):
    out = []
    e = St(); e(f"s_add_u32 s23, s34, {gi*8192}\ns_add_u32 m0, s36, {gi*8192}")
    e.i(f"buffer_load_dwordx4 v{vL16}, s[8:11], s23 offen sc1 lds"); out.append(e)
    e = St(); e.i(f"buffer_load_dwordx4 v{vL16}, s[8:11], s23 offen offset:1024 sc1 lds"); out.append(e)
    e = St(); e(f"s_add_u32 s23, s35, {gi*8192}\ns_add_u32 m0, s37, {gi*8*VS}")
    e.i(f"buffer_load_dwordx4 v{vL16}, s[8:11], s23 offen sc1 lds"); out.append(e)
    e = St(); e(f"s_add_u32 m0, s37, {gi*8*VS + VS - 1024}")
    e.i(f"buffer_load_dwordx4 v{vL16}, s[8:11], s23 offen offset:1024 sc1 lds", vm=tag); out.append(e)
    return out

KVB = 147456
MAIN_LDS = 163840
vB0, vB1 = 158, 162
A_WQ, A_WKV, A_PREP, A_XC = 0, 64, 80, 92

def transpose(e, src, dst, tmp=16):
    e(f"v_mfma_f32_16x16x32_bf16 {vr(tmp,4)}, {src}, {vr(vB0,4)}, 0")
    e(f"v_mfma_f32_16x16x32_bf16 {vr(tmp+4,4)}, {src}, {vr(vB1,4)}, 0")
    e(f"""
    v_cvt_pk_bf16_f32 v{dst}, v{tmp}, v{tmp+1}
    v_cvt_pk_bf16_f32 v{dst+1}, v{tmp+2}, v{tmp+3}
    v_cvt_pk_bf16_f32 v{dst+2}, v{tmp+4}, v{tmp+5}
    v_cvt_pk_bf16_f32 v{dst+3}, v{tmp+6}, v{tmp+7}
    """)

def q_setup(st):
    xa_setup(st, 4, XB_Q)
    stats_setup(st, SB_Q)

def q_dma_act(st):
    dma = dma_slots(st, 4, XB_Q, f"s{sXIN}", lambda e, s: e(f"s_add_u32 s23, s26, {s}"), "xq")
    return dma

def phase_q(st, name, dma):
    ns = 4
    acc, vCS = 64, 124
    SGs = [80, 84, 88, 92]; SSs = [104, 108, 112, 116]
    steps = gemm_steps(ns, lambda s: [((acc + 4 * s, True), W_QA, True)], "xq", [[], [], dma[2], dma[3]], 2,
                       stats=lambda s: (SGs[s], SSs[s]), fine="q")
    pa = []
    for s in range(ns):
        e = St(); stats_extract(e, s, SGs[s], SSs[s], vTMP, f"qsw{s}")
        pa += prog(16 * s + 6, e)
    pub = St(); pub.wv("kvst")
    pub(f"s_lshl_b32 s29, s{sL}, 14\ns_add_u32 s29, s29, {KVFL}")
    g = St(); wg_flag_store(g, "s29", replicas=8)
    pub.it.append(("grpv", [it[1] for it in g.it], None, None))
    ld = [f"buffer_load_dwordx4 v[128:131], v60, s[8:11], s47 offen sc1", f"buffer_load_dwordx4 v[132:135], v60, s[8:11], s47 offen offset:16 sc1"]
    look = St()
    look(f"""
    v_lshlrev_b32 v60, 5, v0
    s_lshl_b32 s47, s{sL}, 14
    s_add_u32 s47, s47, {KVFL}
    s_lshr_b32 s28, s20, 2
    s_lshl_b32 s28, s28, 11
    s_add_u32 s47, s47, s28
    """)
    look.it.append(("grpv", ["s_cmp_eq_u32 s22, 0", "s_cselect_b64 exec, -1, 0", ld[0], ld[1], "s_mov_b64 exec, -1"], None, None))
    csum = St(); colsum(csum, vCS, W_QA, True)
    PUBS = int(os.environ.get("PUBS", "12")); LOOK = int(os.environ.get("LOOKS", "56"))
    body = St()
    body.ext(steps[1])
    body.ext(strip_marks(weave2(steps[2:], [pa, prog(PUBS, pub) + prog(LOOK, look), prog(4, csum)], per=1)))
    st.ext(body)
    st("s_waitcnt lgkmcnt(0)\ns_barrier")
    A8 = [16, 24, 32, 40]
    for s in range(ns): stats_read(st, s, A8[s], f"qsr{s}")
    stamp(st)
    st("s_waitcnt vmcnt(0)")
    w0_exec(st)
    check_pairs(st, [128, 130, 132, 134])
    st(f"s_cbranch_vccz L_kvok_{name}")
    poll_pairs(st, f"L_kvp_{name}", [128, 130, 132, 134], ld, sleep=True)
    st.label(f"L_kvok_{name}")
    st("s_mov_b64 exec, -1\ns_barrier")
    st(f"""
    s_lshl_b32 s36, s22, 11
    s_add_u32 s34, s36, s{sKF}
    s_add_u32 s35, s36, s{sVF}
    s_mul_i32 s37, s22, {2*VS}
    s_add_u32 s37, s37, {LDS_V}
    """)
    for e in kv_group(0, "c0"): st.ext(e)
    R = [48 + s for s in range(ns)]; N = [52 + s for s in range(ns)]
    st.wl("qsr3")
    maths = [stats_math(A8[s], R[s], N[s]) for s in range(ns)]
    for i in range(len(maths[0])):
        for s in range(ns): st(maths[s][i])
    for s in range(ns):
        st(f"v_mul_f32 v{R[s]}, {f32(CQ)}, v{R[s]}\nv_mul_f32 v{N[s]}, {f32(CQ)}, v{N[s]}")
    for s in range(ns):
        ln_epi(st, acc + 4 * s, [R[s]] * 4, [N[s]] * 4, [vCS + r for r in range(4)], QA + 2 * s, 16 + 4 * s)
    st(f"""
    v_permlane16_swap_b32 v{QA}, v{QA+2}
    v_permlane16_swap_b32 v{QA+1}, v{QA+3}
    v_permlane16_swap_b32 v{QB}, v{QB+2}
    v_permlane16_swap_b32 v{QB+1}, v{QB+3}
    """)

def phase_att(st, name):
    st(f"""
    v_mov_b32 v{vK}, v{vL16}
    v_and_b32 v5, 31, v0
    v_lshrrev_b32 v6, 5, v0
    v_lshlrev_b32 v7, 8, v6
    v_lshl_add_u32 v7, v5, 4, v7
    v_add_u32 v7, {LDS_V}, v7
    v_mov_b32 v16, {LDS_V + 1024 + 16}
    v_mov_b32 v17, {LDS_V + 1024}
    v_and_b32 v18, 27, v5
    v_cmp_eq_u32 s[28:29], 16, v18
    v_cndmask_b32_e64 v16, v16, v17, s[28:29]
    v_cmp_gt_u32 s[28:29], 16, v5
    v_cndmask_b32_e64 v{vV0}, v16, v7, s[28:29]
    v_add_u32 v7, 512, v7
    v_cndmask_b32_e64 v{vV1}, v16, v7, s[28:29]
    v_mov_b32 v16, 0x3f803f80
    v_mov_b32 v17, v16
    v_mov_b32 v18, v16
    v_mov_b32 v19, v16
    v_mul_u32_u24 v20, {VS}, v0
    v_add_u32 v20, {LDS_V + 1024}, v20
    s_cmp_lg_u32 s22, 0
    s_cbranch_scc1 L_noones_{name}
    ds_write_b128 v20, v[16:19]
    v_mov_b32 v16, 0
    v_mov_b32 v17, 0
    v_mov_b32 v18, 0
    v_mov_b32 v19, 0
    ds_write_b128 v20, v[16:19] offset:16
    """)
    st.label(f"L_noones_{name}")
    st(f"""
    v_and_b32 v9, 15, v0
    v_lshrrev_b32 v10, 4, v0
    s_lshl_b32 s23, s21, 11
    s_lshr_b32 s28, s22, 1
    s_lshl_b32 s28, s28, 10
    s_add_u32 s23, s23, s28
    s_and_b32 s28, s22, 1
    s_lshl_b32 s28, s28, 9
    s_add_u32 s23, s23, s28
    v_lshrrev_b32 v11, 1, v10
    v_lshlrev_b32 v11, 8, v11
    v_lshl_add_u32 v11, v9, 4, v11
    v_and_b32 v8, 1, v10
    v_lshl_add_u32 v8, v8, 3, v11
    v_add_u32 v8, s23, v8
    s_lshl_b32 s59, s20, 16
    s_add_u32 s59, s59, s{sXIN}
    """)
    def init_acc(s):
        for r in range(16): s(f"v_mov_b32 v{OA_+r}, 0\nv_mov_b32 v{OB_+r}, 0")
    def rdK(t, base): return f"ds_read_b128 {vr(KB + 4*(t&1),4)}, v{vK} offset:{(t-base)*1024}"
    def rdV(t, base):
        b = VB + 8 * (t & 1)
        return [f"ds_read_b128 {vr(b,4)}, v{vV0} offset:{(t-base)*VS}", f"ds_read_b128 {vr(b+4,4)}, v{vV1} offset:{(t-base)*VS}"]
    def qk(S, t, Q): return f"v_mfma_f32_32x32x16_bf16 {vr(S,16)}, {vr(KB + 4*(t&1),4)}, {vr(Q,4)}, 0"
    def pv(O, t, P):
        b = VB + 8 * (t & 1)
        return [f"v_mfma_f32_32x32x16_bf16 {vr(O,16)}, {vr(b,4)}, {vr(P,4)}, {vr(O,16)}",
                f"v_mfma_f32_32x32x16_bf16 {vr(O,16)}, {vr(b+4,4)}, {vr(P+4,4)}, {vr(O,16)}"]
    def softmax(S, P, M):
        ins = []
        if M is not None:
            for r in range(16): ins.append(f"v_sub_f32 v{S+r}, v{S+r}, v{M}")
        for i in range(8):
            ins.append(f"v_exp_f32 v{S+2*i}, v{S+2*i}")
            ins.append(f"v_exp_f32 v{S+2*i+1}, v{S+2*i+1}")
            if i > 0: ins.append(f"v_cvt_pk_bf16_f32 v{P+i-1}, v{S+2*i-2}, v{S+2*i-1}")
        ins.append(f"v_cvt_pk_bf16_f32 v{P+7}, v{S+14}, v{S+15}")
        return ins
    def mix(s, valu, groups):
        n = len(valu); k = len(groups)
        for j in range(k):
            for x in groups[j]:
                if isinstance(x, St): s.ext(x)
                else: s(x)
            for x in valu[j * n // k:(j + 1) * n // k]: s(x)
    def iteration(s, t, nt, base, extras, safe=None, first=False, rolled=False):
        MA, MB = safe if safe else (None, None)
        ex = list(extras)
        def pop(): return [ex.pop(0)] if ex else []
        g1 = [[qk(SB, t, QB)] + ([rdK(t + 2, base)] if (rolled or t + 2 < nt) else [])]
        pvb = [] if first else pv(OB_, t - 1, PB)
        rv = rdV(t + 1, base) if (rolled or t + 1 < nt) else []
        if pvb:
            g1.append([pvb[0]] + rv[:1]); g1.append([pvb[1]] + rv[1:])
        else:
            g1.append(rv)
        mix(s, softmax(SA, PA, MA), g1)
        pva = pv(OA_, t, PA)
        g2 = [([qk(SA, t + 1, QA)] if (rolled or t + 1 < nt) else []) + pop(), [pva[0]] + pop(), [pva[1], "s_waitcnt lgkmcnt(0)"]]
        mix(s, softmax(SB, PB, MB), g2)
        for x in ex: s.ext(x)
    def first_reads(s):
        s(rdK(0, 0)); s(rdK(1, 0))
        for x in rdV(0, 0): s(x)
        s("s_waitcnt lgkmcnt(0)")
        s(qk(SA, 0, QA))
    init_acc(st)
    st.wv("c0")
    st("s_waitcnt lgkmcnt(0)\ns_barrier")
    first_reads(st)
    stamp(st)
    extras = {t: [] for t in range(64)}
    for gi in range(1, 8): extras[gi - 1] += kv_group(gi, f"kv{gi}")
    pre = []
    pre += w_loads(W_O, T_WOA, "woa")
    for q in range(4):
        e = St()
        if q: e("s_add_u32 s59, s59, 16384")
        e.i(f"buffer_load_dwordx2 {vr(vRES+2*q,2)}, v8, s[8:11], s59 offen sc1"); pre.append(e)
    pre += w_loads(W_Q2, T_WQKV, "wq2")
    pre += w_loads(W_K2, T_WQKV + 32, "wk2")
    pre += w_loads(W_V2, T_WQKV + 64, "wv2")
    if FAST: pre += xcc_issue()
    t = 14
    while pre:
        extras[t] += pre[:2]; pre = pre[2:]; t += 1
    warm = []
    if "nowarm" not in OPT:
        e = St()
        e(f"""
        v_lshrrev_b32 v9, 4, v0
        v_bfe_u32 v10, v0, 2, 2
        v_and_b32 v11, 3, v0
        v_lshlrev_b32 v10, 14, v10
        v_lshl_add_u32 v10, v11, 7, v10
        s_lshl_b32 s28, s21, 11
        s_lshl_b32 s29, s22, 9
        s_add_u32 s28, s28, s29
        s_lshl_b32 s29, s20, 16
        s_add_u32 s28, s28, s29
        v_add_u32 v10, s28, v10
        v_add_u32 v9, 1, v9
        v_lshlrev_b32 v9, 21, v9
        v_add_u32 v10, v10, v9
        """)
        e.i(f"buffer_load_dword v253, v10, s[8:11], s{sXIN} offen".replace("v253", "v5"))
        warm = [e]
    if "wbl2" in OPT:
        e = St()
        lines = [f"s_lshr_b32 s28, s2, 3", f"s_or_b32 s28, s28, s22", f"s_xor_b32 s29, s{sL}, 1", "s_or_b32 s28, s28, s29", "s_cmp_lg_u32 s28, 0",
                 "s_cbranch_scc1 L_nowb", "buffer_wbl2 sc1", "L_nowb:"]
        e.it.append(("grp", lines, None, None))
        extras[15].append(e)
    WT = int(os.environ.get("WARMT", t))
    extras[WT] += warm
    assert t <= 62
    base = 0
    for t in range(64):
        if t == 6: st.wv("kv1"); st("s_barrier")
        if t == 14: st.wv("kv7"); st("s_barrier")
        if t == 32:
            st(f"v_add_u32 v{vK}, {32*1024}, v{vK}\nv_add_u32 v{vV0}, {32*VS}, v{vV0}\nv_add_u32 v{vV1}, {32*VS}, v{vV1}")
            base = 32
        iteration(st, t, 64, base, extras[t], first=(t == 0))
    stamp(st)
    def tail(s):
        for x in pv(OB_, 63, PB): s(x)
    lA, lB = OA_ + 8, OB_ + 8
    tail(st)
    xcc_check(st, name)
    st(f"v_mul_f32 v9, 0, v{OA_}\nv_mul_f32 v10, 0, v{OB_}")
    for r in range(1, 8):
        st(f"v_fma_f32 v9, v{OA_+r}, 0, v9\nv_fma_f32 v10, v{OB_+r}, 0, v10")
    st(f"""
    v_add_f32 v9, v9, v10
    v_min_f32 v10, v{lA}, v{lB}
    v_max_f32 v11, v{lA}, v{lB}
    v_add_f32 v10, v10, v9
    v_add_f32 v11, v11, v9
    v_cmp_u_f32 s[28:29], v{lA}, v{lB}
    v_mov_b32 v20, {f32(2.0**-40)}
    v_cmp_nge_f32 vcc, v10, v20
    s_or_b64 s[28:29], s[28:29], vcc
    v_mov_b32 v20, {f32(2.0**100)}
    v_cmp_nle_f32 vcc, v11, v20
    s_or_b64 s[28:29], s[28:29], vcc
    s_cmp_eq_u64 s[28:29], 0
    s_cbranch_scc1 L_attok_{name}
    """)
    MA, MB = 9, 10
    st(f"""
    v_subrev_u32 v{vK}, {32*1024}, v{vK}
    v_subrev_u32 v{vV0}, {32*VS}, v{vV0}
    v_subrev_u32 v{vV1}, {32*VS}, v{vV1}
    v_mov_b32 v{MA}, {f32(-3.0e38)}
    v_mov_b32 v{MB}, {f32(-3.0e38)}
    v_mov_b32 v11, v{vK}
    s_mov_b32 s44, 0
    """)
    st.label(f"L_max_{name}")
    st(f"""
    ds_read_b128 {vr(KB,4)}, v11
    s_waitcnt lgkmcnt(0)
    v_mfma_f32_32x32x16_bf16 {vr(SA,16)}, {vr(KB,4)}, {vr(QA,4)}, 0
    v_mfma_f32_32x32x16_bf16 {vr(SB,16)}, {vr(KB,4)}, {vr(QB,4)}, 0
    v_add_u32 v11, 1024, v11
    """)
    for r in range(0, 16, 2): st(f"v_max3_f32 v{MA}, v{MA}, v{SA+r}, v{SA+r+1}")
    for r in range(0, 16, 2): st(f"v_max3_f32 v{MB}, v{MB}, v{SB+r}, v{SB+r+1}")
    st(f"""
    s_add_u32 s44, s44, 1
    s_cmp_lt_u32 s44, 64
    s_cbranch_scc1 L_max_{name}
    v_mov_b32 v11, v{MA}
    v_permlane32_swap_b32 v11, v{MA}
    v_max_f32 v{MA}, v{MA}, v11
    v_mov_b32 v11, v{MB}
    v_permlane32_swap_b32 v11, v{MB}
    v_max_f32 v{MB}, v{MB}, v11
    """)
    init_acc(st)
    for r in range(8): st(f"v_mov_b32 v{PB+r}, 0\nv_mov_b32 v{VB+8+r}, 0")
    first_reads(st)
    st("s_mov_b32 s44, 0")
    st.label(f"L_att2_{name}")
    for u in range(2):
        iteration(st, u + 2, 64, 2, [], safe=(MA, MB), rolled=True)
    st(f"""
    v_add_u32 v{vK}, {2*1024}, v{vK}
    v_add_u32 v{vV0}, {2*VS}, v{vV0}
    v_add_u32 v{vV1}, {2*VS}, v{vV1}
    s_add_u32 s44, s44, 1
    s_cmp_lt_u32 s44, 32
    s_cbranch_scc1 L_att2_{name}
    """)
    tail(st)
    st.label(f"L_attok_{name}")
    st(f"""
    s_lshl_b32 s23, s21, 11
    s_lshr_b32 s24, s22, 1
    s_lshl_b32 s24, s24, 10
    s_add_u32 s23, s23, s24
    s_and_b32 s24, s22, 1
    s_lshl_b32 s24, s24, 9
    s_add_u32 s23, s23, s24
    s_lshl_b32 s24, s20, 16
    s_add_u32 s23, s23, s24
    s_add_u32 s23, s23, s{sOA}
    v_and_b32 v9, 15, v0
    v_lshlrev_b32 v9, 4, v9
    v_lshrrev_b32 v10, 5, v0
    v_lshl_add_u32 v9, v10, 3, v9
    v_bfe_u32 v10, v0, 4, 1
    v_lshl_add_u32 v9, v10, 14, v9
    v_rcp_f32 v11, v{lA}
    v_rcp_f32 v12, v{lB}
    s_mov_b64 vcc, s[{sSLOWA}:{sSLOWA+1}]
    """)
    for qb, O, rc in ((0, OA_, 11), (1, OB_, 12)):
        for r in range(8): st(f"v_mul_f32 v{O+r}, v{O+r}, v{rc}")
        p = 16 + 4 * qb
        st(f"""
        v_cvt_pk_bf16_f32 v{p}, v{O}, v{O+1}
        v_cvt_pk_bf16_f32 v{p+1}, v{O+2}, v{O+3}
        v_cvt_pk_bf16_f32 v{p+2}, v{O+4}, v{O+5}
        v_cvt_pk_bf16_f32 v{p+3}, v{O+6}, v{O+7}
        """)
        dstore(st, f"buffer_store_dwordx2 {vr(p,2)}, v9, s[8:11], s23 offen")
        dstore(st, f"buffer_store_dwordx2 {vr(p+2,2)}, v9, s[8:11], s23 offen offset:256")
        if qb == 0: st("s_add_u32 s23, s23, 32768")

def phase_p13(st, name, which):
    ns = 4
    slow = sSLOWB if which == 1 else sSLOWA
    lane_consts(st)
    xa_setup(st, ns, 0)
    st("s_lshl_b32 s26, s20, 2")
    tag = f"x{which}"
    vActA, vRowA = 44, 45
    act_addr(st, vActA, vTMP)
    acc = 64
    for s in range(ns):
        a = acc + 4 * s
        st(f"""
        v_lshlrev_b32 v{a}, 16, v{vRES+2*s}
        v_and_b32 v{a+1}, 0xffff0000, v{vRES+2*s}
        v_lshlrev_b32 v{a+2}, 16, v{vRES+2*s+1}
        v_and_b32 v{a+3}, 0xffff0000, v{vRES+2*s+1}
        """)
    if which == 3:
        row_addr(st, vRowA)
        st(f"""
        s_cmp_eq_u32 s{sL}, 0
        s_cselect_b32 s{SRD_OUT}, s8, s12
        s_cselect_b32 s{SRD_OUT+1}, s9, s13
        s_cselect_b32 s{SRD_OUT+2}, s10, s14
        s_mov_b32 s{SRD_OUT+3}, 0x00020000
        s_cselect_b32 s46, {B0 + BS + XIN}, 0
        s_cselect_b64 s[28:29], -1, 0
        v_cndmask_b32_e64 v{vActA}, v{vRowA}, v{vActA}, s[28:29]
        """)
    dma = dma_slots(st, ns, 0, f"s{sOA if which == 1 else sOB}", lambda e, s: e(f"s_add_u32 s23, s26, {s}"), tag)
    stamp(st, f"p{which}")
    sync_wait(st, 0 if which == 1 else 2, name, slow=slow)
    if which == 3 and "outwt" in OPT:
        st(f"s_cmp_eq_u32 s{sL}, 1\ns_cselect_b64 vcc, -1, vcc")
    stamp(st, f"p{which}")
    steps = gemm_steps(ns, lambda s: [((acc + 4 * s, False), W_O, True)], tag, dma, 3, fine=f"p{which}")
    def epi(s):
        e = St()
        a = acc + 4 * s
        p = (vRES if which == 1 else 88) + 2 * s
        e(f"""
        v_cvt_pk_bf16_f32 v{p}, v{a}, v{a+1}
        v_cvt_pk_bf16_f32 v{p+1}, v{a+2}, v{a+3}
        s_add_u32 s47, s26, {s}
        s_lshl_b32 s47, s47, 14
        """)
        if which == 1:
            e(f"s_add_u32 s47, s47, s{sX1}")
            dstore(e, f"buffer_store_dwordx2 {vr(p,2)}, v{vActA}, s[8:11], s47 offen")
        else:
            e("s_add_u32 s47, s47, s46")
            dstore(e, f"buffer_store_dwordx2 {vr(p,2)}, v{vActA}, s[{SRD_OUT}:{SRD_OUT+3}], s47 offen")
        return e
    st.ext(steps[0]); st.ext(steps[1])
    pb = []
    for s in range(ns - 1): pb += prog(16 * (s + 1) + 3, epi(s))
    st.ext(strip_marks(weave2(steps[2:], [pb], per=2)))
    st.ext(epi(ns - 1))
    stamp(st, f"p{which}")

def phase_p2(st, name):
    ns = 5
    SBASE = ns * 16384
    lane_consts(st)
    xa_setup(st, ns, 0)
    stats_setup(st, SBASE)
    Wq, Wk, Wv = W_Q2, W_K2, W_V2
    st("s_lshl_b32 s26, s20, 2\ns_sub_u32 s26, s26, 1")
    vActA = 96
    act_addr(st, vActA, vTMP)
    vMo, vMp, vMp0 = 100, 104, 108
    st(f"v_mov_b32 v{vTMP+2}, {f32(-1.0e30)}")
    for r in range(4):
        st(f"""
        v_lshl_add_u32 v{vTMP}, v{vG}, 2, {r}
        v_sub_u32 v{vTMP}, v{vT}, v{vTMP}
        v_and_b32 v{vTMP+1}, 0x80000001, v{vTMP}
        v_cmp_eq_u32 s[28:29], 0, v{vTMP+1}
        v_cndmask_b32_e64 v{vMo+r}, v{vTMP+2}, 0, s[28:29]
        v_cmp_gt_i32 s[38:39], -1, v{vTMP}
        v_and_b32 v{vTMP+1}, 1, v{vTMP}
        v_cmp_eq_u32 s[28:29], 0, v{vTMP+1}
        s_and_b64 s[28:29], s[28:29], s[38:39]
        v_cndmask_b32_e64 v{vMp+r}, v{vTMP+2}, 0, s[28:29]
        """)
    st("s_cmp_eq_u32 s20, 0\ns_cselect_b64 s[28:29], -1, 0")
    for r in range(4): st(f"v_cndmask_b32_e64 v{vMp0+r}, v{vMp+r}, v{vTMP+2}, s[28:29]")
    vCSq, vCSk, vCSv = 112, 116, 120
    def tile_of_slot(e, s):
        if s == 0: e("s_max_i32 s23, s26, 0")
        else: e(f"s_add_u32 s23, s26, {s}")
    dma = dma_slots(st, ns, 0, f"s{sX1}", tile_of_slot, "x2")
    csum = St()
    if "cslate" not in OPT:
        colsum(st, vCSq, Wq, True); colsum(st, vCSk, Wk, True); colsum(st, vCSv, Wv, False)
    stamp(st, "p2")
    sync_wait(st, 1, name, halo=True, slow=sSLOWA)
    stamp(st, "p2")
    wob = w_loads(W_O, T_WOB, "wob")
    accq, acck, accv = 64, 68, 72
    def A(base, s): return base + 12 * (s & 1)
    vSG, vSS = 88, 92
    def chains(s):
        c = []
        if s > 0: c.append(((A(accq, s), True), Wq, True))
        c.append(((A(acck, s), True), Wk, True))
        c.append(((A(accv, s), True), Wv, False))
        return c
    steps = gemm_steps(ns, chains, "x2", dma, 2, stats=lambda s: (vSG, vSS), fine="p2")
    for jj in range(16): steps[2 + 16 * 4 + jj].ext(wob[jj])
    last = steps[2 + 16 * 4 + 8]
    last.it.append(("mark", "bar4", None, None)); last("s_barrier")
    vR, vN = 124, 125
    vRq, vNq = 128, 129
    vR4, vN4 = 132, 136
    pq, pk, pv = 140, 142, 148
    tmp = 56
    S, P, MX, T2, PO = 158, 132, 97, 98, 146
    O, L = S, S + 4
    def statsA(s):
        b = 16 * s
        p = []
        e = St(); stats_extract(e, s, vSG, vSS, vTMP, f"sw{s}"); e.wl(f"sw{s}")
        p += prog(b + 5, e); p.append((b + 5, ("before", f"bar{s}", None, None)))
        e = St(); stats_read(e, s, vTMP, f"sr{s}"); p += prog(b + 9, e)
        e = St(); e.wl(f"sr{s}")
        R, N = vR + 2 * (s & 1), vN + 2 * (s & 1)
        for x in stats_math(vTMP, R, N): e(x)
        e.i(f"ds_write_b32 v{vSTA}, v{R}")
        e.i(f"ds_write_b32 v{vSTA}, v{N} offset:64", lds=f"pw{s}")
        p += prog(b + 12, e)
        p.append((b + 12, ("before", f"sl{s}", None, None)))
        return p
    def epi(s):
        e = St()
        R, N = vR + 2 * (s & 1), vN + 2 * (s & 1)
        e.wl(f"pw{s}")
        e.i(f"ds_read_b128 {vr(vR4,4)}, v{vPRR}")
        e.i(f"ds_read_b128 {vr(vN4,4)}, v{vPRR} offset:64", lds=f"pr{s}")
        ln_epi(e, A(acck, s), [R]*4, [N]*4, [vCSk+r for r in range(4)], pk + 2 * (s & 1), tmp)
        if s > 0:
            e(f"v_mul_f32 v{vRq}, {f32(CQ)}, v{R}\nv_mul_f32 v{vNq}, {f32(CQ)}, v{N}")
            ln_epi(e, A(accq, s), [vRq]*4, [vNq]*4, [vCSq+r for r in range(4)], pq, tmp)
            kp = pk + 2 * ((s - 1) & 1); ko = pk + 2 * (s & 1)
            mp = vMp0 if s == 1 else vMp
            e(f"v_mfma_f32_16x16x16_bf16 {vr(S,4)}, {vr(kp,2)}, {vr(pq,2)}, {vr(mp,4)}")
            e(f"v_mfma_f32_16x16x16_bf16 {vr(S+4,4)}, {vr(ko,2)}, {vr(pq,2)}, {vr(vMo,4)}")
        e.wl(f"pr{s}")
        ln_epi(e, A(accv, s), [vR4+r for r in range(4)], [vN4+r for r in range(4)], [vCSv]*4, pv + 2 * s, tmp)
        if s == 0: return e
        e(f"""
        v_max3_f32 v{MX}, v{S}, v{S+1}, v{S+2}
        v_max3_f32 v{T2}, v{S+3}, v{S+4}, v{S+5}
        v_max3_f32 v{MX}, v{MX}, v{S+6}, v{S+7}
        v_max_f32 v{MX}, v{MX}, v{T2}
        v_mov_b32 v{T2}, v{MX}
        v_permlane32_swap_b32 v{T2}, v{MX}
        v_max_f32 v{MX}, v{MX}, v{T2}
        v_mov_b32 v{T2}, v{MX}
        v_permlane16_swap_b32 v{T2}, v{MX}
        v_max_f32 v{MX}, v{MX}, v{T2}
        """)
        for r in range(8): e(f"v_sub_f32 v{S+r}, v{S+r}, v{MX}")
        for r in range(8): e(f"v_exp_f32 v{S+r}, v{S+r}")
        for r in range(4): e(f"v_cvt_pk_bf16_f32 v{P+r}, v{S+2*r}, v{S+2*r+1}")
        e(f"v_mfma_f32_16x16x32_bf16 {vr(O,4)}, {vr(pv+2*(s-1),4)}, {vr(P,4)}, 0")
        e(f"v_mfma_f32_16x16x32_bf16 {vr(L,4)}, {vr(vONES,4)}, {vr(P,4)}, 0")
        e.it.append(("gap", 4, None, None))
        e(f"v_rcp_f32 v{L}, v{L}")
        e(f"s_add_u32 s47, s26, {s}\ns_lshl_b32 s47, s47, 14\ns_add_u32 s47, s47, s{sOB}")
        for r in range(4): e(f"v_mul_f32 v{O+r}, v{O+r}, v{L}")
        e(f"v_cvt_pk_bf16_f32 v{PO}, v{O}, v{O+1}\nv_cvt_pk_bf16_f32 v{PO+1}, v{O+2}, v{O+3}")
        dstore(e, f"buffer_store_dwordx2 {vr(PO,2)}, v{vActA}, s[8:11], s47 offen")
        return e
    st.ext(steps[0]); st.ext(steps[1])
    main = steps[2:]
    for s in range(ns - 1):
        main[16 * (s + 1)].it.insert(0, ("mark", f"sl{s}", None, None))
    pa, pb = [], []
    for s in range(ns): pa += statsA(s)
    for s in range(ns - 1):
        pb += prog(16 * (s + 1) + 1, epi(s)); pb.append((16 * (s + 1) + 1, ("before", f"ep{s}", None, None)))
    for s in range(ns - 2):
        main[16 * (s + 2)].it.insert(0, ("mark", f"ep{s}", None, None))
    st.ext(strip_marks(weave2(main, [pa, pb], per=2)))
    st.ext(strip_marks(epi(ns - 1)))

def layer_scalars(st):
    st(f"""
    s_mul_i32 s23, s{sL}, {KVS}
    s_add_u32 s{sKF}, s23, {KF0}
    s_add_u32 s{sVF}, s23, {VF0}
    s_mul_i32 s23, s{sL}, {BS}
    s_add_u32 s{sXIN}, s23, {B0 + XIN}
    s_add_u32 s{sOA}, s23, {B0 + OA}
    s_add_u32 s{sX1}, s23, {B0 + X1}
    s_add_u32 s{sOB}, s23, {B0 + OB}
    s_lshl_b32 s23, s{sL}, 14
    s_add_u32 s{sFLAG}, s23, {FLAGS}
    """)

def q_dma(st):
    st("s_lshl_b32 s46, s20, 2")
    return dma_slots(st, 4, XB_Q, f"s{sXIN}", lambda e, s: e(f"s_add_u32 s23, s46, {s}"), "xq")

def gen_init(st, name):
    pWK, pWV, pWQ, pWOA, pWQKV, pWOB = 40, 42, 44, 46, 60, 62
    prologue(st, name, """
    s_load_dwordx4 s[40:43], s[0:1], 16
    s_load_dwordx2 s[44:45], s[0:1], 8
    s_load_dwordx2 s[46:47], s[0:1], 32
    s_load_dwordx4 s[60:63], s[0:1], 48
    s_load_dwordx2 s[6:7], s[0:1], 0
    """)
    st(f"s_add_u32 s28, s4, {EPOCH}\ns_addc_u32 s29, s5, 0\ns_load_dwordx2 s[{sEP}:{sEP+1}], s[28:29], 0")
    srd_io(st, 6, 2048 * 1024)
    st(f"s_mov_b32 s{sL}, 0")
    lane_consts(st)
    stamp(st, "i")
    xloads, setup, cs, main = phase_kv(st, name + "_i", 0, "row", KVB)
    xloads(st)
    vKap, vCol = 24, 25
    st(f"""
    v_lshrrev_b32 v{vKap}, 2, v{vT}
    v_lshlrev_b32 v{vKap}, 3, v{vKap}
    v_and_b32 v{vCol}, 3, v{vT}
    v_add_u32 v{vKap}, v{vKap}, v{vCol}
    v_lshrrev_b32 v{vCol}, 1, v{vG}
    v_lshl_add_u32 v{vKap}, v{vCol}, 2, v{vKap}
    v_and_b32 v{vCol}, 1, v{vG}
    v_lshlrev_b32 v{vCol}, 4, v{vCol}
    s_bitcmp1_b32 s21, 0
    s_cselect_b32 s28, s{pWV}, s{pWK}
    s_cselect_b32 s29, s{pWV+1}, s{pWK+1}
    v_lshl_add_u32 v142, v{vKap}, 5, v{vCol}
    s_lshl_b32 s23, s22, 12
    v_add_u32 v142, s23, v142
    """)
    for q in range(4):
        st.i(f"global_load_dwordx4 {ar(A_WKV+4*q,4)}, v142, s[28:29] offset:{q*1024}", vm=f"rw{q}")
    stamp(st, "i")
    st("s_getpc_b64 s[28:29]")
    st.label("L_pc_anchor")
    st(f"""
    s_add_u32 s28, s28, {name}-L_pc_anchor
    s_addc_u32 s29, s29, -1
    s_lshr_b32 s27, s2, 3
    s_lshl_b32 s27, s27, 2
    s_add_u32 s27, s27, s22
    s_lshl_b32 s27, s27, 9
    v_lshlrev_b32 v14, 6, v0
    v_add_u32 v14, s27, v14
    v_min_u32 v14, L_code_end-{name}-4, v14
    s_mov_b64 exec, 0xff
    """)
    if "nocode" not in OPT: st.i("global_load_dword v13, v14, s[28:29]")
    st("s_mov_b64 exec, -1")
    st(f"s_lshl_b32 s59, s2, 2\ns_add_u32 s59, s59, s22")
    for i in range(3):
        st(f"""
        s_add_u32 s27, s59, {1024*i}
        s_lshr_b32 s28, s27, 4
        s_and_b32 s29, s27, 15
        s_mov_b32 s24, s{pWQ}
        s_mov_b32 s25, s{pWQ+1}
        s_mov_b32 s38, s28
        s_mov_b32 s39, 1024
        """)
        for T0, reg, stride in ((T_WOA, pWOA, 1024), (T_WOB, pWOB, 1024), (T_WQKV, pWQKV, 3072)):
            st(f"""
            s_sub_u32 s58, s28, {T0}
            s_cmp_ge_u32 s28, {T0}
            s_cselect_b32 s24, s{reg}, s24
            s_cselect_b32 s25, s{reg+1}, s25
            s_cselect_b32 s38, s58, s38
            s_cselect_b32 s39, {stride}, s39
            """)
        st(f"""
        s_lshl_b32 s29, s29, 5
        s_lshl_b32 s38, s38, 5
        v_add_u32 v148, s29, v{vKap}
        v_mul_lo_u32 v148, v148, s39
        v_add_u32 v148, v148, v{vCol}
        v_add_u32 v148, s38, v148
        """)
        st.i(f"global_load_dwordx4 {ar(A_PREP+4*i,4)}, v148, s[24:25]", vm=f"pw{i}")
    st(f"""
    v_lshlrev_b32 v26, 10, v{vT}
    v_lshl_add_u32 v26, v{vG}, 4, v26
    s_lshr_b32 s27, s59, 3
    s_lshl_b32 s27, s27, 14
    s_and_b32 s28, s59, 7
    s_lshl_b32 s28, s28, 7
    s_add_u32 s27, s27, s28
    """)
    st.i(f"buffer_load_dwordx4 {ar(A_XC,4)}, v26, s[12:15], s27 offen")
    st.i(f"buffer_load_dwordx4 {ar(A_XC+4,4)}, v26, s[12:15], s27 offen offset:64", vm="xc")
    if "nowarm" not in OPT:
        st(f"""
        s_lshl_b32 s27, s20, 7
        s_lshl_b32 s28, s21, 3
        s_add_u32 s27, s27, s28
        s_add_u32 s27, s27, {FLAGS}
        v_and_b32 v148, 7, v0
        v_lshlrev_b32 v148, 12, v148
        v_add_u32 v148, s27, v148
        s_lshl_b32 s28, s20, 3
        s_add_u32 s28, s28, s21
        s_lshl_b32 s28, s28, 3
        s_add_u32 s28, s28, {KVFL - 8*0x800}
        v_min_u32 v149, 32, v0
        v_lshlrev_b32 v149, 11, v149
        v_add_u32 v149, s28, v149
        v_cmp_gt_u32 s[38:39], 8, v0
        v_cndmask_b32_e64 v148, v149, v148, s[38:39]
        """)
        w0_exec(st)
        st.i("buffer_load_dword v15, v148, s[8:11], 0 offen")
        st("s_mov_b64 exec, -1")
    stamp(st, "i")
    layer_scalars(st)
    wave_scalars(st)
    emit_selectors(st, vB0, vB1, 16)
    setup(st)
    for q in range(4):
        st.wv(f"rw{q}")
        transpose(st, ar(A_WKV + 4 * q, 4), W_KV[1] + 4 * q)
    stamp(st, "i")
    cs(st)
    stamp(st); stamp(st, "i")
    main(st)
    stamp(st); stamp(st, "i")
    st("s_lshl_b32 s59, s2, 2\ns_add_u32 s59, s59, s22")
    for i in range(3):
        st.wv(f"pw{i}")
        transpose(st, ar(A_PREP + 4 * i, 4), 28 + 0, tmp=16)
        st(f"s_add_u32 s27, s59, {1024*i}\ns_lshl_b32 s27, s27, 10")
        st.i(f"buffer_store_dwordx4 v[28:31], v{vL16}, s[8:11], s27 offen sc1")
    st(f"s_lshl_b32 s27, s59, 11\ns_add_u32 s27, s27, {B0 + XIN}")
    st.wv("xc")
    st.i(f"buffer_store_dwordx4 {ar(A_XC,4)}, v{vL16}, s[8:11], s27 offen sc1")
    st.i(f"buffer_store_dwordx4 {ar(A_XC+4,4)}, v{vL16}, s[8:11], s27 offen offset:1024 sc1")
    st(f"""
    s_load_dwordx2 s[6:7], s[0:1], 64
    s_waitcnt lgkmcnt(0)
    s_mul_i32 s{sTLO}, s{sEP}, 0x9e3779b1
    s_xor_b32 s{sTLO}, s{sTLO}, s{sEP+1}
    s_add_u32 s{sTLO}, s{sTLO}, 0x7f4a7c15
    s_mul_i32 s{sTHI}, s{sEP}, 0x85ebca6b
    s_add_u32 s{sTHI}, s{sTHI}, s{sEP+1}
    s_xor_b32 s{sTHI}, s{sTHI}, 0x5bd1e995
    """)
    srd_io(st, 6, 2048 * 1024)
    q_setup(st)
    stamp(st, "i")
    st("s_waitcnt vmcnt(0)\ns_barrier")
    stamp(st, "i")
    wg_flag_store(st, f"{KVFL}", replicas=8)
    xcc_publish(st)
    ld = [f"buffer_load_dwordx4 v[128:131], v60, s[8:11], s47 offen sc1", f"buffer_load_dwordx4 v[132:135], v60, s[8:11], s47 offen offset:16 sc1"]
    st(f"""
    v_lshlrev_b32 v60, 5, v0
    s_lshr_b32 s47, s20, 2
    s_lshl_b32 s47, s47, 11
    s_add_u32 s47, s47, {KVFL}
    """)
    w0_exec(st)
    poll_pairs(st, "L_initp", [128, 130, 132, 134], ld, sleep=False)
    st("s_mov_b64 exec, -1\ns_barrier")
    stamp(st, "i")
    wl = w_loads(W_QA, 0, "wq")
    for e in wl: st.ext(e)
    dma = q_dma(st)
    for e in dma[0]: st.ext(e)
    st("s_barrier")
    for e in dma[1]: st.ext(e)
    st.i(f"buffer_load_dword v59, v{vL16}, s[8:11], s{sXIN} offen")
    stamp(st, "i")

def gen_persist(name):
    st = St()
    NST[0] = 0
    stamp(st)
    if INSTR: st("s_memrealtime s[96:97]")
    if DBG or SPINRT: st("s_memrealtime s[96:97]\ns_memtime s[64:65]")
    gen_init(st, name)
    st("s_branch L_common")
    st.label("L_layer1")
    sync_publish(st, 3, name, sSLOWA)
    lane_consts(st)
    xloads, setup, cs, main = phase_kv(st, name + "_4", 1, "act", KVB)
    setup(st); cs(st)
    q_setup(st)
    sync_wait(st, 3, name + "_4")
    st(f"s_mov_b32 s{sL}, 1")
    layer_scalars(st)
    xloads(st)
    dma = q_dma(st)
    for e in dma[0]: st.ext(e)
    st("s_barrier")
    for e in dma[1]: st.ext(e)
    main(st)
    st.label("L_common")
    if DBG: st(f"s_cmp_lg_u32 s{sL}, 0\ns_cbranch_scc1 L_dbg_a\ns_memrealtime s[66:67]\ns_branch L_dbg_b\nL_dbg_a:\ns_memrealtime s[68:69]\nL_dbg_b:")
    phase_q(st, name, dma)
    phase_att(st, name)
    stamp(st)
    sync_publish(st, 0, name, sSLOWA)
    phase_p13(st, name + "_1", 1)
    stamp(st)
    sync_publish(st, 1, name, sSLOWB)
    phase_p2(st, name + "_2")
    stamp(st)
    sync_publish(st, 2, name, sSLOWA)
    phase_p13(st, name + "_3", 3)
    stamp(st)
    if INSTR:
        st(f"s_cmp_lg_u32 s{sL}, 0\ns_cbranch_scc1 L_fin")
        stamp_dump(st, 0)
        st("s_branch L_layer1")
    else:
        st(f"s_cmp_eq_u32 s{sL}, 0\ns_cbranch_scc1 L_layer1")
    st.label("L_fin")
    st(f"""
    s_or_b32 s23, s2, s22
    s_cmp_lg_u32 s23, 0
    s_cbranch_scc1 L_noep
    s_add_u32 s28, s{sEP}, 1
    s_addc_u32 s29, s{sEP+1}, 0
    v_mov_b32 v2, s28
    v_mov_b32 v3, s29
    v_mov_b32 v4, 0
    s_mov_b32 s23, {EPOCH}
    s_mov_b64 exec, 1
    buffer_store_dwordx2 v[2:3], v4, s[8:11], s23 offen
    s_mov_b64 exec, -1
    """)
    st.label("L_noep")
    st("s_waitcnt vmcnt(0)")
    if SPINRT:
        if "spinwb" in OPT: st("s_barrier\nbuffer_wbl2 sc1\ns_waitcnt vmcnt(0)")
        st.label("L_spinrt")
        st(f"""
        s_memrealtime s[98:99]
        s_waitcnt lgkmcnt(0)
        s_sub_u32 s98, s98, s96
        s_cmp_lt_u32 s98, {SPINRT}
        s_cbranch_scc1 L_spinrt
        """)
    if DBG:
        st(f"""
        s_memrealtime s[98:99]
        s_memtime s[70:71]
        s_load_dwordx2 s[28:29], s[0:1], 72
        s_waitcnt lgkmcnt(0)
        s_cmp_lg_u32 s22, 0
        s_cbranch_scc1 L_nodbg
        s_cmp_ge_u32 s2, 4
        s_cbranch_scc1 L_nodbg
        s_sub_u32 s66, s66, s96
        s_sub_u32 s68, s68, s96
        s_sub_u32 s98, s98, s96
        s_sub_u32 s70, s70, s64
        v_mov_b32 v4, s66
        v_mov_b32 v5, s68
        v_mov_b32 v6, s98
        v_mov_b32 v7, s70
        s_lshl_b32 s23, s2, 4
        v_mov_b32 v8, s23
        s_mov_b64 exec, 1
        global_store_dwordx4 v8, v[4:7], s[28:29]
        s_waitcnt vmcnt(0)
        """)
        st.label("L_nodbg")
    stamp_dump(st, 1)
    return kernel_text(name, st, sgpr=102).replace(f"L_end_{name}:", f"L_code_end:\nL_end_{name}:")

def build(path):
    hdr = open("cdna_kernels/" + NAME + ".s.ref").read().split("; Override launch geometry")[0]
    out = hdr + f"; @launch grid=(256,1,1) block=(256,1,1) lds={MAIN_LDS}\n"
    out += '.amdgcn_target "amdgcn-amd-amdhsa--gfx950"\n'
    out += gen_persist(NAME + "_kernel")
    open(path, "w").write(out)

if __name__ == "__main__":
    build(sys.argv[1] if len(sys.argv) > 1 else "stage5.s")
```

```python
import sys, os
sys.path.insert(0, os.path.dirname(os.path.abspath(__file__)))
import gen
from gen import (St, resolve, weave, vr, ar, rr, f32, CQ, srd_io, emit_selectors,
                 T_WQ, T_WOA, T_WOB, T_WQKV, T_WK, T_WV, NFRAG, NAME, WS_SIZE)
from asmlib import fix_hazards
INSTR = os.environ.get("INSTR")
OPT = os.environ.get("OPT", "")
DBG = os.environ.get("DBG")
SPINRT = int(os.environ.get("SPINRT", "0"))
FAST = "nofast" not in OPT

KF0, VF0, KVS = 0x310000, 0x320000, 0x20000
B0, BS = 0x800000, 0x800000
XIN, OA, X1, OB = 0, 0x200000, 0x400000, 0x600000
FLAGS = 0x1900000
KVFL = FLAGS + 0x8000
PREPF = FLAGS + 0x10000
QPRF = FLAGS + 0x14000
XCCT = FLAGS + 0x18000
EPOCH = FLAGS + 0x19000
TS_OFF = 0x1800000
S_G, S_M, S_W = 20, 21, 22
sROT = 16
sSLOWA, sSLOWB = 40, 42
sSPIN = 45
sKF, sVF, sXIN, sOA, sX1, sOB, sL, sFLAG = 48, 49, 51, 52, 53, 54, 55, 56
sTLO, sTHI = 50, 3
sEP = 14 + 86
sWT = 57
SRD_OUT = 60
W_Q2, W_K2, W_V2, W_O = ("a", 0), ("a", 64), ("a", 128), ("a", 192)
W_QA = ("v", 166)
W_KV = ("v", 230)
vRES = 246
vL16, vXA, vT, vG, vONES, vRING, RING = 1, 2, 6, 7, 8, 12, 8
vSTA, vSTW, vSTR, vPRR, vTMP = 44, 45, 46, 47, 48
vFLO, vFLP = 62, 63

NST = [0]
def stamp(st, fine=None):
    if not INSTR: return
    if INSTR == "1":
        if fine: return
        k = NST[0]; NST[0] += 1
        st(f"s_memtime s[{64+2*k}:{65+2*k}]\ns_waitcnt lgkmcnt(0)")
    else:
        if fine != INSTR and not (fine is None and NST[0] == 0): return
        k = NST[0]; NST[0] += 1
        assert k < 16
        st(f"s_memtime s[{64+2*k}:{65+2*k}]")
def stamp_dump(st, slot):
    if not INSTR: return
    st("s_memrealtime s[98:99]\ns_waitcnt lgkmcnt(0)")
    for k in range(16): st(f"v_mov_b32 v{16+k}, s{64+2*k if k < NST[0] else 98}")
    st(f"""
    v_mov_b32 v31, s98
    v_mov_b32 v30, s96
    s_lshl_b32 s23, s2, 2
    s_add_u32 s23, s23, s22
    s_lshl_b32 s23, s23, 6
    s_mul_i32 s24, {slot}, 65536
    s_add_u32 s23, s23, s24
    s_add_u32 s23, s23, {TS_OFF}
    v_mov_b32 v8, 0
    s_mov_b64 exec, 1
    buffer_store_dwordx4 v[16:19], v8, s[8:11], s23 offen
    buffer_store_dwordx4 v[20:23], v8, s[8:11], s23 offen offset:16
    buffer_store_dwordx4 v[24:27], v8, s[8:11], s23 offen offset:32
    buffer_store_dwordx4 v[28:31], v8, s[8:11], s23 offen offset:48
    s_waitcnt vmcnt(0)
    s_mov_b64 exec, -1
    """)

def prologue(st, name, extra_loads=""):
    st(f"""
    s_cmp_ge_u32 s2, 256
    s_cbranch_scc1 L_end_{name}
    s_load_dwordx2 s[4:5], s[0:1], 80
    {extra_loads}
    v_lshrrev_b32 v1, 6, v0
    v_and_b32 v0, 63, v0
    s_and_b32 s20, s2, 7
    s_lshr_b32 s21, s2, 3
    s_lshl_b32 s20, s20, 2
    s_lshr_b32 s23, s21, 3
    s_add_u32 s20, s20, s23
    s_and_b32 s21, s21, 7
    v_readfirstlane_b32 s22, v1
    v_lshlrev_b32 v{vL16}, 4, v0
    s_waitcnt lgkmcnt(0)
    s_mov_b32 s8, s4
    s_mov_b32 s9, s5
    s_mov_b32 s10, {WS_SIZE}
    s_mov_b32 s11, 0x00020000
    """)

OUTLINE = []
def dstore(e, text):
    if not FAST:
        e.i(text + " sc1"); return
    k = len(OUTLINE)
    e.it.append(("grp", [f"s_cbranch_vccnz L_slow_{k}", text, f"L_back_{k}:"], None, None))
    OUTLINE.append(text + " sc1")

def expand_groups(st):
    o = St()
    for it in st.it:
        if it[0] in ("grp", "grpv"):
            for l in it[1]: o.it.append(("i", l, None, None))
        else: o.it.append(it)
    return o

def kernel_text(name, st, vgpr=512, accum=256, sgpr=100):
    lines = resolve(expand_groups(st))
    lines.append("s_endpgm")
    for k, t in enumerate(OUTLINE):
        lines += [f"L_slow_{k}:", t, f"s_branch L_back_{k}"]
    OUTLINE.clear()
    lines, nins = fix_hazards(lines)
    body = "\n".join(("    " + l) if not l.endswith(":") else l for l in lines)
    return f""".text
.globl {name}
.p2align 8
.type {name},@function
{name}:
{body}
L_end_{name}:
    s_endpgm
.section .rodata,"a"
.p2align 6
.amdhsa_kernel {name}
  .amdhsa_next_free_vgpr {vgpr}
  .amdhsa_next_free_sgpr {sgpr}
  .amdhsa_accum_offset {accum}
  .amdhsa_group_segment_fixed_size 0
  .amdhsa_kernarg_size 88
  .amdhsa_user_sgpr_count 2
  .amdhsa_user_sgpr_kernarg_segment_ptr 1
  .amdhsa_system_sgpr_workgroup_id_x 1
  .amdhsa_float_denorm_mode_32 3
.end_amdhsa_kernel
"""

def lane_consts(st):
    st(f"v_and_b32 v{vT}, 15, v0\nv_lshrrev_b32 v{vG}, 4, v0")
    for q in range(4): st(f"v_mov_b32 v{vONES+q}, 0x3f803f80")

def xa_setup(st, ns, xb):
    for jg in range(4):
        st(f"s_mul_i32 s23, s{sROT+jg}, {ns}")
        if xb: st(f"s_add_u32 s23, s23, {xb}")
        st(f"v_add_u32 v{vXA+jg}, s23, v{vL16}")

def wave_scalars(st):
    for jg in range(4):
        st(f"""
        s_add_u32 s23, s22, {jg}
        s_and_b32 s23, s23, 3
        s_lshl_b32 s{sROT+jg}, s23, 12
        """)
    st(f"""
    s_lshl_b32 s{sWT}, s21, 2
    s_add_u32 s{sWT}, s{sWT}, s22
    s_lshl_b32 s{sWT}, s{sWT}, 14
    """)

def w_loads(dst, T0, tag):
    out = []
    for jg in range(4):
        for q in range(4):
            e = St()
            if q == 0:
                e(f"s_add_u32 s58, s{sWT}, s{sROT+jg}")
                if T0: e(f"s_add_u32 s58, s58, {T0*16384}")
            b = dst[1] + 4 * (4 * jg + q)
            e.i(f"buffer_load_dwordx4 {rr((dst[0], b), 4)}, v{vL16}, s[8:11], s58 offen offset:{q*1024} sc1", vm=f"{tag}{4*jg+q}")
            out.append(e)
    return out

def kv_loads(tag):
    out = []
    for q in range(4):
        e = St()
        if q == 0:
            e(f"""
            s_and_b32 s58, s21, 1
            s_add_u32 s58, s58, {T_WK}
            s_lshl_b32 s58, s58, 14
            s_add_u32 s58, s58, s{sROT}
            """)
        e.i(f"buffer_load_dwordx4 {rr((W_KV[0], W_KV[1] + 4*q), 4)}, v{vL16}, s[8:11], s58 offen offset:{q*1024}", vm=f"{tag}{q}")
        out.append(e)
    return out

def act_addr(st, vdst, tmp):
    st(f"""
    s_lshl_b32 s23, s21, 11
    s_lshr_b32 s28, s22, 1
    s_lshl_b32 s28, s28, 10
    s_add_u32 s23, s23, s28
    s_and_b32 s28, s22, 1
    s_lshl_b32 s28, s28, 9
    s_add_u32 s23, s23, s28
    v_lshrrev_b32 v{tmp}, 1, v{vG}
    v_lshlrev_b32 v{tmp}, 8, v{tmp}
    v_lshl_add_u32 v{tmp}, v{vT}, 4, v{tmp}
    v_and_b32 v{vdst}, 1, v{vG}
    v_lshl_add_u32 v{vdst}, v{vdst}, 3, v{tmp}
    v_add_u32 v{vdst}, s23, v{vdst}
    """)

def row_addr(st, vdst):
    st(f"""
    s_lshl_b32 s23, s21, 7
    s_lshl_b32 s28, s22, 5
    s_add_u32 s23, s23, s28
    v_lshlrev_b32 v{vdst}, 10, v{vT}
    v_lshl_add_u32 v{vdst}, v{vG}, 3, v{vdst}
    v_add_u32 v{vdst}, s23, v{vdst}
    """)

def colsum(st, dst, W, w_is_A, n=16):
    for jj in range(n):
        wreg = rr((W[0], W[1] + 4 * jj), 4)
        c = "0" if jj == 0 else vr(dst, 4)
        if w_is_A: st(f"v_mfma_f32_16x16x32_bf16 {vr(dst,4)}, {wreg}, {vr(vONES,4)}, {c}")
        else:      st(f"v_mfma_f32_16x16x32_bf16 {vr(dst,4)}, {vr(vONES,4)}, {wreg}, {c}")

def stats_setup(st, sb, regs=None):
    pb = sb + 2560; dummy = pb + 512
    vSTA, vSTW, vSTR, vPRR = regs or (44, 45, 46, 47)
    st(f"""
    v_lshrrev_b32 v{vTMP}, 2, v{vT}
    v_cmp_eq_u32 s[30:31], v{vTMP}, v{vG}
    v_lshlrev_b32 v{vSTW}, 5, v{vT}
    s_lshl_b32 s23, s22, 2
    s_add_u32 s23, s23, {sb}
    v_add_u32 v{vSTW}, s23, v{vSTW}
    v_mov_b32 v{vTMP}, {dummy}
    v_cndmask_b32_e64 v{vSTW}, v{vTMP}, v{vSTW}, s[30:31]
    v_lshlrev_b32 v{vSTR}, 5, v{vT}
    v_add_u32 v{vSTR}, {sb}, v{vSTR}
    s_lshl_b32 s23, s22, 7
    s_add_u32 s23, s23, {pb}
    v_lshlrev_b32 v{vSTA}, 2, v{vT}
    v_add_u32 v{vSTA}, s23, v{vSTA}
    v_lshlrev_b32 v{vPRR}, 4, v{vG}
    v_add_u32 v{vPRR}, s23, v{vPRR}
    """)
def const_masks(st):
    st("""
    s_mov_b32 s32, 0x22222222
    s_mov_b32 s33, 0x22222222
    s_mov_b32 s34, 0x44444444
    s_mov_b32 s35, 0x44444444
    s_mov_b32 s36, 0x88888888
    s_mov_b32 s37, 0x88888888
    """)
STAT_BYTES = 2560 + 512 + 2600

def stats_extract(e, s, vSG, vSS, t, tag, vSTW=45):
    e(f"""
    v_cndmask_b32_e64 v{t}, v{vSG}, v{vSG+1}, s[32:33]
    v_cndmask_b32_e64 v{t}, v{t}, v{vSG+2}, s[34:35]
    v_cndmask_b32_e64 v{t}, v{t}, v{vSG+3}, s[36:37]
    """)
    e.i(f"ds_write_b32 v{vSTW}, v{vSS} offset:{s*512}")
    e.i(f"ds_write_b32 v{vSTW}, v{t} offset:{s*512 + 16}", lds=tag)

def stats_read(e, s, a, tag, vSTR=46):
    e.i(f"ds_read_b128 {vr(a,4)}, v{vSTR} offset:{s*512}")
    e.i(f"ds_read_b128 {vr(a+4,4)}, v{vSTR} offset:{s*512+16}", lds=tag)

def stats_math(a, vR, vN):
    return f"""
    v_add_f32 v{a}, v{a}, v{a+1}
    v_add_f32 v{a+4}, v{a+4}, v{a+5}
    v_add_f32 v{a+2}, v{a+2}, v{a+3}
    v_add_f32 v{a+6}, v{a+6}, v{a+7}
    v_add_f32 v{a}, v{a}, v{a+2}
    v_add_f32 v{a+4}, v{a+4}, v{a+6}
    v_mul_f32 v{a}, {f32(1.0/512)}, v{a}
    v_mul_f32 v{a+4}, {f32(1.0/512)}, v{a+4}
    v_fma_f32 v{a+4}, -v{a}, v{a}, v{a+4}
    v_max_f32 v{a+4}, 0, v{a+4}
    v_add_f32 v{a+4}, {f32(1e-5)}, v{a+4}
    v_rsq_f32 v{vR}, v{a+4}
    v_sub_f32 v{a}, 0, v{a}
    v_mul_f32 v{vN}, v{a}, v{vR}
    """.strip().split("\n")

def ln_epi(e, acc, R, N, CS, pk, tmp):
    for r in range(4): e(f"v_mul_f32 v{tmp+r}, v{N[r]}, v{CS[r]}")
    for r in range(4): e(f"v_fma_f32 v{tmp+r}, v{acc+r}, v{R[r]}, v{tmp+r}")
    e(f"v_cvt_pk_bf16_f32 v{pk}, v{tmp}, v{tmp+1}")
    e(f"v_cvt_pk_bf16_f32 v{pk+1}, v{tmp+2}, v{tmp+3}")

def flag_value(st):
    st(f"v_mov_b32 v{vFLO}, s{sTLO}\nv_mov_b32 v{vFLO+1}, s{sTHI}")

vFLA = 61
def sync_publish(st, e, name, slow, pre=None):
    if pre: pre(st)
    st(f"""
    s_waitcnt vmcnt(0)
    s_barrier
    s_cmp_lg_u32 s22, 0
    s_cbranch_scc1 L_np{e}_{name}
    s_lshl_b32 s23, s20, 7
    s_lshl_b32 s28, s21, 3
    s_add_u32 s23, s23, s28
    s_add_u32 s23, s23, s{sFLAG}
    s_add_u32 s23, s23, {e*0x1000}
    v_mov_b32 v{vFLA}, 0
    """)
    flag_value(st)
    st(f"s_mov_b64 vcc, s[{slow}:{slow+1}]\ns_mov_b64 exec, 1")
    dstore(st, f"buffer_store_dwordx2 v[{vFLO}:{vFLO+1}], v{vFLA}, s[8:11], s23 offen")
    st("s_mov_b64 exec, -1")
    st.label(f"L_np{e}_{name}")

def poll_pairs(st, label, regs, loads, sleep=False):
    st(f"s_mov_b32 s{sSPIN}, 0x10000")
    st.label(label)
    if sleep: st(f"s_sleep {2 if sleep is True else sleep}")
    for l in loads: st(l)
    st("s_waitcnt vmcnt(0)")
    check_pairs(st, regs)
    st(f"""
    s_sub_u32 s{sSPIN}, s{sSPIN}, 1
    s_cmp_eq_u32 s{sSPIN}, 0
    s_cbranch_scc1 {label}_d
    s_cbranch_vccnz {label}
    """)
    st.label(label + "_d")

def check_pairs(st, regs):
    for k, r in enumerate(regs):
        if k == 0: st(f"v_cmp_ne_u32 vcc, s{sTLO}, v{r}")
        else: st(f"v_cmp_ne_u32 s[28:29], s{sTLO}, v{r}\ns_or_b64 vcc, vcc, s[28:29]")
        st(f"v_cmp_ne_u32 s[28:29], s{sTHI}, v{r+1}\ns_or_b64 vcc, vcc, s[28:29]")

def sync_wait(st, e, name, halo=False, slow=None):
    st(f"""
    v_and_b32 v{vFLA}, 7, v0
    v_lshlrev_b32 v{vFLA}, 3, v{vFLA}
    s_lshl_b32 s23, s20, 7
    """)
    if halo:
        st(f"""
        s_sub_u32 s28, s20, 1
        s_max_i32 s28, s28, 0
        s_lshl_b32 s28, s28, 7
        s_sub_u32 s28, s28, s23
        v_bfe_u32 v{vFLO}, v0, 3, 1
        v_mul_lo_u32 v{vFLO}, v{vFLO}, s28
        v_add_u32 v{vFLA}, v{vFLA}, v{vFLO}
        """)
    st(f"""
    v_add_u32 v{vFLA}, s23, v{vFLA}
    s_add_u32 s23, s{sFLAG}, {e*0x1000}
    """)
    poll_pairs(st, f"L_poll{e}_{name}", [vFLO], [f"buffer_load_dwordx2 v[{vFLO}:{vFLO+1}], v{vFLA}, s[8:11], s23 offen sc1"])
    if slow is not None: st(f"s_mov_b64 vcc, s[{slow}:{slow+1}]")
    stamp(st)

def wg_flag_store(e, off_expr, lo_add=None, regs=None, replicas=1):
    vA, vV = regs or (61, 62)
    e(f"""
    s_lshl_b32 s28, s20, 3
    s_add_u32 s28, s28, s21
    s_lshl_b32 s28, s28, 3
    s_add_u32 s28, s28, {off_expr}
    v_lshlrev_b32 v{vA}, 11, v0
    v_mov_b32 v{vV}, s{sTLO if lo_add is None else lo_add}
    v_mov_b32 v{vV+1}, s{sTHI}
    s_cmp_eq_u32 s22, 0
    s_cselect_b64 exec, {(1 << replicas) - 1 if replicas < 7 else hex((1 << replicas) - 1)}, 0
    """)
    e.i(f"buffer_store_dwordx2 v[{vV}:{vV+1}], v{vA}, s[8:11], s28 offen sc1")
    e("s_mov_b64 exec, -1")

def w0_exec(e):
    e("s_cmp_eq_u32 s22, 0\ns_cselect_b64 exec, -1, 0")

vXCA, vXCV = 13, 14
def xcc_publish(st):
    if not FAST: return
    st(f"""
    s_getreg_b32 s39, hwreg(HW_REG_XCC_ID)
    s_and_b32 s39, s39, 7
    s_add_u32 s39, s39, 16
    s_add_u32 s39, s39, s{sTLO}
    """)
    wg_flag_store(st, f"{XCCT}", lo_add=39)
    st(f"s_mov_b32 s{sXCC}, s39")
sXCC = 95

def xcc_issue():
    e = St()
    e(f"""
    v_and_b32 v{vXCA}, 7, v0
    s_add_u32 s28, s20, 1
    s_min_u32 s28, s28, 31
    s_sub_u32 s28, s28, s20
    s_lshl_b32 s28, s28, 3
    v_bfe_u32 v{vXCV}, v0, 3, 1
    v_mul_lo_u32 v{vXCV}, v{vXCV}, s28
    v_add_u32 v{vXCA}, v{vXCA}, v{vXCV}
    s_lshl_b32 s28, s20, 3
    v_add_u32 v{vXCA}, s28, v{vXCA}
    v_lshlrev_b32 v{vXCA}, 3, v{vXCA}
    s_mov_b32 s38, {XCCT}
    """)
    e2 = St()
    e2.i(f"buffer_load_dwordx2 v[{vXCV}:{vXCV+1}], v{vXCA}, s[8:11], s38 offen sc1", vm="xcc")
    return [e, e2]

def xcc_check(st, name):
    if not FAST:
        st("s_waitcnt vmcnt(1)")
        st(f"s_mov_b64 s[{sSLOWA}:{sSLOWA+1}], -1\ns_mov_b64 s[{sSLOWB}:{sSLOWB+1}], -1"); return
    def chk():
        st(f"""
        v_subrev_u32 v9, s{sTLO}, v{vXCV}
        v_subrev_u32 v9, 16, v9
        v_cmp_le_u32 vcc, 8, v9
        v_cmp_ne_u32 s[28:29], s{sTHI}, v{vXCV+1}
        s_or_b64 vcc, vcc, s[28:29]
        """)
    st.wv("xcc")
    chk()
    st(f"s_mov_b32 s{sSPIN}, 0x10000\ns_cbranch_vccz L_xd_{name}")
    st.label(f"L_xp_{name}")
    st(f"buffer_load_dwordx2 v[{vXCV}:{vXCV+1}], v{vXCA}, s[8:11], s38 offen sc1\ns_waitcnt vmcnt(0)")
    chk()
    st(f"""
    s_sub_u32 s{sSPIN}, s{sSPIN}, 1
    s_cmp_eq_u32 s{sSPIN}, 0
    s_cbranch_scc1 L_xd_{name}
    s_cbranch_vccnz L_xp_{name}
    """)
    st.label(f"L_xd_{name}")
    st(f"""
    v_cmp_ne_u32 s[{sSLOWB}:{sSLOWB+1}], s{sXCC}, v{vXCV}
    s_nop 1
    s_and_b32 s{sSLOWA}, s{sSLOWB}, 0xff
    s_mov_b32 s{sSLOWA+1}, 0
    """)
    if "forceslow" in OPT:
        st(f"s_mov_b64 s[{sSLOWA}:{sSLOWA+1}], -1\ns_mov_b64 s[{sSLOWB}:{sSLOWB+1}], -1")

def dma_slots(st, ns, xb, sSrc, tile_of_slot, tag):
    st(f"""
    s_mul_i32 s25, s22, {ns*4096}
    s_add_u32 s25, s25, {xb}
    s_lshl_b32 s24, s22, 12
    s_add_u32 s24, s24, {sSrc}
    """)
    slots = []
    for s in range(ns):
        L = []
        for q in range(4):
            e = St()
            if q == 0:
                tile_of_slot(e, s)
                e(f"s_lshl_b32 s23, s23, 14\ns_add_u32 s27, s23, s24\ns_add_u32 m0, s25, {s*4096}")
            e.i(f"buffer_load_dwordx4 v{vL16}, s[8:11], s27 offen offset:{q*1024} sc1 lds", vm=f"{tag}{s}_{q}")
            L.append(e)
        slots.append(L)
    return slots

def gemm_steps(ns, chains, tagx, dma, upfront, stats=None, fine=None, wtags=None, pre_mid=None):
    steps = []
    total = ns * 16
    def rd(idx):
        s, jj = divmod(idx, 16)
        return f"ds_read_b128 {vr(vRING + 4*(idx % RING), 4)}, v{vXA + (jj >> 2)} offset:{s*4096 + (jj & 3)*1024}"
    pre = St()
    for s in range(upfront):
        for e in dma[s]: pre.ext(e)
        if s == 0 and pre_mid is not None: pre.ext(pre_mid)
        if s + 1 < upfront: pre("s_barrier")
    stamp(pre, fine)
    steps.append(pre)
    pre2 = St()
    pre2.wv(f"{tagx}0_3")
    pre2("s_barrier")
    stamp(pre2, fine)
    for idx in range(RING): pre2.i(rd(idx), lds=f"x{idx}")
    steps.append(pre2)
    for idx in range(total):
        s, jj = divmod(idx, 16)
        stp = St()
        ring = vRING + 4 * (idx % RING)
        if wtags and s == 0 and jj % 4 == 0: stp.wv(wtags[jj // 4])
        multi = len(chains(s)) >= 2
        if (idx % 2 == 0 and not multi) or idx == 0: stp.wl(f"x{min(idx+1, total-1)}")
        for ci, (acc, w, w_is_A) in enumerate(chains(s)):
            wreg = rr((w[0], w[1] + 4 * jj), 4)
            c = "0" if jj == 0 and acc[1] else vr(acc[0], 4)
            if w_is_A: stp(f"v_mfma_f32_16x16x32_bf16 {vr(acc[0],4)}, {wreg}, {vr(ring,4)}, {c}")
            else:      stp(f"v_mfma_f32_16x16x32_bf16 {vr(acc[0],4)}, {vr(ring,4)}, {wreg}, {c}")
            if multi and ci == 0 and idx % 2 == 1 and idx + 1 < total: stp.wl(f"x{min(idx+2, total-1)}")
        if stats and jj < 4:
            sg, ss = stats(s)
            stp(f"v_mfma_f32_16x16x32_bf16 {vr(sg,4)}, {vr(ring,4)}, {vr(ring,4)}, {'0' if jj == 0 else vr(sg,4)}")
            stp(f"v_mfma_f32_16x16x32_bf16 {vr(ss,4)}, {vr(vONES,4)}, {vr(ring,4)}, {'0' if jj == 0 else vr(ss,4)}")
        nxt = idx + RING
        if nxt < total:
            if nxt % 16 == 0:
                stp.it.append(("mark", f"bar{s}", None, None))
                stp.wv(f"{tagx}{nxt//16}_3")
                stp("s_barrier")
            stp.i(rd(nxt), lds=f"x{nxt}")
        sd = s + upfront
        if sd < ns and jj < 4: stp.ext(dma[sd][jj])
        if jj == 15 or jj == 7: stamp(stp, fine)
        steps.append(stp)
    return steps

def weave2(steps, progs, per=2):
    out = St()
    qs = [list(p) for p in progs]
    skip = [0] * len(qs)
    def emit_forced(name):
        for qi, q in enumerate(qs):
            last = max([i for i, (ms, it) in enumerate(q) if it[0] == "before" and it[1] == name], default=-1)
            for _ in range(last + 1):
                ms, it = q.pop(0)
                if it[0] not in ("gap", "before"): out.it.append(it)
    for si, stp in enumerate(steps):
        items = list(stp.it)
        k = 0
        while k < len(items):
            it = items[k]; k += 1
            if it[0] == "mark":
                emit_forced(it[1]); continue
            out.it.append(it)
            if it[0] == "i" and it[1].startswith("v_mfma"):
                if k < len(items) and items[k][0] == "i" and items[k][1].startswith("ds_read"):
                    out.it.append(items[k]); k += 1
                n = 0
                for qi, q in enumerate(qs):
                    if skip[qi] > 0:
                        skip[qi] -= 1; continue
                    while q and n < per and q[0][0] <= si:
                        ms, x = q.pop(0)
                        if x[0] == "gap":
                            skip[qi] = x[1]; break
                        if x[0] == "before": continue
                        out.it.append(x)
                        if x[0] in ("i", "grp", "grpv"): n += 1
    for q in qs:
        for ms, x in q:
            if x[0] not in ("gap", "before"): out.it.append(x)
    return out

def prog(ms, st_): return [(ms, it) for it in st_.it]
def strip_marks(st_):
    o = St(); o.it = [it for it in st_.it if it[0] != "mark"]; return o

def phase_kv(st, name, layer_out, src, kvb, sregs=(28, 29, 30, 31)):
    XR = 64
    accK, accV, SG, SS = 80, 84, 96, 100
    csK, csV = 112, 116
    vA0, vA1, vKW, vKR = 104, 105, 106, 107
    t = vTMP
    sb = kvb + 8192
    kA, kW, kR, kP = sregs
    def first(e):
        stats_setup(e, sb, (kA, kW, kR, kP))
        e(f"""
        s_lshl_b32 s44, s20, 2
        s_lshr_b32 s28, s21, 1
        s_add_u32 s44, s44, s28
        """)
    def xloads(e):
        if src == "row":
            e(f"""
            v_lshlrev_b32 v{t+12}, 10, v{vT}
            v_lshl_add_u32 v{t+12}, v{vG}, 4, v{t+12}
            s_lshl_b32 s23, s44, 14
            s_lshl_b32 s28, s22, 8
            s_add_u32 s23, s23, s28
            """)
            for q in range(4):
                e.i(f"buffer_load_dwordx4 {vr(XR+4*q,4)}, v{t+12}, s[12:15], s23 offen offset:{q*64}", vm=f"xk{q}")
        else:
            e(f"""
            s_lshl_b32 s23, s44, 14
            s_lshl_b32 s28, s22, 12
            s_add_u32 s23, s23, s28
            s_add_u32 s23, s23, {B0 + BS*layer_out + XIN}
            """)
            for q in range(4):
                e.i(f"buffer_load_dwordx4 {vr(XR+4*q,4)}, v{vL16}, s[8:11], s23 offen offset:{q*1024} sc1", vm=f"xk{q}")
    def setup(e):
        e(f"""
        s_bitcmp1_b32 s21, 0
        s_cselect_b64 s[38:39], -1, 0
        v_lshrrev_b32 v{t}, 1, v{vG}
        v_and_b32 v{t+1}, 1, v{vG}
        v_lshlrev_b32 v{t+2}, 9, v{t}
        v_lshl_add_u32 v{t+2}, v{vT}, 4, v{t+2}
        v_lshl_add_u32 v{t+2}, v{t+1}, 3, v{t+2}
        v_lshlrev_b32 v{t+4}, 8, v{t+1}
        v_lshl_add_u32 v{t+4}, v{vT}, 4, v{t+4}
        v_lshl_add_u32 v{t+4}, v{t}, 3, v{t+4}
        v_cndmask_b32_e64 v{vA0}, v{t+2}, v{t+4}, s[38:39]
        s_lshl_b32 s23, s22, 11
        s_add_u32 s23, s23, {kvb}
        v_add_u32 v{vKW}, s23, v{vL16}
        v_add_u32 v{vKR}, {kvb}, v{vL16}
        s_lshr_b32 s23, s44, 1
        s_lshl_b32 s23, s23, 10
        s_and_b32 s28, s44, 1
        s_lshl_b32 s29, s28, 8
        s_add_u32 s29, s29, {KF0 + KVS*layer_out}
        s_lshl_b32 s28, s28, 9
        s_add_u32 s28, s28, {VF0 + KVS*layer_out}
        s_bitcmp1_b32 s21, 0
        s_cselect_b32 s28, s28, s29
        s_add_u32 s59, s23, s28
        """)
    def cs(e):
        for jj in range(4):
            w = rr((W_KV[0], W_KV[1] + 4 * jj), 4)
            e(f"v_mfma_f32_16x16x32_bf16 {vr(csK,4)}, {w}, {vr(vONES,4)}, {'0' if jj == 0 else vr(csK,4)}")
            e(f"v_mfma_f32_16x16x32_bf16 {vr(csV,4)}, {vr(vONES,4)}, {w}, {'0' if jj == 0 else vr(csV,4)}")
        for r in range(4): e(f"v_cndmask_b32_e64 v{csK+r}, v{csK+r}, v{csV}, s[38:39]")
        e.i(f"ds_write_b128 v{vKW}, {vr(csK,4)} offset:1024")
    def main(e):
        for q in range(4):
            e.wv(f"xk{q}")
            w = rr((W_KV[0], W_KV[1] + 4 * q), 4); x = vr(XR + 4 * q, 4)
            z = lambda r: "0" if q == 0 else vr(r, 4)
            e(f"v_mfma_f32_16x16x32_bf16 {vr(SG,4)}, {x}, {x}, {z(SG)}")
            e(f"v_mfma_f32_16x16x32_bf16 {vr(SS,4)}, {vr(vONES,4)}, {x}, {z(SS)}")
            e(f"v_mfma_f32_16x16x32_bf16 {vr(accK,4)}, {w}, {x}, {z(accK)}")
            e(f"v_mfma_f32_16x16x32_bf16 {vr(accV,4)}, {x}, {w}, {z(accV)}")
        stats_extract(e, 0, SG, SS, t, "ksw", kW)
        for r in range(4): e(f"v_cndmask_b32_e64 v{accK+r}, v{accK+r}, v{accV+r}, s[38:39]")
        e.i(f"ds_write_b128 v{vKW}, {vr(accK,4)}", lds="kaw")
        e("s_waitcnt lgkmcnt(0)\ns_barrier")
        stats_read(e, 0, t, "ksr", kR)
        F = 108
        for w in range(4): e.i(f"ds_read_b128 {vr(F+4*w,4)}, v{vKR} offset:{w*2048}")
        for w in range(4): e.i(f"ds_read_b128 {vr(F+16+4*w,4)}, v{vKR} offset:{w*2048+1024}", lds=f"kr{w}")
        e.wl("ksr")
        R, N = 140, 141
        for x in stats_math(t, R, N): e(x)
        e.i(f"ds_write_b32 v{kA}, v{R}")
        e.i(f"ds_write_b32 v{kA}, v{N} offset:64", lds="kpw")
        e.wl("kpw")
        R4, N4 = 144, 148
        e.i(f"ds_read_b128 {vr(R4,4)}, v{kP}")
        e.i(f"ds_read_b128 {vr(N4,4)}, v{kP} offset:64", lds="kpr")
        for b in (F, F + 16):
            for r in range(4): e(f"v_add_f32 v{b+r}, v{b+r}, v{b+4+r}\nv_add_f32 v{b+8+r}, v{b+8+r}, v{b+12+r}")
            for r in range(4): e(f"v_add_f32 v{b+r}, v{b+r}, v{b+8+r}")
        e.wl("kpr")
        for r in range(4):
            e(f"v_cndmask_b32_e64 v{R4+r}, v{R}, v{R4+r}, s[38:39]\nv_cndmask_b32_e64 v{N4+r}, v{N}, v{N4+r}, s[38:39]")
        ln_epi(e, F, [R4+r for r in range(4)], [N4+r for r in range(4)], [F+16+r for r in range(4)], 152, 154)
        e("s_cmp_eq_u32 s22, 0\ns_cselect_b64 exec, -1, 0")
        e.i(f"buffer_store_dwordx2 v[152:153], v{vA0}, s[8:11], s59 offen sc1", vm="kvst")
        e("s_mov_b64 exec, -1")
    return first, xloads, setup, cs, main

LDS_K, LDS_V, VS = 0, 65536, 1056
XB_Q = 74752
SB_Q = XB_Q + 65536
SA, SB, OA_, OB_ = 16, 32, 48, 64
PA, PB, QA, QB, KB, VB = 80, 88, 96, 100, 104, 112
vK, vV0, vV1 = 2, 3, 4

def kv_group(gi, tag):
    out = []
    e = St(); e(f"s_add_u32 s23, s60, {gi*8192}\ns_add_u32 m0, s62, {gi*8192}")
    e.i(f"buffer_load_dwordx4 v{vL16}, s[8:11], s23 offen sc1 lds"); out.append(e)
    e = St(); e.i(f"buffer_load_dwordx4 v{vL16}, s[8:11], s23 offen offset:1024 sc1 lds"); out.append(e)
    e = St(); e(f"s_add_u32 s23, s61, {gi*8192}\ns_add_u32 m0, s63, {gi*8*VS}")
    e.i(f"buffer_load_dwordx4 v{vL16}, s[8:11], s23 offen sc1 lds"); out.append(e)
    e = St(); e(f"s_add_u32 m0, s63, {gi*8*VS + VS - 1024}")
    e.i(f"buffer_load_dwordx4 v{vL16}, s[8:11], s23 offen offset:1024 sc1 lds", vm=tag); out.append(e)
    return out

KVB = 147456
MAIN_LDS = 163840
vB0, vB1 = 158, 162
A_WQ, A_WKV, A_PREP, A_XC = 0, 64, 80, 92

def transpose(e, src, dst, tmp=16):
    e(f"v_mfma_f32_16x16x32_bf16 {vr(tmp,4)}, {src}, {vr(vB0,4)}, 0")
    e(f"v_mfma_f32_16x16x32_bf16 {vr(tmp+4,4)}, {src}, {vr(vB1,4)}, 0")
    e(f"""
    v_cvt_pk_bf16_f32 v{dst}, v{tmp}, v{tmp+1}
    v_cvt_pk_bf16_f32 v{dst+1}, v{tmp+2}, v{tmp+3}
    v_cvt_pk_bf16_f32 v{dst+2}, v{tmp+4}, v{tmp+5}
    v_cvt_pk_bf16_f32 v{dst+3}, v{tmp+6}, v{tmp+7}
    """)

def q_setup(st):
    xa_setup(st, 4, XB_Q)
    stats_setup(st, SB_Q)

def q_dma_act(st):
    dma = dma_slots(st, 4, XB_Q, f"s{sXIN}", lambda e, s: e(f"s_add_u32 s23, s26, {s}"), "xq")
    return dma

def phase_q(st, name, dma):
    ns = 4
    acc, vCS = 64, 124
    SGs = [80, 84, 88, 92]; SSs = [104, 108, 112, 116]
    steps = gemm_steps(ns, lambda s: [((acc + 4 * s, True), W_QA, True)], "xq", [[], [], dma[2], dma[3]], 2,
                       stats=lambda s: (SGs[s], SSs[s]), fine="q")
    pa = []
    for s in range(ns):
        e = St(); stats_extract(e, s, SGs[s], SSs[s], vTMP, f"qsw{s}")
        pa += prog(16 * s + 6, e)
    pub = St(); pub.wv("kvst")
    pub(f"s_lshl_b32 s29, s{sL}, 14\ns_add_u32 s29, s29, {KVFL}")
    g = St(); wg_flag_store(g, "s29", replicas=8)
    pub.it.append(("grpv", [it[1] for it in g.it], None, None))
    ld = [f"buffer_load_dwordx4 v[128:131], v60, s[8:11], s47 offen sc1", f"buffer_load_dwordx4 v[132:135], v60, s[8:11], s47 offen offset:16 sc1"]
    look = St()
    look(f"""
    v_lshlrev_b32 v60, 5, v0
    s_lshl_b32 s47, s{sL}, 14
    s_add_u32 s47, s47, {KVFL}
    s_lshr_b32 s28, s20, 2
    s_lshl_b32 s28, s28, 11
    s_add_u32 s47, s47, s28
    """)
    look.it.append(("grpv", ["s_cmp_eq_u32 s22, 0", "s_cselect_b64 exec, -1, 0", ld[0], ld[1], "s_mov_b64 exec, -1"], None, None))
    csum = St(); colsum(csum, vCS, W_QA, True)
    PUBS = int(os.environ.get("PUBS", "12")); LOOK = int(os.environ.get("LOOKS", "56"))
    body = St()
    body.ext(steps[1])
    body.ext(strip_marks(weave2(steps[2:], [pa, prog(PUBS, pub) + prog(LOOK, look), prog(4, csum)], per=1)))
    st.ext(body)
    st("s_waitcnt lgkmcnt(0)\ns_barrier")
    A8 = [16, 24, 32, 40]
    for s in range(ns): stats_read(st, s, A8[s], f"qsr{s}")
    stamp(st)
    st("s_waitcnt vmcnt(0)")
    w0_exec(st)
    check_pairs(st, [128, 130, 132, 134])
    st(f"s_cbranch_vccz L_kvok_{name}")
    poll_pairs(st, f"L_kvp_{name}", [128, 130, 132, 134], ld, sleep=True)
    st.label(f"L_kvok_{name}")
    st("s_mov_b64 exec, -1\ns_barrier")
    st(f"""
    s_lshl_b32 s62, s22, 11
    s_add_u32 s60, s62, s{sKF}
    s_add_u32 s61, s62, s{sVF}
    s_mul_i32 s63, s22, {2*VS}
    s_add_u32 s63, s63, {LDS_V}
    """)
    for e in kv_group(0, "c0"): st.ext(e)
    st(f"s_lshl_b32 s46, s2, 2\ns_add_u32 s46, s46, s22")
    for i in range(3):
        transpose(st, ar(A_PREP + 4 * i, 4), 136 + 4 * i, tmp=128)
        st(f"""
        s_add_u32 s27, s46, {1024*i}
        s_lshl_b32 s28, s{sL}, 12
        s_add_u32 s28, s28, s27
        s_cmp_lt_u32 s28, 2560
        s_cselect_b64 exec, -1, 0
        s_add_u32 s27, s27, 512
        s_lshl_b32 s27, s27, 10
        """)
        st.i(f"buffer_store_dwordx4 {vr(136+4*i,4)}, v{vL16}, s[8:11], s27 offen sc1")
        st("s_mov_b64 exec, -1")
    R = [48 + s for s in range(ns)]; N = [52 + s for s in range(ns)]
    st.wl("qsr3")
    maths = [stats_math(A8[s], R[s], N[s]) for s in range(ns)]
    for i in range(len(maths[0])):
        for s in range(ns): st(maths[s][i])
    for s in range(ns):
        st(f"v_mul_f32 v{R[s]}, {f32(CQ)}, v{R[s]}\nv_mul_f32 v{N[s]}, {f32(CQ)}, v{N[s]}")
    for s in range(ns):
        ln_epi(st, acc + 4 * s, [R[s]] * 4, [N[s]] * 4, [vCS + r for r in range(4)], QA + 2 * s, 16 + 4 * s)
    st(f"""
    v_permlane16_swap_b32 v{QA}, v{QA+2}
    v_permlane16_swap_b32 v{QA+1}, v{QA+3}
    v_permlane16_swap_b32 v{QB}, v{QB+2}
    v_permlane16_swap_b32 v{QB+1}, v{QB+3}
    """)

def phase_att(st, name):
    st(f"""
    v_mov_b32 v{vK}, v{vL16}
    v_and_b32 v5, 31, v0
    v_lshrrev_b32 v6, 5, v0
    v_lshlrev_b32 v7, 8, v6
    v_lshl_add_u32 v7, v5, 4, v7
    v_add_u32 v7, {LDS_V}, v7
    v_mov_b32 v16, {LDS_V + 1024 + 16}
    v_mov_b32 v17, {LDS_V + 1024}
    v_and_b32 v18, 27, v5
    v_cmp_eq_u32 s[28:29], 16, v18
    v_cndmask_b32_e64 v16, v16, v17, s[28:29]
    v_cmp_gt_u32 s[28:29], 16, v5
    v_cndmask_b32_e64 v{vV0}, v16, v7, s[28:29]
    v_add_u32 v7, 512, v7
    v_cndmask_b32_e64 v{vV1}, v16, v7, s[28:29]
    v_mov_b32 v16, 0x3f803f80
    v_mov_b32 v17, v16
    v_mov_b32 v18, v16
    v_mov_b32 v19, v16
    v_mul_u32_u24 v20, {VS}, v0
    v_add_u32 v20, {LDS_V + 1024}, v20
    s_cmp_lg_u32 s22, 0
    s_cbranch_scc1 L_noones_{name}
    ds_write_b128 v20, v[16:19]
    v_mov_b32 v16, 0
    v_mov_b32 v17, 0
    v_mov_b32 v18, 0
    v_mov_b32 v19, 0
    ds_write_b128 v20, v[16:19] offset:16
    """)
    st.label(f"L_noones_{name}")
    st(f"""
    v_and_b32 v9, 15, v0
    v_lshrrev_b32 v10, 4, v0
    s_lshl_b32 s23, s21, 11
    s_lshr_b32 s28, s22, 1
    s_lshl_b32 s28, s28, 10
    s_add_u32 s23, s23, s28
    s_and_b32 s28, s22, 1
    s_lshl_b32 s28, s28, 9
    s_add_u32 s23, s23, s28
    v_lshrrev_b32 v11, 1, v10
    v_lshlrev_b32 v11, 8, v11
    v_lshl_add_u32 v11, v9, 4, v11
    v_and_b32 v8, 1, v10
    v_lshl_add_u32 v8, v8, 3, v11
    v_add_u32 v8, s23, v8
    s_lshl_b32 s59, s20, 16
    s_add_u32 s59, s59, s{sXIN}
    """)
    def init_acc(s):
        for r in range(16): s(f"v_mov_b32 v{OA_+r}, 0\nv_mov_b32 v{OB_+r}, 0")
    def rdK(t, base): return f"ds_read_b128 {vr(KB + 4*(t&1),4)}, v{vK} offset:{(t-base)*1024}"
    def rdV(t, base):
        b = VB + 8 * (t & 1)
        return [f"ds_read_b128 {vr(b,4)}, v{vV0} offset:{(t-base)*VS}", f"ds_read_b128 {vr(b+4,4)}, v{vV1} offset:{(t-base)*VS}"]
    def qk(S, t, Q): return f"v_mfma_f32_32x32x16_bf16 {vr(S,16)}, {vr(KB + 4*(t&1),4)}, {vr(Q,4)}, 0"
    def pv(O, t, P):
        b = VB + 8 * (t & 1)
        return [f"v_mfma_f32_32x32x16_bf16 {vr(O,16)}, {vr(b,4)}, {vr(P,4)}, {vr(O,16)}",
                f"v_mfma_f32_32x32x16_bf16 {vr(O,16)}, {vr(b+4,4)}, {vr(P+4,4)}, {vr(O,16)}"]
    def softmax(S, P, M):
        ins = []
        if M is not None:
            for r in range(16): ins.append(f"v_sub_f32 v{S+r}, v{S+r}, v{M}")
        for i in range(8):
            ins.append(f"v_exp_f32 v{S+2*i}, v{S+2*i}")
            ins.append(f"v_exp_f32 v{S+2*i+1}, v{S+2*i+1}")
            if i > 0: ins.append(f"v_cvt_pk_bf16_f32 v{P+i-1}, v{S+2*i-2}, v{S+2*i-1}")
        ins.append(f"v_cvt_pk_bf16_f32 v{P+7}, v{S+14}, v{S+15}")
        return ins
    def mix(s, valu, groups):
        n = len(valu); k = len(groups)
        for j in range(k):
            for x in groups[j]:
                if isinstance(x, St): s.ext(x)
                else: s(x)
            for x in valu[j * n // k:(j + 1) * n // k]: s(x)
    def iteration(s, t, nt, base, extras, safe=None, first=False, rolled=False):
        MA, MB = safe if safe else (None, None)
        ex = list(extras)
        def pop(): return [ex.pop(0)] if ex else []
        g1 = [[qk(SB, t, QB)] + ([rdK(t + 2, base)] if (rolled or t + 2 < nt) else [])]
        pvb = [] if first else pv(OB_, t - 1, PB)
        rv = rdV(t + 1, base) if (rolled or t + 1 < nt) else []
        if pvb:
            g1.append([pvb[0]] + rv[:1]); g1.append([pvb[1]] + rv[1:])
        else:
            g1.append(rv)
        mix(s, softmax(SA, PA, MA), g1)
        pva = pv(OA_, t, PA)
        g2 = [([qk(SA, t + 1, QA)] if (rolled or t + 1 < nt) else []) + pop(), [pva[0]] + pop(), [pva[1], "s_waitcnt lgkmcnt(0)"]]
        mix(s, softmax(SB, PB, MB), g2)
        for x in ex: s.ext(x)
    def first_reads(s):
        s(rdK(0, 0)); s(rdK(1, 0))
        for x in rdV(0, 0): s(x)
        s("s_waitcnt lgkmcnt(0)")
        s(qk(SA, 0, QA))
    init_acc(st)
    st.wv("c0")
    st("s_waitcnt lgkmcnt(0)\ns_barrier")
    first_reads(st)
    stamp(st)
    extras = {t: [] for t in range(64)}
    for gi in range(1, 8): extras[gi - 1] += kv_group(gi, f"kv{gi}")
    prep_ld = [f"buffer_load_dwordx4 v[128:131], v136, s[8:11], s47 offen sc1", f"buffer_load_dwordx4 v[132:135], v136, s[8:11], s47 offen offset:16 sc1"]
    e = St(); e(f"v_lshlrev_b32 v136, 5, v0\ns_lshr_b32 s47, s20, 2\ns_lshl_b32 s47, s47, 11\ns_add_u32 s47, s47, {PREPF}")
    w0_exec(e); e.i(prep_ld[0]); e.i(prep_ld[1], vm="prepf"); e("s_mov_b64 exec, -1"); extras[11].append(e)
    pre = []
    pre += w_loads(W_O, T_WOA, "woa")
    for q in range(4):
        e = St()
        if q: e("s_add_u32 s59, s59, 16384")
        e.i(f"buffer_load_dwordx2 {vr(vRES+2*q,2)}, v8, s[8:11], s59 offen sc1"); pre.append(e)
    pre += w_loads(W_Q2, T_WQKV, "wq2")
    pre += w_loads(W_K2, T_WQKV + 32, "wk2")
    pre += w_loads(W_V2, T_WQKV + 64, "wv2")
    if FAST: pre += xcc_issue()
    t = 14
    while pre:
        extras[t] += pre[:2]; pre = pre[2:]; t += 1
    warm = []
    if "nowarm" not in OPT:
        e = St()
        e(f"""
        v_lshrrev_b32 v9, 4, v0
        v_bfe_u32 v10, v0, 2, 2
        v_and_b32 v11, 3, v0
        v_lshlrev_b32 v10, 14, v10
        v_lshl_add_u32 v10, v11, 7, v10
        s_lshl_b32 s28, s21, 11
        s_lshl_b32 s29, s22, 9
        s_add_u32 s28, s28, s29
        s_lshl_b32 s29, s20, 16
        s_add_u32 s28, s28, s29
        v_add_u32 v10, s28, v10
        v_add_u32 v9, 1, v9
        v_lshlrev_b32 v9, 21, v9
        v_add_u32 v10, v10, v9
        """)
        e.i(f"buffer_load_dword v253, v10, s[8:11], s{sXIN} offen".replace("v253", "v137"))
        warm = [e]
    if "wbl2" in OPT:
        e = St()
        lines = [f"s_lshr_b32 s28, s2, 3", f"s_or_b32 s28, s28, s22", f"s_xor_b32 s29, s{sL}, 1", "s_or_b32 s28, s28, s29", "s_cmp_lg_u32 s28, 0",
                 "s_cbranch_scc1 L_nowb", "buffer_wbl2 sc1", "L_nowb:"]
        e.it.append(("grp", lines, None, None))
        extras[15].append(e)
    WT = int(os.environ.get("WARMT", t))
    extras[WT] += warm
    assert t <= 62
    base = 0
    for t in range(64):
        if t == 6:
            st.wv("kv1"); st("s_barrier")
            wg_flag_store(st, f"{PREPF}", regs=(138, 140), replicas=8)
        if t == 14:
            st.wv("kv7"); st.wv("prepf")
            w0_exec(st)
            check_pairs(st, [128, 130, 132, 134])
            st(f"s_cbranch_vccz L_prepok_{name}")
            poll_pairs(st, f"L_prepp_{name}", [128, 130, 132, 134], prep_ld, sleep=True)
            st.label(f"L_prepok_{name}")
            st("s_mov_b64 exec, -1\ns_barrier")
        if t == 32:
            st(f"v_add_u32 v{vK}, {32*1024}, v{vK}\nv_add_u32 v{vV0}, {32*VS}, v{vV0}\nv_add_u32 v{vV1}, {32*VS}, v{vV1}")
            base = 32
        if t in (0, 6, 8, 14, 16, 22, 30, 38, 46, 52, 58): stamp(st, "a")
        iteration(st, t, 64, base, extras[t], first=(t == 0))
    stamp(st, "a")
    stamp(st)
    def tail(s):
        for x in pv(OB_, 63, PB): s(x)
    lA, lB = OA_ + 8, OB_ + 8
    tail(st)
    xcc_check(st, name)
    st(f"v_mul_f32 v9, 0, v{OA_}\nv_mul_f32 v10, 0, v{OB_}")
    for r in range(1, 8):
        st(f"v_fma_f32 v9, v{OA_+r}, 0, v9\nv_fma_f32 v10, v{OB_+r}, 0, v10")
    st(f"""
    v_add_f32 v9, v9, v10
    v_min_f32 v10, v{lA}, v{lB}
    v_max_f32 v11, v{lA}, v{lB}
    v_add_f32 v10, v10, v9
    v_add_f32 v11, v11, v9
    v_cmp_u_f32 s[28:29], v{lA}, v{lB}
    v_mov_b32 v20, {f32(2.0**-40)}
    v_cmp_nge_f32 vcc, v10, v20
    s_or_b64 s[28:29], s[28:29], vcc
    v_mov_b32 v20, {f32(2.0**100)}
    v_cmp_nle_f32 vcc, v11, v20
    s_or_b64 s[28:29], s[28:29], vcc
    s_cmp_eq_u64 s[28:29], 0
    s_cbranch_scc1 L_attok_{name}
    """)
    MA, MB = 9, 10
    st(f"""
    v_subrev_u32 v{vK}, {32*1024}, v{vK}
    v_subrev_u32 v{vV0}, {32*VS}, v{vV0}
    v_subrev_u32 v{vV1}, {32*VS}, v{vV1}
    v_mov_b32 v{MA}, {f32(-3.0e38)}
    v_mov_b32 v{MB}, {f32(-3.0e38)}
    v_mov_b32 v11, v{vK}
    s_mov_b32 s44, 0
    """)
    st.label(f"L_max_{name}")
    st(f"""
    ds_read_b128 {vr(KB,4)}, v11
    s_waitcnt lgkmcnt(0)
    v_mfma_f32_32x32x16_bf16 {vr(SA,16)}, {vr(KB,4)}, {vr(QA,4)}, 0
    v_mfma_f32_32x32x16_bf16 {vr(SB,16)}, {vr(KB,4)}, {vr(QB,4)}, 0
    v_add_u32 v11, 1024, v11
    """)
    for r in range(0, 16, 2): st(f"v_max3_f32 v{MA}, v{MA}, v{SA+r}, v{SA+r+1}")
    for r in range(0, 16, 2): st(f"v_max3_f32 v{MB}, v{MB}, v{SB+r}, v{SB+r+1}")
    st(f"""
    s_add_u32 s44, s44, 1
    s_cmp_lt_u32 s44, 64
    s_cbranch_scc1 L_max_{name}
    v_mov_b32 v11, v{MA}
    v_permlane32_swap_b32 v11, v{MA}
    v_max_f32 v{MA}, v{MA}, v11
    v_mov_b32 v11, v{MB}
    v_permlane32_swap_b32 v11, v{MB}
    v_max_f32 v{MB}, v{MB}, v11
    """)
    init_acc(st)
    for r in range(8): st(f"v_mov_b32 v{PB+r}, 0\nv_mov_b32 v{VB+8+r}, 0")
    first_reads(st)
    st("s_mov_b32 s44, 0")
    st.label(f"L_att2_{name}")
    for u in range(2):
        iteration(st, u + 2, 64, 2, [], safe=(MA, MB), rolled=True)
    st(f"""
    v_add_u32 v{vK}, {2*1024}, v{vK}
    v_add_u32 v{vV0}, {2*VS}, v{vV0}
    v_add_u32 v{vV1}, {2*VS}, v{vV1}
    s_add_u32 s44, s44, 1
    s_cmp_lt_u32 s44, 32
    s_cbranch_scc1 L_att2_{name}
    """)
    tail(st)
    st.label(f"L_attok_{name}")
    st(f"""
    s_lshl_b32 s23, s21, 11
    s_lshr_b32 s24, s22, 1
    s_lshl_b32 s24, s24, 10
    s_add_u32 s23, s23, s24
    s_and_b32 s24, s22, 1
    s_lshl_b32 s24, s24, 9
    s_add_u32 s23, s23, s24
    s_lshl_b32 s24, s20, 16
    s_add_u32 s23, s23, s24
    s_add_u32 s23, s23, s{sOA}
    v_and_b32 v9, 15, v0
    v_lshlrev_b32 v9, 4, v9
    v_lshrrev_b32 v10, 5, v0
    v_lshl_add_u32 v9, v10, 3, v9
    v_bfe_u32 v10, v0, 4, 1
    v_lshl_add_u32 v9, v10, 14, v9
    v_rcp_f32 v11, v{lA}
    v_rcp_f32 v12, v{lB}
    s_mov_b64 vcc, s[{sSLOWA}:{sSLOWA+1}]
    """)
    for qb, O, rc in ((0, OA_, 11), (1, OB_, 12)):
        for r in range(8): st(f"v_mul_f32 v{O+r}, v{O+r}, v{rc}")
        p = 16 + 4 * qb
        st(f"""
        v_cvt_pk_bf16_f32 v{p}, v{O}, v{O+1}
        v_cvt_pk_bf16_f32 v{p+1}, v{O+2}, v{O+3}
        v_cvt_pk_bf16_f32 v{p+2}, v{O+4}, v{O+5}
        v_cvt_pk_bf16_f32 v{p+3}, v{O+6}, v{O+7}
        """)
        dstore(st, f"buffer_store_dwordx2 {vr(p,2)}, v9, s[8:11], s23 offen")
        dstore(st, f"buffer_store_dwordx2 {vr(p+2,2)}, v9, s[8:11], s23 offen offset:256")
        if qb == 0: st("s_add_u32 s23, s23, 32768")

def p13_pre(which, pre_kv=None):
    def f(st):
        if which == 1:
            lane_consts(st)
            act_addr(st, 44, vTMP)
            st("v_mov_b32 v99, v44")
            colsum(st, 112, W_Q2, True)
        else:
            st("v_mov_b32 v44, v99")
            pre_kv(st)
        xa_setup(st, 4, 0)
        for s in range(4):
            a = 64 + 4 * s
            st(f"""
            v_lshlrev_b32 v{a}, 16, v{vRES+2*s}
            v_and_b32 v{a+1}, 0xffff0000, v{vRES+2*s}
            v_lshlrev_b32 v{a+2}, 16, v{vRES+2*s+1}
            v_and_b32 v{a+3}, 0xffff0000, v{vRES+2*s+1}
            """)
    return f

def phase_p13(st, name, which):
    ns = 4
    slow = sSLOWB if which == 1 else sSLOWA
    st("s_lshl_b32 s26, s20, 2")
    tag = f"x{which}"
    vActA, vRowA = 44, 45
    acc = 64
    if which == 3:
        row_addr(st, vRowA)
        st(f"""
        s_cmp_eq_u32 s{sL}, 0
        s_cselect_b32 s{SRD_OUT}, s8, s12
        s_cselect_b32 s{SRD_OUT+1}, s9, s13
        s_cselect_b32 s{SRD_OUT+2}, s10, s14
        s_mov_b32 s{SRD_OUT+3}, 0x00020000
        s_cselect_b32 s46, {B0 + BS + XIN}, 0
        s_cselect_b64 s[28:29], -1, 0
        v_cndmask_b32_e64 v{vActA}, v{vRowA}, v{vActA}, s[28:29]
        """)
    else:
        p2_consts_a(st)
    dma = dma_slots(st, ns, 0, f"s{sOA if which == 1 else sOB}", lambda e, s: e(f"s_add_u32 s23, s26, {s}"), tag)
    stamp(st, f"p{which}")
    sync_wait(st, 0 if which == 1 else 2, name, slow=slow)
    if which == 3 and "outwt" in OPT:
        st(f"s_cmp_eq_u32 s{sL}, 1\ns_cselect_b64 vcc, -1, vcc")
    stamp(st, f"p{which}")
    steps = gemm_steps(ns, lambda s: [((acc + 4 * s, False), W_O, True)], tag, dma, 3, fine=f"p{which}")
    def epi(s):
        e = St()
        a = acc + 4 * s
        p = (vRES if which == 1 else 88) + 2 * s
        e(f"""
        v_cvt_pk_bf16_f32 v{p}, v{a}, v{a+1}
        v_cvt_pk_bf16_f32 v{p+1}, v{a+2}, v{a+3}
        s_add_u32 s47, s26, {s}
        s_lshl_b32 s47, s47, 14
        """)
        if which == 1:
            e(f"s_add_u32 s47, s47, s{sX1}")
            dstore(e, f"buffer_store_dwordx2 {vr(p,2)}, v{vActA}, s[8:11], s47 offen")
        else:
            e("s_add_u32 s47, s47, s46")
            dstore(e, f"buffer_store_dwordx2 {vr(p,2)}, v{vActA}, s[{SRD_OUT}:{SRD_OUT+3}], s47 offen")
        return e
    st.ext(steps[0]); st.ext(steps[1])
    pb = []
    for s in range(ns - 1): pb += prog(16 * (s + 1) + 3, epi(s))
    st.ext(strip_marks(weave2(steps[2:], [pb], per=2)))
    st.ext(epi(ns - 1))
    stamp(st, f"p{which}")

def p2_consts_a(st):
    vMo, vMp, vMp0 = 100, 104, 108
    st(f"v_mov_b32 v{vTMP+2}, {f32(-1.0e30)}")
    for r in range(4):
        st(f"""
        v_lshl_add_u32 v{vTMP}, v{vG}, 2, {r}
        v_sub_u32 v{vTMP}, v{vT}, v{vTMP}
        v_and_b32 v{vTMP+1}, 0x80000001, v{vTMP}
        v_cmp_eq_u32 s[28:29], 0, v{vTMP+1}
        v_cndmask_b32_e64 v{vMo+r}, v{vTMP+2}, 0, s[28:29]
        v_cmp_gt_i32 s[38:39], -1, v{vTMP}
        v_and_b32 v{vTMP+1}, 1, v{vTMP}
        v_cmp_eq_u32 s[28:29], 0, v{vTMP+1}
        s_and_b64 s[28:29], s[28:29], s[38:39]
        v_cndmask_b32_e64 v{vMp+r}, v{vTMP+2}, 0, s[28:29]
        """)
    st("s_cmp_eq_u32 s20, 0\ns_cselect_b64 s[28:29], -1, 0")
    for r in range(4): st(f"v_cndmask_b32_e64 v{vMp0+r}, v{vMp+r}, v{vTMP+2}, s[28:29]")
    colsum(st, 116, W_K2, True)

def p2_pre(st):
    xa_setup(st, 5, 0)
    stats_setup(st, 5 * 16384)
    colsum(st, 120, W_V2, False)

def phase_p2(st, name):
    ns = 5
    SBASE = ns * 16384
    Wq, Wk, Wv = W_Q2, W_K2, W_V2
    st("s_lshl_b32 s26, s20, 2\ns_sub_u32 s26, s26, 1")
    vActA = 96
    st(f"v_mov_b32 v{vActA}, v99")
    vMo, vMp, vMp0 = 100, 104, 108
    vCSq, vCSk, vCSv = 112, 116, 120
    def tile_of_slot(e, s):
        if s == 0: e("s_max_i32 s23, s26, 0")
        else: e(f"s_add_u32 s23, s26, {s}")
    dma = dma_slots(st, ns, 0, f"s{sX1}", tile_of_slot, "x2")
    csum = St()
    stamp(st, "p2")
    sync_wait(st, 1, name, halo=True, slow=sSLOWA)
    stamp(st, "p2")
    wob = w_loads(W_O, T_WOB, "wob")
    accq, acck, accv = 64, 68, 72
    def A(base, s): return base + 12 * (s & 1)
    vSG, vSS = 88, 92
    def chains(s):
        c = []
        if s > 0: c.append(((A(accq, s), True), Wq, True))
        c.append(((A(acck, s), True), Wk, True))
        c.append(((A(accv, s), True), Wv, False))
        return c
    steps = gemm_steps(ns, chains, "x2", dma, 2, stats=lambda s: (vSG, vSS), fine="p2")
    for jj in range(16): steps[2 + 16 * 4 + jj].ext(wob[jj])
    last = steps[2 + 16 * 4 + 8]
    last.it.append(("mark", "bar4", None, None)); last("s_barrier")
    vR, vN = 124, 125
    vRq, vNq = 128, 129
    vR4, vN4 = 132, 136
    pq, pk, pv = 140, 142, 148
    tmp = 56
    S, P, MX, T2, PO = 158, 132, 97, 98, 146
    O, L = S, S + 4
    def statsA(s):
        b = 16 * s
        p = []
        e = St(); stats_extract(e, s, vSG, vSS, vTMP, f"sw{s}")
        p += prog(b + 5, e)
        e = St(); e.wl(f"sw{s}")
        p += prog(b + 9, e); p.append((b + 9, ("before", f"bar{s}", None, None)))
        e = St(); stats_read(e, s, vTMP, f"sr{s}"); p += prog(b + 9, e)
        e = St(); e.wl(f"sr{s}")
        R, N = vR + 2 * (s & 1), vN + 2 * (s & 1)
        for x in stats_math(vTMP, R, N): e(x)
        e.i(f"ds_write_b32 v{vSTA}, v{R}")
        e.i(f"ds_write_b32 v{vSTA}, v{N} offset:64", lds=f"pw{s}")
        p += prog(b + 12, e)
        p.append((b + 12, ("before", f"sl{s}", None, None)))
        return p
    def epi(s):
        e = St()
        R, N = vR + 2 * (s & 1), vN + 2 * (s & 1)
        e.wl(f"pw{s}")
        e.i(f"ds_read_b128 {vr(vR4,4)}, v{vPRR}")
        e.i(f"ds_read_b128 {vr(vN4,4)}, v{vPRR} offset:64", lds=f"pr{s}")
        ln_epi(e, A(acck, s), [R]*4, [N]*4, [vCSk+r for r in range(4)], pk + 2 * (s & 1), tmp)
        if s > 0:
            e(f"v_mul_f32 v{vRq}, {f32(CQ)}, v{R}\nv_mul_f32 v{vNq}, {f32(CQ)}, v{N}")
            ln_epi(e, A(accq, s), [vRq]*4, [vNq]*4, [vCSq+r for r in range(4)], pq, tmp)
            kp = pk + 2 * ((s - 1) & 1); ko = pk + 2 * (s & 1)
            mp = vMp0 if s == 1 else vMp
            e(f"v_mfma_f32_16x16x16_bf16 {vr(S,4)}, {vr(kp,2)}, {vr(pq,2)}, {vr(mp,4)}")
            e(f"v_mfma_f32_16x16x16_bf16 {vr(S+4,4)}, {vr(ko,2)}, {vr(pq,2)}, {vr(vMo,4)}")
        e.wl(f"pr{s}")
        ln_epi(e, A(accv, s), [vR4+r for r in range(4)], [vN4+r for r in range(4)], [vCSv]*4, pv + 2 * s, tmp)
        if s == 0: return e
        e(f"""
        v_max3_f32 v{MX}, v{S}, v{S+1}, v{S+2}
        v_max3_f32 v{T2}, v{S+3}, v{S+4}, v{S+5}
        v_max3_f32 v{MX}, v{MX}, v{S+6}, v{S+7}
        v_max_f32 v{MX}, v{MX}, v{T2}
        v_mov_b32 v{T2}, v{MX}
        v_permlane32_swap_b32 v{T2}, v{MX}
        v_max_f32 v{MX}, v{MX}, v{T2}
        v_mov_b32 v{T2}, v{MX}
        v_permlane16_swap_b32 v{T2}, v{MX}
        v_max_f32 v{MX}, v{MX}, v{T2}
        """)
        for r in range(8): e(f"v_sub_f32 v{S+r}, v{S+r}, v{MX}")
        for r in range(8): e(f"v_exp_f32 v{S+r}, v{S+r}")
        for r in range(4): e(f"v_cvt_pk_bf16_f32 v{P+r}, v{S+2*r}, v{S+2*r+1}")
        e(f"v_mfma_f32_16x16x32_bf16 {vr(O,4)}, {vr(pv+2*(s-1),4)}, {vr(P,4)}, 0")
        e(f"v_mfma_f32_16x16x32_bf16 {vr(L,4)}, {vr(vONES,4)}, {vr(P,4)}, 0")
        e.it.append(("gap", 4, None, None))
        e(f"v_rcp_f32 v{L}, v{L}")
        e(f"s_add_u32 s47, s26, {s}\ns_lshl_b32 s47, s47, 14\ns_add_u32 s47, s47, s{sOB}")
        for r in range(4): e(f"v_mul_f32 v{O+r}, v{O+r}, v{L}")
        e(f"v_cvt_pk_bf16_f32 v{PO}, v{O}, v{O+1}\nv_cvt_pk_bf16_f32 v{PO+1}, v{O+2}, v{O+3}")
        dstore(e, f"buffer_store_dwordx2 {vr(PO,2)}, v{vActA}, s[8:11], s47 offen")
        return e
    st.ext(steps[0]); st.ext(steps[1])
    main = steps[2:]
    for s in range(ns - 1):
        main[16 * (s + 1)].it.insert(0, ("mark", f"sl{s}", None, None))
    pa, pb = [], []
    for s in range(ns): pa += statsA(s)
    for s in range(ns - 1):
        pb += prog(16 * (s + 1) + 1, epi(s)); pb.append((16 * (s + 1) + 1, ("before", f"ep{s}", None, None)))
    for s in range(ns - 2):
        main[16 * (s + 2)].it.insert(0, ("mark", f"ep{s}", None, None))
    st.ext(strip_marks(weave2(main, [pa, pb], per=2)))
    st.ext(strip_marks(epi(ns - 1)))

def layer_scalars(st):
    st(f"""
    s_mul_i32 s23, s{sL}, {KVS}
    s_add_u32 s{sKF}, s23, {KF0}
    s_add_u32 s{sVF}, s23, {VF0}
    s_mul_i32 s23, s{sL}, {BS}
    s_add_u32 s{sXIN}, s23, {B0 + XIN}
    s_add_u32 s{sOA}, s23, {B0 + OA}
    s_add_u32 s{sX1}, s23, {B0 + X1}
    s_add_u32 s{sOB}, s23, {B0 + OB}
    s_lshl_b32 s23, s{sL}, 14
    s_add_u32 s{sFLAG}, s23, {FLAGS}
    """)

def q_dma(st):
    st("s_lshl_b32 s46, s20, 2")
    return dma_slots(st, 4, XB_Q, f"s{sXIN}", lambda e, s: e(f"s_add_u32 s23, s46, {s}"), "xq")

def gen_init(st, name):
    pWK, pWV, pWQ, pWOA, pWQKV, pWOB = 40, 42, 56, 46, 60, 62
    prologue(st, name, """
    s_load_dwordx2 s[56:57], s[0:1], 8
    s_load_dwordx2 s[6:7], s[0:1], 0
    s_load_dwordx4 s[40:43], s[0:1], 16
    s_load_dwordx2 s[46:47], s[0:1], 32
    s_load_dwordx4 s[60:63], s[0:1], 48
    """)
    st(f"s_add_u32 s28, s4, {EPOCH}\ns_addc_u32 s29, s5, 0\ns_load_dwordx2 s[{sEP}:{sEP+1}], s[28:29], 0")
    srd_io(st, 6, 2048 * 1024)
    st(f"s_mov_b32 s{sL}, 0")
    lane_consts(st)
    vKap, vCol = 24, 25
    st(f"""
    v_lshrrev_b32 v{vKap}, 2, v{vT}
    v_lshlrev_b32 v{vKap}, 3, v{vKap}
    v_and_b32 v{vCol}, 3, v{vT}
    v_add_u32 v{vKap}, v{vKap}, v{vCol}
    v_lshrrev_b32 v{vCol}, 1, v{vG}
    v_lshl_add_u32 v{vKap}, v{vCol}, 2, v{vKap}
    v_and_b32 v{vCol}, 1, v{vG}
    v_lshlrev_b32 v{vCol}, 4, v{vCol}
    s_lshl_b32 s59, s2, 2
    s_add_u32 s59, s59, s22
    """)
    if "nowarm" not in OPT:
        st(f"""
        v_lshrrev_b32 v27, 3, v0
        v_and_b32 v28, 7, v0
        v_lshlrev_b32 v28, 7, v28
        v_subrev_u32 v29, 3, v27
        v_lshlrev_b32 v29, 10, v29
        v_add_u32 v29, s59, v29
        v_min_u32 v29, 2559, v29
        v_add_u32 v29, 512, v29
        v_lshlrev_b32 v29, 10, v29
        s_lshl_b32 s27, s59, 11
        s_add_u32 s27, s27, {B0 + XIN - 1024}
        v_lshlrev_b32 v30, 10, v27
        v_add_u32 v30, s27, v30
        s_and_b32 s27, s59, 511
        s_lshl_b32 s27, s27, 10
        v_mov_b32 v31, s27
        v_cmp_gt_u32 s[38:39], 3, v27
        v_cndmask_b32_e64 v29, v29, v30, s[38:39]
        v_cmp_eq_u32 s[38:39], 0, v27
        v_cndmask_b32_e64 v29, v29, v31, s[38:39]
        v_add_u32 v29, v29, v28
        s_mov_b32 exec_hi, 0xffff
        """)
        st.i("buffer_load_dword v12, v29, s[8:11], 0 offen")
        st("s_mov_b64 exec, -1")
    st(f"""
    s_and_b32 s27, s59, 511
    s_lshr_b32 s28, s27, 4
    s_and_b32 s29, s27, 15
    s_lshl_b32 s29, s29, 5
    s_lshl_b32 s28, s28, 5
    v_add_u32 v148, s29, v{vKap}
    v_lshlrev_b32 v148, 10, v148
    v_add_u32 v148, v148, v{vCol}
    v_add_u32 v148, s28, v148
    s_cmp_lt_u32 s59, 512
    s_cselect_b64 exec, -1, 0
    """)
    st.i(f"global_load_dwordx4 {ar(A_WQ,4)}, v148, s[{pWQ}:{pWQ+1}]", vm="rq")
    st(f"""
    s_mov_b64 exec, -1
    v_lshlrev_b32 v26, 10, v{vT}
    v_lshl_add_u32 v26, v{vG}, 4, v26
    s_lshr_b32 s27, s59, 3
    s_lshl_b32 s27, s27, 14
    s_and_b32 s28, s59, 7
    s_lshl_b32 s28, s28, 7
    s_add_u32 s27, s27, s28
    """)
    st.i(f"buffer_load_dwordx4 {ar(A_XC,4)}, v26, s[12:15], s27 offen")
    st.i(f"buffer_load_dwordx4 {ar(A_XC+4,4)}, v26, s[12:15], s27 offen offset:64", vm="xc")
    stamp(st, "i")
    const_masks(st)
    first, xloads, setup, cs, main = phase_kv(st, name + "_i", 0, "row", KVB)
    first(st)
    xloads(st)
    st(f"""
    s_bitcmp1_b32 s21, 0
    s_cselect_b32 s28, s{pWV}, s{pWK}
    s_cselect_b32 s29, s{pWV+1}, s{pWK+1}
    v_lshl_add_u32 v142, v{vKap}, 5, v{vCol}
    s_lshl_b32 s23, s22, 12
    v_add_u32 v142, s23, v142
    """)
    for q in range(4):
        st.i(f"global_load_dwordx4 {ar(A_WKV+4*q,4)}, v142, s[28:29] offset:{q*1024}", vm=f"rw{q}")
    stamp(st, "i")
    st("s_getpc_b64 s[28:29]")
    st.label("L_pc_anchor")
    st(f"""
    s_add_u32 s28, s28, {name}-L_pc_anchor
    s_addc_u32 s29, s29, -1
    s_lshr_b32 s27, s2, 3
    s_lshl_b32 s27, s27, 2
    s_add_u32 s27, s27, s22
    s_lshl_b32 s27, s27, 9
    v_lshlrev_b32 v14, 6, v0
    v_add_u32 v14, s27, v14
    v_min_u32 v14, L_code_end-{name}-4, v14
    s_mov_b64 exec, 0xff
    """)
    if "nocode" not in OPT: st.i("global_load_dword v13, v14, s[28:29]")
    st("s_mov_b64 exec, -1")
    if "nowarm" not in OPT:
        st(f"""
        s_lshl_b32 s27, s20, 7
        s_lshl_b32 s28, s21, 3
        s_add_u32 s27, s27, s28
        s_add_u32 s27, s27, {FLAGS}
        v_and_b32 v148, 7, v0
        v_lshlrev_b32 v148, 12, v148
        v_add_u32 v148, s27, v148
        s_lshl_b32 s28, s20, 3
        s_add_u32 s28, s28, s21
        s_lshl_b32 s28, s28, 3
        s_add_u32 s28, s28, {KVFL - 8*0x800}
        v_min_u32 v149, 40, v0
        v_lshlrev_b32 v149, 11, v149
        v_add_u32 v149, s28, v149
        v_cmp_gt_u32 s[38:39], 8, v0
        v_cndmask_b32_e64 v148, v149, v148, s[38:39]
        """)
        w0_exec(st)
        st.i("buffer_load_dword v15, v148, s[8:11], 0 offen")
        st("s_mov_b64 exec, -1")
    emit_selectors(st, vB0, vB1, 16)
    setup(st)
    stamp(st, "i")
    st("s_lshl_b32 s58, s2, 2\ns_add_u32 s58, s58, s22")
    st.wv("rq")
    transpose(st, ar(A_WQ, 4), 144, tmp=16)
    st("s_lshl_b32 s27, s58, 10\ns_cmp_lt_u32 s58, 512\ns_cselect_b64 exec, -1, 0")
    st.i(f"buffer_store_dwordx4 v[144:147], v{vL16}, s[8:11], s27 offen sc1")
    st(f"s_mov_b64 exec, -1\ns_lshl_b32 s27, s58, 11\ns_add_u32 s27, s27, {B0 + XIN}")
    st.wv("xc")
    st.i(f"buffer_store_dwordx4 {ar(A_XC,4)}, v{vL16}, s[8:11], s27 offen sc1")
    st.i(f"buffer_store_dwordx4 {ar(A_XC+4,4)}, v{vL16}, s[8:11], s27 offen offset:1024 sc1", vm="xcs")
    stamp(st, "i")
    st(f"s_lshl_b32 s58, s2, 2\ns_add_u32 s58, s58, s22")
    for i in range(3):
        st(f"""
        s_add_u32 s27, s58, {1024*i}
        s_min_u32 s27, s27, 2559
        s_add_u32 s27, s27, 512
        s_lshr_b32 s28, s27, 4
        s_and_b32 s29, s27, 15
        s_mov_b32 s24, s{pWOA}
        s_mov_b32 s25, s{pWOA+1}
        s_sub_u32 s45, s28, {T_WOA}
        s_mov_b32 s3, 1024
        """)
        for T0, reg, stride in ((T_WOB, pWOB, 1024), (T_WQKV, pWQKV, 3072)):
            st(f"""
            s_sub_u32 s23, s28, {T0}
            s_cmp_ge_u32 s28, {T0}
            s_cselect_b32 s24, s{reg}, s24
            s_cselect_b32 s25, s{reg+1}, s25
            s_cselect_b32 s45, s23, s45
            s_cselect_b32 s3, {stride}, s3
            """)
        st(f"""
        s_lshl_b32 s29, s29, 5
        s_lshl_b32 s45, s45, 5
        v_add_u32 v148, s29, v{vKap}
        v_mul_lo_u32 v148, v148, s3
        v_add_u32 v148, v148, v{vCol}
        v_add_u32 v148, s45, v148
        """)
        st.i(f"global_load_dwordx4 {ar(A_PREP+4*i,4)}, v148, s[24:25]", vm=f"pw{i}")
    st(f"""
    s_waitcnt lgkmcnt(0)
    s_mul_i32 s{sTLO}, s{sEP}, 0x9e3779b1
    s_xor_b32 s{sTLO}, s{sTLO}, s{sEP+1}
    s_add_u32 s{sTLO}, s{sTLO}, 0x7f4a7c15
    s_mul_i32 s{sTHI}, s{sEP}, 0x85ebca6b
    s_add_u32 s{sTHI}, s{sTHI}, s{sEP+1}
    s_xor_b32 s{sTHI}, s{sTHI}, 0x5bd1e995
    """)
    for q in range(4):
        st.wv(f"rw{q}")
        transpose(st, ar(A_WKV + 4 * q, 4), W_KV[1] + 4 * q)
    cs(st)
    st.wv("xcs")
    st("s_barrier")
    wg_flag_store(st, f"{QPRF}", replicas=8)
    stamp(st); stamp(st, "i")
    main(st)
    stamp(st); stamp(st, "i")
    layer_scalars(st)
    wave_scalars(st)
    q_setup(st)
    st("s_load_dwordx2 s[6:7], s[0:1], 64")
    st.wv("kvst")
    wg_flag_store(st, f"{KVFL}", replicas=8)
    xcc_publish(st)
    st("s_waitcnt lgkmcnt(0)")
    srd_io(st, 6, 2048 * 1024)
    stamp(st, "i")
    ld = [f"buffer_load_dwordx4 v[128:131], v60, s[8:11], s47 offen sc1", f"buffer_load_dwordx4 v[132:135], v60, s[8:11], s47 offen offset:16 sc1"]
    st(f"""
    v_lshlrev_b32 v60, 5, v0
    s_lshr_b32 s47, s20, 2
    s_lshl_b32 s47, s47, 11
    s_add_u32 s47, s47, {QPRF}
    """)
    w0_exec(st)
    poll_pairs(st, "L_initp", [128, 130, 132, 134], ld, sleep=int(os.environ.get("ISLEEP", "2")))
    st("s_mov_b64 exec, -1\ns_barrier")
    stamp(st, "i")
    wl = w_loads(W_QA, 0, "wq")
    for e in wl[:4]: st.ext(e)
    dma = q_dma(st)
    for e in dma[0]: st.ext(e)
    for e in wl[4:]: st.ext(e)
    st("s_barrier")
    for e in dma[1]: st.ext(e)
    st.i(f"buffer_load_dword v59, v{vL16}, s[8:11], s{sXIN} offen")
    st("s_waitcnt vmcnt(5)")
    stamp(st, "i")

def gen_persist(name):
    st = St()
    NST[0] = 0
    stamp(st)
    if INSTR: st("s_memrealtime s[96:97]")
    if DBG or SPINRT: st("s_memrealtime s[96:97]\ns_memtime s[64:65]")
    gen_init(st, name)
    st("s_branch L_common")
    kv1 = phase_kv(st, name + "_4", 1, "act", KVB, sregs=(142, 143, 158, 159))
    def pre_kv(e):
        kv1[0](e); kv1[2](e); kv1[3](e)
    st.label("L_layer1")
    sync_publish(st, 3, name, sSLOWA, pre=q_setup)
    first, xloads, setup, cs, main = kv1
    sync_wait(st, 3, name + "_4")
    st(f"s_mov_b32 s{sL}, 1")
    layer_scalars(st)
    xloads(st)
    dma = q_dma(st)
    for e in dma[0]: st.ext(e)
    st("s_barrier")
    for e in dma[1]: st.ext(e)
    main(st)
    st.label("L_common")
    if DBG: st(f"s_cmp_lg_u32 s{sL}, 0\ns_cbranch_scc1 L_dbg_a\ns_memrealtime s[66:67]\ns_branch L_dbg_b\nL_dbg_a:\ns_memrealtime s[68:69]\nL_dbg_b:")
    phase_q(st, name, dma)
    phase_att(st, name)
    stamp(st)
    sync_publish(st, 0, name, sSLOWA, pre=p13_pre(1))
    phase_p13(st, name + "_1", 1)
    stamp(st)
    sync_publish(st, 1, name, sSLOWB, pre=p2_pre)
    phase_p2(st, name + "_2")
    stamp(st)
    sync_publish(st, 2, name, sSLOWA, pre=p13_pre(3, pre_kv))
    phase_p13(st, name + "_3", 3)
    stamp(st)
    if INSTR:
        st(f"s_cmp_lg_u32 s{sL}, 0\ns_cbranch_scc1 L_fin")
        stamp_dump(st, 0)
        st("s_branch L_layer1")
    else:
        st(f"s_cmp_eq_u32 s{sL}, 0\ns_cbranch_scc1 L_layer1")
    st.label("L_fin")
    st(f"""
    s_or_b32 s23, s2, s22
    s_cmp_lg_u32 s23, 0
    s_cbranch_scc1 L_noep
    s_add_u32 s28, s{sEP}, 1
    s_addc_u32 s29, s{sEP+1}, 0
    v_mov_b32 v2, s28
    v_mov_b32 v3, s29
    v_mov_b32 v4, 0
    s_mov_b32 s23, {EPOCH}
    s_mov_b64 exec, 1
    buffer_store_dwordx2 v[2:3], v4, s[8:11], s23 offen
    s_mov_b64 exec, -1
    """)
    st.label("L_noep")
    st("s_waitcnt vmcnt(0)")
    if SPINRT:
        if "spinwb" in OPT: st("s_barrier\nbuffer_wbl2 sc1\ns_waitcnt vmcnt(0)")
        st.label("L_spinrt")
        st(f"""
        s_memrealtime s[98:99]
        s_waitcnt lgkmcnt(0)
        s_sub_u32 s98, s98, s96
        s_cmp_lt_u32 s98, {SPINRT}
        s_cbranch_scc1 L_spinrt
        """)
    if DBG:
        st(f"""
        s_memrealtime s[98:99]
        s_memtime s[70:71]
        s_load_dwordx2 s[28:29], s[0:1], 72
        s_waitcnt lgkmcnt(0)
        s_cmp_lg_u32 s22, 0
        s_cbranch_scc1 L_nodbg
        s_cmp_ge_u32 s2, 4
        s_cbranch_scc1 L_nodbg
        s_sub_u32 s66, s66, s96
        s_sub_u32 s68, s68, s96
        s_sub_u32 s98, s98, s96
        s_sub_u32 s70, s70, s64
        v_mov_b32 v4, s66
        v_mov_b32 v5, s68
        v_mov_b32 v6, s98
        v_mov_b32 v7, s70
        s_lshl_b32 s23, s2, 4
        v_mov_b32 v8, s23
        s_mov_b64 exec, 1
        global_store_dwordx4 v8, v[4:7], s[28:29]
        s_waitcnt vmcnt(0)
        """)
        st.label("L_nodbg")
    stamp_dump(st, 1)
    return kernel_text(name, st, sgpr=102).replace(f"L_end_{name}:", f"L_code_end:\nL_end_{name}:")

def build(path):
    hdr = open("cdna_kernels/" + NAME + ".s.ref").read().split("; Override launch geometry")[0]
    out = hdr + f"; @launch grid=(256,1,1) block=(256,1,1) lds={MAIN_LDS}\n"
    out += '.amdgcn_target "amdgcn-amd-amdhsa--gfx950"\n'
    out += gen_persist(NAME + "_kernel")
    open(path, "w").write(out)

if __name__ == "__main__":
    build(sys.argv[1] if len(sys.argv) > 1 else "stage5.s")
```

```python
import re

TRANS = ("v_exp_f32", "v_log_f32", "v_rcp_f32", "v_rsq_f32", "v_sqrt_f32", "v_sin_f32", "v_cos_f32",
         "v_exp_f16", "v_log_f16", "v_rcp_f16", "v_rsq_f16", "v_sqrt_f16", "v_rcp_iflag_f32")
REG_RE = re.compile(r"^(-|abs\()?\|?(v|a|s)(?:\[(\d+):(\d+)\]|(\d+))\|?\)?$")

def parse_reg(op):
    op = op.strip()
    if op in ("vcc", "vcc_lo", "vcc_hi"): return [("s", 106), ("s", 107)]
    if op in ("exec", "exec_lo", "exec_hi"): return [("x", 0)]
    if op == "m0": return [("m", 0)]
    m = REG_RE.match(op)
    if not m: return []
    k = m.group(2)
    if m.group(3) is not None:
        return [(k, i) for i in range(int(m.group(3)), int(m.group(4)) + 1)]
    return [(k, int(m.group(5)))]

class Ins:
    __slots__ = ("text", "op", "kind", "wr", "rd", "passes", "srcC", "dst_exact", "is_trans", "storedata", "nop", "rdAB", "lanesel")
    def __init__(self, text):
        self.text = text
        t = text.split(";")[0].strip()
        self.op = t.split()[0] if t else ""
        rest = t[len(self.op):].strip()
        ops = [o.strip() for o in rest.split(",")] if rest else []
        if ops:
            last = ops[-1].split()
            ops[-1] = last[0] if last else ""
            mods = last[1:]
        else:
            mods = []
        op = self.op
        self.wr, self.rd = set(), set()
        self.passes = 0; self.srcC = set(); self.dst_exact = None; self.is_trans = False
        self.storedata = set(); self.nop = 0; self.rdAB = set(); self.lanesel = set()
        R = lambda o: set(parse_reg(o))
        if op.startswith("v_mfma") or op.startswith("v_smfmac"):
            self.kind = "mfma"
            self.passes = 8 if "32x32" in op else (2 if "4x4x4" in op else 4)
            if op.startswith("v_smfmac"):
                self.wr = R(ops[0]); self.rdAB = R(ops[1]) | R(ops[2]) | R(ops[3]); self.srcC = R(ops[0])
            else:
                self.wr = R(ops[0]); self.rdAB = R(ops[1]) | R(ops[2]); self.srcC = R(ops[3])
            self.rd = self.rdAB | self.srcC
            self.dst_exact = (ops[0], op)
        elif op.startswith("v_"):
            self.kind = "valu"
            base = op.replace("_e32", "").replace("_e64", "").replace("_dpp", "").replace("_sdwa", "")
            self.is_trans = base in TRANS
            if base.startswith("v_cmp"):
                self.wr = R(ops[0])
                for o in ops[1:]: self.rd |= R(o)
                if base.startswith("v_cmpx"): self.wr |= {("x", 0)}
            elif base.startswith("v_permlane") and "swap" in base:
                self.kind = "permlane"
                self.wr = R(ops[0]) | R(ops[1]); self.rd = set(self.wr)
            elif base in ("v_readfirstlane_b32", "v_readlane_b32"):
                self.kind = "readlane"
                self.wr = R(ops[0]); self.rd = R(ops[1])
                if len(ops) > 2: self.lanesel = R(ops[2])
            elif base in ("v_add_co_u32", "v_sub_co_u32", "v_addc_co_u32", "v_subb_co_u32", "v_subrev_co_u32"):
                self.wr = R(ops[0]) | R(ops[1])
                for o in ops[2:]: self.rd |= R(o)
            else:
                self.wr = R(ops[0])
                for o in ops[1:]: self.rd |= R(o)
                if base.startswith(("v_fmac", "v_dot2c", "v_pk_fmac")) or "UNUSED_PRESERVE" in text or base.startswith("v_writelane") or base.startswith("v_fma_mix"):
                    self.rd |= R(ops[0])
                if base == "v_cndmask_b32" and len(ops) == 3: self.rd |= R("vcc")
            if "dpp" in op or "row_" in text or "quad_perm" in text: self.kind = "dpp"
        elif op.startswith("ds_"):
            self.kind = "mem"
            if op.startswith(("ds_read", "ds_bpermute", "ds_permute", "ds_swizzle")):
                self.wr = R(ops[0])
                for o in ops[1:]: self.rd |= R(o)
            else:
                for o in ops: self.rd |= R(o)
        elif op.startswith(("buffer_", "global_", "flat_", "scratch_")):
            self.kind = "mem"
            islds = ("lds" in mods) or ("_lds_" in op)
            if op in ("buffer_wbl2", "buffer_inv"):
                pass
            elif "load" in op and not islds:
                self.wr = R(ops[0])
                for o in ops[1:]: self.rd |= R(o)
            elif "load" in op and islds:
                for o in ops: self.rd |= R(o)
                self.rd |= {("m", 0)}
                self.kind = "memlds"
            elif "atomic" in op:
                for o in ops: self.rd |= R(o)
                if "sc0" in mods:
                    self.wr = R(ops[0])
            else:
                for o in ops: self.rd |= R(o)
                if "x3" in op or "x4" in op:
                    self.storedata = R(ops[0]) if op.startswith("buffer_") else R(ops[1])
        elif op == "s_nop":
            self.kind = "nop"; self.nop = int(ops[0], 0) + 1
        elif op.startswith("s_"):
            self.kind = "salu"
            if op.startswith(("s_cmp", "s_cbranch", "s_branch", "s_waitcnt", "s_barrier", "s_endpgm", "s_setprio", "s_sleep", "s_bitcmp")):
                for o in ops: self.rd |= R(o)
            else:
                if ops: self.wr = R(ops[0])
                for o in ops[1:]: self.rd |= R(o)
                if "saveexec" in op: self.wr |= {("x", 0)}
        else:
            self.kind = "other"

def vregs(s): return {r for r in s if r[0] in "va"}
def sregs(s): return {r for r in s if r[0] == "s"}

def need(p, c):
    n = 0
    pv = p.kind in ("valu", "permlane", "dpp", "readlane")
    cv = c.kind in ("valu", "permlane", "dpp", "readlane")
    if pv:
        w = vregs(p.wr)
        if w:
            if c.kind == "mfma" and (w & c.rd): n = max(n, 2)
            if c.kind == "permlane" and (w & c.rd): n = max(n, 2)
            if c.kind == "dpp" and (w & c.rd): n = max(n, 2)
            if c.kind == "readlane" and (w & c.rd): n = max(n, 1)
            if p.is_trans and cv and not c.is_trans and (w & c.rd): n = max(n, 1)
            if p.is_trans and cv and (w & c.rd): n = max(n, 1)
            if ("sdwa" in p.op or "op_sel" in p.text) and cv and (w & (c.rd | c.wr)): n = max(n, 1)
        sw = sregs(p.wr)
        if sw:
            if cv and (sw & c.rd): n = max(n, 2)
            if c.kind == "readlane" and (sw & c.lanesel): n = max(n, 4)
            if c.kind in ("mem", "memlds") and (sw & c.rd): n = max(n, 5)
            if c.kind == "salu" and (sw & c.rd): n = max(n, 1)
        if ("x", 0) in p.wr:
            if c.kind == "mfma": n = max(n, 4)
            if c.kind in ("dpp",): n = max(n, 5)
            if c.kind in ("permlane", "readlane"): n = max(n, 4)
    if p.kind == "mfma":
        d = p.wr
        k = {2: 0, 4: 1, 8: 2}[p.passes]
        if c.kind == "mfma":
            if d & c.srcC:
                same = (c.srcC == d and c.passes == p.passes)
                n = max(n, (2, 0, 0)[k] if same else (4, 6, 10)[k])
            if d & c.rdAB: n = max(n, (5, 8, 12)[k])
            if (d & c.wr) and not (d & c.srcC):
                n = max(n, (4, 6, 10)[k]) if c.wr != d else max(n, (2, 0, 0)[k])
        elif cv or c.kind in ("mem", "memlds"):
            if d & (c.rd | vregs(c.wr)): n = max(n, (5, 8, 12)[k])
        if cv and (p.srcC & vregs(c.wr)): n = max(n, (1, 3, 7)[k])
    if p.storedata:
        if p.storedata & vregs(c.wr): n = max(n, 2 if cv else 1)
    if p.kind == "salu" and ("m", 0) in p.wr and c.kind == "memlds": n = max(n, 1)
    return n

class Asm:
    def __init__(self):
        self.lines = []
    def __call__(self, s):
        for l in s.strip("\n").split("\n"):
            l = l.strip()
            if l: self.lines.append(l)
    def label(self, l): self.lines.append(l + ":")
    def raw(self, s): self.lines.append(s)

WINDOW = 24
def fix_hazards(lines, verbose=False):
    out = []
    labelpos = {}
    inserted = 0
    def dist_scan(hist, c):
        d = 0; extra = 0
        for p in reversed(hist):
            r = need(p, c)
            if r > d: extra = max(extra, r - d)
            d += p.nop if p.kind == "nop" else 1
            if d >= WINDOW: break
        return extra
    hist = []
    alts = []
    fwd = {}
    for l in lines:
        if l.endswith(":") and " " not in l:
            labelpos[l[:-1]] = len(out)
            for h in fwd.pop(l[:-1], []):
                alts.append([h, WINDOW])
            out.append((l, None)); continue
        if l.startswith(".") or l.startswith(";"):
            out.append((l, None)); continue
        c = Ins(l)
        e = dist_scan(hist, c)
        for a in alts:
            e = max(e, dist_scan(a[0], c))
        if e > 0:
            nop = Ins(f"s_nop {e-1}")
            out.append((nop.text, nop)); hist.append(nop); inserted += 1
            for a in alts: a[0].append(nop)
            if verbose: print("hazard: inserted", e, "before", l)
        out.append((l, c)); hist.append(c)
        for a in alts:
            a[0].append(c); a[1] -= 1
        alts = [a for a in alts if a[1] > 0]
        if c.op.startswith(("s_cbranch", "s_branch")):
            tgt = l.split()[-1]
            if tgt in labelpos:
                head = [x[1] for x in out[labelpos[tgt]:] if x[1] is not None][:WINDOW]
                h2 = list(hist)
                worst = 0
                for hc in head:
                    ex = dist_scan(h2, hc)
                    if ex > 0: worst = max(worst, ex)
                    h2.append(hc)
                if worst > 0:
                    nop = Ins(f"s_nop {worst-1}")
                    out.insert(len(out) - 1, (nop.text, nop)); hist.insert(len(hist) - 1, nop); inserted += 1
                    if verbose: print("hazard(backedge): inserted", worst, "before", l)
            else:
                fwd.setdefault(tgt, []).append(list(hist[-WINDOW:]))
        if len(hist) > 4 * WINDOW: hist = hist[-2 * WINDOW:]
    return [x[0] for x in out], inserted

def check_inflight(lines, verbose=True):
    vm = []
    lg = []
    bad = []
    rare = 0
    for n, l in enumerate(lines):
        if l.startswith("; RARE_BEGIN"): rare += 1
        if l.startswith("; RARE_END"): rare -= 1
        if rare or l.endswith(":") or l.startswith((".", ";")): continue
        c = Ins(l)
        op = c.op
        if op == "s_waitcnt":
            m = re.search(r"vmcnt\((\d+)\)", l)
            if m:
                k = int(m.group(1)); vm = vm[len(vm) - k:] if k < len(vm) else vm
                if k == 0: vm = []
            m = re.search(r"lgkmcnt\((\d+)\)", l)
            if m:
                k = int(m.group(1)); lg = lg[len(lg) - k:] if k < len(lg) else lg
                if k == 0: lg = []
            continue
        touch = vregs(c.rd) | vregs(c.wr)
        for q, name in ((vm, "vm"), (lg, "lds")):
            for (ln, dst) in q:
                if dst & touch:
                    if name == "vm" and op.startswith(("buffer_load", "global_load")) and not (dst & vregs(c.rd)): continue
                    if name == "lds" and op.startswith("ds_read") and not (dst & vregs(c.rd)): continue
                    bad.append((n, l, name, lines[ln]))
        if op.startswith(("buffer_", "global_")) and op not in ("buffer_wbl2", "buffer_inv"):
            vm.append((n, vregs(c.wr)))
        elif op.startswith("ds_"):
            lg.append((n, vregs(c.wr)))
        if op in ("s_endpgm",): vm = []; lg = []
    if verbose:
        seen = set()
        for n, l, name, src in bad:
            key = (l, src)
            if key in seen: continue
            seen.add(key)
            print(f"INFLIGHT line {n}: '{l}' touches the destination of uncovered {name} op '{src}'")
    return bad
```

```python
import sys, os
sys.path.insert(0, os.path.dirname(os.path.abspath(__file__)))
import gen
from gen import (St, resolve, weave, vr, ar, rr, f32, CQ, srd_io, emit_selectors,
                 T_WQ, T_WOA, T_WOB, T_WQKV, T_WK, T_WV, NFRAG, NAME, WS_SIZE)
from asmlib import fix_hazards, check_inflight
INSTR = os.environ.get("INSTR")
OPT = os.environ.get("OPT", "")
DBG = os.environ.get("DBG")
SPINRT = int(os.environ.get("SPINRT", "0"))
FAST = "nofast" not in OPT

XROW = 1040
XB_Q = 74752
KF0, VF0, KVS = 0x310000, 0x320000, 0x20000
B0, BS = 0x800000, 0x800000
XIN, OA, X1, OB = 0, 0x200000, 0x400000, 0x600000
FLAGS = 0x1900000
KVFL = FLAGS + 0x8000
PREPF = FLAGS + 0x10000
QPRF = FLAGS + 0x14000
XCCT = FLAGS + 0x18000
EPOCH = FLAGS + 0x19000
TS_OFF = 0x1800000
S_G, S_M, S_W = 20, 21, 22
sROT = 16
sSLOWA, sSLOWB = 40, 42
sSPIN = 45
sKF, sVF, sXIN, sOA, sX1, sOB, sL, sFLAG = 48, 49, 51, 52, 53, 54, 55, 56
sTLO, sTHI = 50, 3
sEP = 14 + 86
sWT = 57
SRD_OUT = 60
W_Q2, W_K2, W_V2, W_O = ("a", 0), ("a", 64), ("a", 128), ("a", 192)
W_QA = ("v", 166)
W_KV = ("v", 230)
vRES = 246
vL16, vXA, vT, vG, vONES, vRING, RING = 1, 2, 6, 7, 8, 12, 8
vSTA, vSTW, vSTR, vPRR, vTMP = 44, 45, 46, 47, 48
vFLO, vFLP = 62, 63

NST = [0]
def stamp(st, fine=None):
    if not INSTR: return
    if INSTR == "1":
        if fine: return
        k = NST[0]; NST[0] += 1
        st(f"s_memtime s[{64+2*k}:{65+2*k}]\ns_waitcnt lgkmcnt(0)")
    else:
        if fine != INSTR and not (fine is None and NST[0] == 0): return
        k = NST[0]; NST[0] += 1
        assert k < 16
        st(f"s_memtime s[{64+2*k}:{65+2*k}]")
def stamp_dump(st, slot):
    if not INSTR: return
    st("s_memrealtime s[98:99]\ns_waitcnt lgkmcnt(0)")
    for k in range(16): st(f"v_mov_b32 v{16+k}, s{64+2*k if k < NST[0] else 98}")
    st(f"""
    v_mov_b32 v31, s98
    v_mov_b32 v30, s96
    s_lshl_b32 s23, s2, 2
    s_add_u32 s23, s23, s22
    s_lshl_b32 s23, s23, 6
    s_mul_i32 s24, {slot}, 65536
    s_add_u32 s23, s23, s24
    s_add_u32 s23, s23, {TS_OFF}
    v_mov_b32 v8, 0
    s_mov_b64 exec, 1
    buffer_store_dwordx4 v[16:19], v8, s[8:11], s23 offen
    buffer_store_dwordx4 v[20:23], v8, s[8:11], s23 offen offset:16
    buffer_store_dwordx4 v[24:27], v8, s[8:11], s23 offen offset:32
    buffer_store_dwordx4 v[28:31], v8, s[8:11], s23 offen offset:48
    s_waitcnt vmcnt(0)
    s_mov_b64 exec, -1
    """)

def prologue(st, name, extra_loads=""):
    st(f"""
    s_cmp_ge_u32 s2, 256
    s_cbranch_scc1 L_end_{name}
    s_load_dwordx2 s[4:5], s[0:1], 80
    {extra_loads}
    v_lshrrev_b32 v1, 6, v0
    v_and_b32 v0, 63, v0
    s_and_b32 s20, s2, 7
    s_lshr_b32 s21, s2, 3
    s_lshl_b32 s20, s20, 2
    s_lshr_b32 s23, s21, 3
    s_add_u32 s20, s20, s23
    s_and_b32 s21, s21, 7
    v_readfirstlane_b32 s22, v1
    v_lshlrev_b32 v{vL16}, 4, v0
    s_waitcnt lgkmcnt(0)
    s_mov_b32 s8, s4
    s_mov_b32 s9, s5
    s_mov_b32 s10, {WS_SIZE}
    s_mov_b32 s11, 0x00020000
    """)

OUTLINE = []
def dstore(e, text):
    if not FAST:
        e.i(text + " sc1"); return
    k = len(OUTLINE)
    e.it.append(("grp", [f"s_cbranch_vccnz L_slow_{k}", text, f"L_back_{k}:"], None, None))
    OUTLINE.append(text + " sc1")

def expand_groups(st):
    o = St()
    for it in st.it:
        if it[0] in ("grp", "grpv"):
            for l in it[1]: o.it.append(("i", l, None, None))
        else: o.it.append(it)
    return o

def kernel_text(name, st, vgpr=512, accum=256, sgpr=100):
    lines = resolve(expand_groups(st))
    lines.append("s_endpgm")
    for k, t in enumerate(OUTLINE):
        lines += [f"L_slow_{k}:", t, f"s_branch L_back_{k}"]
    OUTLINE.clear()
    lines, nins = fix_hazards(lines)
    if os.environ.get('CHECK'): check_inflight(lines)
    body = "\n".join(("    " + l) if not l.endswith(":") else l for l in lines)
    return f""".text
.globl {name}
.p2align 8
.type {name},@function
{name}:
{body}
L_end_{name}:
    s_endpgm
.section .rodata,"a"
.p2align 6
.amdhsa_kernel {name}
  .amdhsa_next_free_vgpr {vgpr}
  .amdhsa_next_free_sgpr {sgpr}
  .amdhsa_accum_offset {accum}
  .amdhsa_group_segment_fixed_size 0
  .amdhsa_kernarg_size 88
  .amdhsa_user_sgpr_count 2
  .amdhsa_user_sgpr_kernarg_segment_ptr 1
  .amdhsa_system_sgpr_workgroup_id_x 1
  .amdhsa_float_denorm_mode_32 3
.end_amdhsa_kernel
"""

def lane_consts(st):
    st(f"v_and_b32 v{vT}, 15, v0\nv_lshrrev_b32 v{vG}, 4, v0")
    for q in range(4): st(f"v_mov_b32 v{vONES+q}, 0x3f803f80")

def xa_setup(st, ns, xb):
    for jg in range(4):
        st(f"s_mul_i32 s23, s{sROT+jg}, {ns}")
        if xb: st(f"s_add_u32 s23, s23, {xb}")
        st(f"v_add_u32 v{vXA+jg}, s23, v{vL16}")

def wave_scalars(st):
    for jg in range(4):
        st(f"""
        s_add_u32 s23, s22, {jg}
        s_and_b32 s23, s23, 3
        s_lshl_b32 s{sROT+jg}, s23, 12
        """)
    st(f"""
    s_lshl_b32 s{sWT}, s21, 2
    s_add_u32 s{sWT}, s{sWT}, s22
    s_lshl_b32 s{sWT}, s{sWT}, 14
    """)

def w_loads(dst, T0, tag):
    out = []
    for jg in range(4):
        for q in range(4):
            e = St()
            if q == 0:
                e(f"s_add_u32 s58, s{sWT}, s{sROT+jg}")
                if T0: e(f"s_add_u32 s58, s58, {T0*16384}")
            b = dst[1] + 4 * (4 * jg + q)
            e.i(f"buffer_load_dwordx4 {rr((dst[0], b), 4)}, v{vL16}, s[8:11], s58 offen offset:{q*1024} sc1", vm=f"{tag}{4*jg+q}")
            out.append(e)
    return out

def kv_loads(tag):
    out = []
    for q in range(4):
        e = St()
        if q == 0:
            e(f"""
            s_and_b32 s58, s21, 1
            s_add_u32 s58, s58, {T_WK}
            s_lshl_b32 s58, s58, 14
            s_add_u32 s58, s58, s{sROT}
            """)
        e.i(f"buffer_load_dwordx4 {rr((W_KV[0], W_KV[1] + 4*q), 4)}, v{vL16}, s[8:11], s58 offen offset:{q*1024}", vm=f"{tag}{q}")
        out.append(e)
    return out

def act_addr(st, vdst, tmp):
    st(f"""
    s_lshl_b32 s23, s21, 11
    s_lshr_b32 s28, s22, 1
    s_lshl_b32 s28, s28, 10
    s_add_u32 s23, s23, s28
    s_and_b32 s28, s22, 1
    s_lshl_b32 s28, s28, 9
    s_add_u32 s23, s23, s28
    v_lshrrev_b32 v{tmp}, 1, v{vG}
    v_lshlrev_b32 v{tmp}, 8, v{tmp}
    v_lshl_add_u32 v{tmp}, v{vT}, 4, v{tmp}
    v_and_b32 v{vdst}, 1, v{vG}
    v_lshl_add_u32 v{vdst}, v{vdst}, 3, v{tmp}
    v_add_u32 v{vdst}, s23, v{vdst}
    """)

def row_addr(st, vdst):
    st(f"""
    s_lshl_b32 s23, s21, 7
    s_lshl_b32 s28, s22, 5
    s_add_u32 s23, s23, s28
    v_lshlrev_b32 v{vdst}, 10, v{vT}
    v_lshl_add_u32 v{vdst}, v{vG}, 3, v{vdst}
    v_add_u32 v{vdst}, s23, v{vdst}
    """)

def colsum(st, dst, W, w_is_A, n=16):
    for jj in range(n):
        wreg = rr((W[0], W[1] + 4 * jj), 4)
        c = "0" if jj == 0 else vr(dst, 4)
        if w_is_A: st(f"v_mfma_f32_16x16x32_bf16 {vr(dst,4)}, {wreg}, {vr(vONES,4)}, {c}")
        else:      st(f"v_mfma_f32_16x16x32_bf16 {vr(dst,4)}, {vr(vONES,4)}, {wreg}, {c}")

def stats_setup(st, sb, regs=None):
    pb = sb + 2560; dummy = pb + 512
    vSTA, vSTW, vSTR, vPRR = regs or (44, 45, 46, 47)
    st(f"""
    v_lshrrev_b32 v{vTMP}, 2, v{vT}
    v_cmp_eq_u32 s[30:31], v{vTMP}, v{vG}
    v_lshlrev_b32 v{vSTW}, 5, v{vT}
    s_lshl_b32 s23, s22, 2
    s_add_u32 s23, s23, {sb}
    v_add_u32 v{vSTW}, s23, v{vSTW}
    v_mov_b32 v{vTMP}, {dummy}
    v_cndmask_b32_e64 v{vSTW}, v{vTMP}, v{vSTW}, s[30:31]
    v_lshlrev_b32 v{vSTR}, 5, v{vT}
    v_add_u32 v{vSTR}, {sb}, v{vSTR}
    s_lshl_b32 s23, s22, 7
    s_add_u32 s23, s23, {pb}
    v_lshlrev_b32 v{vSTA}, 2, v{vT}
    v_add_u32 v{vSTA}, s23, v{vSTA}
    v_lshlrev_b32 v{vPRR}, 4, v{vG}
    v_add_u32 v{vPRR}, s23, v{vPRR}
    """)
def const_masks(st):
    st("""
    s_mov_b32 s32, 0x22222222
    s_mov_b32 s33, 0x22222222
    s_mov_b32 s34, 0x44444444
    s_mov_b32 s35, 0x44444444
    s_mov_b32 s36, 0x88888888
    s_mov_b32 s37, 0x88888888
    """)
STAT_BYTES = 2560 + 512 + 2600

def stats_extract(e, s, vSG, vSS, t, tag, vSTW=45):
    e(f"""
    v_cndmask_b32_e64 v{t}, v{vSG}, v{vSG+1}, s[32:33]
    v_cndmask_b32_e64 v{t}, v{t}, v{vSG+2}, s[34:35]
    v_cndmask_b32_e64 v{t}, v{t}, v{vSG+3}, s[36:37]
    """)
    e.i(f"ds_write_b32 v{vSTW}, v{vSS} offset:{s*512}")
    e.i(f"ds_write_b32 v{vSTW}, v{t} offset:{s*512 + 16}", lds=tag)

def stats_read(e, s, a, tag, vSTR=46):
    e.i(f"ds_read_b128 {vr(a,4)}, v{vSTR} offset:{s*512}")
    e.i(f"ds_read_b128 {vr(a+4,4)}, v{vSTR} offset:{s*512+16}", lds=tag)

def stats_math(a, vR, vN):
    return f"""
    v_add_f32 v{a}, v{a}, v{a+1}
    v_add_f32 v{a+4}, v{a+4}, v{a+5}
    v_add_f32 v{a+2}, v{a+2}, v{a+3}
    v_add_f32 v{a+6}, v{a+6}, v{a+7}
    v_add_f32 v{a}, v{a}, v{a+2}
    v_add_f32 v{a+4}, v{a+4}, v{a+6}
    v_mul_f32 v{a}, {f32(1.0/512)}, v{a}
    v_mul_f32 v{a+4}, {f32(1.0/512)}, v{a+4}
    v_fma_f32 v{a+4}, -v{a}, v{a}, v{a+4}
    v_max_f32 v{a+4}, 0, v{a+4}
    v_add_f32 v{a+4}, {f32(1e-5)}, v{a+4}
    v_rsq_f32 v{vR}, v{a+4}
    v_sub_f32 v{a}, 0, v{a}
    v_mul_f32 v{vN}, v{a}, v{vR}
    """.strip().split("\n")

def ln_epi(e, acc, R, N, CS, pk, tmp):
    for r in range(4): e(f"v_mul_f32 v{tmp+r}, v{N[r]}, v{CS[r]}")
    for r in range(4): e(f"v_fma_f32 v{tmp+r}, v{acc+r}, v{R[r]}, v{tmp+r}")
    e(f"v_cvt_pk_bf16_f32 v{pk}, v{tmp}, v{tmp+1}")
    e(f"v_cvt_pk_bf16_f32 v{pk+1}, v{tmp+2}, v{tmp+3}")

def flag_value(st):
    st(f"v_mov_b32 v{vFLO}, s{sTLO}\nv_mov_b32 v{vFLO+1}, s{sTHI}")

vFLA = 61
def sync_publish(st, e, name, slow, pre=None):
    if pre: pre(st)
    st(f"""
    s_waitcnt vmcnt(0)
    s_barrier
    s_cmp_lg_u32 s22, 0
    s_cbranch_scc1 L_np{e}_{name}
    s_lshl_b32 s23, s20, 7
    s_lshl_b32 s28, s21, 3
    s_add_u32 s23, s23, s28
    s_add_u32 s23, s23, s{sFLAG}
    s_add_u32 s23, s23, {e*0x1000}
    v_mov_b32 v{vFLA}, 0
    """)
    flag_value(st)
    st(f"s_mov_b64 vcc, s[{slow}:{slow+1}]\ns_mov_b64 exec, 1")
    dstore(st, f"buffer_store_dwordx2 v[{vFLO}:{vFLO+1}], v{vFLA}, s[8:11], s23 offen")
    st("s_mov_b64 exec, -1")
    st.label(f"L_np{e}_{name}")

def poll_pairs(st, label, regs, loads, sleep=False):
    st(f"s_mov_b32 s{sSPIN}, 0x10000")
    st.label(label)
    if sleep: st(f"s_sleep {2 if sleep is True else sleep}")
    for l in loads: st(l)
    st("s_waitcnt vmcnt(0)")
    check_pairs(st, regs)
    st(f"""
    s_sub_u32 s{sSPIN}, s{sSPIN}, 1
    s_cmp_eq_u32 s{sSPIN}, 0
    s_cbranch_scc1 {label}_d
    s_cbranch_vccnz {label}
    """)
    st.label(label + "_d")

def check_pairs(st, regs):
    for k, r in enumerate(regs):
        if k == 0: st(f"v_cmp_ne_u32 vcc, s{sTLO}, v{r}")
        else: st(f"v_cmp_ne_u32 s[28:29], s{sTLO}, v{r}\ns_or_b64 vcc, vcc, s[28:29]")
        st(f"v_cmp_ne_u32 s[28:29], s{sTHI}, v{r+1}\ns_or_b64 vcc, vcc, s[28:29]")

def sync_wait(st, e, name, halo=False, slow=None):
    st(f"""
    v_and_b32 v{vFLA}, 7, v0
    v_lshlrev_b32 v{vFLA}, 3, v{vFLA}
    s_lshl_b32 s23, s20, 7
    """)
    if halo:
        st(f"""
        s_sub_u32 s28, s20, 1
        s_max_i32 s28, s28, 0
        s_lshl_b32 s28, s28, 7
        s_sub_u32 s28, s28, s23
        v_bfe_u32 v{vFLO}, v0, 3, 1
        v_mul_lo_u32 v{vFLO}, v{vFLO}, s28
        v_add_u32 v{vFLA}, v{vFLA}, v{vFLO}
        """)
    st(f"""
    v_add_u32 v{vFLA}, s23, v{vFLA}
    s_add_u32 s23, s{sFLAG}, {e*0x1000}
    """)
    poll_pairs(st, f"L_poll{e}_{name}", [vFLO], [f"buffer_load_dwordx2 v[{vFLO}:{vFLO+1}], v{vFLA}, s[8:11], s23 offen sc1"])
    if slow is not None: st(f"s_mov_b64 vcc, s[{slow}:{slow+1}]")
    stamp(st)

def wg_flag_store(e, off_expr, lo_add=None, regs=None, replicas=1):
    vA, vV = regs or (61, 62)
    e(f"""
    s_lshl_b32 s28, s20, 3
    s_add_u32 s28, s28, s21
    s_lshl_b32 s28, s28, 3
    s_add_u32 s28, s28, {off_expr}
    v_lshlrev_b32 v{vA}, 11, v0
    v_mov_b32 v{vV}, s{sTLO if lo_add is None else lo_add}
    v_mov_b32 v{vV+1}, s{sTHI}
    s_cmp_eq_u32 s22, 0
    s_cselect_b64 exec, {(1 << replicas) - 1 if replicas < 7 else hex((1 << replicas) - 1)}, 0
    """)
    e.i(f"buffer_store_dwordx2 v[{vV}:{vV+1}], v{vA}, s[8:11], s28 offen sc1")
    e("s_mov_b64 exec, -1")

def w0_exec(e):
    e("s_cmp_eq_u32 s22, 0\ns_cselect_b64 exec, -1, 0")

vXCA, vXCV = 13, 14
def xcc_publish(st):
    if not FAST: return
    st(f"""
    s_getreg_b32 s39, hwreg(HW_REG_XCC_ID)
    s_and_b32 s39, s39, 7
    s_add_u32 s39, s39, 16
    s_add_u32 s39, s39, s{sTLO}
    """)
    wg_flag_store(st, f"{XCCT}", lo_add=39)
    st(f"s_mov_b32 s{sXCC}, s39")
sXCC = 95

def xcc_issue():
    e = St()
    e(f"""
    v_and_b32 v{vXCA}, 7, v0
    s_add_u32 s28, s20, 1
    s_min_u32 s28, s28, 31
    s_sub_u32 s28, s28, s20
    s_lshl_b32 s28, s28, 3
    v_bfe_u32 v{vXCV}, v0, 3, 1
    v_mul_lo_u32 v{vXCV}, v{vXCV}, s28
    v_add_u32 v{vXCA}, v{vXCA}, v{vXCV}
    s_lshl_b32 s28, s20, 3
    v_add_u32 v{vXCA}, s28, v{vXCA}
    v_lshlrev_b32 v{vXCA}, 3, v{vXCA}
    s_mov_b32 s38, {XCCT}
    """)
    e2 = St()
    e2.i(f"buffer_load_dwordx2 v[{vXCV}:{vXCV+1}], v{vXCA}, s[8:11], s38 offen sc1", vm="xcc")
    return [e, e2]

def xcc_check(st, name):
    if not FAST:
        st("s_waitcnt vmcnt(1)")
        st(f"s_mov_b64 s[{sSLOWA}:{sSLOWA+1}], -1\ns_mov_b64 s[{sSLOWB}:{sSLOWB+1}], -1"); return
    def chk():
        st(f"""
        v_subrev_u32 v9, s{sTLO}, v{vXCV}
        v_subrev_u32 v9, 16, v9
        v_cmp_le_u32 vcc, 8, v9
        v_cmp_ne_u32 s[28:29], s{sTHI}, v{vXCV+1}
        s_or_b64 vcc, vcc, s[28:29]
        """)
    st.wv("xcc")
    chk()
    st(f"s_mov_b32 s{sSPIN}, 0x10000\ns_cbranch_vccz L_xd_{name}")
    st("; RARE_BEGIN")
    st.label(f"L_xp_{name}")
    st(f"buffer_load_dwordx2 v[{vXCV}:{vXCV+1}], v{vXCA}, s[8:11], s38 offen sc1\ns_waitcnt vmcnt(0)")
    chk()
    st(f"""
    s_sub_u32 s{sSPIN}, s{sSPIN}, 1
    s_cmp_eq_u32 s{sSPIN}, 0
    s_cbranch_scc1 L_xd_{name}
    s_cbranch_vccnz L_xp_{name}
    """)
    st("; RARE_END")
    st.label(f"L_xd_{name}")
    st(f"""
    v_cmp_ne_u32 s[{sSLOWB}:{sSLOWB+1}], s{sXCC}, v{vXCV}
    s_nop 1
    s_and_b32 s{sSLOWA}, s{sSLOWB}, 0xff
    s_mov_b32 s{sSLOWA+1}, 0
    """)
    if "forceslow" in OPT:
        st(f"s_mov_b64 s[{sSLOWA}:{sSLOWA+1}], -1\ns_mov_b64 s[{sSLOWB}:{sSLOWB+1}], -1")

def dma_slots(st, ns, xb, sSrc, tile_of_slot, tag):
    st(f"""
    s_mul_i32 s25, s22, {ns*4096}
    s_add_u32 s25, s25, {xb}
    s_lshl_b32 s24, s22, 12
    s_add_u32 s24, s24, {sSrc}
    """)
    slots = []
    for s in range(ns):
        L = []
        for q in range(4):
            e = St()
            if q == 0:
                tile_of_slot(e, s)
                e(f"s_lshl_b32 s23, s23, 14\ns_add_u32 s27, s23, s24\ns_add_u32 m0, s25, {s*4096}")
            e.i(f"buffer_load_dwordx4 v{vL16}, s[8:11], s27 offen offset:{q*1024} sc1 lds", vm=f"{tag}{s}_{q}")
            L.append(e)
        slots.append(L)
    return slots

def gemm_steps(ns, chains, tagx, dma, upfront, stats=None, fine=None, wtags=None, pre_mid=None, lay=(4096, 1024), arrive=True):
    steps = []
    total = ns * 16
    def rd(idx):
        s, jj = divmod(idx, 16)
        return f"ds_read_b128 {vr(vRING + 4*(idx % RING), 4)}, v{vXA + (jj >> 2)} offset:{s*lay[0] + (jj & 3)*lay[1]}"
    pre = St()
    for s in range(upfront):
        for e in dma[s]: pre.ext(e)
        if s == 0 and pre_mid is not None: pre.ext(pre_mid)
        if s + 1 < upfront: pre("s_barrier")
    stamp(pre, fine)
    steps.append(pre)
    pre2 = St()
    if arrive:
        pre2.wv(f"{tagx}0_3")
        pre2("s_barrier")
    stamp(pre2, fine)
    for idx in range(RING): pre2.i(rd(idx), lds=f"x{idx}")
    steps.append(pre2)
    for idx in range(total):
        s, jj = divmod(idx, 16)
        stp = St()
        ring = vRING + 4 * (idx % RING)
        if wtags and s == 0 and jj % 4 == 0: stp.wv(wtags[jj // 4])
        multi = len(chains(s)) >= 2
        if (idx % 2 == 0 and not multi) or idx == 0: stp.wl(f"x{min(idx+1, total-1)}")
        for ci, (acc, w, w_is_A) in enumerate(chains(s)):
            wreg = rr((w[0], w[1] + 4 * jj), 4)
            c = "0" if jj == 0 and acc[1] else vr(acc[0], 4)
            if w_is_A: stp(f"v_mfma_f32_16x16x32_bf16 {vr(acc[0],4)}, {wreg}, {vr(ring,4)}, {c}")
            else:      stp(f"v_mfma_f32_16x16x32_bf16 {vr(acc[0],4)}, {vr(ring,4)}, {wreg}, {c}")
            if multi and ci == 0 and idx % 2 == 1 and idx + 1 < total: stp.wl(f"x{min(idx+2, total-1)}")
        if stats and jj < 4:
            sg, ss = stats(s)
            stp(f"v_mfma_f32_16x16x32_bf16 {vr(sg,4)}, {vr(ring,4)}, {vr(ring,4)}, {'0' if jj == 0 else vr(sg,4)}")
            stp(f"v_mfma_f32_16x16x32_bf16 {vr(ss,4)}, {vr(vONES,4)}, {vr(ring,4)}, {'0' if jj == 0 else vr(ss,4)}")
        nxt = idx + RING
        if nxt < total:
            if nxt % 16 == 0 and arrive:
                stp.it.append(("mark", f"bar{s}", None, None))
                stp.wv(f"{tagx}{nxt//16}_3")
                stp("s_barrier")
            stp.i(rd(nxt), lds=f"x{nxt}")
        sd = s + upfront
        if sd < ns and jj < 4: stp.ext(dma[sd][jj])
        if jj == 15 or jj == 7: stamp(stp, fine)
        steps.append(stp)
    return steps

COSTW = 'nocostw' not in OPT
BUDGET = int(os.environ.get('BUDGET', '8'))
def weave2(steps, progs, per=2):
    out = St()
    qs = [list(p) for p in progs]
    skip = [0] * len(qs)
    def emit_forced(name):
        for qi, q in enumerate(qs):
            last = max([i for i, (ms, it) in enumerate(q) if it[0] == "before" and it[1] == name], default=-1)
            for _ in range(last + 1):
                ms, it = q.pop(0)
                if it[0] not in ("gap", "before"): out.it.append(it)
    def cost(x):
        if x[0] in ("grp", "grpv"): return 4 * len(x[1])
        if x[0] != "i": return 0
        op = x[1].split()[0]
        if op.endswith(":"): return 0
        if op.startswith("v_mfma"): return 8
        if op in ("v_exp_f32", "v_rcp_f32", "v_rsq_f32") or op.startswith("v_permlane"): return 8
        if op.startswith("ds_"): return 6
        if op.startswith("s_"): return 2
        return 4
    avail = 0
    for si, stp in enumerate(steps):
        items = list(stp.it)
        k = 0
        while k < len(items):
            it = items[k]; k += 1
            if it[0] == "mark":
                emit_forced(it[1]); avail = 0; continue
            out.it.append(it)
            if it[0] == "i" and it[1].startswith("v_mfma"):
                avail = min(avail + BUDGET, 2 * BUDGET) if COSTW else 0
                if k < len(items) and items[k][0] == "i" and items[k][1].startswith("ds_read"):
                    out.it.append(items[k]); k += 1
                    avail -= 4
                n = 0
                for qi, q in enumerate(qs):
                    if skip[qi] > 0:
                        skip[qi] -= 1; continue
                    while q and q[0][0] <= si:
                        x = q[0][1]
                        if COSTW:
                            if cost(x) > avail and not (cost(x) > 2 * BUDGET and avail >= BUDGET): break
                        elif n >= per: break
                        q.pop(0)
                        if x[0] == "gap":
                            skip[qi] = x[1]; break
                        if x[0] == "before": continue
                        out.it.append(x)
                        avail -= cost(x)
                        if x[0] in ("i", "grp", "grpv"): n += 1
    for q in qs:
        for ms, x in q:
            if x[0] not in ("gap", "before"): out.it.append(x)
    return out

def prog(ms, st_): return [(ms, it) for it in st_.it]
def strip_marks(st_):
    o = St(); o.it = [it for it in st_.it if it[0] != "mark"]; return o

def phase_kv(st, name, layer_out, src, kvb, sregs=(28, 29, 30, 31)):
    XR = 64
    accK, accV, SG, SS = 80, 84, 96, 100
    csK, csV = 112, 116
    vA0, vA1, vKW, vKR = 104, 105, 106, 107
    t = vTMP
    sb = kvb + 8192
    kA, kW, kR, kP = sregs
    def first(e):
        stats_setup(e, sb, (kA, kW, kR, kP))
        e(f"""
        s_lshl_b32 s44, s20, 2
        s_lshr_b32 s28, s21, 1
        s_add_u32 s44, s44, s28
        """)
    def xloads(e):
        if src == "lds":
            e(f"""
            s_lshl_b32 s23, s21, 3
            s_and_b32 s23, s23, 0x30
            s_mul_i32 s23, s23, {XROW}
            s_lshl_b32 s28, s22, 8
            s_add_u32 s23, s23, s28
            s_add_u32 s23, s23, {XB_Q}
            v_mul_u32_u24 v{t+12}, {XROW}, v{vT}
            v_lshl_add_u32 v{t+12}, v{vG}, 4, v{t+12}
            v_add_u32 v{t+12}, s23, v{t+12}
            """)
            for q in range(4):
                e.i(f"ds_read_b128 {vr(XR+4*q,4)}, v{t+12} offset:{q*64}", lds=f"xk{q}")
        elif src == "row":
            e(f"""
            v_lshlrev_b32 v{t+12}, 10, v{vT}
            v_lshl_add_u32 v{t+12}, v{vG}, 4, v{t+12}
            s_lshl_b32 s23, s44, 14
            s_lshl_b32 s28, s22, 8
            s_add_u32 s23, s23, s28
            """)
            for q in range(4):
                e.i(f"buffer_load_dwordx4 {vr(XR+4*q,4)}, v{t+12}, s[12:15], s23 offen offset:{q*64}", vm=f"xk{q}")
        else:
            e(f"""
            s_lshl_b32 s23, s44, 14
            s_lshl_b32 s28, s22, 12
            s_add_u32 s23, s23, s28
            s_add_u32 s23, s23, {B0 + BS*layer_out + XIN}
            """)
            for q in range(4):
                e.i(f"buffer_load_dwordx4 {vr(XR+4*q,4)}, v{vL16}, s[8:11], s23 offen offset:{q*1024} sc1", vm=f"xk{q}")
    def setup(e):
        e(f"""
        s_bitcmp1_b32 s21, 0
        s_cselect_b64 s[38:39], -1, 0
        v_lshrrev_b32 v{t}, 1, v{vG}
        v_and_b32 v{t+1}, 1, v{vG}
        v_lshlrev_b32 v{t+2}, 9, v{t}
        v_lshl_add_u32 v{t+2}, v{vT}, 4, v{t+2}
        v_lshl_add_u32 v{t+2}, v{t+1}, 3, v{t+2}
        v_lshlrev_b32 v{t+4}, 8, v{t+1}
        v_lshl_add_u32 v{t+4}, v{vT}, 4, v{t+4}
        v_lshl_add_u32 v{t+4}, v{t}, 3, v{t+4}
        v_cndmask_b32_e64 v{vA0}, v{t+2}, v{t+4}, s[38:39]
        s_lshl_b32 s23, s22, 11
        s_add_u32 s23, s23, {kvb}
        v_add_u32 v{vKW}, s23, v{vL16}
        v_add_u32 v{vKR}, {kvb}, v{vL16}
        s_lshr_b32 s23, s44, 1
        s_lshl_b32 s23, s23, 10
        s_and_b32 s28, s44, 1
        s_lshl_b32 s29, s28, 8
        s_add_u32 s29, s29, {KF0 + KVS*layer_out}
        s_lshl_b32 s28, s28, 9
        s_add_u32 s28, s28, {VF0 + KVS*layer_out}
        s_bitcmp1_b32 s21, 0
        s_cselect_b32 s28, s28, s29
        s_add_u32 s59, s23, s28
        """)
    def cs(e):
        for jj in range(4):
            w = rr((W_KV[0], W_KV[1] + 4 * jj), 4)
            e(f"v_mfma_f32_16x16x32_bf16 {vr(csK,4)}, {w}, {vr(vONES,4)}, {'0' if jj == 0 else vr(csK,4)}")
            e(f"v_mfma_f32_16x16x32_bf16 {vr(csV,4)}, {vr(vONES,4)}, {w}, {'0' if jj == 0 else vr(csV,4)}")
        for r in range(4): e(f"v_cndmask_b32_e64 v{csK+r}, v{csK+r}, v{csV}, s[38:39]")
        e.i(f"ds_write_b128 v{vKW}, {vr(csK,4)} offset:1024")
    def main(e):
        for q in range(4):
            if src == "lds": e.wl(f"xk{q}")
            else: e.wv(f"xk{q}")
            w = rr((W_KV[0], W_KV[1] + 4 * q), 4); x = vr(XR + 4 * q, 4)
            z = lambda r: "0" if q == 0 else vr(r, 4)
            e(f"v_mfma_f32_16x16x32_bf16 {vr(SG,4)}, {x}, {x}, {z(SG)}")
            e(f"v_mfma_f32_16x16x32_bf16 {vr(SS,4)}, {vr(vONES,4)}, {x}, {z(SS)}")
            e(f"v_mfma_f32_16x16x32_bf16 {vr(accK,4)}, {w}, {x}, {z(accK)}")
            e(f"v_mfma_f32_16x16x32_bf16 {vr(accV,4)}, {x}, {w}, {z(accV)}")
        stats_extract(e, 0, SG, SS, t, "ksw", kW)
        for r in range(4): e(f"v_cndmask_b32_e64 v{accK+r}, v{accK+r}, v{accV+r}, s[38:39]")
        e.i(f"ds_write_b128 v{vKW}, {vr(accK,4)}", lds="kaw")
        e("s_waitcnt lgkmcnt(0)\ns_barrier")
        stats_read(e, 0, t, "ksr", kR)
        F = 108
        for w in range(4): e.i(f"ds_read_b128 {vr(F+4*w,4)}, v{vKR} offset:{w*2048}")
        for w in range(4): e.i(f"ds_read_b128 {vr(F+16+4*w,4)}, v{vKR} offset:{w*2048+1024}", lds=f"kr{w}")
        e.wl("ksr")
        R, N = 140, 141
        for x in stats_math(t, R, N): e(x)
        e.i(f"ds_write_b32 v{kA}, v{R}")
        e.i(f"ds_write_b32 v{kA}, v{N} offset:64", lds="kpw")
        e.wl("kpw")
        R4, N4 = 144, 148
        e.i(f"ds_read_b128 {vr(R4,4)}, v{kP}")
        e.i(f"ds_read_b128 {vr(N4,4)}, v{kP} offset:64", lds="kpr")
        for b in (F, F + 16):
            for r in range(4): e(f"v_add_f32 v{b+r}, v{b+r}, v{b+4+r}\nv_add_f32 v{b+8+r}, v{b+8+r}, v{b+12+r}")
            for r in range(4): e(f"v_add_f32 v{b+r}, v{b+r}, v{b+8+r}")
        e.wl("kpr")
        for r in range(4):
            e(f"v_cndmask_b32_e64 v{R4+r}, v{R}, v{R4+r}, s[38:39]\nv_cndmask_b32_e64 v{N4+r}, v{N}, v{N4+r}, s[38:39]")
        ln_epi(e, F, [R4+r for r in range(4)], [N4+r for r in range(4)], [F+16+r for r in range(4)], 152, 154)
        e("s_cmp_eq_u32 s22, 0\ns_cselect_b64 exec, -1, 0")
        e.i(f"buffer_store_dwordx2 v[152:153], v{vA0}, s[8:11], s59 offen sc1", vm="kvst")
        e("s_mov_b64 exec, -1")
    return first, xloads, setup, cs, main

LDS_K, LDS_V, VS = 0, 65536, 1056
SB_Q = XB_Q + 65536
SB_Q0 = XB_Q + 64 * XROW
SA, SB, OA_, OB_ = 16, 32, 48, 64
PA, PB, QA, QB, KB, VB = 80, 88, 96, 100, 104, 112
vK, vV0, vV1 = 2, 3, 4

def kv_group(gi, tag):
    out = []
    e = St(); e(f"s_add_u32 s23, s60, {gi*8192}\ns_add_u32 m0, s62, {gi*8192}")
    e.i(f"buffer_load_dwordx4 v{vL16}, s[8:11], s23 offen sc1 lds"); out.append(e)
    e = St(); e.i(f"buffer_load_dwordx4 v{vL16}, s[8:11], s23 offen offset:1024 sc1 lds"); out.append(e)
    e = St(); e(f"s_add_u32 s23, s61, {gi*8192}\ns_add_u32 m0, s63, {gi*8*VS}")
    e.i(f"buffer_load_dwordx4 v{vL16}, s[8:11], s23 offen sc1 lds"); out.append(e)
    e = St(); e(f"s_add_u32 m0, s63, {gi*8*VS + VS - 1024}")
    e.i(f"buffer_load_dwordx4 v{vL16}, s[8:11], s23 offen offset:1024 sc1 lds", vm=tag); out.append(e)
    return out

KVB = 147456
MAIN_LDS = 163840
vB0, vB1 = 158, 162
A_WQ, A_WKV, A_PREP, A_XC = 0, 64, 80, 92

def transpose(e, src, dst, tmp=16):
    e(f"v_mfma_f32_16x16x32_bf16 {vr(tmp,4)}, {src}, {vr(vB0,4)}, 0")
    e(f"v_mfma_f32_16x16x32_bf16 {vr(tmp+4,4)}, {src}, {vr(vB1,4)}, 0")
    e(f"""
    v_cvt_pk_bf16_f32 v{dst}, v{tmp}, v{tmp+1}
    v_cvt_pk_bf16_f32 v{dst+1}, v{tmp+2}, v{tmp+3}
    v_cvt_pk_bf16_f32 v{dst+2}, v{tmp+4}, v{tmp+5}
    v_cvt_pk_bf16_f32 v{dst+3}, v{tmp+6}, v{tmp+7}
    """)

def q_setup(st):
    xa_setup(st, 4, XB_Q)
    stats_setup(st, SB_Q)

def q_dma_act(st):
    dma = dma_slots(st, 4, XB_Q, f"s{sXIN}", lambda e, s: e(f"s_add_u32 s23, s26, {s}"), "xq")
    return dma

Q_ACC, Q_CS = 64, 124
Q_SG = [80, 84, 88, 92]; Q_SS = [104, 108, 112, 116]
KVF_LD = ["buffer_load_dwordx4 v[128:131], v60, s[8:11], s47 offen sc1", "buffer_load_dwordx4 v[132:135], v60, s[8:11], s47 offen offset:16 sc1"]

def q_gemm(st, first, dma=None, tailprog=None):
    ns = 4
    if first:
        steps = gemm_steps(ns, lambda s: [((Q_ACC + 4 * s, True), W_QA, True)], "xq", [[], [], [], []], 4,
                           stats=lambda s: (Q_SG[s], Q_SS[s]), fine="q", lay=(16 * XROW, 64), arrive=False)
    else:
        steps = gemm_steps(ns, lambda s: [((Q_ACC + 4 * s, True), W_QA, True)], "xq", [[], [], dma[2], dma[3]], 2,
                           stats=lambda s: (Q_SG[s], Q_SS[s]), fine="q")
    pa = []
    for s in range(ns):
        e = St(); stats_extract(e, s, Q_SG[s], Q_SS[s], vTMP, f"qsw{s}")
        pa += prog(16 * s + 6, e)
    pb = []
    PUBS = int(os.environ.get("PUBS", "12")); LOOK = int(os.environ.get("LOOK0" if first else "LOOK1", "40" if first else "56"))
    if not first:
        pub = St(); pub.wv("kvst")
        pub(f"s_lshl_b32 s29, s{sL}, 14\ns_add_u32 s29, s29, {KVFL}")
        g = St(); wg_flag_store(g, "s29", replicas=8)
        pub.it.append(("grpv", [it[1] for it in g.it], None, None))
        pb += prog(PUBS, pub)
    look = St()
    look(f"""
    v_lshlrev_b32 v60, 5, v0
    s_lshl_b32 s47, s{sL}, 14
    s_add_u32 s47, s47, {KVFL}
    s_lshr_b32 s28, s20, 2
    s_lshl_b32 s28, s28, 11
    s_add_u32 s47, s47, s28
    """)
    look.it.append(("grpv", ["s_cmp_eq_u32 s22, 0", "s_cselect_b64 exec, -1, 0", KVF_LD[0], KVF_LD[1], "s_mov_b64 exec, -1"], None, None))
    pb += prog(LOOK, look)
    csum = St(); colsum(csum, Q_CS, W_QA, True)
    st.ext(steps[1])
    st.ext(strip_marks(weave2(steps[2:], [pa, pb, prog(4, csum)], per=1)))
    if first:
        tailprog(st)
        st("s_waitcnt vmcnt(3)")
    else:
        st("s_waitcnt vmcnt(0)")

def q_tail(st, name):
    ns = 4
    st("s_waitcnt lgkmcnt(0)\ns_barrier")
    A8 = [16, 24, 32, 40]
    for s in range(ns): stats_read(st, s, A8[s], f"qsr{s}")
    stamp(st)
    w0_exec(st)
    check_pairs(st, [128, 130, 132, 134])
    st(f"s_cbranch_vccz L_kvok_{name}")
    st("; RARE_BEGIN")
    poll_pairs(st, f"L_kvp_{name}", [128, 130, 132, 134], KVF_LD, sleep=True)
    st("; RARE_END")
    st.label(f"L_kvok_{name}")
    st("s_mov_b64 exec, -1\ns_barrier")
    st(f"""
    s_lshl_b32 s62, s22, 11
    s_add_u32 s60, s62, s{sKF}
    s_add_u32 s61, s62, s{sVF}
    s_mul_i32 s63, s22, {2*VS}
    s_add_u32 s63, s63, {LDS_V}
    """)
    for e in kv_group(0, "c0"): st.ext(e)
    R = [48 + s for s in range(ns)]; N = [52 + s for s in range(ns)]
    st.wl("qsr3")
    maths = [stats_math(A8[s], R[s], N[s]) for s in range(ns)]
    for i in range(len(maths[0])):
        for s in range(ns): st(maths[s][i])
    for s in range(ns):
        st(f"v_mul_f32 v{R[s]}, {f32(CQ)}, v{R[s]}\nv_mul_f32 v{N[s]}, {f32(CQ)}, v{N[s]}")
    for s in range(ns):
        ln_epi(st, Q_ACC + 4 * s, [R[s]] * 4, [N[s]] * 4, [Q_CS + r for r in range(4)], QA + 2 * s, 16 + 4 * s)
    st(f"""
    v_permlane16_swap_b32 v{QA}, v{QA+2}
    v_permlane16_swap_b32 v{QA+1}, v{QA+3}
    v_permlane16_swap_b32 v{QB}, v{QB+2}
    v_permlane16_swap_b32 v{QB+1}, v{QB+3}
    """)

def prep_block(st, name):
    st(f"s_cmp_lg_u32 s{sL}, 0\ns_cbranch_scc1 L_noprep_{name}")
    st(f"s_lshl_b32 s46, s2, 2\ns_add_u32 s46, s46, s22")
    for i in range(3):
        transpose(st, ar(A_PREP + 4 * i, 4), 136 + 4 * i, tmp=128)
        st(f"""
        s_add_u32 s27, s46, {1024*i}
        s_cmp_lt_u32 s27, 2560
        s_cselect_b64 exec, -1, 0
        s_add_u32 s27, s27, 512
        s_lshl_b32 s27, s27, 10
        """)
        st(f"buffer_store_dwordx4 {vr(136+4*i,4)}, v{vL16}, s[8:11], s27 offen sc1")
        st("s_mov_b64 exec, -1")
    st.label(f"L_noprep_{name}")

def phase_att(st, name):
    st(f"""
    v_mov_b32 v{vK}, v{vL16}
    v_and_b32 v5, 31, v0
    v_lshrrev_b32 v6, 5, v0
    v_lshlrev_b32 v7, 8, v6
    v_lshl_add_u32 v7, v5, 4, v7
    v_add_u32 v7, {LDS_V}, v7
    v_mov_b32 v16, {LDS_V + 1024 + 16}
    v_mov_b32 v17, {LDS_V + 1024}
    v_and_b32 v18, 27, v5
    v_cmp_eq_u32 s[28:29], 16, v18
    v_cndmask_b32_e64 v16, v16, v17, s[28:29]
    v_cmp_gt_u32 s[28:29], 16, v5
    v_cndmask_b32_e64 v{vV0}, v16, v7, s[28:29]
    v_add_u32 v7, 512, v7
    v_cndmask_b32_e64 v{vV1}, v16, v7, s[28:29]
    v_mov_b32 v16, 0x3f803f80
    v_mov_b32 v17, v16
    v_mov_b32 v18, v16
    v_mov_b32 v19, v16
    v_mul_u32_u24 v20, {VS}, v0
    v_add_u32 v20, {LDS_V + 1024}, v20
    s_cmp_lg_u32 s22, 0
    s_cbranch_scc1 L_noones_{name}
    ds_write_b128 v20, v[16:19]
    v_mov_b32 v16, 0
    v_mov_b32 v17, 0
    v_mov_b32 v18, 0
    v_mov_b32 v19, 0
    ds_write_b128 v20, v[16:19] offset:16
    """)
    st.label(f"L_noones_{name}")
    st(f"""
    v_and_b32 v9, 15, v0
    v_lshrrev_b32 v10, 4, v0
    s_lshl_b32 s23, s21, 11
    s_lshr_b32 s28, s22, 1
    s_lshl_b32 s28, s28, 10
    s_add_u32 s23, s23, s28
    s_and_b32 s28, s22, 1
    s_lshl_b32 s28, s28, 9
    s_add_u32 s23, s23, s28
    v_lshrrev_b32 v11, 1, v10
    v_lshlrev_b32 v11, 8, v11
    v_lshl_add_u32 v11, v9, 4, v11
    v_and_b32 v8, 1, v10
    v_lshl_add_u32 v8, v8, 3, v11
    v_add_u32 v8, s23, v8
    s_lshl_b32 s59, s20, 16
    s_add_u32 s59, s59, s{sXIN}
    """)
    def init_acc(s):
        for r in range(16): s(f"v_mov_b32 v{OA_+r}, 0\nv_mov_b32 v{OB_+r}, 0")
    def rdK(t, base): return f"ds_read_b128 {vr(KB + 4*(t&1),4)}, v{vK} offset:{(t-base)*1024}"
    def rdV(t, base):
        b = VB + 8 * (t & 1)
        return [f"ds_read_b128 {vr(b,4)}, v{vV0} offset:{(t-base)*VS}", f"ds_read_b128 {vr(b+4,4)}, v{vV1} offset:{(t-base)*VS}"]
    def qk(S, t, Q): return f"v_mfma_f32_32x32x16_bf16 {vr(S,16)}, {vr(KB + 4*(t&1),4)}, {vr(Q,4)}, 0"
    def pv(O, t, P):
        b = VB + 8 * (t & 1)
        return [f"v_mfma_f32_32x32x16_bf16 {vr(O,16)}, {vr(b,4)}, {vr(P,4)}, {vr(O,16)}",
                f"v_mfma_f32_32x32x16_bf16 {vr(O,16)}, {vr(b+4,4)}, {vr(P+4,4)}, {vr(O,16)}"]
    def softmax(S, P, M):
        ins = []
        if M is not None:
            for r in range(16): ins.append(f"v_sub_f32 v{S+r}, v{S+r}, v{M}")
        for i in range(8):
            ins.append(f"v_exp_f32 v{S+2*i}, v{S+2*i}")
            ins.append(f"v_exp_f32 v{S+2*i+1}, v{S+2*i+1}")
            if i > 0: ins.append(f"v_cvt_pk_bf16_f32 v{P+i-1}, v{S+2*i-2}, v{S+2*i-1}")
        ins.append(f"v_cvt_pk_bf16_f32 v{P+7}, v{S+14}, v{S+15}")
        return ins
    def mix(s, valu, groups):
        n = len(valu); k = len(groups)
        for j in range(k):
            for x in groups[j]:
                if isinstance(x, St): s.ext(x)
                else: s(x)
            for x in valu[j * n // k:(j + 1) * n // k]: s(x)
    def iteration(s, t, nt, base, extras, safe=None, first=False, rolled=False):
        MA, MB = safe if safe else (None, None)
        ex = list(extras)
        def pop(): return [ex.pop(0)] if ex else []
        g1 = [[qk(SB, t, QB)] + ([rdK(t + 2, base)] if (rolled or t + 2 < nt) else [])]
        pvb = [] if first else pv(OB_, t - 1, PB)
        rv = rdV(t + 1, base) if (rolled or t + 1 < nt) else []
        if pvb:
            g1.append([pvb[0]] + rv[:1]); g1.append([pvb[1]] + rv[1:])
        else:
            g1.append(rv)
        mix(s, softmax(SA, PA, MA), g1)
        pva = pv(OA_, t, PA)
        g2 = [([qk(SA, t + 1, QA)] if (rolled or t + 1 < nt) else []) + pop(), [pva[0]] + pop(), [pva[1], "s_waitcnt lgkmcnt(0)"]]
        mix(s, softmax(SB, PB, MB), g2)
        for x in ex: s.ext(x)
    def first_reads(s):
        s(rdK(0, 0)); s(rdK(1, 0))
        for x in rdV(0, 0): s(x)
        s("s_waitcnt lgkmcnt(0)")
        s(qk(SA, 0, QA))
    init_acc(st)
    st.wv("c0")
    st("s_waitcnt lgkmcnt(0)\ns_barrier")
    prep_block(st, name)
    first_reads(st)
    stamp(st)
    extras = {t: [] for t in range(64)}
    for gi in range(1, 8): extras[gi - 1] += kv_group(gi, f"kv{gi}")
    prep_ld = [f"buffer_load_dwordx4 v[128:131], v136, s[8:11], s47 offen sc1", f"buffer_load_dwordx4 v[132:135], v136, s[8:11], s47 offen offset:16 sc1"]
    e = St(); e(f"v_lshlrev_b32 v136, 5, v0\ns_lshr_b32 s47, s20, 2\ns_lshl_b32 s47, s47, 11\ns_add_u32 s47, s47, {PREPF}")
    w0_exec(e); e.i(prep_ld[0]); e.i(prep_ld[1], vm="prepf"); e("s_mov_b64 exec, -1"); extras[11].append(e)
    pre = []
    pre += w_loads(W_O, T_WOA, "woa")
    e = St()
    e(f"s_cmp_eq_u32 s{sL}, 1\ns_cselect_b64 exec, -1, 0")
    for q in range(4):
        if q: e("s_add_u32 s59, s59, 16384")
        e.i(f"buffer_load_dwordx2 {vr(vRES+2*q,2)}, v8, s[8:11], s59 offen sc1")
    e("s_mov_b64 exec, -1")
    pre.append(e)
    pre += w_loads(W_Q2, T_WQKV, "wq2")
    pre += w_loads(W_K2, T_WQKV + 32, "wk2")
    pre += w_loads(W_V2, T_WQKV + 64, "wv2")
    if FAST: pre += xcc_issue()
    t = 14
    while pre:
        extras[t] += pre[:2]; pre = pre[2:]; t += 1
    warm = []
    if "nowarm" not in OPT:
        e = St()
        e(f"""
        v_lshrrev_b32 v9, 4, v0
        v_bfe_u32 v10, v0, 2, 2
        v_and_b32 v11, 3, v0
        v_lshlrev_b32 v10, 14, v10
        v_lshl_add_u32 v10, v11, 7, v10
        s_lshl_b32 s28, s21, 11
        s_lshl_b32 s29, s22, 9
        s_add_u32 s28, s28, s29
        s_lshl_b32 s29, s20, 16
        s_add_u32 s28, s28, s29
        v_add_u32 v10, s28, v10
        v_add_u32 v9, 1, v9
        v_lshlrev_b32 v9, 21, v9
        v_add_u32 v10, v10, v9
        """)
        e.i(f"buffer_load_dword v253, v10, s[8:11], s{sXIN} offen".replace("v253", "v137"))
        warm = [e]
    if "wbl2" in OPT:
        e = St()
        lines = [f"s_lshr_b32 s28, s2, 3", f"s_or_b32 s28, s28, s22", f"s_xor_b32 s29, s{sL}, 1", "s_or_b32 s28, s28, s29", "s_cmp_lg_u32 s28, 0",
                 "s_cbranch_scc1 L_nowb", "buffer_wbl2 sc1", "L_nowb:"]
        e.it.append(("grp", lines, None, None))
        extras[15].append(e)
    WT = int(os.environ.get("WARMT", t))
    extras[WT] += warm
    assert t <= 62
    base = 0
    for t in range(64):
        if t == 6:
            st.wv("kv1"); st("s_barrier")
            wg_flag_store(st, f"{PREPF}", regs=(138, 140), replicas=8)
        if t == 14:
            st.wv("kv7"); st.wv("prepf")
            w0_exec(st)
            check_pairs(st, [128, 130, 132, 134])
            st(f"s_cbranch_vccz L_prepok_{name}")
            st("; RARE_BEGIN")
            poll_pairs(st, f"L_prepp_{name}", [128, 130, 132, 134], prep_ld, sleep=True)
            st("; RARE_END")
            st.label(f"L_prepok_{name}")
            st("s_mov_b64 exec, -1\ns_barrier")
        if t == 32:
            st(f"v_add_u32 v{vK}, {32*1024}, v{vK}\nv_add_u32 v{vV0}, {32*VS}, v{vV0}\nv_add_u32 v{vV1}, {32*VS}, v{vV1}")
            base = 32
        if t in (0, 6, 8, 14, 16, 22, 30, 38, 46, 52, 58): stamp(st, "a")
        iteration(st, t, 64, base, extras[t], first=(t == 0))
    stamp(st, "a")
    stamp(st)
    def tail(s):
        for x in pv(OB_, 63, PB): s(x)
    lA, lB = OA_ + 8, OB_ + 8
    tail(st)
    xcc_check(st, name)
    st(f"v_mul_f32 v9, 0, v{OA_}\nv_mul_f32 v10, 0, v{OB_}")
    for r in range(1, 8):
        st(f"v_fma_f32 v9, v{OA_+r}, 0, v9\nv_fma_f32 v10, v{OB_+r}, 0, v10")
    st(f"""
    v_add_f32 v9, v9, v10
    v_min_f32 v10, v{lA}, v{lB}
    v_max_f32 v11, v{lA}, v{lB}
    v_add_f32 v10, v10, v9
    v_add_f32 v11, v11, v9
    v_cmp_u_f32 s[28:29], v{lA}, v{lB}
    v_mov_b32 v20, {f32(2.0**-40)}
    v_cmp_nge_f32 vcc, v10, v20
    s_or_b64 s[28:29], s[28:29], vcc
    v_mov_b32 v20, {f32(2.0**100)}
    v_cmp_nle_f32 vcc, v11, v20
    s_or_b64 s[28:29], s[28:29], vcc
    s_cmp_eq_u64 s[28:29], 0
    s_cbranch_scc1 L_attok_{name}
    """)
    st("; RARE_BEGIN")
    MA, MB = 9, 10
    st(f"""
    v_subrev_u32 v{vK}, {32*1024}, v{vK}
    v_subrev_u32 v{vV0}, {32*VS}, v{vV0}
    v_subrev_u32 v{vV1}, {32*VS}, v{vV1}
    v_mov_b32 v{MA}, {f32(-3.0e38)}
    v_mov_b32 v{MB}, {f32(-3.0e38)}
    v_mov_b32 v11, v{vK}
    s_mov_b32 s44, 0
    """)
    st.label(f"L_max_{name}")
    st(f"""
    ds_read_b128 {vr(KB,4)}, v11
    s_waitcnt lgkmcnt(0)
    v_mfma_f32_32x32x16_bf16 {vr(SA,16)}, {vr(KB,4)}, {vr(QA,4)}, 0
    v_mfma_f32_32x32x16_bf16 {vr(SB,16)}, {vr(KB,4)}, {vr(QB,4)}, 0
    v_add_u32 v11, 1024, v11
    """)
    for r in range(0, 16, 2): st(f"v_max3_f32 v{MA}, v{MA}, v{SA+r}, v{SA+r+1}")
    for r in range(0, 16, 2): st(f"v_max3_f32 v{MB}, v{MB}, v{SB+r}, v{SB+r+1}")
    st(f"""
    s_add_u32 s44, s44, 1
    s_cmp_lt_u32 s44, 64
    s_cbranch_scc1 L_max_{name}
    v_mov_b32 v11, v{MA}
    v_permlane32_swap_b32 v11, v{MA}
    v_max_f32 v{MA}, v{MA}, v11
    v_mov_b32 v11, v{MB}
    v_permlane32_swap_b32 v11, v{MB}
    v_max_f32 v{MB}, v{MB}, v11
    """)
    init_acc(st)
    for r in range(8): st(f"v_mov_b32 v{PB+r}, 0\nv_mov_b32 v{VB+8+r}, 0")
    first_reads(st)
    st("s_mov_b32 s44, 0")
    st.label(f"L_att2_{name}")
    for u in range(2):
        iteration(st, u + 2, 64, 2, [], safe=(MA, MB), rolled=True)
    st(f"""
    v_add_u32 v{vK}, {2*1024}, v{vK}
    v_add_u32 v{vV0}, {2*VS}, v{vV0}
    v_add_u32 v{vV1}, {2*VS}, v{vV1}
    s_add_u32 s44, s44, 1
    s_cmp_lt_u32 s44, 32
    s_cbranch_scc1 L_att2_{name}
    """)
    tail(st)
    st("; RARE_END")
    st.label(f"L_attok_{name}")
    st(f"""
    s_lshl_b32 s23, s21, 11
    s_lshr_b32 s24, s22, 1
    s_lshl_b32 s24, s24, 10
    s_add_u32 s23, s23, s24
    s_and_b32 s24, s22, 1
    s_lshl_b32 s24, s24, 9
    s_add_u32 s23, s23, s24
    s_lshl_b32 s24, s20, 16
    s_add_u32 s23, s23, s24
    s_add_u32 s23, s23, s{sOA}
    v_and_b32 v9, 15, v0
    v_lshlrev_b32 v9, 4, v9
    v_lshrrev_b32 v10, 5, v0
    v_lshl_add_u32 v9, v10, 3, v9
    v_bfe_u32 v10, v0, 4, 1
    v_lshl_add_u32 v9, v10, 14, v9
    v_rcp_f32 v11, v{lA}
    v_rcp_f32 v12, v{lB}
    s_mov_b64 vcc, s[{sSLOWA}:{sSLOWA+1}]
    """)
    for qb, O, rc in ((0, OA_, 11), (1, OB_, 12)):
        for r in range(8): st(f"v_mul_f32 v{O+r}, v{O+r}, v{rc}")
        p = 16 + 4 * qb
        st(f"""
        v_cvt_pk_bf16_f32 v{p}, v{O}, v{O+1}
        v_cvt_pk_bf16_f32 v{p+1}, v{O+2}, v{O+3}
        v_cvt_pk_bf16_f32 v{p+2}, v{O+4}, v{O+5}
        v_cvt_pk_bf16_f32 v{p+3}, v{O+6}, v{O+7}
        """)
        dstore(st, f"buffer_store_dwordx2 {vr(p,2)}, v9, s[8:11], s23 offen")
        dstore(st, f"buffer_store_dwordx2 {vr(p+2,2)}, v9, s[8:11], s23 offen offset:256")
        if qb == 0: st("s_add_u32 s23, s23, 32768")

def p13_pre(which, pre_kv=None):
    def f(st):
        if which == 1:
            lane_consts(st)
            act_addr(st, 44, vTMP)
            st("v_mov_b32 v99, v44")
            colsum(st, 112, W_Q2, True)
        else:
            st("v_mov_b32 v44, v99")
            pre_kv(st)
        xa_setup(st, 4, 0)
        for s in range(4):
            a = 64 + 4 * s
            st(f"""
            v_lshlrev_b32 v{a}, 16, v{vRES+2*s}
            v_and_b32 v{a+1}, 0xffff0000, v{vRES+2*s}
            v_lshlrev_b32 v{a+2}, 16, v{vRES+2*s+1}
            v_and_b32 v{a+3}, 0xffff0000, v{vRES+2*s+1}
            """)
    return f

def phase_p13(st, name, which):
    ns = 4
    slow = sSLOWB if which == 1 else sSLOWA
    st("s_lshl_b32 s26, s20, 2")
    tag = f"x{which}"
    vActA, vRowA = 44, 45
    acc = 64
    if which == 3:
        row_addr(st, vRowA)
        st(f"""
        s_cmp_eq_u32 s{sL}, 0
        s_cselect_b32 s{SRD_OUT}, s8, s12
        s_cselect_b32 s{SRD_OUT+1}, s9, s13
        s_cselect_b32 s{SRD_OUT+2}, s10, s14
        s_mov_b32 s{SRD_OUT+3}, 0x00020000
        s_cselect_b32 s46, {B0 + BS + XIN}, 0
        s_cselect_b64 s[28:29], -1, 0
        v_cndmask_b32_e64 v{vActA}, v{vRowA}, v{vActA}, s[28:29]
        """)
    else:
        p2_consts_a(st)
    dma = dma_slots(st, ns, 0, f"s{sOA if which == 1 else sOB}", lambda e, s: e(f"s_add_u32 s23, s26, {s}"), tag)
    stamp(st, f"p{which}")
    sync_wait(st, 0 if which == 1 else 2, name, slow=slow)
    if which == 3 and "outwt" in OPT:
        st(f"s_cmp_eq_u32 s{sL}, 1\ns_cselect_b64 vcc, -1, vcc")
    stamp(st, f"p{which}")
    steps = gemm_steps(ns, lambda s: [((acc + 4 * s, False), W_O, True)], tag, dma, 3, fine=f"p{which}")
    def epi(s):
        e = St()
        a = acc + 4 * s
        p = (vRES if which == 1 else 88) + 2 * s
        e(f"""
        v_cvt_pk_bf16_f32 v{p}, v{a}, v{a+1}
        v_cvt_pk_bf16_f32 v{p+1}, v{a+2}, v{a+3}
        s_add_u32 s47, s26, {s}
        s_lshl_b32 s47, s47, 14
        """)
        if which == 1:
            e(f"s_add_u32 s47, s47, s{sX1}")
            dstore(e, f"buffer_store_dwordx2 {vr(p,2)}, v{vActA}, s[8:11], s47 offen")
        else:
            e("s_add_u32 s47, s47, s46")
            dstore(e, f"buffer_store_dwordx2 {vr(p,2)}, v{vActA}, s[{SRD_OUT}:{SRD_OUT+3}], s47 offen")
        return e
    st.ext(steps[0]); st.ext(steps[1])
    pb = []
    for s in range(ns - 1): pb += prog(16 * (s + 1) + 3, epi(s))
    st.ext(strip_marks(weave2(steps[2:], [pb], per=2)))
    st.ext(epi(ns - 1))
    stamp(st, f"p{which}")

def p2_consts_a(st):
    vMo, vMp, vMp0 = 100, 104, 108
    st(f"v_mov_b32 v{vTMP+2}, {f32(-1.0e30)}")
    for r in range(4):
        st(f"""
        v_lshl_add_u32 v{vTMP}, v{vG}, 2, {r}
        v_sub_u32 v{vTMP}, v{vT}, v{vTMP}
        v_and_b32 v{vTMP+1}, 0x80000001, v{vTMP}
        v_cmp_eq_u32 s[28:29], 0, v{vTMP+1}
        v_cndmask_b32_e64 v{vMo+r}, v{vTMP+2}, 0, s[28:29]
        v_cmp_gt_i32 s[38:39], -1, v{vTMP}
        v_and_b32 v{vTMP+1}, 1, v{vTMP}
        v_cmp_eq_u32 s[28:29], 0, v{vTMP+1}
        s_and_b64 s[28:29], s[28:29], s[38:39]
        v_cndmask_b32_e64 v{vMp+r}, v{vTMP+2}, 0, s[28:29]
        """)
    st("s_cmp_eq_u32 s20, 0\ns_cselect_b64 s[28:29], -1, 0")
    for r in range(4): st(f"v_cndmask_b32_e64 v{vMp0+r}, v{vMp+r}, v{vTMP+2}, s[28:29]")
    colsum(st, 116, W_K2, True)

def p2_pre(st):
    xa_setup(st, 5, 0)
    stats_setup(st, 5 * 16384)
    colsum(st, 120, W_V2, False)

def phase_p2(st, name):
    ns = 5
    SBASE = ns * 16384
    Wq, Wk, Wv = W_Q2, W_K2, W_V2
    st("s_lshl_b32 s26, s20, 2\ns_sub_u32 s26, s26, 1")
    vActA = 96
    st(f"v_mov_b32 v{vActA}, v99")
    vMo, vMp, vMp0 = 100, 104, 108
    vCSq, vCSk, vCSv = 112, 116, 120
    def tile_of_slot(e, s):
        if s == 0: e("s_max_i32 s23, s26, 0")
        else: e(f"s_add_u32 s23, s26, {s}")
    dma = dma_slots(st, ns, 0, f"s{sX1}", tile_of_slot, "x2")
    csum = St()
    stamp(st, "p2")
    sync_wait(st, 1, name, halo=True, slow=sSLOWA)
    stamp(st, "p2")
    wob = w_loads(W_O, T_WOB, "wob")
    accq, acck, accv = 64, 68, 72
    def A(base, s): return base + 12 * (s & 1)
    vSG, vSS = 88, 92
    def chains(s):
        c = []
        if s > 0: c.append(((A(accq, s), True), Wq, True))
        c.append(((A(acck, s), True), Wk, True))
        c.append(((A(accv, s), True), Wv, False))
        return c
    steps = gemm_steps(ns, chains, "x2", dma, 2, stats=lambda s: (vSG, vSS), fine="p2")
    for jj in range(16): steps[2 + 16 * 4 + jj].ext(wob[jj])
    last = steps[2 + 16 * 4 + 8]
    last.it.append(("mark", "bar4", None, None)); last("s_barrier")
    vR, vN = 124, 125
    vRq, vNq = 128, 129
    vR4, vN4 = 132, 136
    pq, pk, pv = 140, 142, 148
    tmp = 56
    S, P, MX, T2, PO = 158, 132, 97, 98, 146
    O, L = S, S + 4
    def statsA(s):
        b = 16 * s
        p = []
        e = St(); stats_extract(e, s, vSG, vSS, vTMP, f"sw{s}")
        p += prog(b + 5, e)
        e = St(); e.wl(f"sw{s}")
        p += prog(b + 9, e); p.append((b + 9, ("before", f"bar{s}", None, None)))
        e = St(); stats_read(e, s, vTMP, f"sr{s}"); p += prog(b + 9, e)
        e = St(); e.wl(f"sr{s}")
        R, N = vR + 2 * (s & 1), vN + 2 * (s & 1)
        for x in stats_math(vTMP, R, N): e(x)
        e.i(f"ds_write_b32 v{vSTA}, v{R}")
        e.i(f"ds_write_b32 v{vSTA}, v{N} offset:64", lds=f"pw{s}")
        p += prog(b + 12, e)
        p.append((b + 12, ("before", f"sl{s}", None, None)))
        return p
    def epi(s):
        e = St()
        R, N = vR + 2 * (s & 1), vN + 2 * (s & 1)
        e.wl(f"pw{s}")
        e.i(f"ds_read_b128 {vr(vR4,4)}, v{vPRR}")
        e.i(f"ds_read_b128 {vr(vN4,4)}, v{vPRR} offset:64", lds=f"pr{s}")
        ln_epi(e, A(acck, s), [R]*4, [N]*4, [vCSk+r for r in range(4)], pk + 2 * (s & 1), tmp)
        if s > 0:
            e(f"v_mul_f32 v{vRq}, {f32(CQ)}, v{R}\nv_mul_f32 v{vNq}, {f32(CQ)}, v{N}")
            ln_epi(e, A(accq, s), [vRq]*4, [vNq]*4, [vCSq+r for r in range(4)], pq, tmp)
            kp = pk + 2 * ((s - 1) & 1); ko = pk + 2 * (s & 1)
            mp = vMp0 if s == 1 else vMp
            e(f"v_mfma_f32_16x16x16_bf16 {vr(S,4)}, {vr(kp,2)}, {vr(pq,2)}, {vr(mp,4)}")
            e(f"v_mfma_f32_16x16x16_bf16 {vr(S+4,4)}, {vr(ko,2)}, {vr(pq,2)}, {vr(vMo,4)}")
        e.wl(f"pr{s}")
        ln_epi(e, A(accv, s), [vR4+r for r in range(4)], [vN4+r for r in range(4)], [vCSv]*4, pv + 2 * s, tmp)
        if s == 0: return e
        e(f"""
        v_max3_f32 v{MX}, v{S}, v{S+1}, v{S+2}
        v_max3_f32 v{T2}, v{S+3}, v{S+4}, v{S+5}
        v_max3_f32 v{MX}, v{MX}, v{S+6}, v{S+7}
        v_max_f32 v{MX}, v{MX}, v{T2}
        v_mov_b32 v{T2}, v{MX}
        v_permlane32_swap_b32 v{T2}, v{MX}
        v_max_f32 v{MX}, v{MX}, v{T2}
        v_mov_b32 v{T2}, v{MX}
        v_permlane16_swap_b32 v{T2}, v{MX}
        v_max_f32 v{MX}, v{MX}, v{T2}
        """)
        for r in range(8): e(f"v_sub_f32 v{S+r}, v{S+r}, v{MX}")
        for r in range(8): e(f"v_exp_f32 v{S+r}, v{S+r}")
        for r in range(4): e(f"v_cvt_pk_bf16_f32 v{P+r}, v{S+2*r}, v{S+2*r+1}")
        e(f"v_mfma_f32_16x16x32_bf16 {vr(O,4)}, {vr(pv+2*(s-1),4)}, {vr(P,4)}, 0")
        e(f"v_mfma_f32_16x16x32_bf16 {vr(L,4)}, {vr(vONES,4)}, {vr(P,4)}, 0")
        e.it.append(("gap", 4, None, None))
        e(f"v_rcp_f32 v{L}, v{L}")
        e(f"s_add_u32 s47, s26, {s}\ns_lshl_b32 s47, s47, 14\ns_add_u32 s47, s47, s{sOB}")
        for r in range(4): e(f"v_mul_f32 v{O+r}, v{O+r}, v{L}")
        e(f"v_cvt_pk_bf16_f32 v{PO}, v{O}, v{O+1}\nv_cvt_pk_bf16_f32 v{PO+1}, v{O+2}, v{O+3}")
        dstore(e, f"buffer_store_dwordx2 {vr(PO,2)}, v{vActA}, s[8:11], s47 offen")
        return e
    st.ext(steps[0]); st.ext(steps[1])
    main = steps[2:]
    for s in range(ns - 1):
        main[16 * (s + 1)].it.insert(0, ("mark", f"sl{s}", None, None))
    pa, pb = [], []
    for s in range(ns): pa += statsA(s)
    for s in range(ns - 1):
        pb += prog(16 * (s + 1) + 1, epi(s)); pb.append((16 * (s + 1) + 1, ("before", f"ep{s}", None, None)))
    for s in range(ns - 2):
        main[16 * (s + 2)].it.insert(0, ("mark", f"ep{s}", None, None))
    st.ext(strip_marks(weave2(main, [pa, pb], per=2)))
    st.ext(strip_marks(epi(ns - 1)))

def layer_scalars(st):
    st(f"""
    s_mul_i32 s23, s{sL}, {KVS}
    s_add_u32 s{sKF}, s23, {KF0}
    s_add_u32 s{sVF}, s23, {VF0}
    s_mul_i32 s23, s{sL}, {BS}
    s_add_u32 s{sXIN}, s23, {B0 + XIN}
    s_add_u32 s{sOA}, s23, {B0 + OA}
    s_add_u32 s{sX1}, s23, {B0 + X1}
    s_add_u32 s{sOB}, s23, {B0 + OB}
    s_lshl_b32 s23, s{sL}, 14
    s_add_u32 s{sFLAG}, s23, {FLAGS}
    """)

def q_dma(st):
    st("s_lshl_b32 s46, s20, 2")
    return dma_slots(st, 4, XB_Q, f"s{sXIN}", lambda e, s: e(f"s_add_u32 s23, s46, {s}"), "xq")

LDS_WQ = 0
def gen_init(st, name):
    pWK, pWV, pWQ, pWOA, pWQKV, pWOB = 40, 42, 56, 46, 60, 62
    prologue(st, name, """
    s_load_dwordx2 s[6:7], s[0:1], 0
    s_load_dwordx4 s[40:43], s[0:1], 16
    s_load_dwordx2 s[56:57], s[0:1], 8
    s_load_dwordx2 s[46:47], s[0:1], 32
    s_load_dwordx4 s[60:63], s[0:1], 48
    """)
    st(f"s_add_u32 s28, s4, {EPOCH}\ns_addc_u32 s29, s5, 0\ns_load_dwordx2 s[{sEP}:{sEP+1}], s[28:29], 0")
    srd_io(st, 6, 2048 * 1024)
    st(f"s_mov_b32 s{sL}, 0")
    def xrows(k):
        st(f"""
        s_lshr_b32 s23, s21, 1
        s_add_u32 s23, s23, {k}
        s_and_b32 s23, s23, 3
        s_lshl_b32 s23, s23, 2
        s_add_u32 s23, s23, s22
        s_lshl_b32 s23, s23, 2
        s_mul_i32 s24, s23, {XROW}
        s_add_u32 m0, s24, {XB_Q}
        s_lshl_b32 s24, s20, 6
        s_add_u32 s23, s23, s24
        s_lshl_b32 s23, s23, 10
        """)
        for r in range(4):
            if r: st(f"s_add_u32 m0, m0, {XROW}\ns_add_u32 s23, s23, 1024")
            st.i(f"buffer_load_dwordx4 v{vL16}, s[12:15], s23 offen lds", vm=f"xr{k}_{r}")
    if "pf" in OPT:
        st(f"""
        v_lshlrev_b32 v14, 7, v0
        s_lshl_b32 s23, s20, 16
        s_lshl_b32 s24, s21, 13
        s_add_u32 s23, s23, s24
        v_add_u32 v15, s23, v14
        s_lshr_b32 s24, s2, 3
        s_lshl_b32 s24, s24, 14
        s_sub_u32 s23, s22, 1
        s_and_b32 s23, s23, 1
        s_lshl_b32 s23, s23, 13
        s_add_u32 s24, s24, s23
        v_add_u32 v14, s24, v14
        s_cmp_eq_u32 s22, 0
        s_cselect_b32 s24, s6, s{pWQ}
        s_cselect_b32 s25, s7, s{pWQ+1}
        s_cselect_b64 vcc, -1, 0
        v_cndmask_b32_e64 v14, v14, v15, vcc
        s_cmp_eq_u32 s22, 3
        s_cselect_b64 exec, 0, -1
        """)
        st.i("global_load_dword v12, v14, s[24:25]")
        st("s_mov_b64 exec, -1")
    xrows(0)
    lane_consts(st)
    vKap, vCol = 24, 25
    st(f"""
    v_lshrrev_b32 v{vKap}, 2, v{vT}
    v_lshlrev_b32 v{vKap}, 3, v{vKap}
    v_and_b32 v{vCol}, 3, v{vT}
    v_add_u32 v{vKap}, v{vKap}, v{vCol}
    v_lshrrev_b32 v{vCol}, 1, v{vG}
    v_lshl_add_u32 v{vKap}, v{vCol}, 2, v{vKap}
    v_and_b32 v{vCol}, 1, v{vG}
    v_lshlrev_b32 v{vCol}, 4, v{vCol}
    s_bitcmp1_b32 s21, 0
    s_cselect_b32 s28, s{pWV}, s{pWK}
    s_cselect_b32 s29, s{pWV+1}, s{pWK+1}
    v_lshl_add_u32 v142, v{vKap}, 5, v{vCol}
    s_lshl_b32 s23, s22, 12
    v_add_u32 v142, s23, v142
    """)
    for q in range(4):
        st.i(f"global_load_dwordx4 {ar(A_WKV+4*q,4)}, v142, s[28:29] offset:{q*1024}", vm=f"rw{q}")
    stamp(st, "i")
    for k in range(1, 4): xrows(k)
    st(f"""
    v_lshrrev_b32 v26, 3, v0
    v_and_b32 v27, 7, v0
    v_and_b32 v28, 2, v26
    v_xor_b32 v27, v27, v28
    v_lshlrev_b32 v27, 4, v27
    v_lshl_add_u32 v26, v26, 10, v27
    s_lshl_b32 s23, s21, 7
    s_lshl_b32 s24, s22, 17
    s_add_u32 s23, s23, s24
    v_add_u32 v26, s23, v26
    v_xor_b32 v27, 64, v26
    s_lshl_b32 s24, s22, 14
    s_add_u32 m0, s24, {LDS_WQ}
    """)
    for b in range(4):
        for u in range(4):
            if b or u: st("s_add_u32 m0, m0, 1024")
            src = 26 if u < 2 else 27
            st(f"v_add_u32 v28, {(32*b + 8*u)*1024}, v{src}")
            st.i(f"global_load_lds_dwordx4 v28, s[{pWQ}:{pWQ+1}]", vm=f"wb{b}_{u}")
    stamp(st, "i")
    st("s_getpc_b64 s[28:29]")
    st.label("L_pc_anchor")
    st(f"""
    s_add_u32 s28, s28, {name}-L_pc_anchor
    s_addc_u32 s29, s29, -1
    s_lshr_b32 s27, s2, 3
    s_lshl_b32 s27, s27, 2
    s_add_u32 s27, s27, s22
    s_lshl_b32 s27, s27, 9
    v_lshlrev_b32 v14, 6, v0
    v_add_u32 v14, s27, v14
    v_min_u32 v14, L_code_end-{name}-4, v14
    s_mov_b64 exec, 0xff
    """)
    if "nocode" not in OPT: st.i("global_load_dword v13, v14, s[28:29]")
    st("s_mov_b64 exec, -1")
    if "nowarm" not in OPT:
        st(f"""
        s_lshl_b32 s27, s20, 7
        s_lshl_b32 s28, s21, 3
        s_add_u32 s27, s27, s28
        s_add_u32 s27, s27, {FLAGS}
        v_and_b32 v148, 7, v0
        v_lshlrev_b32 v148, 12, v148
        v_add_u32 v148, s27, v148
        s_lshl_b32 s28, s20, 3
        s_add_u32 s28, s28, s21
        s_lshl_b32 s28, s28, 3
        s_add_u32 s28, s28, {KVFL - 8*0x800}
        v_min_u32 v149, 40, v0
        v_lshlrev_b32 v149, 11, v149
        v_add_u32 v149, s28, v149
        v_cmp_gt_u32 s[38:39], 8, v0
        v_cndmask_b32_e64 v148, v149, v148, s[38:39]
        """)
        w0_exec(st)
        st.i("buffer_load_dword v15, v148, s[8:11], 0 offen")
        st("s_mov_b64 exec, -1")
    const_masks(st)
    first, xloads, setup, cs, main = phase_kv(st, name + "_i", 0, "lds", KVB)
    first(st)
    emit_selectors(st, vB0, vB1, 16)
    setup(st)
    st(f"""
    s_waitcnt lgkmcnt(0)
    s_mul_i32 s{sTLO}, s{sEP}, 0x9e3779b1
    s_xor_b32 s{sTLO}, s{sTLO}, s{sEP+1}
    s_add_u32 s{sTLO}, s{sTLO}, 0x7f4a7c15
    s_mul_i32 s{sTHI}, s{sEP}, 0x85ebca6b
    s_add_u32 s{sTHI}, s{sTHI}, s{sEP+1}
    s_xor_b32 s{sTHI}, s{sTHI}, 0x5bd1e995
    """)
    stamp(st, "i")
    for q in range(4):
        st.wv(f"rw{q}")
        transpose(st, ar(A_WKV + 4 * q, 4), W_KV[1] + 4 * q)
    cs(st)
    st("s_barrier")
    stamp(st); stamp(st, "i")
    xloads(st)
    main(st)
    stamp(st); stamp(st, "i")
    st(f"s_lshl_b32 s58, s2, 2\ns_add_u32 s58, s58, s22")
    for i in range(3):
        st(f"""
        s_add_u32 s27, s58, {1024*i}
        s_min_u32 s27, s27, 2559
        s_add_u32 s27, s27, 512
        s_lshr_b32 s28, s27, 4
        s_and_b32 s29, s27, 15
        s_mov_b32 s24, s{pWOA}
        s_mov_b32 s25, s{pWOA+1}
        s_sub_u32 s45, s28, {T_WOA}
        s_mov_b32 s26, 1024
        """)
        for T0, reg, stride in ((T_WOB, pWOB, 1024), (T_WQKV, pWQKV, 3072)):
            st(f"""
            s_sub_u32 s23, s28, {T0}
            s_cmp_ge_u32 s28, {T0}
            s_cselect_b32 s24, s{reg}, s24
            s_cselect_b32 s25, s{reg+1}, s25
            s_cselect_b32 s45, s23, s45
            s_cselect_b32 s26, {stride}, s26
            """)
        st(f"""
        s_lshl_b32 s29, s29, 5
        s_lshl_b32 s45, s45, 5
        v_add_u32 v148, s29, v{vKap}
        v_mul_lo_u32 v148, v148, s26
        v_add_u32 v148, v148, v{vCol}
        v_add_u32 v148, s45, v148
        v_mov_b32 v{137+2*i}, s25
        v_add_co_u32 v{136+2*i}, vcc, s24, v148
        v_addc_co_u32 v{137+2*i}, vcc, 0, v{137+2*i}, vcc
        """)
    layer_scalars(st)
    wave_scalars(st)
    st.wv("kvst")
    wg_flag_store(st, f"{KVFL}", replicas=8)
    xcc_publish(st)
    st("s_load_dwordx2 s[6:7], s[0:1], 64\ns_barrier")
    stamp(st, "i")
    st(f"""
    v_and_b32 v26, 2, v{vKap}
    v_lshrrev_b32 v27, 2, v{vKap}
    v_and_b32 v27, 4, v27
    v_or_b32 v26, v26, v27
    v_lshrrev_b32 v27, 4, v{vCol}
    s_lshl_b32 s23, s22, 1
    v_add_u32 v27, s23, v27
    v_xor_b32 v26, v26, v27
    v_lshlrev_b32 v26, 4, v26
    v_lshl_add_u32 v26, v{vKap}, 7, v26
    """)
    for jg in range(4):
        st(f"v_add_u32 v{28+jg}, s{sROT+jg}, v26")
        st(f"v_mov_b32 v27, s{sROT+jg}\nv_lshl_add_u32 v{28+jg}, v27, 2, v26")
    RW = 32
    def rdw(jj): st.i(f"ds_read_b128 {vr(RW+4*(jj%8),4)}, v{28+(jj>>2)} offset:{LDS_WQ + (jj&3)*4096}", lds=f"wr{jj}")
    for jj in range(8): rdw(jj)
    def mm(j):
        d = 64 + 8 * (j & 1)
        st.wl(f"wr{j}")
        st(f"v_mfma_f32_16x16x32_bf16 {vr(d,4)}, {vr(RW+4*(j%8),4)}, {vr(vB0,4)}, 0")
        st(f"v_mfma_f32_16x16x32_bf16 {vr(d+4,4)}, {vr(RW+4*(j%8),4)}, {vr(vB1,4)}, 0")
        if j + 8 < 16: rdw(j + 8)
    def cv(j):
        d = 64 + 8 * (j & 1); o = W_QA[1] + 4 * j
        for q in range(4): st(f"v_cvt_pk_bf16_f32 v{o+q}, v{d+2*q}, v{d+2*q+1}")
    mm(0)
    for j in range(16):
        if j + 1 < 16: mm(j + 1)
        cv(j)
    st(f"""
    v_mul_u32_u24 v26, {XROW}, v{vT}
    v_lshl_add_u32 v26, v{vG}, 3, v26
    s_lshl_b32 s23, s21, 7
    s_lshl_b32 s24, s22, 5
    s_add_u32 s23, s23, s24
    s_add_u32 s23, s23, {XB_Q}
    v_add_u32 v26, s23, v26
    """)
    for sl in range(4): st.i(f"ds_read_b64 {vr(vRES+2*sl,2)}, v26 offset:{sl*16*XROW}")
    st(f"v_mul_u32_u24 v26, {XROW}, v{vT}\nv_lshl_add_u32 v26, v{vG}, 4, v26")
    for jg in range(4):
        st(f"s_lshr_b32 s23, s{sROT+jg}, 4\ns_add_u32 s23, s23, {XB_Q}\nv_add_u32 v{vXA+jg}, s23, v26")
    stats_setup(st, SB_Q0)
    st("s_waitcnt lgkmcnt(0)")
    srd_io(st, 6, 2048 * 1024)
    stamp(st, "i")
    def tail(e):
        for i in range(3):
            e.i(f"global_load_dwordx4 {ar(A_PREP+4*i,4)}, v[{136+2*i}:{137+2*i}], off")
    q_gemm(st, True, tailprog=tail)
    stamp(st, "i")

def gen_persist(name):
    st = St()
    NST[0] = 0
    stamp(st)
    if INSTR: st("s_memrealtime s[96:97]")
    if DBG or SPINRT: st("s_memrealtime s[96:97]\ns_memtime s[64:65]")
    gen_init(st, name)
    st("s_branch L_common")
    kv1 = phase_kv(st, name + "_4", 1, "act", KVB, sregs=(142, 143, 158, 159))
    def pre_kv(e):
        kv1[0](e); kv1[2](e); kv1[3](e)
    st.label("L_layer1")
    sync_publish(st, 3, name, sSLOWA, pre=q_setup)
    first, xloads, setup, cs, main = kv1
    sync_wait(st, 3, name + "_4")
    st(f"s_mov_b32 s{sL}, 1")
    layer_scalars(st)
    xloads(st)
    dma = q_dma(st)
    for e in dma[0]: st.ext(e)
    st("s_barrier")
    for e in dma[1]: st.ext(e)
    main(st)
    q_gemm(st, False, dma)
    st.label("L_common")
    if DBG: st(f"s_cmp_lg_u32 s{sL}, 0\ns_cbranch_scc1 L_dbg_a\ns_memrealtime s[66:67]\ns_branch L_dbg_b\nL_dbg_a:\ns_memrealtime s[68:69]\nL_dbg_b:")
    q_tail(st, name)
    phase_att(st, name)
    stamp(st)
    sync_publish(st, 0, name, sSLOWA, pre=p13_pre(1))
    phase_p13(st, name + "_1", 1)
    stamp(st)
    sync_publish(st, 1, name, sSLOWB, pre=p2_pre)
    phase_p2(st, name + "_2")
    stamp(st)
    sync_publish(st, 2, name, sSLOWA, pre=p13_pre(3, pre_kv))
    phase_p13(st, name + "_3", 3)
    stamp(st)
    if INSTR:
        st(f"s_cmp_lg_u32 s{sL}, 0\ns_cbranch_scc1 L_fin")
        stamp_dump(st, 0)
        st("s_branch L_layer1")
    else:
        st(f"s_cmp_eq_u32 s{sL}, 0\ns_cbranch_scc1 L_layer1")
    st.label("L_fin")
    st(f"""
    s_or_b32 s23, s2, s22
    s_cmp_lg_u32 s23, 0
    s_cbranch_scc1 L_noep
    s_add_u32 s28, s{sEP}, 1
    s_addc_u32 s29, s{sEP+1}, 0
    v_mov_b32 v2, s28
    v_mov_b32 v3, s29
    v_mov_b32 v4, 0
    s_mov_b32 s23, {EPOCH}
    s_mov_b64 exec, 1
    buffer_store_dwordx2 v[2:3], v4, s[8:11], s23 offen
    s_mov_b64 exec, -1
    """)
    st.label("L_noep")
    st("s_waitcnt vmcnt(0)")
    if SPINRT:
        if "spinwb" in OPT: st("s_barrier\nbuffer_wbl2 sc1\ns_waitcnt vmcnt(0)")
        st.label("L_spinrt")
        st(f"""
        s_memrealtime s[98:99]
        s_waitcnt lgkmcnt(0)
        s_sub_u32 s98, s98, s96
        s_cmp_lt_u32 s98, {SPINRT}
        s_cbranch_scc1 L_spinrt
        """)
    if DBG:
        st(f"""
        s_memrealtime s[98:99]
        s_memtime s[70:71]
        s_load_dwordx2 s[28:29], s[0:1], 72
        s_waitcnt lgkmcnt(0)
        s_cmp_lg_u32 s22, 0
        s_cbranch_scc1 L_nodbg
        s_cmp_ge_u32 s2, 4
        s_cbranch_scc1 L_nodbg
        s_sub_u32 s66, s66, s96
        s_sub_u32 s68, s68, s96
        s_sub_u32 s98, s98, s96
        s_sub_u32 s70, s70, s64
        v_mov_b32 v4, s66
        v_mov_b32 v5, s68
        v_mov_b32 v6, s98
        v_mov_b32 v7, s70
        s_lshl_b32 s23, s2, 4
        v_mov_b32 v8, s23
        s_mov_b64 exec, 1
        global_store_dwordx4 v8, v[4:7], s[28:29]
        s_waitcnt vmcnt(0)
        """)
        st.label("L_nodbg")
    stamp_dump(st, 1)
    return kernel_text(name, st, sgpr=102).replace(f"L_end_{name}:", f"L_code_end:\nL_end_{name}:")

def build(path):
    hdr = open("cdna_kernels/" + NAME + ".s.ref").read().split("; Override launch geometry")[0]
    out = hdr + f"; @launch grid=(256,1,1) block=(256,1,1) lds={MAIN_LDS}\n"
    out += '.amdgcn_target "amdgcn-amd-amdhsa--gfx950"\n'
    out += gen_persist(NAME + "_kernel")
    open(path, "w").write(out)

if __name__ == "__main__":
    build(sys.argv[1] if len(sys.argv) > 1 else "stage6.s")
```

```python
import sys, os
sys.path.insert(0, os.path.dirname(os.path.abspath(__file__)))
import gen
from gen import (St, resolve, weave, vr, ar, rr, f32, CQ, srd_io, emit_selectors,
                 T_WQ, T_WOA, T_WOB, T_WQKV, T_WK, T_WV, NFRAG, NAME, WS_SIZE)
from asmlib import fix_hazards, check_inflight
INSTR = os.environ.get("INSTR")
OPT = os.environ.get("OPT", "")
DBG = os.environ.get("DBG")
SPINRT = int(os.environ.get("SPINRT", "0"))
FAST = "nofast" not in OPT

XROW = 1040
XB_Q = 74752
KF0, VF0, KVS = 0x310000, 0x320000, 0x20000
B0, BS = 0x800000, 0x800000
XIN, OA, X1, OB = 0, 0x200000, 0x400000, 0x600000
FLAGS = 0x1900000
KVFL = FLAGS + 0x8000
PREPF = FLAGS + 0x10000
QPRF = FLAGS + 0x14000
XCCT = FLAGS + 0x18000
EPOCH = FLAGS + 0x19000
HALOF = FLAGS + 0x1A000
TS_OFF = 0x1800000
S_G, S_M, S_W = 20, 21, 22
sROT = 16
sSLOWA, sSLOWB = 40, 42
sSPIN = 45
sKF, sVF, sXIN, sOA, sX1, sOB, sL, sFLAG = 48, 49, 51, 52, 53, 54, 55, 56
sTLO, sTHI = 50, 3
sEP = 14 + 86
sWT = 57
SRD_OUT = 60
W_Q2, W_K2, W_V2, W_O = ("a", 0), ("a", 64), ("a", 128), ("a", 192)
W_QA = ("v", 166)
W_KV = ("v", 230)
vRES = 246
vL16, vXA, vT, vG, vONES, vRING, RING = 1, 2, 6, 7, 8, 12, 8
vSTA, vSTW, vSTR, vPRR, vTMP = 44, 45, 46, 47, 48
vFLO, vFLP = 62, 63

NST = [0]
def stamp(st, fine=None):
    if not INSTR: return
    if INSTR == "1":
        if fine: return
        k = NST[0]; NST[0] += 1
        st(f"s_memtime s[{64+2*k}:{65+2*k}]\ns_waitcnt lgkmcnt(0)")
    else:
        if fine != INSTR and not (fine is None and NST[0] == 0): return
        k = NST[0]; NST[0] += 1
        assert k < 16
        st(f"s_memtime s[{64+2*k}:{65+2*k}]")
def stamp_dump(st, slot):
    if not INSTR: return
    st("s_memrealtime s[98:99]\ns_waitcnt lgkmcnt(0)")
    for k in range(16): st(f"v_mov_b32 v{16+k}, s{64+2*k if k < NST[0] else 98}")
    st(f"""
    v_mov_b32 v31, s98
    v_mov_b32 v30, s96
    s_lshl_b32 s23, s2, 2
    s_add_u32 s23, s23, s22
    s_lshl_b32 s23, s23, 6
    s_mul_i32 s24, {slot}, 65536
    s_add_u32 s23, s23, s24
    s_add_u32 s23, s23, {TS_OFF}
    v_mov_b32 v8, 0
    s_mov_b64 exec, 1
    buffer_store_dwordx4 v[16:19], v8, s[8:11], s23 offen
    buffer_store_dwordx4 v[20:23], v8, s[8:11], s23 offen offset:16
    buffer_store_dwordx4 v[24:27], v8, s[8:11], s23 offen offset:32
    buffer_store_dwordx4 v[28:31], v8, s[8:11], s23 offen offset:48
    s_waitcnt vmcnt(0)
    s_mov_b64 exec, -1
    """)

def prologue(st, name, extra_loads=""):
    st(f"""
    s_cmp_ge_u32 s2, 256
    s_cbranch_scc1 L_end_{name}
    s_load_dwordx2 s[4:5], s[0:1], 80
    {extra_loads}
    v_lshrrev_b32 v1, 6, v0
    v_and_b32 v0, 63, v0
    s_and_b32 s20, s2, 7
    s_lshr_b32 s21, s2, 3
    s_lshl_b32 s20, s20, 2
    s_lshr_b32 s23, s21, 3
    s_add_u32 s20, s20, s23
    s_and_b32 s21, s21, 7
    v_readfirstlane_b32 s22, v1
    v_lshlrev_b32 v{vL16}, 4, v0
    s_waitcnt lgkmcnt(0)
    s_mov_b32 s8, s4
    s_mov_b32 s9, s5
    s_mov_b32 s10, {WS_SIZE}
    s_mov_b32 s11, 0x00020000
    """)

OUTLINE = []
def dstore(e, text, vm=None):
    if not FAST:
        e.i(text + " sc1", vm=vm); return
    k = len(OUTLINE)
    e.it.append(("grp", [f"s_cbranch_vccnz L_slow_{k}", text, f"L_back_{k}:"], None, vm))
    OUTLINE.append(text + " sc1")

def expand_groups(st):
    o = St()
    for it in st.it:
        if it[0] in ("grp", "grpv"):
            for l in it[1]: o.it.append(("i", l, None, it[3] if l.startswith("buffer_") else None))
        else: o.it.append(it)
    return o

def kernel_text(name, st, vgpr=512, accum=256, sgpr=100):
    lines = resolve(expand_groups(st))
    lines.append("s_endpgm")
    for k, t in enumerate(OUTLINE):
        lines += [f"L_slow_{k}:", t, f"s_branch L_back_{k}"]
    OUTLINE.clear()
    lines, nins = fix_hazards(lines)
    if os.environ.get('CHECK'): check_inflight(lines)
    body = "\n".join(("    " + l) if not l.endswith(":") else l for l in lines)
    return f""".text
.globl {name}
.p2align 8
.type {name},@function
{name}:
{body}
L_end_{name}:
    s_endpgm
.section .rodata,"a"
.p2align 6
.amdhsa_kernel {name}
  .amdhsa_next_free_vgpr {vgpr}
  .amdhsa_next_free_sgpr {sgpr}
  .amdhsa_accum_offset {accum}
  .amdhsa_group_segment_fixed_size 0
  .amdhsa_kernarg_size 88
  .amdhsa_user_sgpr_count 2
  .amdhsa_user_sgpr_kernarg_segment_ptr 1
  .amdhsa_system_sgpr_workgroup_id_x 1
  .amdhsa_float_denorm_mode_32 3
.end_amdhsa_kernel
"""

def lane_consts(st):
    st(f"v_and_b32 v{vT}, 15, v0\nv_lshrrev_b32 v{vG}, 4, v0")
    for q in range(4): st(f"v_mov_b32 v{vONES+q}, 0x3f803f80")

def xa_setup(st, ns, xb):
    for jg in range(4):
        st(f"s_mul_i32 s23, s{sROT+jg}, {ns}")
        if xb: st(f"s_add_u32 s23, s23, {xb}")
        st(f"v_add_u32 v{vXA+jg}, s23, v{vL16}")

def wave_scalars(st):
    for jg in range(4):
        st(f"""
        s_add_u32 s23, s22, {jg}
        s_and_b32 s23, s23, 3
        s_lshl_b32 s{sROT+jg}, s23, 12
        """)
    st(f"""
    s_lshl_b32 s{sWT}, s21, 2
    s_add_u32 s{sWT}, s{sWT}, s22
    s_lshl_b32 s{sWT}, s{sWT}, 14
    """)

def w_loads(dst, T0, tag):
    out = []
    for jg in range(4):
        for q in range(4):
            e = St()
            if q == 0:
                e(f"s_add_u32 s58, s{sWT}, s{sROT+jg}")
                if T0: e(f"s_add_u32 s58, s58, {T0*16384}")
            b = dst[1] + 4 * (4 * jg + q)
            e.i(f"buffer_load_dwordx4 {rr((dst[0], b), 4)}, v{vL16}, s[8:11], s58 offen offset:{q*1024} sc1", vm=f"{tag}{4*jg+q}")
            out.append(e)
    return out

def kv_loads(tag):
    out = []
    for q in range(4):
        e = St()
        if q == 0:
            e(f"""
            s_and_b32 s58, s21, 1
            s_add_u32 s58, s58, {T_WK}
            s_lshl_b32 s58, s58, 14
            s_add_u32 s58, s58, s{sROT}
            """)
        e.i(f"buffer_load_dwordx4 {rr((W_KV[0], W_KV[1] + 4*q), 4)}, v{vL16}, s[8:11], s58 offen offset:{q*1024}", vm=f"{tag}{q}")
        out.append(e)
    return out

def act_addr(st, vdst, tmp):
    st(f"""
    s_lshl_b32 s23, s21, 11
    s_lshr_b32 s28, s22, 1
    s_lshl_b32 s28, s28, 10
    s_add_u32 s23, s23, s28
    s_and_b32 s28, s22, 1
    s_lshl_b32 s28, s28, 9
    s_add_u32 s23, s23, s28
    v_lshrrev_b32 v{tmp}, 1, v{vG}
    v_lshlrev_b32 v{tmp}, 8, v{tmp}
    v_lshl_add_u32 v{tmp}, v{vT}, 4, v{tmp}
    v_and_b32 v{vdst}, 1, v{vG}
    v_lshl_add_u32 v{vdst}, v{vdst}, 3, v{tmp}
    v_add_u32 v{vdst}, s23, v{vdst}
    """)

def row_addr(st, vdst):
    st(f"""
    s_lshl_b32 s23, s21, 7
    s_lshl_b32 s28, s22, 5
    s_add_u32 s23, s23, s28
    v_lshlrev_b32 v{vdst}, 10, v{vT}
    v_lshl_add_u32 v{vdst}, v{vG}, 3, v{vdst}
    v_add_u32 v{vdst}, s23, v{vdst}
    """)

def colsum(st, dst, W, w_is_A, n=16):
    for jj in range(n):
        wreg = rr((W[0], W[1] + 4 * jj), 4)
        c = "0" if jj == 0 else vr(dst, 4)
        if w_is_A: st(f"v_mfma_f32_16x16x32_bf16 {vr(dst,4)}, {wreg}, {vr(vONES,4)}, {c}")
        else:      st(f"v_mfma_f32_16x16x32_bf16 {vr(dst,4)}, {vr(vONES,4)}, {wreg}, {c}")

def stats_setup(st, sb, regs=None):
    pb = sb + 2560; dummy = pb + 512
    vSTA, vSTW, vSTR, vPRR = regs or (44, 45, 46, 47)
    st(f"""
    v_lshrrev_b32 v{vTMP}, 2, v{vT}
    v_cmp_eq_u32 s[30:31], v{vTMP}, v{vG}
    v_lshlrev_b32 v{vSTW}, 5, v{vT}
    s_lshl_b32 s23, s22, 2
    s_add_u32 s23, s23, {sb}
    v_add_u32 v{vSTW}, s23, v{vSTW}
    v_mov_b32 v{vTMP}, {dummy}
    v_cndmask_b32_e64 v{vSTW}, v{vTMP}, v{vSTW}, s[30:31]
    v_lshlrev_b32 v{vSTR}, 5, v{vT}
    v_add_u32 v{vSTR}, {sb}, v{vSTR}
    s_lshl_b32 s23, s22, 7
    s_add_u32 s23, s23, {pb}
    v_lshlrev_b32 v{vSTA}, 2, v{vT}
    v_add_u32 v{vSTA}, s23, v{vSTA}
    v_lshlrev_b32 v{vPRR}, 4, v{vG}
    v_add_u32 v{vPRR}, s23, v{vPRR}
    """)
def const_masks(st):
    st("""
    s_mov_b32 s32, 0x22222222
    s_mov_b32 s33, 0x22222222
    s_mov_b32 s34, 0x44444444
    s_mov_b32 s35, 0x44444444
    s_mov_b32 s36, 0x88888888
    s_mov_b32 s37, 0x88888888
    """)
STAT_BYTES = 2560 + 512 + 2600

def stats_extract(e, s, vSG, vSS, t, tag, vSTW=45):
    e(f"""
    v_cndmask_b32_e64 v{t}, v{vSG}, v{vSG+1}, s[32:33]
    v_cndmask_b32_e64 v{t}, v{t}, v{vSG+2}, s[34:35]
    v_cndmask_b32_e64 v{t}, v{t}, v{vSG+3}, s[36:37]
    """)
    e.i(f"ds_write_b32 v{vSTW}, v{vSS} offset:{s*512}")
    e.i(f"ds_write_b32 v{vSTW}, v{t} offset:{s*512 + 16}", lds=tag)

def stats_read(e, s, a, tag, vSTR=46):
    e.i(f"ds_read_b128 {vr(a,4)}, v{vSTR} offset:{s*512}")
    e.i(f"ds_read_b128 {vr(a+4,4)}, v{vSTR} offset:{s*512+16}", lds=tag)

def stats_math(a, vR, vN):
    return f"""
    v_add_f32 v{a}, v{a}, v{a+1}
    v_add_f32 v{a+4}, v{a+4}, v{a+5}
    v_add_f32 v{a+2}, v{a+2}, v{a+3}
    v_add_f32 v{a+6}, v{a+6}, v{a+7}
    v_add_f32 v{a}, v{a}, v{a+2}
    v_add_f32 v{a+4}, v{a+4}, v{a+6}
    v_mul_f32 v{a}, {f32(1.0/512)}, v{a}
    v_mul_f32 v{a+4}, {f32(1.0/512)}, v{a+4}
    v_fma_f32 v{a+4}, -v{a}, v{a}, v{a+4}
    v_max_f32 v{a+4}, 0, v{a+4}
    v_add_f32 v{a+4}, {f32(1e-5)}, v{a+4}
    v_rsq_f32 v{vR}, v{a+4}
    v_sub_f32 v{a}, 0, v{a}
    v_mul_f32 v{vN}, v{a}, v{vR}
    """.strip().split("\n")

def ln_epi(e, acc, R, N, CS, pk, tmp):
    for r in range(4): e(f"v_mul_f32 v{tmp+r}, v{N[r]}, v{CS[r]}")
    for r in range(4): e(f"v_fma_f32 v{tmp+r}, v{acc+r}, v{R[r]}, v{tmp+r}")
    e(f"v_cvt_pk_bf16_f32 v{pk}, v{tmp}, v{tmp+1}")
    e(f"v_cvt_pk_bf16_f32 v{pk+1}, v{tmp+2}, v{tmp+3}")

def flag_value(st):
    st(f"v_mov_b32 v{vFLO}, s{sTLO}\nv_mov_b32 v{vFLO+1}, s{sTHI}")

vFLA = 61
def sync_publish(st, e, name, slow, pre=None):
    stamp(st, f"s{e}")
    if pre: pre(st)
    stamp(st, f"s{e}")
    st("s_waitcnt vmcnt(0)")
    stamp(st, f"s{e}")
    st(f"""
    s_barrier
    s_cmp_lg_u32 s22, 0
    s_cbranch_scc1 L_np{e}_{name}
    s_lshl_b32 s23, s20, 7
    s_lshl_b32 s28, s21, 3
    s_add_u32 s23, s23, s28
    s_add_u32 s23, s23, s{sFLAG}
    s_add_u32 s23, s23, {e*0x1000}
    v_mov_b32 v{vFLA}, 0
    """)
    flag_value(st)
    st(f"s_mov_b64 vcc, s[{slow}:{slow+1}]\ns_mov_b64 exec, 1")
    dstore(st, f"buffer_store_dwordx2 v[{vFLO}:{vFLO+1}], v{vFLA}, s[8:11], s23 offen")
    if e == 1:
        st(f"""
        s_lshl_b32 s23, s20, 7
        s_lshl_b32 s28, s21, 3
        s_add_u32 s23, s23, s28
        s_lshl_b32 s28, s{sL}, 13
        s_add_u32 s23, s23, s28
        s_add_u32 s23, s23, {HALOF}
        s_mov_b64 vcc, s[{sSLOWB}:{sSLOWB+1}]
        """)
        dstore(st, f"buffer_store_dwordx2 v[{vFLO}:{vFLO+1}], v{vFLA}, s[8:11], s23 offen")
    st("s_mov_b64 exec, -1")
    st.label(f"L_np{e}_{name}")
    stamp(st, f"s{e}")

def poll_pairs(st, label, regs, loads, sleep=False):
    st(f"s_mov_b32 s{sSPIN}, 0x10000")
    st.label(label)
    if sleep: st(f"s_sleep {2 if sleep is True else sleep}")
    for l in loads: st(l)
    st("s_waitcnt vmcnt(0)")
    check_pairs(st, regs)
    st(f"""
    s_sub_u32 s{sSPIN}, s{sSPIN}, 1
    s_cmp_eq_u32 s{sSPIN}, 0
    s_cbranch_scc1 {label}_d
    s_cbranch_vccnz {label}
    """)
    st.label(label + "_d")

def check_pairs(st, regs):
    for k, r in enumerate(regs):
        if k == 0: st(f"v_cmp_ne_u32 vcc, s{sTLO}, v{r}")
        else: st(f"v_cmp_ne_u32 s[28:29], s{sTLO}, v{r}\ns_or_b64 vcc, vcc, s[28:29]")
        st(f"v_cmp_ne_u32 s[28:29], s{sTHI}, v{r+1}\ns_or_b64 vcc, vcc, s[28:29]")

def sync_wait(st, e, name, halo=False, slow=None, a=None, b=None):
    if a: a(st)
    st(f"""
    v_and_b32 v{vFLA}, 7, v0
    v_lshlrev_b32 v{vFLA}, 3, v{vFLA}
    s_lshl_b32 s23, s20, 7
    """)
    st(f"""
    v_add_u32 v{vFLA}, s23, v{vFLA}
    s_add_u32 s45, s{sFLAG}, {e*0x1000}
    v_add_u32 v{vFLA}, s45, v{vFLA}
    """)
    if halo:
        st(f"""
        s_sub_u32 s28, s20, 1
        s_lshl_b32 s28, s28, 7
        s_lshl_b32 s23, s{sL}, 13
        s_add_u32 s28, s28, s23
        s_add_u32 s28, s28, {HALOF - 64}
        v_lshl_add_u32 v{vFLO}, v0, 3, s28
        v_subrev_u32 v{vFLO+1}, 8, v0
        v_cmp_gt_u32 s[28:29], 8, v{vFLO+1}
        s_cmp_eq_u32 s20, 0
        s_cselect_b64 s[28:29], 0, s[28:29]
        v_cndmask_b32_e64 v{vFLA}, v{vFLA}, v{vFLO}, s[28:29]
        """)
    ld = f"buffer_load_dwordx2 v[{vFLO}:{vFLO+1}], v{vFLA}, s[8:11], 0 offen sc1"
    stamp(st, f"s{e}")
    st.i(ld, vm=f"look{e}")
    if b: b(st)
    st.wv(f"look{e}")
    check_pairs(st, [vFLO])
    st(f"s_cbranch_vccz L_seen{e}_{name}")
    st("; RARE_BEGIN")
    poll_pairs(st, f"L_poll{e}_{name}", [vFLO], [ld])
    st("; RARE_END")
    st.label(f"L_seen{e}_{name}")
    stamp(st, f"s{e}")
    if slow is not None: st(f"s_mov_b64 vcc, s[{slow}:{slow+1}]")
    stamp(st)

def wg_flag_store(e, off_expr, lo_add=None, regs=None, replicas=1):
    vA, vV = regs or (61, 62)
    e(f"""
    s_lshl_b32 s28, s20, 3
    s_add_u32 s28, s28, s21
    s_lshl_b32 s28, s28, 3
    s_add_u32 s28, s28, {off_expr}
    v_lshlrev_b32 v{vA}, 11, v0
    v_mov_b32 v{vV}, s{sTLO if lo_add is None else lo_add}
    v_mov_b32 v{vV+1}, s{sTHI}
    s_cmp_eq_u32 s22, 0
    s_cselect_b64 exec, {(1 << replicas) - 1 if replicas < 7 else hex((1 << replicas) - 1)}, 0
    """)
    e.i(f"buffer_store_dwordx2 v[{vV}:{vV+1}], v{vA}, s[8:11], s28 offen sc1")
    e("s_mov_b64 exec, -1")

def w0_exec(e):
    e("s_cmp_eq_u32 s22, 0\ns_cselect_b64 exec, -1, 0")

vXCA, vXCV = 13, 14
def xcc_publish(st):
    if not FAST: return
    st(f"""
    s_getreg_b32 s39, hwreg(HW_REG_XCC_ID)
    s_and_b32 s39, s39, 7
    s_add_u32 s39, s39, 16
    s_add_u32 s39, s39, s{sTLO}
    """)
    wg_flag_store(st, f"{XCCT}", lo_add=39)
    st(f"s_mov_b32 s{sXCC}, s39")
sXCC = 95

def xcc_issue():
    e = St()
    e(f"""
    v_and_b32 v{vXCA}, 7, v0
    s_add_u32 s28, s20, 1
    s_min_u32 s28, s28, 31
    s_sub_u32 s28, s28, s20
    s_lshl_b32 s28, s28, 3
    v_bfe_u32 v{vXCV}, v0, 3, 1
    v_mul_lo_u32 v{vXCV}, v{vXCV}, s28
    v_add_u32 v{vXCA}, v{vXCA}, v{vXCV}
    s_lshl_b32 s28, s20, 3
    v_add_u32 v{vXCA}, s28, v{vXCA}
    v_lshlrev_b32 v{vXCA}, 3, v{vXCA}
    s_mov_b32 s38, {XCCT}
    """)
    e2 = St()
    e2.i(f"buffer_load_dwordx2 v[{vXCV}:{vXCV+1}], v{vXCA}, s[8:11], s38 offen sc1", vm="xcc")
    return [e, e2]

def xcc_check(st, name):
    if not FAST:
        st("s_waitcnt vmcnt(1)")
        st(f"s_mov_b64 s[{sSLOWA}:{sSLOWA+1}], -1\ns_mov_b64 s[{sSLOWB}:{sSLOWB+1}], -1"); return
    def chk():
        st(f"""
        v_subrev_u32 v9, s{sTLO}, v{vXCV}
        v_subrev_u32 v9, 16, v9
        v_cmp_le_u32 vcc, 8, v9
        v_cmp_ne_u32 s[28:29], s{sTHI}, v{vXCV+1}
        s_or_b64 vcc, vcc, s[28:29]
        """)
    st.wv("xcc")
    chk()
    st(f"s_mov_b32 s{sSPIN}, 0x10000\ns_cbranch_vccz L_xd_{name}")
    st("; RARE_BEGIN")
    st.label(f"L_xp_{name}")
    st(f"buffer_load_dwordx2 v[{vXCV}:{vXCV+1}], v{vXCA}, s[8:11], s38 offen sc1\ns_waitcnt vmcnt(0)")
    chk()
    st(f"""
    s_sub_u32 s{sSPIN}, s{sSPIN}, 1
    s_cmp_eq_u32 s{sSPIN}, 0
    s_cbranch_scc1 L_xd_{name}
    s_cbranch_vccnz L_xp_{name}
    """)
    st("; RARE_END")
    st.label(f"L_xd_{name}")
    st(f"""
    v_cmp_ne_u32 s[{sSLOWB}:{sSLOWB+1}], s{sXCC}, v{vXCV}
    s_nop 1
    s_and_b32 s{sSLOWA}, s{sSLOWB}, 0xff
    s_mov_b32 s{sSLOWA+1}, 0
    """)
    if "forceslow" in OPT:
        st(f"s_mov_b64 s[{sSLOWA}:{sSLOWA+1}], -1\ns_mov_b64 s[{sSLOWB}:{sSLOWB+1}], -1")

def dma_slots(st, ns, xb, sSrc, tile_of_slot, tag):
    st(f"""
    s_mul_i32 s25, s22, {ns*4096}
    s_add_u32 s25, s25, {xb}
    s_lshl_b32 s24, s22, 12
    s_add_u32 s24, s24, {sSrc}
    """)
    slots = []
    for s in range(ns):
        L = []
        for q in range(4):
            e = St()
            if q == 0:
                tile_of_slot(e, s)
                e(f"s_lshl_b32 s23, s23, 14\ns_add_u32 s27, s23, s24\ns_add_u32 m0, s25, {s*4096}")
            e.i(f"buffer_load_dwordx4 v{vL16}, s[8:11], s27 offen offset:{q*1024} sc1 lds", vm=f"{tag}{s}_{q}")
            L.append(e)
        slots.append(L)
    return slots

def gemm_steps(ns, chains, tagx, dma, upfront, stats=None, fine=None, wtags=None, pre_mid=None, lay=(4096, 1024), arrive=True):
    steps = []
    total = ns * 16
    def rd(idx):
        s, jj = divmod(idx, 16)
        return f"ds_read_b128 {vr(vRING + 4*(idx % RING), 4)}, v{vXA + (jj >> 2)} offset:{s*lay[0] + (jj & 3)*lay[1]}"
    pre = St()
    for s in range(upfront):
        for e in dma[s]: pre.ext(e)
        if s == 0 and pre_mid is not None: pre.ext(pre_mid)
        if s + 1 < upfront: pre("s_barrier")
    stamp(pre, fine)
    steps.append(pre)
    pre2 = St()
    if arrive:
        pre2.wv(f"{tagx}0_3")
        pre2("s_barrier")
    stamp(pre2, fine)
    for idx in range(RING): pre2.i(rd(idx), lds=f"x{idx}")
    steps.append(pre2)
    for idx in range(total):
        s, jj = divmod(idx, 16)
        stp = St()
        ring = vRING + 4 * (idx % RING)
        if wtags and s == 0 and jj % 4 == 0: stp.wv(wtags[jj // 4])
        multi = len(chains(s)) >= 2
        if (idx % 2 == 0 and not multi) or idx == 0: stp.wl(f"x{min(idx+1, total-1)}")
        for ci, (acc, w, w_is_A) in enumerate(chains(s)):
            wreg = rr((w[0], w[1] + 4 * jj), 4)
            c = "0" if jj == 0 and acc[1] else vr(acc[0], 4)
            if w_is_A: stp(f"v_mfma_f32_16x16x32_bf16 {vr(acc[0],4)}, {wreg}, {vr(ring,4)}, {c}")
            else:      stp(f"v_mfma_f32_16x16x32_bf16 {vr(acc[0],4)}, {vr(ring,4)}, {wreg}, {c}")
            if multi and ci == 0 and idx % 2 == 1 and idx + 1 < total: stp.wl(f"x{min(idx+2, total-1)}")
        if stats and jj < 4:
            sg, ss = stats(s)
            stp(f"v_mfma_f32_16x16x32_bf16 {vr(sg,4)}, {vr(ring,4)}, {vr(ring,4)}, {'0' if jj == 0 else vr(sg,4)}")
            stp(f"v_mfma_f32_16x16x32_bf16 {vr(ss,4)}, {vr(vONES,4)}, {vr(ring,4)}, {'0' if jj == 0 else vr(ss,4)}")
        nxt = idx + RING
        if nxt < total:
            if nxt % 16 == 0 and arrive:
                stp.it.append(("mark", f"bar{s}", None, None))
                stp.wv(f"{tagx}{nxt//16}_3")
                stp("s_barrier")
            stp.i(rd(nxt), lds=f"x{nxt}")
        sd = s + upfront
        if sd < ns and jj < 4: stp.ext(dma[sd][jj])
        if jj == 15 or jj == 7: stamp(stp, fine)
        steps.append(stp)
    return steps

COSTW = 'nocostw' not in OPT
BUDGET = int(os.environ.get('BUDGET', '8'))
def weave2(steps, progs, per=2):
    out = St()
    qs = [list(p) for p in progs]
    skip = [0] * len(qs)
    def emit_forced(name):
        for qi, q in enumerate(qs):
            last = max([i for i, (ms, it) in enumerate(q) if it[0] == "before" and it[1] == name], default=-1)
            for _ in range(last + 1):
                ms, it = q.pop(0)
                if it[0] not in ("gap", "before"): out.it.append(it)
    def cost(x):
        if x[0] in ("grp", "grpv"): return 4 * len(x[1])
        if x[0] != "i": return 0
        op = x[1].split()[0]
        if op.endswith(":"): return 0
        if op.startswith("v_mfma"): return 8
        if op in ("v_exp_f32", "v_rcp_f32", "v_rsq_f32") or op.startswith("v_permlane"): return 8
        if op.startswith("ds_"): return 6
        if op.startswith("s_"): return 2
        return 4
    avail = 0
    for si, stp in enumerate(steps):
        items = list(stp.it)
        k = 0
        while k < len(items):
            it = items[k]; k += 1
            if it[0] == "mark":
                emit_forced(it[1]); avail = 0; continue
            out.it.append(it)
            if it[0] == "i" and it[1].startswith("v_mfma"):
                avail = min(avail + BUDGET, 2 * BUDGET) if COSTW else 0
                if k < len(items) and items[k][0] == "i" and items[k][1].startswith("ds_read"):
                    out.it.append(items[k]); k += 1
                    avail -= 4
                n = 0
                for qi, q in enumerate(qs):
                    if skip[qi] > 0:
                        skip[qi] -= 1; continue
                    while q and q[0][0] <= si:
                        x = q[0][1]
                        if COSTW:
                            if cost(x) > avail and not (cost(x) > 2 * BUDGET and avail >= BUDGET): break
                        elif n >= per: break
                        q.pop(0)
                        if x[0] == "gap":
                            skip[qi] = x[1]; break
                        if x[0] == "before": continue
                        out.it.append(x)
                        avail -= cost(x)
                        if x[0] in ("i", "grp", "grpv"): n += 1
    for q in qs:
        for ms, x in q:
            if x[0] not in ("gap", "before"): out.it.append(x)
    return out

def prog(ms, st_): return [(ms, it) for it in st_.it]
def strip_marks(st_):
    o = St(); o.it = [it for it in st_.it if it[0] != "mark"]; return o

def phase_kv(st, name, layer_out, src, kvb, sregs=(28, 29, 30, 31)):
    XR = 64
    accK, accV, SG, SS = 80, 84, 96, 100
    csK, csV = 112, 116
    vA0, vA1, vKW, vKR = 104, 105, 106, 107
    t = vTMP
    sb = kvb + 8192
    kA, kW, kR, kP = sregs
    def first(e):
        stats_setup(e, sb, (kA, kW, kR, kP))
        e(f"""
        s_lshl_b32 s44, s20, 2
        s_lshr_b32 s28, s21, 1
        s_add_u32 s44, s44, s28
        """)
    def xloads(e):
        if src == "lds":
            e(f"""
            s_lshl_b32 s23, s21, 3
            s_and_b32 s23, s23, 0x30
            s_mul_i32 s23, s23, {XROW}
            s_lshl_b32 s28, s22, 8
            s_add_u32 s23, s23, s28
            s_add_u32 s23, s23, {XB_Q}
            v_mul_u32_u24 v{t+12}, {XROW}, v{vT}
            v_lshl_add_u32 v{t+12}, v{vG}, 4, v{t+12}
            v_add_u32 v{t+12}, s23, v{t+12}
            """)
            for q in range(4):
                e.i(f"ds_read_b128 {vr(XR+4*q,4)}, v{t+12} offset:{q*64}", lds=f"xk{q}")
        elif src == "row":
            e(f"""
            v_lshlrev_b32 v{t+12}, 10, v{vT}
            v_lshl_add_u32 v{t+12}, v{vG}, 4, v{t+12}
            s_lshl_b32 s23, s44, 14
            s_lshl_b32 s28, s22, 8
            s_add_u32 s23, s23, s28
            """)
            for q in range(4):
                e.i(f"buffer_load_dwordx4 {vr(XR+4*q,4)}, v{t+12}, s[12:15], s23 offen offset:{q*64}", vm=f"xk{q}")
        else:
            e(f"""
            s_lshl_b32 s23, s44, 14
            s_lshl_b32 s28, s22, 12
            s_add_u32 s23, s23, s28
            s_add_u32 s23, s23, {B0 + BS*layer_out + XIN}
            """)
            for q in range(4):
                e.i(f"buffer_load_dwordx4 {vr(XR+4*q,4)}, v{vL16}, s[8:11], s23 offen offset:{q*1024} sc1", vm=f"xk{q}")
    def setup(e):
        e(f"""
        s_bitcmp1_b32 s21, 0
        s_cselect_b64 s[38:39], -1, 0
        v_lshrrev_b32 v{t}, 1, v{vG}
        v_and_b32 v{t+1}, 1, v{vG}
        v_lshlrev_b32 v{t+2}, 9, v{t}
        v_lshl_add_u32 v{t+2}, v{vT}, 4, v{t+2}
        v_lshl_add_u32 v{t+2}, v{t+1}, 3, v{t+2}
        v_lshlrev_b32 v{t+4}, 8, v{t+1}
        v_lshl_add_u32 v{t+4}, v{vT}, 4, v{t+4}
        v_lshl_add_u32 v{t+4}, v{t}, 3, v{t+4}
        v_cndmask_b32_e64 v{vA0}, v{t+2}, v{t+4}, s[38:39]
        s_lshl_b32 s23, s22, 11
        s_add_u32 s23, s23, {kvb}
        v_add_u32 v{vKW}, s23, v{vL16}
        v_add_u32 v{vKR}, {kvb}, v{vL16}
        s_lshr_b32 s23, s44, 1
        s_lshl_b32 s23, s23, 10
        s_and_b32 s28, s44, 1
        s_lshl_b32 s29, s28, 8
        s_add_u32 s29, s29, {KF0 + KVS*layer_out}
        s_lshl_b32 s28, s28, 9
        s_add_u32 s28, s28, {VF0 + KVS*layer_out}
        s_bitcmp1_b32 s21, 0
        s_cselect_b32 s28, s28, s29
        s_add_u32 s59, s23, s28
        """)
    def cs(e):
        for jj in range(4):
            w = rr((W_KV[0], W_KV[1] + 4 * jj), 4)
            e(f"v_mfma_f32_16x16x32_bf16 {vr(csK,4)}, {w}, {vr(vONES,4)}, {'0' if jj == 0 else vr(csK,4)}")
            e(f"v_mfma_f32_16x16x32_bf16 {vr(csV,4)}, {vr(vONES,4)}, {w}, {'0' if jj == 0 else vr(csV,4)}")
        for r in range(4): e(f"v_cndmask_b32_e64 v{csK+r}, v{csK+r}, v{csV}, s[38:39]")
        e.i(f"ds_write_b128 v{vKW}, {vr(csK,4)} offset:1024")
    def main(e):
        for q in range(4):
            if src == "lds": e.wl(f"xk{q}")
            else: e.wv(f"xk{q}")
            w = rr((W_KV[0], W_KV[1] + 4 * q), 4); x = vr(XR + 4 * q, 4)
            z = lambda r: "0" if q == 0 else vr(r, 4)
            e(f"v_mfma_f32_16x16x32_bf16 {vr(SG,4)}, {x}, {x}, {z(SG)}")
            e(f"v_mfma_f32_16x16x32_bf16 {vr(SS,4)}, {vr(vONES,4)}, {x}, {z(SS)}")
            e(f"v_mfma_f32_16x16x32_bf16 {vr(accK,4)}, {w}, {x}, {z(accK)}")
            e(f"v_mfma_f32_16x16x32_bf16 {vr(accV,4)}, {x}, {w}, {z(accV)}")
        stats_extract(e, 0, SG, SS, t, "ksw", kW)
        for r in range(4): e(f"v_cndmask_b32_e64 v{accK+r}, v{accK+r}, v{accV+r}, s[38:39]")
        e.i(f"ds_write_b128 v{vKW}, {vr(accK,4)}", lds="kaw")
        e("s_waitcnt lgkmcnt(0)\ns_barrier")
        stats_read(e, 0, t, "ksr", kR)
        F = 108
        for w in range(4): e.i(f"ds_read_b128 {vr(F+4*w,4)}, v{vKR} offset:{w*2048}")
        for w in range(4): e.i(f"ds_read_b128 {vr(F+16+4*w,4)}, v{vKR} offset:{w*2048+1024}", lds=f"kr{w}")
        e.wl("ksr")
        R, N = 140, 141
        for x in stats_math(t, R, N): e(x)
        e.i(f"ds_write_b32 v{kA}, v{R}")
        e.i(f"ds_write_b32 v{kA}, v{N} offset:64", lds="kpw")
        e.wl("kpw")
        R4, N4 = 144, 148
        e.i(f"ds_read_b128 {vr(R4,4)}, v{kP}")
        e.i(f"ds_read_b128 {vr(N4,4)}, v{kP} offset:64", lds="kpr")
        for b in (F, F + 16):
            for r in range(4): e(f"v_add_f32 v{b+r}, v{b+r}, v{b+4+r}\nv_add_f32 v{b+8+r}, v{b+8+r}, v{b+12+r}")
            for r in range(4): e(f"v_add_f32 v{b+r}, v{b+r}, v{b+8+r}")
        e.wl("kpr")
        for r in range(4):
            e(f"v_cndmask_b32_e64 v{R4+r}, v{R}, v{R4+r}, s[38:39]\nv_cndmask_b32_e64 v{N4+r}, v{N}, v{N4+r}, s[38:39]")
        ln_epi(e, F, [R4+r for r in range(4)], [N4+r for r in range(4)], [F+16+r for r in range(4)], 152, 154)
        e("s_cmp_eq_u32 s22, 0\ns_cselect_b64 exec, -1, 0")
        e.i(f"buffer_store_dwordx2 v[152:153], v{vA0}, s[8:11], s59 offen sc1", vm="kvst")
        e("s_mov_b64 exec, -1")
    return first, xloads, setup, cs, main

LDS_K, LDS_V, VS = 0, 65536, 1056
SB_Q = XB_Q + 65536
SB_Q0 = XB_Q + 64 * XROW
SA, SB, OA_, OB_ = 16, 32, 48, 64
PA, PB, QA, QB, KB, VB = 80, 88, 96, 100, 104, 112
vK, vV0, vV1 = 2, 3, 4

def kv_group(gi, tag):
    out = []
    e = St(); e(f"s_add_u32 s23, s60, {gi*8192}\ns_add_u32 m0, s62, {gi*8192}")
    e.i(f"buffer_load_dwordx4 v{vL16}, s[8:11], s23 offen sc1 lds"); out.append(e)
    e = St(); e.i(f"buffer_load_dwordx4 v{vL16}, s[8:11], s23 offen offset:1024 sc1 lds"); out.append(e)
    e = St(); e(f"s_add_u32 s23, s61, {gi*8192}\ns_add_u32 m0, s63, {gi*8*VS}")
    e.i(f"buffer_load_dwordx4 v{vL16}, s[8:11], s23 offen sc1 lds"); out.append(e)
    e = St(); e(f"s_add_u32 m0, s63, {gi*8*VS + VS - 1024}")
    e.i(f"buffer_load_dwordx4 v{vL16}, s[8:11], s23 offen offset:1024 sc1 lds", vm=tag); out.append(e)
    return out

KVB = 147456
MAIN_LDS = 163840
vB0, vB1 = 158, 162
A_WQ, A_WKV, A_PREP, A_XC = 0, 64, 80, 92

def transpose(e, src, dst, tmp=16):
    e(f"v_mfma_f32_16x16x32_bf16 {vr(tmp,4)}, {src}, {vr(vB0,4)}, 0")
    e(f"v_mfma_f32_16x16x32_bf16 {vr(tmp+4,4)}, {src}, {vr(vB1,4)}, 0")
    e(f"""
    v_cvt_pk_bf16_f32 v{dst}, v{tmp}, v{tmp+1}
    v_cvt_pk_bf16_f32 v{dst+1}, v{tmp+2}, v{tmp+3}
    v_cvt_pk_bf16_f32 v{dst+2}, v{tmp+4}, v{tmp+5}
    v_cvt_pk_bf16_f32 v{dst+3}, v{tmp+6}, v{tmp+7}
    """)

def q_setup(st):
    xa_setup(st, 4, XB_Q)
    stats_setup(st, SB_Q)

def q_dma_act(st):
    dma = dma_slots(st, 4, XB_Q, f"s{sXIN}", lambda e, s: e(f"s_add_u32 s23, s26, {s}"), "xq")
    return dma

Q_ACC, Q_CS = 64, 124
Q_SG = [80, 84, 88, 92]; Q_SS = [104, 108, 112, 116]
KVF_LD = ["buffer_load_dwordx4 v[128:131], v60, s[8:11], s47 offen sc1", "buffer_load_dwordx4 v[132:135], v60, s[8:11], s47 offen offset:16 sc1"]

def q_gemm(st, first, dma=None, tailprog=None):
    ns = 4
    if first:
        steps = gemm_steps(ns, lambda s: [((Q_ACC + 4 * s, True), W_QA, True)], "xq", [[], [], [], []], 4,
                           stats=lambda s: (Q_SG[s], Q_SS[s]), fine="q", lay=(16 * XROW, 64), arrive=False)
    else:
        steps = gemm_steps(ns, lambda s: [((Q_ACC + 4 * s, True), W_QA, True)], "xq", [[], [], dma[2], dma[3]], 2,
                           stats=lambda s: (Q_SG[s], Q_SS[s]), fine="q")
    pa = []
    for s in range(ns):
        e = St(); stats_extract(e, s, Q_SG[s], Q_SS[s], vTMP, f"qsw{s}")
        pa += prog(16 * s + 6, e)
    pb = []
    PUBS = int(os.environ.get("PUBS", "12")); LOOK = int(os.environ.get("LOOK0" if first else "LOOK1", "40" if first else "56"))
    if not first:
        pub = St(); pub.wv("kvst")
        pub(f"s_lshl_b32 s29, s{sL}, 14\ns_add_u32 s29, s29, {KVFL}")
        g = St(); wg_flag_store(g, "s29", replicas=8)
        pub.it.append(("grpv", [it[1] for it in g.it], None, None))
        pb += prog(PUBS, pub)
    look = St()
    look(f"""
    v_lshlrev_b32 v60, 5, v0
    s_lshl_b32 s47, s{sL}, 14
    s_add_u32 s47, s47, {KVFL}
    s_lshr_b32 s28, s20, 2
    s_lshl_b32 s28, s28, 11
    s_add_u32 s47, s47, s28
    """)
    look.it.append(("grpv", ["s_cmp_eq_u32 s22, 0", "s_cselect_b64 exec, -1, 0", KVF_LD[0], KVF_LD[1], "s_mov_b64 exec, -1"], None, None))
    pb += prog(LOOK, look)
    csum = St(); colsum(csum, Q_CS, W_QA, True)
    st.ext(steps[1])
    st.ext(strip_marks(weave2(steps[2:], [pa, pb, prog(4, csum)], per=1)))
    if first:
        tailprog(st)
        st("s_waitcnt vmcnt(3)")
    else:
        st("s_waitcnt vmcnt(0)")

def q_tail(st, name):
    ns = 4
    st("s_waitcnt lgkmcnt(0)\ns_barrier")
    A8 = [16, 24, 32, 40]
    for s in range(ns): stats_read(st, s, A8[s], f"qsr{s}")
    stamp(st)
    w0_exec(st)
    check_pairs(st, [128, 130, 132, 134])
    st(f"s_cbranch_vccz L_kvok_{name}")
    st("; RARE_BEGIN")
    poll_pairs(st, f"L_kvp_{name}", [128, 130, 132, 134], KVF_LD, sleep=True)
    st("; RARE_END")
    st.label(f"L_kvok_{name}")
    st("s_mov_b64 exec, -1\ns_barrier")
    st(f"""
    s_lshl_b32 s62, s22, 11
    s_add_u32 s60, s62, s{sKF}
    s_add_u32 s61, s62, s{sVF}
    s_mul_i32 s63, s22, {2*VS}
    s_add_u32 s63, s63, {LDS_V}
    """)
    for e in kv_group(0, "c0"): st.ext(e)
    R = [48 + s for s in range(ns)]; N = [52 + s for s in range(ns)]
    st.wl("qsr3")
    maths = [stats_math(A8[s], R[s], N[s]) for s in range(ns)]
    for i in range(len(maths[0])):
        for s in range(ns): st(maths[s][i])
    for s in range(ns):
        st(f"v_mul_f32 v{R[s]}, {f32(CQ)}, v{R[s]}\nv_mul_f32 v{N[s]}, {f32(CQ)}, v{N[s]}")
    for s in range(ns):
        ln_epi(st, Q_ACC + 4 * s, [R[s]] * 4, [N[s]] * 4, [Q_CS + r for r in range(4)], QA + 2 * s, 16 + 4 * s)
    st(f"""
    v_permlane16_swap_b32 v{QA}, v{QA+2}
    v_permlane16_swap_b32 v{QA+1}, v{QA+3}
    v_permlane16_swap_b32 v{QB}, v{QB+2}
    v_permlane16_swap_b32 v{QB+1}, v{QB+3}
    """)

def prep_block(st, name):
    st(f"s_cmp_lg_u32 s{sL}, 0\ns_cbranch_scc1 L_noprep_{name}")
    st(f"s_lshl_b32 s46, s2, 2\ns_add_u32 s46, s46, s22")
    for i in range(3):
        transpose(st, ar(A_PREP + 4 * i, 4), 136 + 4 * i, tmp=128)
        st(f"""
        s_add_u32 s27, s46, {1024*i}
        s_cmp_lt_u32 s27, 2560
        s_cselect_b64 exec, -1, 0
        s_add_u32 s27, s27, 512
        s_lshl_b32 s27, s27, 10
        """)
        st(f"buffer_store_dwordx4 {vr(136+4*i,4)}, v{vL16}, s[8:11], s27 offen sc1")
        st("s_mov_b64 exec, -1")
    st.label(f"L_noprep_{name}")

def phase_att(st, name):
    st(f"""
    v_mov_b32 v{vK}, v{vL16}
    v_and_b32 v5, 31, v0
    v_lshrrev_b32 v6, 5, v0
    v_lshlrev_b32 v7, 8, v6
    v_lshl_add_u32 v7, v5, 4, v7
    v_add_u32 v7, {LDS_V}, v7
    v_mov_b32 v16, {LDS_V + 1024 + 16}
    v_mov_b32 v17, {LDS_V + 1024}
    v_and_b32 v18, 27, v5
    v_cmp_eq_u32 s[28:29], 16, v18
    v_cndmask_b32_e64 v16, v16, v17, s[28:29]
    v_cmp_gt_u32 s[28:29], 16, v5
    v_cndmask_b32_e64 v{vV0}, v16, v7, s[28:29]
    v_add_u32 v7, 512, v7
    v_cndmask_b32_e64 v{vV1}, v16, v7, s[28:29]
    v_mov_b32 v16, 0x3f803f80
    v_mov_b32 v17, v16
    v_mov_b32 v18, v16
    v_mov_b32 v19, v16
    v_mul_u32_u24 v20, {VS}, v0
    v_add_u32 v20, {LDS_V + 1024}, v20
    s_cmp_lg_u32 s22, 0
    s_cbranch_scc1 L_noones_{name}
    ds_write_b128 v20, v[16:19]
    v_mov_b32 v16, 0
    v_mov_b32 v17, 0
    v_mov_b32 v18, 0
    v_mov_b32 v19, 0
    ds_write_b128 v20, v[16:19] offset:16
    """)
    st.label(f"L_noones_{name}")
    st(f"""
    v_and_b32 v9, 15, v0
    v_lshrrev_b32 v10, 4, v0
    s_lshl_b32 s23, s21, 11
    s_lshr_b32 s28, s22, 1
    s_lshl_b32 s28, s28, 10
    s_add_u32 s23, s23, s28
    s_and_b32 s28, s22, 1
    s_lshl_b32 s28, s28, 9
    s_add_u32 s23, s23, s28
    v_lshrrev_b32 v11, 1, v10
    v_lshlrev_b32 v11, 8, v11
    v_lshl_add_u32 v11, v9, 4, v11
    v_and_b32 v8, 1, v10
    v_lshl_add_u32 v8, v8, 3, v11
    v_add_u32 v8, s23, v8
    s_lshl_b32 s59, s20, 16
    s_add_u32 s59, s59, s{sXIN}
    """)
    def init_acc(s):
        for r in range(16): s(f"v_mov_b32 v{OA_+r}, 0\nv_mov_b32 v{OB_+r}, 0")
    def rdK(t, base): return f"ds_read_b128 {vr(KB + 4*(t&1),4)}, v{vK} offset:{(t-base)*1024}"
    def rdV(t, base):
        b = VB + 8 * (t & 1)
        return [f"ds_read_b128 {vr(b,4)}, v{vV0} offset:{(t-base)*VS}", f"ds_read_b128 {vr(b+4,4)}, v{vV1} offset:{(t-base)*VS}"]
    def qk(S, t, Q): return f"v_mfma_f32_32x32x16_bf16 {vr(S,16)}, {vr(KB + 4*(t&1),4)}, {vr(Q,4)}, 0"
    def pv(O, t, P):
        b = VB + 8 * (t & 1)
        return [f"v_mfma_f32_32x32x16_bf16 {vr(O,16)}, {vr(b,4)}, {vr(P,4)}, {vr(O,16)}",
                f"v_mfma_f32_32x32x16_bf16 {vr(O,16)}, {vr(b+4,4)}, {vr(P+4,4)}, {vr(O,16)}"]
    def softmax(S, P, M):
        ins = []
        if M is not None:
            for r in range(16): ins.append(f"v_sub_f32 v{S+r}, v{S+r}, v{M}")
        for i in range(8):
            ins.append(f"v_exp_f32 v{S+2*i}, v{S+2*i}")
            ins.append(f"v_exp_f32 v{S+2*i+1}, v{S+2*i+1}")
            if i > 0: ins.append(f"v_cvt_pk_bf16_f32 v{P+i-1}, v{S+2*i-2}, v{S+2*i-1}")
        ins.append(f"v_cvt_pk_bf16_f32 v{P+7}, v{S+14}, v{S+15}")
        return ins
    def mix(s, valu, groups):
        n = len(valu); k = len(groups)
        for j in range(k):
            for x in groups[j]:
                if isinstance(x, St): s.ext(x)
                else: s(x)
            for x in valu[j * n // k:(j + 1) * n // k]: s(x)
    def iteration(s, t, nt, base, extras, safe=None, first=False, rolled=False):
        MA, MB = safe if safe else (None, None)
        ex = list(extras)
        def pop(): return [ex.pop(0)] if ex else []
        g1 = [[qk(SB, t, QB)] + ([rdK(t + 2, base)] if (rolled or t + 2 < nt) else [])]
        pvb = [] if first else pv(OB_, t - 1, PB)
        rv = rdV(t + 1, base) if (rolled or t + 1 < nt) else []
        if pvb:
            g1.append([pvb[0]] + rv[:1]); g1.append([pvb[1]] + rv[1:])
        else:
            g1.append(rv)
        mix(s, softmax(SA, PA, MA), g1)
        pva = pv(OA_, t, PA)
        g2 = [([qk(SA, t + 1, QA)] if (rolled or t + 1 < nt) else []) + pop(), [pva[0]] + pop(), [pva[1], "s_waitcnt lgkmcnt(0)"]]
        mix(s, softmax(SB, PB, MB), g2)
        for x in ex: s.ext(x)
    def first_reads(s):
        s(rdK(0, 0)); s(rdK(1, 0))
        for x in rdV(0, 0): s(x)
        s("s_waitcnt lgkmcnt(0)")
        s(qk(SA, 0, QA))
    init_acc(st)
    st.wv("c0")
    st("s_waitcnt lgkmcnt(0)\ns_barrier")
    prep_block(st, name)
    first_reads(st)
    stamp(st)
    extras = {t: [] for t in range(64)}
    for gi in range(1, 8): extras[gi - 1] += kv_group(gi, f"kv{gi}")
    prep_ld = [f"buffer_load_dwordx4 v[128:131], v136, s[8:11], s47 offen sc1", f"buffer_load_dwordx4 v[132:135], v136, s[8:11], s47 offen offset:16 sc1"]
    e = St(); e(f"v_lshlrev_b32 v136, 5, v0\ns_lshr_b32 s47, s20, 2\ns_lshl_b32 s47, s47, 11\ns_add_u32 s47, s47, {PREPF}")
    w0_exec(e); e.i(prep_ld[0]); e.i(prep_ld[1], vm="prepf"); e("s_mov_b64 exec, -1"); extras[11].append(e)
    pre = []
    pre += w_loads(W_O, T_WOA, "woa")
    e = St()
    e(f"s_cmp_eq_u32 s{sL}, 1\ns_cselect_b64 exec, -1, 0")
    for q in range(4):
        if q: e("s_add_u32 s59, s59, 16384")
        e.i(f"buffer_load_dwordx2 {vr(vRES+2*q,2)}, v8, s[8:11], s59 offen sc1")
    e("s_mov_b64 exec, -1")
    pre.append(e)
    pre += w_loads(W_Q2, T_WQKV, "wq2")
    pre += w_loads(W_K2, T_WQKV + 32, "wk2")
    pre += w_loads(W_V2, T_WQKV + 64, "wv2")
    if FAST: pre += xcc_issue()
    t = 14
    while pre:
        extras[t] += pre[:2]; pre = pre[2:]; t += 1
    warm = []
    if "nowarm" not in OPT:
        e = St()
        e(f"""
        v_lshrrev_b32 v9, 4, v0
        v_bfe_u32 v10, v0, 2, 2
        v_and_b32 v11, 3, v0
        v_lshlrev_b32 v10, 14, v10
        v_lshl_add_u32 v10, v11, 7, v10
        s_lshl_b32 s28, s21, 11
        s_lshl_b32 s29, s22, 9
        s_add_u32 s28, s28, s29
        s_lshl_b32 s29, s20, 16
        s_add_u32 s28, s28, s29
        v_add_u32 v10, s28, v10
        v_add_u32 v9, 1, v9
        v_lshlrev_b32 v9, 21, v9
        v_add_u32 v10, v10, v9
        """)
        e.i(f"buffer_load_dword v253, v10, s[8:11], s{sXIN} offen".replace("v253", "v137"))
        warm = [e]
    if "wbl2" in OPT:
        e = St()
        lines = [f"s_lshr_b32 s28, s2, 3", f"s_or_b32 s28, s28, s22", f"s_xor_b32 s29, s{sL}, 1", "s_or_b32 s28, s28, s29", "s_cmp_lg_u32 s28, 0",
                 "s_cbranch_scc1 L_nowb", "buffer_wbl2 sc1", "L_nowb:"]
        e.it.append(("grp", lines, None, None))
        extras[15].append(e)
    WT = int(os.environ.get("WARMT", t))
    extras[WT] += warm
    assert t <= 62
    base = 0
    for t in range(64):
        if t == 6:
            st.wv("kv1"); st("s_barrier")
            wg_flag_store(st, f"{PREPF}", regs=(138, 140), replicas=8)
        if t == 14:
            st.wv("kv7"); st.wv("prepf")
            w0_exec(st)
            check_pairs(st, [128, 130, 132, 134])
            st(f"s_cbranch_vccz L_prepok_{name}")
            st("; RARE_BEGIN")
            poll_pairs(st, f"L_prepp_{name}", [128, 130, 132, 134], prep_ld, sleep=True)
            st("; RARE_END")
            st.label(f"L_prepok_{name}")
            st("s_mov_b64 exec, -1\ns_barrier")
        if t == 32:
            st(f"v_add_u32 v{vK}, {32*1024}, v{vK}\nv_add_u32 v{vV0}, {32*VS}, v{vV0}\nv_add_u32 v{vV1}, {32*VS}, v{vV1}")
            base = 32
        if t in (0, 6, 8, 14, 16, 22, 30, 38, 46, 52, 58): stamp(st, "a")
        iteration(st, t, 64, base, extras[t], first=(t == 0))
    stamp(st, "a")
    stamp(st)
    def tail(s):
        for x in pv(OB_, 63, PB): s(x)
    lA, lB = OA_ + 8, OB_ + 8
    tail(st)
    xcc_check(st, name)
    st(f"v_mul_f32 v9, 0, v{OA_}\nv_mul_f32 v10, 0, v{OB_}")
    for r in range(1, 8):
        st(f"v_fma_f32 v9, v{OA_+r}, 0, v9\nv_fma_f32 v10, v{OB_+r}, 0, v10")
    st(f"""
    v_add_f32 v9, v9, v10
    v_min_f32 v10, v{lA}, v{lB}
    v_max_f32 v11, v{lA}, v{lB}
    v_add_f32 v10, v10, v9
    v_add_f32 v11, v11, v9
    v_cmp_u_f32 s[28:29], v{lA}, v{lB}
    v_mov_b32 v20, {f32(2.0**-40)}
    v_cmp_nge_f32 vcc, v10, v20
    s_or_b64 s[28:29], s[28:29], vcc
    v_mov_b32 v20, {f32(2.0**100)}
    v_cmp_nle_f32 vcc, v11, v20
    s_or_b64 s[28:29], s[28:29], vcc
    s_cmp_eq_u64 s[28:29], 0
    s_cbranch_scc1 L_attok_{name}
    """)
    st("; RARE_BEGIN")
    MA, MB = 9, 10
    st(f"""
    v_subrev_u32 v{vK}, {32*1024}, v{vK}
    v_subrev_u32 v{vV0}, {32*VS}, v{vV0}
    v_subrev_u32 v{vV1}, {32*VS}, v{vV1}
    v_mov_b32 v{MA}, {f32(-3.0e38)}
    v_mov_b32 v{MB}, {f32(-3.0e38)}
    v_mov_b32 v11, v{vK}
    s_mov_b32 s44, 0
    """)
    st.label(f"L_max_{name}")
    st(f"""
    ds_read_b128 {vr(KB,4)}, v11
    s_waitcnt lgkmcnt(0)
    v_mfma_f32_32x32x16_bf16 {vr(SA,16)}, {vr(KB,4)}, {vr(QA,4)}, 0
    v_mfma_f32_32x32x16_bf16 {vr(SB,16)}, {vr(KB,4)}, {vr(QB,4)}, 0
    v_add_u32 v11, 1024, v11
    """)
    for r in range(0, 16, 2): st(f"v_max3_f32 v{MA}, v{MA}, v{SA+r}, v{SA+r+1}")
    for r in range(0, 16, 2): st(f"v_max3_f32 v{MB}, v{MB}, v{SB+r}, v{SB+r+1}")
    st(f"""
    s_add_u32 s44, s44, 1
    s_cmp_lt_u32 s44, 64
    s_cbranch_scc1 L_max_{name}
    v_mov_b32 v11, v{MA}
    v_permlane32_swap_b32 v11, v{MA}
    v_max_f32 v{MA}, v{MA}, v11
    v_mov_b32 v11, v{MB}
    v_permlane32_swap_b32 v11, v{MB}
    v_max_f32 v{MB}, v{MB}, v11
    """)
    init_acc(st)
    for r in range(8): st(f"v_mov_b32 v{PB+r}, 0\nv_mov_b32 v{VB+8+r}, 0")
    first_reads(st)
    st("s_mov_b32 s44, 0")
    st.label(f"L_att2_{name}")
    for u in range(2):
        iteration(st, u + 2, 64, 2, [], safe=(MA, MB), rolled=True)
    st(f"""
    v_add_u32 v{vK}, {2*1024}, v{vK}
    v_add_u32 v{vV0}, {2*VS}, v{vV0}
    v_add_u32 v{vV1}, {2*VS}, v{vV1}
    s_add_u32 s44, s44, 1
    s_cmp_lt_u32 s44, 32
    s_cbranch_scc1 L_att2_{name}
    """)
    tail(st)
    st("; RARE_END")
    st.label(f"L_attok_{name}")
    st(f"""
    s_lshl_b32 s23, s21, 11
    s_lshr_b32 s24, s22, 1
    s_lshl_b32 s24, s24, 10
    s_add_u32 s23, s23, s24
    s_and_b32 s24, s22, 1
    s_lshl_b32 s24, s24, 9
    s_add_u32 s23, s23, s24
    s_lshl_b32 s24, s20, 16
    s_add_u32 s23, s23, s24
    s_add_u32 s23, s23, s{sOA}
    v_and_b32 v9, 15, v0
    v_lshlrev_b32 v9, 4, v9
    v_lshrrev_b32 v10, 5, v0
    v_lshl_add_u32 v9, v10, 3, v9
    v_bfe_u32 v10, v0, 4, 1
    v_lshl_add_u32 v9, v10, 14, v9
    v_rcp_f32 v11, v{lA}
    v_rcp_f32 v12, v{lB}
    s_mov_b64 vcc, s[{sSLOWA}:{sSLOWA+1}]
    """)
    for qb, O, rc in ((0, OA_, 11), (1, OB_, 12)):
        for r in range(8): st(f"v_mul_f32 v{O+r}, v{O+r}, v{rc}")
        p = 16 + 4 * qb
        st(f"""
        v_cvt_pk_bf16_f32 v{p}, v{O}, v{O+1}
        v_cvt_pk_bf16_f32 v{p+1}, v{O+2}, v{O+3}
        v_cvt_pk_bf16_f32 v{p+2}, v{O+4}, v{O+5}
        v_cvt_pk_bf16_f32 v{p+3}, v{O+6}, v{O+7}
        """)
        dstore(st, f"buffer_store_dwordx2 {vr(p,2)}, v9, s[8:11], s23 offen")
        dstore(st, f"buffer_store_dwordx2 {vr(p+2,2)}, v9, s[8:11], s23 offen offset:256")
        if qb == 0: st("s_add_u32 s23, s23, 32768")

def phase_p13(st, name, which, kv1=None):
    ns = 4
    slow = sSLOWA
    tag = f"x{which}"
    vActA, vRowA = 44, 45
    acc = 64
    dma = []
    tile = (lambda s: (s + 3) & 3) if which == 1 else (lambda s: s)
    def a(st):
        if which == 1:
            lane_consts(st)
            act_addr(st, vActA, vTMP)
            st(f"v_mov_b32 v99, v{vActA}")
        else:
            st(f"v_mov_b32 v{vActA}, v99")
        st("s_lshl_b32 s26, s20, 2")
        xa_setup(st, 4, 0)
        for s in range(4):
            x = acc + 4 * s
            st(f"""
            v_lshlrev_b32 v{x}, 16, v{vRES+2*tile(s)}
            v_and_b32 v{x+1}, 0xffff0000, v{vRES+2*tile(s)}
            v_lshlrev_b32 v{x+2}, 16, v{vRES+2*tile(s)+1}
            v_and_b32 v{x+3}, 0xffff0000, v{vRES+2*tile(s)+1}
            """)
        if which == 3:
            row_addr(st, vRowA)
            st(f"""
            s_cmp_eq_u32 s{sL}, 0
            s_cselect_b32 s{SRD_OUT}, s8, s12
            s_cselect_b32 s{SRD_OUT+1}, s9, s13
            s_cselect_b32 s{SRD_OUT+2}, s10, s14
            s_mov_b32 s{SRD_OUT+3}, 0x00020000
            s_cselect_b32 s46, {B0 + BS + XIN}, 0
            s_cselect_b64 s[28:29], -1, 0
            v_cndmask_b32_e64 v{vActA}, v{vRowA}, v{vActA}, s[28:29]
            """)
            kv1[0](st); kv1[2](st)
        else:
            colsum(st, 112, W_Q2, True)
        dma.extend(dma_slots(st, ns, 0, f"s{sOA if which == 1 else sOB}", lambda e, s: e(f"s_add_u32 s23, s26, {tile(s)}"), tag))
    def b(st):
        if which == 1: p2_consts_a(st)
        else: kv1[3](st)
    stamp(st, f"p{which}")
    sync_wait(st, 0 if which == 1 else 2, name, slow=slow, a=a, b=b)
    if which == 3 and "outwt" in OPT:
        st(f"s_cmp_eq_u32 s{sL}, 1\ns_cselect_b64 vcc, -1, vcc")
    stamp(st, f"p{which}")
    steps = gemm_steps(ns, lambda s: [((acc + 4 * s, False), W_O, True)], tag, dma, 3, fine=f"p{which}")
    def epi(s):
        e = St()
        a = acc + 4 * s
        p = (vRES + 2 * tile(s)) if which == 1 else 88 + 2 * s
        e(f"""
        v_cvt_pk_bf16_f32 v{p}, v{a}, v{a+1}
        v_cvt_pk_bf16_f32 v{p+1}, v{a+2}, v{a+3}
        s_add_u32 s47, s26, {tile(s)}
        s_lshl_b32 s47, s47, 14
        """)
        if which == 1:
            e(f"s_add_u32 s47, s47, s{sX1}")
            if s == 0: e(f"s_mov_b64 vcc, s[{sSLOWB}:{sSLOWB+1}]")
            dstore(e, f"buffer_store_dwordx2 {vr(p,2)}, v{vActA}, s[8:11], s47 offen", vm=("h3" if s == 0 else None))
            if s == 0: e(f"s_mov_b64 vcc, s[{sSLOWA}:{sSLOWA+1}]")
        else:
            e("s_add_u32 s47, s47, s46")
            dstore(e, f"buffer_store_dwordx2 {vr(p,2)}, v{vActA}, s[{SRD_OUT}:{SRD_OUT+3}], s47 offen")
        return e
    def halo_flag():
        e = St()
        e.wv("h3")
        e(f"""
        s_lshl_b32 s47, s20, 8
        s_lshl_b32 s28, s21, 5
        s_add_u32 s47, s47, s28
        s_lshl_b32 s28, s22, 3
        s_add_u32 s47, s47, s28
        s_lshl_b32 s28, s{sL}, 13
        s_add_u32 s47, s47, s28
        s_add_u32 s47, s47, {HALOF}
        v_mov_b32 v{vFLA}, 0
        v_mov_b32 v{vFLO}, s{sTLO}
        v_mov_b32 v{vFLO+1}, s{sTHI}
        """)
        k = len(OUTLINE)
        text = f"buffer_store_dwordx2 v[{vFLO}:{vFLO+1}], v{vFLA}, s[8:11], s47 offen"
        if FAST:
            e.it.append(("grp", [f"s_mov_b64 vcc, s[{sSLOWB}:{sSLOWB+1}]", "s_mov_b64 exec, 1", f"s_cbranch_vccnz L_slow_{k}", text, f"L_back_{k}:",
                                 "s_mov_b64 exec, -1", f"s_mov_b64 vcc, s[{sSLOWA}:{sSLOWA+1}]"], None, None))
            OUTLINE.append(text + " sc1")
        else:
            e.it.append(("grp", ["s_mov_b64 exec, 1", text + " sc1", "s_mov_b64 exec, -1"], None, None))
        return e
    st.ext(steps[0]); st.ext(steps[1])
    pb = []
    for s in range(ns - 1):
        pb += prog(16 * (s + 1) + 3, epi(s))
    st.ext(strip_marks(weave2(steps[2:], [pb], per=2)))
    st.ext(epi(ns - 1))
    stamp(st, f"p{which}")

def p2_consts_a(st):
    vMo, vMp, vMp0 = 100, 104, 108
    st(f"v_mov_b32 v{vTMP+2}, {f32(-1.0e30)}")
    for r in range(4):
        st(f"""
        v_lshl_add_u32 v{vTMP}, v{vG}, 2, {r}
        v_sub_u32 v{vTMP}, v{vT}, v{vTMP}
        v_and_b32 v{vTMP+1}, 0x80000001, v{vTMP}
        v_cmp_eq_u32 s[28:29], 0, v{vTMP+1}
        v_cndmask_b32_e64 v{vMo+r}, v{vTMP+2}, 0, s[28:29]
        v_cmp_gt_i32 s[38:39], -1, v{vTMP}
        v_and_b32 v{vTMP+1}, 1, v{vTMP}
        v_cmp_eq_u32 s[28:29], 0, v{vTMP+1}
        s_and_b64 s[28:29], s[28:29], s[38:39]
        v_cndmask_b32_e64 v{vMp+r}, v{vTMP+2}, 0, s[28:29]
        """)
    st("s_cmp_eq_u32 s20, 0\ns_cselect_b64 s[28:29], -1, 0")
    for r in range(4): st(f"v_cndmask_b32_e64 v{vMp0+r}, v{vMp+r}, v{vTMP+2}, s[28:29]")
    colsum(st, 116, W_K2, True)

def phase_p2(st, name):
    ns = 5
    SBASE = ns * 16384
    Wq, Wk, Wv = W_Q2, W_K2, W_V2
    vActA = 96
    vMo, vMp, vMp0 = 100, 104, 108
    vCSq, vCSk, vCSv = 112, 116, 120
    def tile_of_slot(e, s):
        if s == 0: e("s_max_i32 s23, s26, 0")
        else: e(f"s_add_u32 s23, s26, {s}")
    dma = []
    def a(st):
        st("s_lshl_b32 s26, s20, 2\ns_sub_u32 s26, s26, 1")
        st(f"v_mov_b32 v{vActA}, v99")
        xa_setup(st, 5, 0)
        stats_setup(st, SBASE)
        colsum(st, vCSv, Wv, False)
        dma.extend(dma_slots(st, ns, 0, f"s{sX1}", tile_of_slot, "x2"))
    stamp(st, "p2")
    sync_wait(st, 1, name, halo=True, slow=sSLOWA, a=a)
    stamp(st, "p2")
    wob = w_loads(W_O, T_WOB, "wob")
    accq, acck, accv = 64, 68, 72
    def A(base, s): return base + 12 * (s & 1)
    vSG, vSS = 88, 92
    def chains(s):
        c = []
        if s > 0: c.append(((A(accq, s), True), Wq, True))
        c.append(((A(acck, s), True), Wk, True))
        c.append(((A(accv, s), True), Wv, False))
        return c
    steps = gemm_steps(ns, chains, "x2", dma, 2, stats=lambda s: (vSG, vSS), fine="p2")
    for jj in range(16): steps[2 + 16 * 4 + jj].ext(wob[jj])
    last = steps[2 + 16 * 4 + 8]
    last.it.append(("mark", "bar4", None, None)); last("s_barrier")
    vR, vN = 124, 125
    vRq, vNq = 128, 129
    vR4, vN4 = 132, 136
    pq, pk, pv = 140, 142, 148
    tmp = 56
    S, P, MX, T2, PO = 158, 132, 97, 98, 146
    O, L = S, S + 4
    def statsA(s):
        b = 16 * s
        p = []
        e = St(); stats_extract(e, s, vSG, vSS, vTMP, f"sw{s}")
        p += prog(b + 5, e)
        e = St(); e.wl(f"sw{s}")
        p += prog(b + 9, e); p.append((b + 9, ("before", f"bar{s}", None, None)))
        e = St(); stats_read(e, s, vTMP, f"sr{s}"); p += prog(b + 9, e)
        e = St(); e.wl(f"sr{s}")
        R, N = vR + 2 * (s & 1), vN + 2 * (s & 1)
        for x in stats_math(vTMP, R, N): e(x)
        e.i(f"ds_write_b32 v{vSTA}, v{R}")
        e.i(f"ds_write_b32 v{vSTA}, v{N} offset:64", lds=f"pw{s}")
        p += prog(b + 12, e)
        p.append((b + 12, ("before", f"sl{s}", None, None)))
        return p
    def epi(s):
        e = St()
        R, N = vR + 2 * (s & 1), vN + 2 * (s & 1)
        e.wl(f"pw{s}")
        e.i(f"ds_read_b128 {vr(vR4,4)}, v{vPRR}")
        e.i(f"ds_read_b128 {vr(vN4,4)}, v{vPRR} offset:64", lds=f"pr{s}")
        ln_epi(e, A(acck, s), [R]*4, [N]*4, [vCSk+r for r in range(4)], pk + 2 * (s & 1), tmp)
        if s > 0:
            e(f"v_mul_f32 v{vRq}, {f32(CQ)}, v{R}\nv_mul_f32 v{vNq}, {f32(CQ)}, v{N}")
            ln_epi(e, A(accq, s), [vRq]*4, [vNq]*4, [vCSq+r for r in range(4)], pq, tmp)
            kp = pk + 2 * ((s - 1) & 1); ko = pk + 2 * (s & 1)
            mp = vMp0 if s == 1 else vMp
            e(f"v_mfma_f32_16x16x16_bf16 {vr(S,4)}, {vr(kp,2)}, {vr(pq,2)}, {vr(mp,4)}")
            e(f"v_mfma_f32_16x16x16_bf16 {vr(S+4,4)}, {vr(ko,2)}, {vr(pq,2)}, {vr(vMo,4)}")
        e.wl(f"pr{s}")
        ln_epi(e, A(accv, s), [vR4+r for r in range(4)], [vN4+r for r in range(4)], [vCSv]*4, pv + 2 * s, tmp)
        if s == 0: return e
        e(f"""
        v_max3_f32 v{MX}, v{S}, v{S+1}, v{S+2}
        v_max3_f32 v{T2}, v{S+3}, v{S+4}, v{S+5}
        v_max3_f32 v{MX}, v{MX}, v{S+6}, v{S+7}
        v_max_f32 v{MX}, v{MX}, v{T2}
        v_mov_b32 v{T2}, v{MX}
        v_permlane32_swap_b32 v{T2}, v{MX}
        v_max_f32 v{MX}, v{MX}, v{T2}
        v_mov_b32 v{T2}, v{MX}
        v_permlane16_swap_b32 v{T2}, v{MX}
        v_max_f32 v{MX}, v{MX}, v{T2}
        """)
        for r in range(8): e(f"v_sub_f32 v{S+r}, v{S+r}, v{MX}")
        for r in range(8): e(f"v_exp_f32 v{S+r}, v{S+r}")
        for r in range(4): e(f"v_cvt_pk_bf16_f32 v{P+r}, v{S+2*r}, v{S+2*r+1}")
        e(f"v_mfma_f32_16x16x32_bf16 {vr(O,4)}, {vr(pv+2*(s-1),4)}, {vr(P,4)}, 0")
        e(f"v_mfma_f32_16x16x32_bf16 {vr(L,4)}, {vr(vONES,4)}, {vr(P,4)}, 0")
        e.it.append(("gap", 4, None, None))
        e(f"v_rcp_f32 v{L}, v{L}")
        e(f"s_add_u32 s47, s26, {s}\ns_lshl_b32 s47, s47, 14\ns_add_u32 s47, s47, s{sOB}")
        for r in range(4): e(f"v_mul_f32 v{O+r}, v{O+r}, v{L}")
        e(f"v_cvt_pk_bf16_f32 v{PO}, v{O}, v{O+1}\nv_cvt_pk_bf16_f32 v{PO+1}, v{O+2}, v{O+3}")
        dstore(e, f"buffer_store_dwordx2 {vr(PO,2)}, v{vActA}, s[8:11], s47 offen")
        return e
    st.ext(steps[0]); st.ext(steps[1])
    main = steps[2:]
    for s in range(ns - 1):
        main[16 * (s + 1)].it.insert(0, ("mark", f"sl{s}", None, None))
    pa, pb = [], []
    for s in range(ns): pa += statsA(s)
    for s in range(ns - 1):
        pb += prog(16 * (s + 1) + 1, epi(s)); pb.append((16 * (s + 1) + 1, ("before", f"ep{s}", None, None)))
    for s in range(ns - 2):
        main[16 * (s + 2)].it.insert(0, ("mark", f"ep{s}", None, None))
    st.ext(strip_marks(weave2(main, [pa, pb], per=2)))
    st.ext(strip_marks(epi(ns - 1)))

def layer_scalars(st):
    st(f"""
    s_mul_i32 s23, s{sL}, {KVS}
    s_add_u32 s{sKF}, s23, {KF0}
    s_add_u32 s{sVF}, s23, {VF0}
    s_mul_i32 s23, s{sL}, {BS}
    s_add_u32 s{sXIN}, s23, {B0 + XIN}
    s_add_u32 s{sOA}, s23, {B0 + OA}
    s_add_u32 s{sX1}, s23, {B0 + X1}
    s_add_u32 s{sOB}, s23, {B0 + OB}
    s_lshl_b32 s23, s{sL}, 14
    s_add_u32 s{sFLAG}, s23, {FLAGS}
    """)

def q_dma(st):
    st("s_lshl_b32 s46, s20, 2")
    return dma_slots(st, 4, XB_Q, f"s{sXIN}", lambda e, s: e(f"s_add_u32 s23, s46, {s}"), "xq")

LDS_WQ = 0
def gen_init(st, name):
    pWK, pWV, pWQ, pWOA, pWQKV, pWOB = 40, 42, 56, 46, 60, 62
    prologue(st, name, """
    s_load_dwordx2 s[6:7], s[0:1], 0
    s_load_dwordx4 s[40:43], s[0:1], 16
    s_load_dwordx2 s[56:57], s[0:1], 8
    s_load_dwordx2 s[46:47], s[0:1], 32
    s_load_dwordx4 s[60:63], s[0:1], 48
    """)
    st(f"s_add_u32 s28, s4, {EPOCH}\ns_addc_u32 s29, s5, 0\ns_load_dwordx2 s[{sEP}:{sEP+1}], s[28:29], 0")
    srd_io(st, 6, 2048 * 1024)
    st(f"s_mov_b32 s{sL}, 0")
    def xrows(k):
        st(f"""
        s_lshr_b32 s23, s21, 1
        s_add_u32 s23, s23, {k}
        s_and_b32 s23, s23, 3
        s_lshl_b32 s23, s23, 2
        s_add_u32 s23, s23, s22
        s_lshl_b32 s23, s23, 2
        s_mul_i32 s24, s23, {XROW}
        s_add_u32 m0, s24, {XB_Q}
        s_lshl_b32 s24, s20, 6
        s_add_u32 s23, s23, s24
        s_lshl_b32 s23, s23, 10
        """)
        for r in range(4):
            if r: st(f"s_add_u32 m0, m0, {XROW}\ns_add_u32 s23, s23, 1024")
            st.i(f"buffer_load_dwordx4 v{vL16}, s[12:15], s23 offen lds", vm=f"xr{k}_{r}")
    if "pf" in OPT:
        st(f"""
        v_lshlrev_b32 v14, 7, v0
        s_lshl_b32 s23, s20, 16
        s_lshl_b32 s24, s21, 13
        s_add_u32 s23, s23, s24
        v_add_u32 v15, s23, v14
        s_lshr_b32 s24, s2, 3
        s_lshl_b32 s24, s24, 14
        s_sub_u32 s23, s22, 1
        s_and_b32 s23, s23, 1
        s_lshl_b32 s23, s23, 13
        s_add_u32 s24, s24, s23
        v_add_u32 v14, s24, v14
        s_cmp_eq_u32 s22, 0
        s_cselect_b32 s24, s6, s{pWQ}
        s_cselect_b32 s25, s7, s{pWQ+1}
        s_cselect_b64 vcc, -1, 0
        v_cndmask_b32_e64 v14, v14, v15, vcc
        s_cmp_eq_u32 s22, 3
        s_cselect_b64 exec, 0, -1
        """)
        st.i("global_load_dword v12, v14, s[24:25]")
        st("s_mov_b64 exec, -1")
    xrows(0)
    lane_consts(st)
    vKap, vCol = 24, 25
    st(f"""
    v_lshrrev_b32 v{vKap}, 2, v{vT}
    v_lshlrev_b32 v{vKap}, 3, v{vKap}
    v_and_b32 v{vCol}, 3, v{vT}
    v_add_u32 v{vKap}, v{vKap}, v{vCol}
    v_lshrrev_b32 v{vCol}, 1, v{vG}
    v_lshl_add_u32 v{vKap}, v{vCol}, 2, v{vKap}
    v_and_b32 v{vCol}, 1, v{vG}
    v_lshlrev_b32 v{vCol}, 4, v{vCol}
    s_bitcmp1_b32 s21, 0
    s_cselect_b32 s28, s{pWV}, s{pWK}
    s_cselect_b32 s29, s{pWV+1}, s{pWK+1}
    v_lshl_add_u32 v142, v{vKap}, 5, v{vCol}
    s_lshl_b32 s23, s22, 12
    v_add_u32 v142, s23, v142
    """)
    for q in range(4):
        st.i(f"global_load_dwordx4 {ar(A_WKV+4*q,4)}, v142, s[28:29] offset:{q*1024}", vm=f"rw{q}")
    stamp(st, "i")
    for k in range(1, 4): xrows(k)
    st(f"""
    v_lshrrev_b32 v26, 3, v0
    v_and_b32 v27, 7, v0
    v_and_b32 v28, 2, v26
    v_xor_b32 v27, v27, v28
    v_lshlrev_b32 v27, 4, v27
    v_lshl_add_u32 v26, v26, 10, v27
    s_lshl_b32 s23, s21, 7
    s_lshl_b32 s24, s22, 17
    s_add_u32 s23, s23, s24
    v_add_u32 v26, s23, v26
    v_xor_b32 v27, 64, v26
    s_lshl_b32 s24, s22, 14
    s_add_u32 m0, s24, {LDS_WQ}
    """)
    for b in range(4):
        for u in range(4):
            if b or u: st("s_add_u32 m0, m0, 1024")
            src = 26 if u < 2 else 27
            st(f"v_add_u32 v28, {(32*b + 8*u)*1024}, v{src}")
            st.i(f"global_load_lds_dwordx4 v28, s[{pWQ}:{pWQ+1}]", vm=f"wb{b}_{u}")
    stamp(st, "i")
    st("s_getpc_b64 s[28:29]")
    st.label("L_pc_anchor")
    st(f"""
    s_add_u32 s28, s28, {name}-L_pc_anchor
    s_addc_u32 s29, s29, -1
    s_lshr_b32 s27, s2, 3
    s_lshl_b32 s27, s27, 2
    s_add_u32 s27, s27, s22
    s_lshl_b32 s27, s27, 9
    v_lshlrev_b32 v14, 6, v0
    v_add_u32 v14, s27, v14
    v_min_u32 v14, L_code_end-{name}-4, v14
    s_mov_b64 exec, 0xff
    """)
    if "nocode" not in OPT: st.i("global_load_dword v13, v14, s[28:29]")
    st("s_mov_b64 exec, -1")
    if "nowarm" not in OPT:
        st(f"""
        s_lshl_b32 s27, s20, 7
        s_lshl_b32 s28, s21, 3
        s_add_u32 s27, s27, s28
        s_add_u32 s27, s27, {FLAGS}
        v_and_b32 v148, 7, v0
        v_lshlrev_b32 v148, 12, v148
        v_add_u32 v148, s27, v148
        s_lshl_b32 s28, s20, 3
        s_add_u32 s28, s28, s21
        s_lshl_b32 s28, s28, 3
        s_add_u32 s28, s28, {KVFL - 8*0x800}
        v_min_u32 v149, 40, v0
        v_lshlrev_b32 v149, 11, v149
        v_add_u32 v149, s28, v149
        v_cmp_gt_u32 s[38:39], 8, v0
        v_cndmask_b32_e64 v148, v149, v148, s[38:39]
        s_lshl_b32 s28, s20, 7
        s_lshl_b32 s27, s21, 3
        s_add_u32 s28, s28, s27
        s_add_u32 s28, s28, {HALOF - 41*0x2000}
        v_lshl_add_u32 v149, v0, 13, s28
        v_subrev_u32 v147, 41, v0
        v_cmp_gt_u32 s[38:39], 2, v147
        v_cndmask_b32_e64 v148, v148, v149, s[38:39]
        """)
        w0_exec(st)
        st.i("buffer_load_dword v15, v148, s[8:11], 0 offen")
        st("s_mov_b64 exec, -1")
    const_masks(st)
    first, xloads, setup, cs, main = phase_kv(st, name + "_i", 0, "lds", KVB)
    first(st)
    emit_selectors(st, vB0, vB1, 16)
    setup(st)
    st(f"""
    s_waitcnt lgkmcnt(0)
    s_mul_i32 s{sTLO}, s{sEP}, 0x9e3779b1
    s_xor_b32 s{sTLO}, s{sTLO}, s{sEP+1}
    s_add_u32 s{sTLO}, s{sTLO}, 0x7f4a7c15
    s_mul_i32 s{sTHI}, s{sEP}, 0x85ebca6b
    s_add_u32 s{sTHI}, s{sTHI}, s{sEP+1}
    s_xor_b32 s{sTHI}, s{sTHI}, 0x5bd1e995
    """)
    stamp(st, "i")
    for q in range(4):
        st.wv(f"rw{q}")
        transpose(st, ar(A_WKV + 4 * q, 4), W_KV[1] + 4 * q)
    cs(st)
    st("s_barrier")
    stamp(st); stamp(st, "i")
    xloads(st)
    main(st)
    stamp(st); stamp(st, "i")
    st(f"s_lshl_b32 s58, s2, 2\ns_add_u32 s58, s58, s22")
    for i in range(3):
        st(f"""
        s_add_u32 s27, s58, {1024*i}
        s_min_u32 s27, s27, 2559
        s_add_u32 s27, s27, 512
        s_lshr_b32 s28, s27, 4
        s_and_b32 s29, s27, 15
        s_mov_b32 s24, s{pWOA}
        s_mov_b32 s25, s{pWOA+1}
        s_sub_u32 s45, s28, {T_WOA}
        s_mov_b32 s26, 1024
        """)
        for T0, reg, stride in ((T_WOB, pWOB, 1024), (T_WQKV, pWQKV, 3072)):
            st(f"""
            s_sub_u32 s23, s28, {T0}
            s_cmp_ge_u32 s28, {T0}
            s_cselect_b32 s24, s{reg}, s24
            s_cselect_b32 s25, s{reg+1}, s25
            s_cselect_b32 s45, s23, s45
            s_cselect_b32 s26, {stride}, s26
            """)
        st(f"""
        s_lshl_b32 s29, s29, 5
        s_lshl_b32 s45, s45, 5
        v_add_u32 v148, s29, v{vKap}
        v_mul_lo_u32 v148, v148, s26
        v_add_u32 v148, v148, v{vCol}
        v_add_u32 v148, s45, v148
        v_mov_b32 v{137+2*i}, s25
        v_add_co_u32 v{136+2*i}, vcc, s24, v148
        v_addc_co_u32 v{137+2*i}, vcc, 0, v{137+2*i}, vcc
        """)
    layer_scalars(st)
    wave_scalars(st)
    st.wv("kvst")
    wg_flag_store(st, f"{KVFL}", replicas=8)
    xcc_publish(st)
    st("s_load_dwordx2 s[6:7], s[0:1], 64\ns_barrier")
    stamp(st, "i")
    st(f"""
    v_and_b32 v26, 2, v{vKap}
    v_lshrrev_b32 v27, 2, v{vKap}
    v_and_b32 v27, 4, v27
    v_or_b32 v26, v26, v27
    v_lshrrev_b32 v27, 4, v{vCol}
    s_lshl_b32 s23, s22, 1
    v_add_u32 v27, s23, v27
    v_xor_b32 v26, v26, v27
    v_lshlrev_b32 v26, 4, v26
    v_lshl_add_u32 v26, v{vKap}, 7, v26
    """)
    for jg in range(4):
        st(f"v_add_u32 v{28+jg}, s{sROT+jg}, v26")
        st(f"v_mov_b32 v27, s{sROT+jg}\nv_lshl_add_u32 v{28+jg}, v27, 2, v26")
    RW = 32
    def rdw(jj): st.i(f"ds_read_b128 {vr(RW+4*(jj%8),4)}, v{28+(jj>>2)} offset:{LDS_WQ + (jj&3)*4096}", lds=f"wr{jj}")
    for jj in range(8): rdw(jj)
    def mm(j):
        d = 64 + 8 * (j & 1)
        st.wl(f"wr{j}")
        st(f"v_mfma_f32_16x16x32_bf16 {vr(d,4)}, {vr(RW+4*(j%8),4)}, {vr(vB0,4)}, 0")
        st(f"v_mfma_f32_16x16x32_bf16 {vr(d+4,4)}, {vr(RW+4*(j%8),4)}, {vr(vB1,4)}, 0")
        if j + 8 < 16: rdw(j + 8)
    def cv(j):
        d = 64 + 8 * (j & 1); o = W_QA[1] + 4 * j
        for q in range(4): st(f"v_cvt_pk_bf16_f32 v{o+q}, v{d+2*q}, v{d+2*q+1}")
    mm(0)
    for j in range(16):
        if j + 1 < 16: mm(j + 1)
        cv(j)
    st(f"""
    v_mul_u32_u24 v26, {XROW}, v{vT}
    v_lshl_add_u32 v26, v{vG}, 3, v26
    s_lshl_b32 s23, s21, 7
    s_lshl_b32 s24, s22, 5
    s_add_u32 s23, s23, s24
    s_add_u32 s23, s23, {XB_Q}
    v_add_u32 v26, s23, v26
    """)
    for sl in range(4): st.i(f"ds_read_b64 {vr(vRES+2*sl,2)}, v26 offset:{sl*16*XROW}")
    st(f"v_mul_u32_u24 v26, {XROW}, v{vT}\nv_lshl_add_u32 v26, v{vG}, 4, v26")
    for jg in range(4):
        st(f"s_lshr_b32 s23, s{sROT+jg}, 4\ns_add_u32 s23, s23, {XB_Q}\nv_add_u32 v{vXA+jg}, s23, v26")
    stats_setup(st, SB_Q0)
    st("s_waitcnt lgkmcnt(0)")
    srd_io(st, 6, 2048 * 1024)
    stamp(st, "i")
    def tail(e):
        for i in range(3):
            e.i(f"global_load_dwordx4 {ar(A_PREP+4*i,4)}, v[{136+2*i}:{137+2*i}], off")
    q_gemm(st, True, tailprog=tail)
    stamp(st, "i")

def gen_persist(name):
    st = St()
    NST[0] = 0
    stamp(st)
    if INSTR: st("s_memrealtime s[96:97]")
    if DBG or SPINRT: st("s_memrealtime s[96:97]\ns_memtime s[64:65]")
    gen_init(st, name)
    st("s_branch L_common")
    kv1 = phase_kv(st, name + "_4", 1, "act", KVB, sregs=(142, 143, 158, 159))
    def pre_kv(e):
        kv1[0](e); kv1[2](e); kv1[3](e)
    st.label("L_layer1")
    sync_publish(st, 3, name, sSLOWA)
    first, xloads, setup, cs, main = kv1
    sync_wait(st, 3, name + "_4", a=q_setup)
    st(f"s_mov_b32 s{sL}, 1")
    layer_scalars(st)
    xloads(st)
    dma = q_dma(st)
    for e in dma[0]: st.ext(e)
    st("s_barrier")
    for e in dma[1]: st.ext(e)
    main(st)
    q_gemm(st, False, dma)
    st.label("L_common")
    if DBG: st(f"s_cmp_lg_u32 s{sL}, 0\ns_cbranch_scc1 L_dbg_a\ns_memrealtime s[66:67]\ns_branch L_dbg_b\nL_dbg_a:\ns_memrealtime s[68:69]\nL_dbg_b:")
    q_tail(st, name)
    phase_att(st, name)
    stamp(st)
    sync_publish(st, 0, name, sSLOWA)
    phase_p13(st, name + "_1", 1)
    stamp(st)
    sync_publish(st, 1, name, sSLOWA)
    phase_p2(st, name + "_2")
    stamp(st)
    sync_publish(st, 2, name, sSLOWA)
    phase_p13(st, name + "_3", 3, kv1)
    stamp(st)
    if INSTR:
        st(f"s_cmp_lg_u32 s{sL}, 0\ns_cbranch_scc1 L_fin")
        stamp_dump(st, 0)
        st("s_branch L_layer1")
    else:
        st(f"s_cmp_eq_u32 s{sL}, 0\ns_cbranch_scc1 L_layer1")
    st.label("L_fin")
    st(f"""
    s_or_b32 s23, s2, s22
    s_cmp_lg_u32 s23, 0
    s_cbranch_scc1 L_noep
    s_add_u32 s28, s{sEP}, 1
    s_addc_u32 s29, s{sEP+1}, 0
    v_mov_b32 v2, s28
    v_mov_b32 v3, s29
    v_mov_b32 v4, 0
    s_mov_b32 s23, {EPOCH}
    s_mov_b64 exec, 1
    buffer_store_dwordx2 v[2:3], v4, s[8:11], s23 offen
    s_mov_b64 exec, -1
    """)
    st.label("L_noep")
    st("s_waitcnt vmcnt(0)")
    if SPINRT:
        if "spinwb" in OPT: st("s_barrier\nbuffer_wbl2 sc1\ns_waitcnt vmcnt(0)")
        st.label("L_spinrt")
        st(f"""
        s_memrealtime s[98:99]
        s_waitcnt lgkmcnt(0)
        s_sub_u32 s98, s98, s96
        s_cmp_lt_u32 s98, {SPINRT}
        s_cbranch_scc1 L_spinrt
        """)
    if DBG:
        st(f"""
        s_memrealtime s[98:99]
        s_memtime s[70:71]
        s_load_dwordx2 s[28:29], s[0:1], 72
        s_waitcnt lgkmcnt(0)
        s_cmp_lg_u32 s22, 0
        s_cbranch_scc1 L_nodbg
        s_cmp_ge_u32 s2, 4
        s_cbranch_scc1 L_nodbg
        s_sub_u32 s66, s66, s96
        s_sub_u32 s68, s68, s96
        s_sub_u32 s98, s98, s96
        s_sub_u32 s70, s70, s64
        v_mov_b32 v4, s66
        v_mov_b32 v5, s68
        v_mov_b32 v6, s98
        v_mov_b32 v7, s70
        s_lshl_b32 s23, s2, 4
        v_mov_b32 v8, s23
        s_mov_b64 exec, 1
        global_store_dwordx4 v8, v[4:7], s[28:29]
        s_waitcnt vmcnt(0)
        """)
        st.label("L_nodbg")
    stamp_dump(st, 1)
    return kernel_text(name, st, sgpr=102).replace(f"L_end_{name}:", f"L_code_end:\nL_end_{name}:")

def build(path):
    hdr = open("cdna_kernels/" + NAME + ".s.ref").read().split("; Override launch geometry")[0]
    out = hdr + f"; @launch grid=(256,1,1) block=(256,1,1) lds={MAIN_LDS}\n"
    out += '.amdgcn_target "amdgcn-amd-amdhsa--gfx950"\n'
    out += gen_persist(NAME + "_kernel")
    open(path, "w").write(out)

if __name__ == "__main__":
    build(sys.argv[1] if len(sys.argv) > 1 else "stage6.s")
```
